```python
import torch

def _softmax(x, axis=-1):
    return torch.softmax(x, dim=axis)
def _gelu(x):
    return torch.nn.functional.gelu(x, approximate="tanh")
def _silu(x):
    return torch.nn.functional.silu(x)
def _sigmoid(x):
    return torch.sigmoid(x)
def _layernorm(x, axis=-1, eps=1e-5):
    m = x.mean(dim=axis, keepdim=True)
    v = x.var(dim=axis, keepdim=True, unbiased=False)
    return (x - m) / torch.sqrt(v + eps)
def _scatter_add(tgt, idx, src, axis=0):
    return tgt.clone().index_add_(axis, idx, src)
def _segment_sum(src, seg, n):
    out = torch.zeros((n,) + src.shape[1:], dtype=src.dtype)
    return out.index_add_(0, seg, src)
def _pad(x, pw):
    flat = tuple(v for pair in reversed(pw) for v in pair)
    return torch.nn.functional.pad(x, flat)

kernel_name = 'sequential_preLN__sliding_block__dense_activation_squared_relu__prompt'

def setup_inputs():

    _w = (lambda a: (lambda t: t.to(torch.bfloat16) if t.is_floating_point() else t)(torch.as_tensor(a)))
    def _A_setup():
        B, S, D = 1, 2048, 512
        return {
            "x": _w((lambda *s: torch.randn(*s, dtype=torch.bfloat16) * 0.05)(B, S, D)),
            "wqkv": _w((lambda *s: torch.randn(*s, dtype=torch.bfloat16) * 0.05)(D, 3 * D)),
            "wo": _w((lambda *s: torch.randn(*s, dtype=torch.bfloat16) * 0.05)(D, D)),
        }
    _A_in = _A_setup()

    def _B_setup():
        B, S, D, F = 1, 2048, 512, 1376
        return {
            "x": _w((lambda *s: torch.randn(*s, dtype=torch.bfloat16) * 0.05)(B, S, D)),
            "w1": _w((lambda *s: torch.randn(*s, dtype=torch.bfloat16) * 0.05)(D, F)),
            "b1": _w((lambda *s: torch.randn(*s, dtype=torch.bfloat16) * 0.4)(F)),
            "w2": _w((lambda *s: torch.randn(*s, dtype=torch.bfloat16) * 0.05)(F, D)),
            "b2": _w((lambda *s: torch.randn(*s, dtype=torch.bfloat16) * 1.6)(D)),
        }
    _B_in = _B_setup()

    return {
        "A_x": _A_in["x"],
        "A_wqkv": _A_in["wqkv"],
        "A_wo": _A_in["wo"],
        "B_x": _B_in["x"],
        "B_w1": _B_in["w1"],
        "B_b1": _B_in["b1"],
        "B_w2": _B_in["w2"],
        "B_b2": _B_in["b2"],
    }

def reference(A_x, A_wqkv, A_wo, B_x, B_w1, B_b1, B_w2, B_b2):
    def _A_ref(x, wqkv, wo):
        B, S, D = x.shape
        H = 32; Dh = D // H; W = 256
        qkv = (lambda x, *d: x.permute(*d))((x @ wqkv).reshape(B, S, 3, H, Dh), 2, 0, 3, 1, 4)
        q, k, v = qkv[0], qkv[1], qkv[2]
        scores = torch.einsum("bhqd,bhkd->bhqk", q, k) * (Dh ** -0.5)
        idx = torch.arange(S)
        mask = (idx[:, None] - idx[None, :] >= 0) & (idx[:, None] - idx[None, :] < W)
        scores = torch.where(mask[None, None], scores, -1e9)
        p = _softmax(scores, axis=-1)
        o = torch.einsum("bhqk,bhkd->bhqd", p, v)
        return (lambda x, *d: x.permute(*d))(o, 0, 2, 1, 3).reshape(B, S, D) @ wo

    def _B_ref(x, w1, b1, w2, b2):
        h = torch.einsum("bsd,df->bsf", x, w1) + b1
        zero = torch.zeros_like(h)
        r = torch.where(h > zero, h, zero)
        h = r * r
        out = torch.einsum("bsf,fd->bsd", h, w2) + b2
        return out

    x = A_x
    h = x + _A_ref(_layernorm(x, axis=-1), A_wqkv, A_wo)
    h2 = h + _B_ref(_layernorm(h, axis=-1), B_w1, B_b1, B_w2, B_b2)
    return h2
```

```python
import re

REG_RE = re.compile(r'^(-?)(?:abs\()?([vsa])(?:(\d+)|\[(\d+):(\d+)\])\)?$')


def regs_of(tok):
    tok = tok.strip()
    if tok in ('vcc', 'exec', 'm0', 'scc'):
        return {(tok, 0)}
    if tok in ('vcc_lo', 'vcc_hi'):
        return {('vcc', 0)}
    if tok in ('exec_lo', 'exec_hi'):
        return {('exec', 0)}
    m = REG_RE.match(tok)
    if not m:
        return set()
    k = m.group(2)
    if m.group(3) is not None:
        return {(k, int(m.group(3)))}
    return {(k, i) for i in range(int(m.group(4)), int(m.group(5)) + 1)}


TRANS = ('v_exp_', 'v_log_', 'v_rcp_', 'v_rsq_', 'v_sqrt_', 'v_sin_', 'v_cos_')


class Ins:
    __slots__ = ('text', 'op', 'ops', 'kind', 'wr', 'rd', 'srcc', 'ab', 'label', 'target', 'data', 'lds', 'comment')

    def __init__(self, text):
        self.text = text
        self.label = None
        self.target = None
        self.wr = set()
        self.rd = set()
        self.srcc = set()
        self.ab = set()
        self.data = set()
        self.lds = False
        t = text.split(';')[0].strip()
        if t.endswith(':'):
            self.label = t[:-1]
            self.kind = 'label'
            self.op = ''
            return
        if t.startswith('.') or not t:
            self.kind = 'dir'
            self.op = ''
            return
        parts = t.split(None, 1)
        op = parts[0]
        self.op = op
        rest = parts[1] if len(parts) > 1 else ''
        ops = [o.strip() for o in rest.split(',')] if rest else []
        mods = ''
        if ops:
            lastp = ops[-1].split(None, 1)
            ops[-1] = lastp[0] if lastp else ''
            mods = lastp[1] if len(lastp) > 1 else ''
        self.ops = ops
        R = regs_of
        if op.startswith('v_mfma'):
            self.kind = 'mfma'
            self.wr = R(ops[0])
            self.ab = R(ops[1]) | R(ops[2])
            self.srcc = R(ops[3])
            self.rd = self.ab | self.srcc
        elif op.startswith('v_'):
            self.kind = 'valu'
            if op.startswith('v_cmp'):
                self.wr = R(ops[0])
                for o in ops[1:]:
                    self.rd |= R(o)
            elif op.startswith('v_permlane') and 'swap' in op:
                self.wr = R(ops[0]) | R(ops[1])
                self.rd = set(self.wr)
            else:
                self.wr = R(ops[0])
                for o in ops[1:]:
                    self.rd |= R(o)
                if op.startswith(('v_dot2c', 'v_fmac', 'v_writelane')):
                    self.rd |= self.wr
                if op.startswith('v_cndmask') and len(ops) == 3:
                    self.rd |= {('vcc', 0)}
                if 'dpp' in op or 'row_' in mods or 'quad_perm' in mods:
                    self.rd |= self.wr
        elif op.startswith('ds_'):
            self.kind = 'ds'
            if op.startswith(('ds_read', 'ds_bpermute', 'ds_permute', 'ds_swizzle')):
                self.wr = R(ops[0])
                for o in ops[1:]:
                    self.rd |= R(o)
            else:
                for o in ops:
                    self.rd |= R(o)
        elif op.startswith(('buffer_', 'global_')):
            self.kind = 'vmem'
            allm = ' ' + mods + ' '
            if op in ('buffer_inv', 'buffer_wbl2'):
                return
            if ' lds ' in allm or 'load_lds' in op:
                self.lds = True
                for o in ops:
                    self.rd |= R(o)
                self.rd |= {('m0', 0)}
            elif '_load' in op:
                self.wr = R(ops[0])
                for o in ops[1:]:
                    self.rd |= R(o)
            elif op.startswith('buffer_store'):
                for o in ops:
                    self.rd |= R(o)
                if 'x4' in op or 'x3' in op:
                    self.data = R(ops[0])
            elif op.startswith('global_store'):
                for o in ops:
                    self.rd |= R(o)
                if 'x4' in op or 'x3' in op:
                    self.data = R(ops[1])
            elif 'atomic' in op:
                for o in ops:
                    self.rd |= R(o)
                if ' sc0 ' in allm:
                    self.wr = R(ops[0])
            else:
                raise ValueError(text)
        elif op.startswith('s_'):
            self.kind = 'salu'
            if op in ('s_branch',) or op.startswith('s_cbranch'):
                self.kind = 'branch'
                self.target = ops[0]
            elif op.startswith(('s_cmp', 's_waitcnt', 's_nop', 's_barrier', 's_endpgm', 's_sleep', 's_setprio', 's_bitcmp')):
                for o in ops:
                    self.rd |= R(o)
            else:
                if ops:
                    self.wr = R(ops[0])
                for o in ops[1:]:
                    self.rd |= R(o)
                if 'saveexec' in op:
                    self.wr |= {('exec', 0)}
        else:
            raise ValueError('unknown instruction: ' + text)

    def states(self):
        if self.kind in ('label', 'dir'):
            return 0
        if self.op == 's_nop':
            return int(self.ops[0], 0) + 1
        return 1


def is_trans(i):
    return i.kind == 'valu' and i.op.startswith(TRANS)


def is_dot(i):
    return i.kind == 'valu' and i.op.startswith('v_dot')


def vregs(s):
    return {r for r in s if r[0] in ('v', 'a')}


def sregs(s):
    return {r for r in s if r[0] in ('s', 'vcc', 'exec')}


def mfma_passes(i):
    return 8 if '32x32x16' in i.op else 4


def need(p, c):
    n = 0
    if p.kind == 'valu':
        pw = vregs(p.wr)
        if c.kind == 'mfma' and pw & c.rd:
            n = max(n, 2)
        if c.kind == 'valu':
            if is_trans(p) and not is_trans(c) and pw & c.rd:
                n = max(n, 1)
            if c.op.startswith(('v_readlane', 'v_readfirstlane')) and pw & c.rd:
                n = max(n, 1)
            if c.op.startswith('v_permlane') and pw & c.rd:
                n = max(n, 2)
            if ('dpp' in c.op or 'row_' in c.text) and pw & c.rd:
                n = max(n, 2)
        if is_dot(p):
            if pw & (c.rd | c.wr):
                if c.kind == 'valu' and c.op == p.op and not (pw & (regs_of(c.ops[1]) | regs_of(c.ops[2]))):
                    pass
                elif c.kind in ('valu', 'mfma', 'ds', 'vmem'):
                    n = max(n, 3)
        ps = sregs(p.wr)
        if ps:
            if c.kind in ('valu', 'mfma') and ps & c.rd:
                n = max(n, 4 if c.op.startswith(('v_readlane', 'v_writelane')) else 2)
            if c.kind == 'vmem' and ps & c.rd:
                n = max(n, 5)
            if ('exec', 0) in ps and c.kind in ('mfma', 'valu'):
                n = max(n, 5)
    if p.kind == 'mfma':
        P = mfma_passes(p)
        full = {8: 12, 4: 8}[P]
        part = {8: 10, 4: 6}[P]
        war = {8: 7, 4: 3}[P]
        if c.kind == 'mfma':
            if p.wr & c.ab:
                n = max(n, full)
            if p.wr & c.srcc:
                if not (p.wr == c.srcc and mfma_passes(c) == P):
                    n = max(n, part)
            elif p.wr & c.wr:
                n = max(n, part)
        elif c.kind in ('valu', 'ds', 'vmem'):
            if p.wr & (c.rd | c.wr):
                n = max(n, full)
            if p.srcc & c.wr:
                n = max(n, war)
    if p.kind == 'salu' and ('m0', 0) in p.wr and c.kind == 'vmem' and c.lds:
        n = max(n, 1)
    if p.kind == 'vmem' and p.data and (p.data & c.wr):
        n = max(n, 2)
    return n


MAXD = 13


class Prog:
    def __init__(self):
        self.ins = []
        self.uid = 0

    def __call__(self, text):
        for line in text.strip('\n').split('\n'):
            line = line.strip()
            if not line or line.startswith(';'):
                continue
            self.ins.append(Ins(line))

    def label(self, name):
        self.ins.append(Ins(name + ':'))

    def newlabel(self, base):
        self.uid += 1
        return f'{base}_{self.uid}'

    def fix_hazards(self):
        changed = True
        rounds = 0
        while changed:
            changed = False
            rounds += 1
            assert rounds < 50
            ins = self.ins
            labels = {x.label: k for k, x in enumerate(ins) if x.label}
            srcs = {}
            for k, x in enumerate(ins):
                if x.kind == 'branch':
                    srcs.setdefault(labels[x.target], []).append(k)

            def preds(k, dist, seen):
                out = []
                stack = [(k, dist)]
                best = {}
                while stack:
                    q, d = stack.pop()
                    while q > 0 and d < MAXD:
                        if ins[q].label and q in srcs:
                            for b in srcs[q]:
                                key = b
                                if best.get(('b', key), 99) > d:
                                    best[('b', key)] = d
                                    out.append((b, d))
                                    stack.append((b, d + 1))
                        q -= 1
                        x = ins[q]
                        if x.op in ('s_branch', 's_endpgm'):
                            break
                        if x.kind in ('label', 'dir'):
                            continue
                        if best.get(q, 99) <= d:
                            break
                        best[q] = d
                        out.append((q, d))
                        d += x.states()
                return out

            k = 0
            while k < len(ins):
                c = ins[k]
                if c.kind in ('label', 'dir') or c.op in ('s_nop', 's_waitcnt', 's_barrier'):
                    k += 1
                    continue
                req = 0
                for q, d in preds(k, 0, None):
                    n = need(ins[q], c)
                    if n > d:
                        req = max(req, n - d)
                if req:
                    ins.insert(k, Ins(f's_nop {req - 1}'))
                    changed = True
                    labels = {x.label: kk for kk, x in enumerate(ins) if x.label}
                    srcs = {}
                    for kk, x in enumerate(ins):
                        if x.kind == 'branch':
                            srcs.setdefault(labels[x.target], []).append(kk)
                    k += 1
                k += 1

    def text(self):
        out = []
        for x in self.ins:
            out.append(x.text if x.kind == 'label' else '    ' + x.text)
        return '\n'.join(out) + '\n'

    def maxreg(self, kind):
        m = -1
        for x in self.ins:
            for r in x.rd | x.wr:
                if r[0] == kind:
                    m = max(m, r[1])
        return m


class Cnt:
    def __init__(self, p, name, maxv):
        self.p = p
        self.name = name
        self.maxv = maxv
        self.q = []

    def issue(self, tag=None):
        self.q.append(tag)

    def wait(self, tag):
        tags = tag if isinstance(tag, (set, list, tuple)) else [tag]
        idx = -1
        for k, t in enumerate(self.q):
            if t in tags:
                idx = k
        if idx < 0:
            return
        n = len(self.q) - 1 - idx
        n = min(n, self.maxv)
        self.p(f's_waitcnt {self.name}({n})')
        self.q = self.q[len(self.q) - n:] if n else []

    def wait_all(self):
        self.p(f's_waitcnt {self.name}(0)')
        self.q = []

    def reset(self):
        self.q = []
```

```python
import sys
import os
sys.path.insert(0, os.path.dirname(os.path.abspath(__file__)))
from asmlib import Prog, Cnt

NAME = 'sequential_preLN__sliding_block__dense_activation_squared_relu__prompt'
KNAME = NAME + '_kernel'

OPT = dict(stamps=False, force_safe=False, force_fallback=False, spin=200000)
for a in sys.argv[2:]:
    k, _, v = a.partition('=')
    OPT[k] = int(v) if v else True

EPOCH = 0x0
ST = 0x1000
FKV = 0x2000
FO = 0xA000
FH = 0xB000
FH1 = 0xC000
KVB = 0x100000
OB = 0x500000
HB = 0x700000
STB = 0x900000
H1B = 0xA00000
WS_END = 0x1000000
STAMP = 0x1000000
WS_SIZE = 0x1100000

S_R = 0
S_M = 512
S_CS = 1024
S_CS1 = 1536
S_B1 = 2048
S_TAG = 2560
RING = 4096
SLOT = 28672
NSLOT = 5
L_WO = 96 * 1024
L_K = 47 * 1024
L_V = L_K + 24 * 1024
VSTR = 1040
L_X = 100 * 1024
LDS_BYTES = 160 * 1024


def w1_addr(s):
    return 4096 + s * 3072


W1_EARLY = 14
W2_REG = [0, 1, 2, 3, 43, 44, 45, 46]
W2_P1 = list(range(4, 15)) + list(range(47, 58))
W2_LATE = [s for s in range(86) if s not in W2_REG and s not in W2_P1]
w2_pos = {}
for i, s in enumerate(W2_REG):
    w2_pos[s] = L_X + i * 2048
for i, s in enumerate(W2_P1):
    w2_pos[s] = 116 * 1024 + i * 2048
late_order = []
lo = [s for s in W2_LATE if s < 43]
hi = [s for s in W2_LATE if s >= 43]
for a, b in zip(lo, hi):
    late_order += [a, b]
assert len(late_order) == 56
for i, s in enumerate(late_order):
    w2_pos[s] = 4096 + i * 2048
assert 4096 + 56 * 2048 == 116 * 1024

sX, sWQKV, sWO, sW1, sW2, sOUT, sWS, sB1, sB2, sDBG = [f's[{i}:{i + 3}]' for i in range(4, 44, 4)]
s_team, s_j, s_rb, s_c, s_rs, s_cb, s_w, s_tt, s_tag, s_mode, s_hd = [f's{i}' for i in range(44, 55)]
T = [f's{i}' for i in range(55, 64)]
s_xr = [f's{i}' for i in range(86, 90)]
s_wr = [f's{i}' for i in range(90, 94)]
s_t, s_kh = 's94', 's95'
s_last = 's96'
s_stamp = 's[98:99]'

LOG2E = 1.4426950408889634
BIG = 0xf149f2ca


def fhex(x):
    import struct
    return '0x%08x' % struct.unpack('<I', struct.pack('<f', x))[0]


def vr(a, n=1):
    return f'v{a}' if n == 1 else f'v[{a}:{a + n - 1}]'


p = Prog()
tail = []


class Role:
    def __init__(self, name):
        self.name = name
        self.vm = Cnt(p, 'vmcnt', 63)
        self.lg = Cnt(p, 'lgkmcnt', 15)
        self.nbar = 0
        self.nstamp = 0

    def bar(self):
        p('s_barrier')
        self.nbar += 1

    def stamp(self, label=''):
        if not OPT['stamps']:
            return
        k = self.nstamp
        self.nstamp += 1
        STAMPS.setdefault(self.name, []).append(label)
        assert k < 20
        p(f's_memtime {s_stamp}')
        p('s_waitcnt lgkmcnt(0)')
        self.lg.reset()
        p(f's_mov_b32 s{66 + k}, s98')


STAMPS = {}


def dsr(R, op, dst, bases, off, tag=None):
    k = off // 65536
    p(f'{op} {dst}, {bases[k]} offset:{off % 65536}')
    R.lg.issue(tag)


def dma(R, vaddr, srd, soff, ldsaddr, tag=None):
    p(f's_mov_b32 m0, {ldsaddr}')
    p(f'buffer_load_dwordx4 {vaddr}, {srd}, {soff} offen lds')
    R.vm.issue(tag)


def poll(R, vaddr, vtmp):
    L = p.newlabel('L_poll')
    D = p.newlabel('L_polld')
    p(f's_mov_b32 {T[0]}, 0')
    p.label(L)
    p(f'buffer_load_dword {vtmp}, {vaddr}, {sWS}, 0 offen sc1')
    p('s_waitcnt vmcnt(0)')
    p(f'v_cmp_ne_u32 vcc, {s_tag}, {vtmp}')
    p(f's_cbranch_vccz {D}')
    p(f's_add_u32 {T[0]}, {T[0]}, 1')
    p(f's_cmp_lt_u32 {T[0]}, {OPT["spin"]}')
    p(f's_cbranch_scc1 {L}')
    p.label(D)
    R.vm.reset()


def moded_stores(R, stores):
    Ls = p.newlabel('L_safe')
    Lb = p.newlabel('L_back')
    p(f's_cmp_eq_u32 {s_mode}, 1')
    p(f's_cbranch_scc0 {Ls}')
    for s in stores:
        p(s)
    p.label(Lb)
    for s in stores:
        if s.startswith('buffer_'):
            R.vm.issue('st')

    def blk():
        p.label(Ls)
        for s in stores:
            p(s + ' sc1' if s.startswith('buffer_') else s)
        p(f's_branch {Lb}')
    tail.append(blk)


def flag_store(R, base, vt0, vt1):
    p(f's_lshl_b32 {T[0]}, {s_rb}, 7')
    p(f's_lshl_b32 {T[1]}, {s_c}, 2')
    p(f's_add_u32 {T[0]}, {T[0]}, {T[1]}')
    p(f's_add_u32 {T[0]}, {T[0]}, {base}')
    p(f'v_mov_b32 {vt0}, {T[0]}')
    p(f'v_mov_b32 {vt1}, {s_tag}')
    p('s_mov_b64 exec, 1')
    moded_stores(R, [f'buffer_store_dword {vt1}, {vt0}, {sWS}, 0 offen'])
    p('s_mov_b64 exec, -1')


p.label(KNAME)
p('s_cmp_ge_u32 s2, 256')
p('s_cbranch_scc1 L_end')
p('s_load_dwordx16 s[64:79], s[0:1], 0')
p('s_load_dwordx4 s[80:83], s[0:1], 64')
p('s_load_dwordx2 s[84:85], s[0:1], 80')
p('v_and_b32 v1, 63, v0')
p('v_lshrrev_b32 v2, 6, v0')
p(f'v_readfirstlane_b32 {s_w}, v2')
p(f's_and_b32 {s_team}, s2, 7')
p(f's_lshr_b32 {s_j}, s2, 3')
p(f's_and_b32 {s_c}, {s_j}, 15')
p(f's_lshr_b32 {T[0]}, {s_j}, 4')
p(f's_lshl_b32 {s_rb}, {s_team}, 1')
p(f's_add_u32 {s_rb}, {s_rb}, {T[0]}')
p(f's_lshr_b32 {T[0]}, {s_j}, 3')
p(f's_lshl_b32 {s_rs}, {s_team}, 2')
p(f's_add_u32 {s_rs}, {s_rs}, {T[0]}')
p(f's_and_b32 {s_cb}, {s_j}, 7')
p(f's_lshr_b32 {s_hd}, {s_w}, 2')
p(f's_sub_u32 {T[0]}, 7, {s_w}')
p(f's_cmp_lt_u32 {s_w}, 4')
p(f's_cselect_b32 {s_tt}, {s_w}, {T[0]}')
p(f's_and_b32 {s_t}, {s_w}, 1')
p(f's_lshr_b32 {s_kh}, {s_w}, 1')
p(f's_and_b32 {s_kh}, {s_kh}, 1')
p('v_lshlrev_b32 v2, 4, v1')
p('v_lshrrev_b32 v3, 3, v1')
p(f's_lshl_b32 {T[0]}, {s_w}, 4')
p(f'v_add_u32 v3, {T[0]}, v3')
p('v_and_b32 v10, 7, v1')
p(f's_lshl_b32 {T[1]}, {s_rb}, 17')
for q, dst in ((0, 'v4'), (1, 'v5')):
    if q:
        p('v_add_u32 v3, 8, v3')
    p('v_lshrrev_b32 v11, 1, v3')
    p('v_and_b32 v11, 7, v11')
    p('v_xor_b32 v11, v10, v11')
    p('v_lshlrev_b32 v11, 4, v11')
    p(f'v_lshl_add_u32 {dst}, v3, 10, v11')
    p(f'v_add_u32 {dst}, {T[1]}, {dst}')
p(f's_lshl_b32 {T[0]}, {s_w}, 1')
p(f's_sub_u32 {T[0]}, {T[0]}, 4')
p(f's_cmp_lt_u32 {s_w}, 4')
p(f's_cselect_b32 {T[2]}, {s_w}, {T[0]}')
p(f's_lshl_b32 {T[0]}, {T[2]}, 6')
p(f's_lshl_b32 {T[1]}, {s_c}, 6')
p(f's_movk_i32 {T[3]}, 5462')
p(f's_movk_i32 {T[4]}, 3072')
for q, dst in ((0, 'v6'), (1, 'v7')):
    p(f'v_add_u32 v10, {T[0]}, v1')
    if q:
        p('v_add_u32 v10, 64, v10')
    p(f'v_mul_lo_u32 v11, v10, {T[3]}')
    p('v_lshrrev_b32 v11, 16, v11')
    p('v_mul_u32_u24 v12, 12, v11')
    p('v_sub_u32 v12, v10, v12')
    p('v_lshrrev_b32 v13, 2, v12')
    p('v_and_b32 v12, 3, v12')
    p('v_lshlrev_b32 v14, 5, v13')
    p('v_and_b32 v15, 1, v12')
    p('v_lshl_add_u32 v14, v15, 4, v14')
    p('v_lshrrev_b32 v15, 1, v12')
    p('v_lshl_add_u32 v14, v15, 10, v14')
    p('v_lshlrev_b32 v15, 4, v12')
    p('v_add_u32 v15, 2048, v15')
    p('v_cmp_eq_u32 vcc, 2, v13')
    p('v_cndmask_b32 v14, v14, v15, vcc')
    p(f'v_mul_lo_u32 v11, v11, {T[4]}')
    p(f'v_add3_u32 {dst}, v11, v14, {T[1]}')
p(f's_lshl_b32 {s_last}, {T[2]}, 10')
p('s_waitcnt lgkmcnt(0)')


def srd(dst, lo, size):
    b = int(dst[2:dst.index(':')])
    p(f's_mov_b32 s{b}, s{lo}')
    p(f's_and_b32 s{b + 1}, s{lo + 1}, 0xffff')
    p(f's_mov_b32 s{b + 2}, {size}')
    p(f's_mov_b32 s{b + 3}, 0x20000')


srd(sX, 64, 2048 * 512 * 2)
srd(sWQKV, 66, 512 * 1536 * 2)
srd(sWS, 84, WS_SIZE if OPT['stamps'] else WS_END)

s_mx, s_mw = 's64', 's65'


def p1_issue(R, ch, nW):
    slot = RING + (ch % NSLOT) * SLOT
    p(f's_mov_b32 {T[0]}, {ch * 128}')
    p(f's_mov_b32 {T[1]}, {ch * 64 * 3072}')
    for q in range(2):
        p(f's_add_u32 m0, {s_mx}, {slot + q * 1024}')
        p(f'buffer_load_dwordx4 v{4 + q}, {sX}, {T[0]} offen lds')
        R.vm.issue(('ch', ch))
    for q in range(nW):
        p(f's_add_u32 m0, {s_mw}, {slot + 16384 + q * 1024}')
        p(f'buffer_load_dwordx4 v{6 + q}, {sWQKV}, {T[1]} offen lds')
        R.vm.issue(('ch', ch))


srd(sWO, 68, 512 * 512 * 2)
srd(sW1, 72, 512 * 1376 * 2)
srd(sB1, 74, 1376 * 2)
srd(sW2, 76, 1376 * 512 * 2)
srd(sB2, 78, 512 * 2)
srd(sOUT, 80, 2048 * 512 * 2)
p(f's_lshl_b32 {s_mx}, {s_w}, 11')
p(f's_mov_b32 {s_mw}, {s_last}')
p(f's_cmp_ge_u32 {s_w}, 4')
p('s_cbranch_scc1 L_HW')


def lane_consts_p1(sec_off):
    p('v_and_b32 v10, 31, v1')
    p(f's_lshl_b32 {T[0]}, {s_tt}, 5')
    p(f'v_add_u32 v10, {T[0]}, v10')
    p('v_lshrrev_b32 v11, 1, v10')
    p('v_and_b32 v11, 7, v11')
    p('v_lshrrev_b32 v12, 5, v1')
    p('v_xor_b32 v11, v11, v12')
    p('v_lshlrev_b32 v11, 4, v11')
    p('v_lshl_add_u32 v8, v10, 7, v11')
    p('v_bfe_u32 v10, v1, 2, 2')
    p('v_lshl_add_u32 v10, v12, 3, v10')
    p('v_mul_u32_u24 v10, 192, v10')
    p('v_bfe_u32 v11, v1, 4, 1')
    p('v_lshl_add_u32 v10, v11, 5, v10')
    p('v_and_b32 v11, 3, v1')
    p('v_lshl_add_u32 v9, v11, 3, v10')
    if sec_off:
        p(f'v_add_u32 v9, {sec_off}, v9')
    p('v_mov_b32 v18, 0x3f803f80')
    for ks in range(4):
        p(f's_add_u32 {T[0]}, {s_w}, {ks}')
        p(f's_and_b32 {T[0]}, {T[0]}, 3')
        p(f's_lshl_b32 {s_xr[ks]}, {T[0]}, 5')
        p(f's_mul_i32 {s_wr[ks]}, {T[0]}, 3072')


XF, WQ, WV, AQK, AV = 20, 36, 52, 68, 84
CSQ, CSV, S1A, S1B, S2A, S2B = 100, 101, 102, 103, 104, 105


def p1_loop(R, cw):
    nW = 1 if cw else 2
    for k in (CSQ, CSV, S1A, S1B, S2A, S2B):
        p(f'v_mov_b32 v{k}, 0')
    for ch in range(8):
        slot = RING + (ch % NSLOT) * SLOT
        R.vm.wait([('ch', ch)])
        R.lg.wait_all()
        R.bar()
        if ch >= 1 and ch + NSLOT - 1 < 8:
            p1_issue(R, ch + NSLOT - 1, nW)
        if ch == 0:
            p(f'ds_read_b32 v19, v19')
        p(f'v_add_u32 v3, {slot}, v8')
        for ks in range(4):
            p(f'v_xor_b32 v{10 + ks}, {s_xr[ks]}, v3')
        p(f'v_add_u32 v3, {slot + 16384}, v9')
        for ks in range(4):
            p(f'v_add_u32 v{14 + ks}, {s_wr[ks]}, v3')
        if ch == 0:
            p('s_waitcnt lgkmcnt(0)')
            p(f'v_readfirstlane_b32 {s_tag}, v19')

        def reads(ks):
            tag = ('k', ch, ks)
            p(f'ds_read_b128 {vr(XF + 4 * ks, 4)}, v{10 + ks}')
            R.lg.issue(tag)
            for rd in range(2):
                p(f'ds_read_b64_tr_b16 {vr(WQ + 4 * ks + 2 * rd, 2)}, v{14 + ks} offset:{rd * 768}')
                R.lg.issue(tag)
            if cw:
                for rd in range(2):
                    p(f'ds_read_b64_tr_b16 {vr(WV + 4 * ks + 2 * rd, 2)}, v{14 + ks} offset:{rd * 768 + 128}')
                    R.lg.issue(tag)
        for ks in range(3 if cw else 4):
            reads(ks)
        for ks in range(4):
            R.lg.wait([('k', ch, ks)])
            first = ch == 0 and ks == 0
            p(f'v_mfma_f32_32x32x16_bf16 {vr(AQK, 16)}, {vr(WQ + 4 * ks, 4)}, {vr(XF + 4 * ks, 4)}, {"0" if first else vr(AQK, 16)}')
            if cw and ks == 0:
                reads(3)
            if cw:
                p(f'v_mfma_f32_32x32x16_bf16 {vr(AV, 16)}, {vr(XF + 4 * ks, 4)}, {vr(WV + 4 * ks, 4)}, {"0" if first else vr(AV, 16)}')
            if ks == 0:
                for r in range(4):
                    p(f'v_dot2c_f32_bf16 v{CSQ}, v{WQ + r}, v18')
                    if cw:
                        p(f'v_dot2c_f32_bf16 v{CSV}, v{WV + r}, v18')
            if not cw:
                for r in range(4):
                    x = XF + 4 * ks + r
                    p(f'v_dot2c_f32_bf16 v{S1A + (r & 1)}, v{x}, v18')
                    p(f'v_dot2c_f32_bf16 v{S2A + (r & 1)}, v{x}, v{x}')


def half_sum(a, t):
    p(f'v_mov_b32 {t}, {a}')
    p(f'v_permlane32_swap_b32 {a}, {t}')
    p(f'v_add_f32 {a}, {a}, {t}')


def ln_finish(s1, s2, t, rstd, mrs):
    p(f'v_mul_f32 {s1}, {fhex(1.0 / 512)}, {s1}')
    p(f'v_mul_f32 {s2}, {fhex(1.0 / 512)}, {s2}')
    p(f'v_fma_f32 {s2}, -{s1}, {s1}, {s2}')
    p(f'v_max_f32 {s2}, 0, {s2}')
    p(f'v_add_f32 {s2}, {fhex(1e-5)}, {s2}')
    p(f'v_rsq_f32 {rstd}, {s2}')
    p(f'v_mul_f32 {mrs}, {s1}, {rstd}')


VQ, MD, MF = 160, 164, 180
SB = [20, 36]
VP = 52
KF = [60, 64]
VF = [68, 76]
VO = 84
VKA, VVA = 'v100', 'v101'
HALO = 104


def p1_epilogue(R, cw):
    p('v_and_b32 v10, 31, v1')
    p('v_lshlrev_b32 v10, 2, v10')
    if cw:
        p(f'ds_add_f32 v10, v{CSQ} offset:{S_CS}')
        p(f'ds_add_f32 v10, v{CSV} offset:{S_CS + 256}')
    else:
        p(f'ds_add_f32 v10, v{CSQ} offset:{S_CS + 128}')
        p(f'v_add_f32 v{S1A}, v{S1A}, v{S1B}')
        p(f'v_add_f32 v{S2A}, v{S2A}, v{S2B}')
        half_sum(f'v{S1A}', 'v11')
        half_sum(f'v{S2A}', 'v11')
        ln_finish(f'v{S1A}', f'v{S2A}', 'v11', 'v12', 'v13')
        p(f's_lshl_b32 {T[0]}, {s_tt}, 7')
        p(f'v_add_u32 v11, {T[0]}, v10')
        p(f'ds_write_b32 v11, v12 offset:{S_R}')
        p(f'ds_write_b32 v11, v13 offset:{S_M}')
    R.lg.wait_all()
    R.bar()
    R.stamp('B1')
    p(f's_lshl_b32 {T[0]}, {s_tt}, 7')
    p(f'v_add_u32 v11, {T[0]}, v10')
    p(f'ds_read_b32 v106, v11 offset:{S_R}')
    p(f'ds_read_b32 v107, v11 offset:{S_M}')
    p('v_lshrrev_b32 v12, 5, v1')
    p('v_lshlrev_b32 v12, 4, v12')
    for g in range(4):
        p(f'ds_read_b128 {vr(108 + 4 * g, 4)}, v12 offset:{S_CS + (0 if cw else 128) + 32 * g}')
    if cw:
        p(f'v_add_u32 v13, {T[0]}, v12')
        for g in range(4):
            p(f'ds_read_b128 {vr(124 + 4 * g, 4)}, v13 offset:{S_R + 32 * g}')
        for g in range(4):
            p(f'ds_read_b128 {vr(140 + 4 * g, 4)}, v13 offset:{S_M + 32 * g}')
        p(f'ds_read_b32 v156, v10 offset:{S_CS + 256}')
    p(f's_lshl_b32 {T[0]}, {s_tt}, 11')
    p(f's_lshl_b32 {T[1]}, {s_hd}, 10')
    p(f's_add_u32 {T[0]}, {T[0]}, {T[1]}')
    p(f'v_add_u32 v14, {T[0]}, v2')
    p(f's_lshl_b32 {T[2]}, {s_rb}, 4')
    p(f's_add_u32 {T[2]}, {T[2]}, {s_c}')
    p(f's_lshl_b32 {T[2]}, {T[2]}, 14')
    p(f's_add_u32 {T[2]}, {T[2]}, {KVB}')
    p('s_waitcnt lgkmcnt(0)')
    R.lg.reset()
    c = 0.25 * LOG2E
    p(f'v_mul_f32 v157, {fhex(c)}, v106')
    p(f'v_mul_f32 v158, {fhex(c)}, v107')
    for i in range(16):
        rs, ms = ('v157', 'v158') if i < 8 else ('v106', 'v107')
        p(f'v_mul_f32 v{108 + i}, {ms}, v{108 + i}')
        p(f'v_fma_f32 v{AQK + i}, v{AQK + i}, {rs}, -v{108 + i}')
    for r in range(4):
        p(f'v_cvt_pk_bf16_f32 v{VQ + r}, v{AQK + 2 * r}, v{AQK + 2 * r + 1}')
    for r in range(4):
        p(f'v_cvt_pk_bf16_f32 v{108 + r}, v{AQK + 8 + 2 * r}, v{AQK + 8 + 2 * r + 1}')
    p(f'buffer_store_dwordx4 {vr(108, 4)}, v14, {sWS}, {T[2]} offen sc1')
    R.vm.issue('st')
    p(f'ds_write_b128 v14, {vr(108, 4)} offset:{L_K + 8 * 2048}')
    if cw:
        for i in range(16):
            p(f'v_mul_f32 v{140 + i}, v156, v{140 + i}')
            p(f'v_fma_f32 v{AV + i}, v{AV + i}, v{124 + i}, -v{140 + i}')
        for r in range(8):
            p(f'v_cvt_pk_bf16_f32 v{112 + r}, v{AV + 2 * r}, v{AV + 2 * r + 1}')
        p(f's_lshl_b32 {T[0]}, {s_tt}, 11')
        p(f'v_add_u32 v15, {T[0]}, v2')
        p(f's_add_u32 {T[3]}, {T[2]}, 8192')
        p(f's_mul_i32 {T[0]}, {s_tt}, {2 * VSTR}')
        p(f's_add_u32 {T[0]}, {T[0]}, {L_V + 16 * VSTR}')
        p(f'v_add_u32 v16, {T[0]}, v2')
        for g in range(2):
            p(f'buffer_store_dwordx4 {vr(112 + 4 * g, 4)}, v15, {sWS}, {T[3]} offen offset:{g * 1024} sc1')
            R.vm.issue('st')
            p(f'ds_write_b128 v16, {vr(112 + 4 * g, 4)} offset:{g * VSTR}')
    else:
        p('v_min_u32 v15, 23, v1')
        p('v_lshrrev_b32 v16, 3, v15')
        p(f'v_add_u32 v16, {s_rb}, v16')
        p('v_cmp_le_u32 vcc, 2, v16')
        p('v_mov_b32 v17, 0')
        p('v_cndmask_b32 v112, v17, v18, vcc')
        p('v_mov_b32 v113, v112')
        p('v_mov_b32 v114, v112')
        p('v_mov_b32 v115, v112')
        p(f'v_mul_u32_u24 v15, {VSTR}, v15')
        p(f'v_add_u32 v15, {L_V + 1024}, v15')
        p(f'ds_write_b128 v15, {vr(112, 4)}')
    p('v_and_b32 v10, 31, v1')
    p('v_lshrrev_b32 v11, 5, v1')
    p('v_lshlrev_b32 v11, 2, v11')
    p('v_sub_u32 v10, v10, v11')
    p(f'v_mov_b32 v12, {BIG:#x}')
    p('v_mov_b32 v13, 0')
    for i in range(16):
        key = 8 * (i >> 2) + (i & 3)
        p(f'v_cmp_le_i32 vcc, {key}, v10')
        p(f'v_cndmask_b32 v{MD + i}, v12, v13, vcc')
        p(f'v_cndmask_b32 v{MF + i}, v13, v12, vcc')
    p(f's_lshl_b32 {T[0]}, {s_tt}, 11')
    p(f's_lshl_b32 {T[1]}, {s_hd}, 10')
    p(f's_add_u32 {T[0]}, {T[0]}, {T[1]}')
    p(f's_add_u32 {T[0]}, {T[0]}, {L_K}')
    p(f'v_add_u32 {VKA}, {T[0]}, v2')
    p('v_and_b32 v10, 47, v1')
    p(f's_lshl_b32 {T[1]}, {s_hd}, 4')
    p(f'v_add_u32 v10, {T[1]}, v10')
    p('v_lshlrev_b32 v10, 4, v10')
    p('v_and_b32 v11, 16, v1')
    p('v_cmp_ne_u32 vcc, 0, v11')
    p('v_mov_b32 v11, 1024')
    p('v_cndmask_b32 v10, v10, v11, vcc')
    p(f's_mul_i32 {T[0]}, {s_tt}, {2 * VSTR}')
    p(f's_add_u32 {T[0]}, {T[0]}, {L_V}')
    p(f'v_add_u32 {VVA}, {T[0]}, v10')
    R.vm.wait_all()
    p('s_waitcnt lgkmcnt(0)')
    R.lg.reset()
    R.bar()
    R.stamp('B2')


def att_load(R, j, b):
    p(f'ds_read_b128 {vr(KF[b], 4)}, {VKA} offset:{j * 2048}')
    R.lg.issue(('K', j))
    for g in range(2):
        p(f'ds_read_b128 {vr(VF[b] + 4 * g, 4)}, {VVA} offset:{(2 * j + g) * VSTR}')
        R.lg.issue(('V', j))


def att_qk(R, j, b):
    R.lg.wait([('K', j)])
    c = vr(MD, 16) if j == 8 else (vr(MF, 16) if j == 0 else '0')
    p(f'v_mfma_f32_32x32x16_bf16 {vr(SB[b], 16)}, {vr(KF[b], 4)}, {vr(VQ, 4)}, {c}')


def att_body(R, j, b, nxt, first):
    S = SB[b]
    if nxt is not None:
        att_load(R, nxt, 1 - b)
    for g in range(2):
        for i in range(8):
            p(f'v_exp_f32 v{S + 8 * g + i}, v{S + 8 * g + i}')
        if g == 0 and nxt is not None:
            att_qk(R, nxt, 1 - b)
        for r in range(4):
            p(f'v_cvt_pk_bf16_f32 v{VP + 4 * g + r}, v{S + 8 * g + 2 * r}, v{S + 8 * g + 2 * r + 1}')
        R.lg.wait([('V', j)])
        c = '0' if (first and g == 0) else vr(VO, 16)
        p(f'v_mfma_f32_32x32x16_bf16 {vr(VO, 16)}, {vr(VF[b] + 4 * g, 4)}, {vr(VP + 4 * g, 4)}, {c}')


def attention(R, cw, after_flag):
    if cw:
        L = p.newlabel('L_nf')
        p(f's_cmp_lg_u32 {s_w}, 0')
        p(f's_cbranch_scc1 {L}')
        p(f's_lshl_b32 {T[0]}, {s_rb}, 4')
        p(f's_add_u32 {T[0]}, {T[0]}, {s_c}')
        p(f's_lshl_b32 {T[0]}, {T[0]}, 7')
        p(f's_add_u32 {T[0]}, {T[0]}, {FKV}')
        p(f'v_mov_b32 v10, {T[0]}')
        p(f'v_mov_b32 v11, {s_tag}')
        p('s_mov_b64 exec, 1')
        p(f'buffer_store_dword v11, v10, {sWS}, 0 offen sc1')
        p('s_mov_b64 exec, -1')
        p.label(L)
    after_flag()
    Lx = p.newlabel('L_2a_done')
    att_load(R, 8, 0)
    att_qk(R, 8, 0)
    for n, j in enumerate((8, 7, 6, 5)):
        att_body(R, j, n & 1, j - 1 if j > 5 else None, n == 0)
        if j > 5:
            p(f's_cmp_eq_u32 {s_tt}, {n}')
            p(f's_cbranch_scc1 {Lx}')
    p.label(Lx)
    p('s_waitcnt lgkmcnt(0)')
    R.lg.reset()
    R.stamp('2a')
    p('v_and_b32 v10, 31, v1')
    p('v_lshlrev_b32 v10, 3, v10')
    p(f's_lshl_b32 {T[0]}, {s_team}, 8')
    p(f's_add_u32 {T[0]}, {T[0]}, {ST}')
    p(f'v_add_u32 v10, {T[0]}, v10')
    Lp = p.newlabel('L_tp')
    Ld = p.newlabel('L_tpd')
    p(f's_mov_b32 {T[0]}, 0')
    p.label(Lp)
    p(f'buffer_load_dwordx2 v[12:13], v10, {sWS}, 0 offen sc1')
    p('s_waitcnt vmcnt(0)')
    p(f'v_cmp_ne_u32 vcc, {s_tag}, v12')
    p(f's_cbranch_vccz {Ld}')
    p(f's_add_u32 {T[0]}, {T[0]}, 1')
    p(f's_cmp_lt_u32 {T[0]}, {OPT["spin"]}')
    p(f's_cbranch_scc1 {Lp}')
    p.label(Ld)
    R.vm.reset()
    p(f'v_readfirstlane_b32 {T[1]}, v13')
    p(f'v_cmp_ne_u32 vcc, {T[1]}, v13')
    p('s_cmp_eq_u64 vcc, 0')
    p(f's_cselect_b32 {s_mode}, 1, 0')
    if OPT['force_safe']:
        p(f's_mov_b32 {s_mode}, 0')
    d = 1 if cw else 2
    Lz = p.newlabel('L_nohalo')
    Lw = p.newlabel('L_halow')
    p(f's_and_b32 {T[3]}, {s_w}, 3')
    p(f's_cmp_lt_u32 {s_rb}, {d}')
    p(f's_cbranch_scc1 {Lz}')
    p(f's_sub_u32 {T[2]}, {s_rb}, {d}')
    p(f's_lshl_b32 {T[2]}, {T[2]}, 4')
    p(f's_add_u32 {T[2]}, {T[2]}, {s_c}')
    p(f's_lshl_b32 {T[1]}, {T[2]}, 7')
    p(f's_add_u32 {T[1]}, {T[1]}, {FKV}')
    p(f'v_mov_b32 v10, {T[1]}')
    poll(R, 'v10', 'v11')
    p(f's_lshl_b32 {T[2]}, {T[2]}, 14')
    p(f's_lshl_b32 {T[1]}, {T[3]}, 12')
    p(f's_add_u32 {T[2]}, {T[2]}, {T[1]}')
    p(f's_add_u32 {T[2]}, {T[2]}, {KVB}')
    for q in range(4):
        p(f'buffer_load_dwordx4 {vr(HALO + 4 * q, 4)}, v2, {sWS}, {T[2]} offen offset:{q * 1024} sc1')
    p.label(Lw)
    blk = 1 if cw else 0
    p(f's_lshl_b32 {T[0]}, {T[3]}, 12')
    p(f's_add_u32 {T[0]}, {T[0]}, {L_K + blk * 8192}')
    p(f's_sub_u32 {T[1]}, {T[3]}, 2')
    p(f's_mul_i32 {T[1]}, {T[1]}, {4 * VSTR}')
    p(f's_add_u32 {T[1]}, {T[1]}, {L_V + blk * 8 * VSTR}')
    p(f's_cmp_lt_u32 {T[3]}, 2')
    p(f's_cselect_b32 {T[0]}, {T[0]}, {T[1]}')
    p(f's_cselect_b32 {T[1]}, 0, 16')
    p(f's_add_u32 {T[1]}, {T[1]}, 1024')
    p(f'v_add_u32 v10, {T[0]}, v2')
    p(f'v_add_u32 v11, {T[1]}, v10')
    p(f'v_add_u32 v12, {T[1]}, v11')
    p(f'v_add_u32 v13, {T[1]}, v12')
    for q in range(4):
        p(f's_waitcnt vmcnt({3 - q})')
        p(f'ds_write_b128 v{10 + q}, {vr(HALO + 4 * q, 4)}')
    R.vm.reset()

    def zero_blk():
        p.label(Lz)
        for r in range(16):
            p(f'v_mov_b32 v{HALO + r}, 0')
        p(f's_branch {Lw}')
    tail.append(zero_blk)
    p('s_waitcnt lgkmcnt(0)')
    R.bar()
    R.stamp('B3')
    Lx = p.newlabel('L_2b_done')
    att_load(R, 0, 0)
    att_qk(R, 0, 0)
    for j in range(8):
        att_body(R, j, j & 1, j + 1 if j < 7 else None, False)
        if 4 <= j < 7:
            p(f's_cmp_eq_u32 {s_tt}, {7 - j}')
            p(f's_cbranch_scc1 {Lx}')
    p.label(Lx)
    p('s_waitcnt lgkmcnt(0)')
    R.lg.reset()
    Lf = p.newlabel('L_fb')
    Lr = p.newlabel('L_fbret')
    p(f'v_mov_b32 v10, {fhex(2.0 ** -60)}')
    p(f'v_mov_b32 v11, {fhex(2.0 ** 60)}')
    p(f'v_cmp_nlt_f32 vcc, v10, v{VO + 8}')
    p(f'v_cmp_nlt_f32 {T[1].replace("s56", "s[56:57]")}, v{VO + 8}, v11')
    p('s_or_b64 vcc, vcc, s[56:57]')
    if OPT['force_fallback']:
        p(f's_branch {Lf}')
    else:
        p(f's_cbranch_vccnz {Lf}')
    p.label(Lr)
    tail.append(lambda: fallback(Lf, Lr))
    p(f'v_rcp_f32 v10, v{VO + 8}')
    for i in range(8):
        p(f'v_mul_f32 v{VO + i}, v{VO + i}, v10')
    for r in range(4):
        p(f'v_cvt_pk_bf16_f32 v{12 + r}, v{VO + 2 * r}, v{VO + 2 * r + 1}')
    p(f's_lshl_b32 {T[0]}, {s_rb}, 2')
    p(f's_add_u32 {T[0]}, {T[0]}, {s_tt}')
    p(f's_lshl_b32 {T[0]}, {T[0]}, 5')
    p(f's_lshl_b32 {T[1]}, {s_c}, 1')
    p(f's_add_u32 {T[0]}, {T[0]}, {T[1]}')
    p(f's_add_u32 {T[0]}, {T[0]}, {s_hd}')
    p(f's_lshl_b32 {T[0]}, {T[0]}, 10')
    p(f's_add_u32 {T[2]}, {T[0]}, {OB}')
    moded_stores(R, [f'buffer_store_dwordx4 v[12:15], v2, {sWS}, {T[2]} offen'])
    R.vm.wait_all()
    R.bar()
    R.stamp('B4')


def fallback(Lf, Lr):
    S = SB[0]
    p.label(Lf)
    p(f's_lshl_b32 {T[0]}, {s_rb}, 2')
    p(f's_add_u32 {T[0]}, {T[0]}, {s_tt}')
    p(f's_sub_i32 {T[0]}, 8, {T[0]}')
    p(f's_max_i32 {T[4]}, {T[0]}, 0')
    p(f'v_mov_b32 v14, {BIG:#x}')
    for pas in range(2):
        L = p.newlabel('L_fbl')
        Lm = p.newlabel('L_fbm')
        Ln = p.newlabel('L_fbn')
        Lc = p.newlabel('L_fbc')
        p(f's_mov_b32 {T[5]}, {T[4]}')
        if pas == 1:
            for i in range(16):
                p(f'v_mov_b32 v{VO + i}, 0')
        p.label(L)
        p(f's_lshl_b32 {T[0]}, {T[5]}, 11')
        p(f'v_add_u32 v10, {T[0]}, {VKA}')
        p(f's_mul_i32 {T[0]}, {T[5]}, {2 * VSTR}')
        p(f'v_add_u32 v11, {T[0]}, {VVA}')
        p(f'ds_read_b128 {vr(KF[0], 4)}, v10')
        p(f'ds_read_b128 {vr(VF[0], 4)}, v11')
        p(f'ds_read_b128 {vr(VF[0] + 4, 4)}, v11 offset:{VSTR}')
        p('s_waitcnt lgkmcnt(0)')
        p(f's_cmp_eq_u32 {T[5]}, 8')
        p(f's_cbranch_scc1 {Lm}')
        p(f's_cmp_eq_u32 {T[5]}, 0')
        p(f's_cbranch_scc1 {Ln}')
        p(f'v_mfma_f32_32x32x16_bf16 {vr(S, 16)}, {vr(KF[0], 4)}, {vr(VQ, 4)}, 0')
        p(f's_branch {Lc}')
        p.label(Lm)
        p(f'v_mfma_f32_32x32x16_bf16 {vr(S, 16)}, {vr(KF[0], 4)}, {vr(VQ, 4)}, {vr(MD, 16)}')
        p(f's_branch {Lc}')
        p.label(Ln)
        p(f'v_mfma_f32_32x32x16_bf16 {vr(S, 16)}, {vr(KF[0], 4)}, {vr(VQ, 4)}, {vr(MF, 16)}')
        p.label(Lc)
        if pas == 0:
            for i in range(16):
                p(f'v_max_f32 v14, v14, v{S + i}')
        else:
            for i in range(16):
                p(f'v_sub_f32 v{S + i}, v{S + i}, v14')
                p(f'v_exp_f32 v{S + i}, v{S + i}')
            for r in range(8):
                p(f'v_cvt_pk_bf16_f32 v{VP + r}, v{S + 2 * r}, v{S + 2 * r + 1}')
            for g in range(2):
                p(f'v_mfma_f32_32x32x16_bf16 {vr(VO, 16)}, {vr(VF[0] + 4 * g, 4)}, {vr(VP + 4 * g, 4)}, {vr(VO, 16)}')
        p(f's_add_u32 {T[5]}, {T[5]}, 1')
        p(f's_cmp_le_u32 {T[5]}, 8')
        p(f's_cbranch_scc1 {L}')
        if pas == 0:
            p('v_mov_b32 v15, v14')
            p('v_permlane32_swap_b32 v14, v15')
            p('v_max_f32 v14, v14, v15')
    p(f's_branch {Lr}')


def w64_dma_lane(dst):
    p('v_lshrrev_b32 v10, 3, v1')
    p('v_lshlrev_b32 v10, 10, v10')
    p('v_and_b32 v11, 7, v1')
    p('v_bfe_u32 v12, v1, 4, 1')
    p('v_lshlrev_b32 v12, 2, v12')
    p('v_xor_b32 v11, v11, v12')
    p('v_lshl_add_u32 v10, v11, 4, v10')
    p(f's_lshl_b32 {T[0]}, {s_cb}, 7')
    p(f'v_add_u32 {dst}, {T[0]}, v10')


def w1_dma_lanes(dsts):
    p(f's_movk_i32 {T[3]}, 5462')
    p(f's_movk_i32 {T[4]}, 2752')
    p(f's_mul_i32 {T[1]}, {s_c}, 192')
    for q, dst in enumerate(dsts):
        p(f'v_add_u32 v10, {64 * q}, v1')
        p(f'v_mul_lo_u32 v11, v10, {T[3]}')
        p('v_lshrrev_b32 v11, 16, v11')
        p('v_mul_u32_u24 v12, 12, v11')
        p('v_sub_u32 v12, v10, v12')
        p('v_lshlrev_b32 v12, 4, v12')
        p(f'v_mul_lo_u32 v11, v11, {T[4]}')
        p(f'v_add3_u32 {dst}, v11, v12, {T[1]}')


def tr64_lanes(a0, a1):
    p('v_bfe_u32 v10, v1, 2, 2')
    p('v_lshrrev_b32 v11, 5, v1')
    p('v_lshl_add_u32 v10, v11, 2, v10')
    p('v_lshlrev_b32 v10, 7, v10')
    p('v_bfe_u32 v11, v1, 4, 1')
    p('v_lshl_add_u32 v10, v11, 5, v10')
    p('v_and_b32 v11, 3, v1')
    p('v_lshl_add_u32 v10, v11, 3, v10')
    p('v_bfe_u32 v11, v1, 3, 1')
    p(f'v_lshl_add_u32 {a0}, v11, 6, v10')
    p(f'v_xor_b32 {a1}, 64, {a0}')


def tr96_lane(a):
    p('v_bfe_u32 v10, v1, 2, 2')
    p('v_lshrrev_b32 v11, 5, v1')
    p('v_lshl_add_u32 v10, v11, 2, v10')
    p('v_mul_u32_u24 v10, 192, v10')
    p('v_bfe_u32 v11, v1, 4, 1')
    p('v_lshl_add_u32 v10, v11, 5, v10')
    p('v_and_b32 v11, 3, v1')
    p(f'v_lshl_add_u32 {a}, v11, 3, v10')


def dma_wave_list(R, items, nwaves, s_idx, vaddr_of, srd_of):
    raise NotImplementedError


CW = Role('CW')
R = CW
for ch in range(NSLOT):
    p1_issue(R, ch, 1)
lane_consts_p1(0)
p(f'v_mov_b32 v19, {S_TAG}')
R.stamp('start')
p1_loop(R, True)
p1_epilogue(R, True)

XRES = 240
HRES = 248


def cw_after_flag():
    w64_dma_lane('v3')
    p(f's_lshl_b32 {T[1]}, {s_w}, 17')
    p(f's_lshl_b32 {T[2]}, {s_w}, 14')
    for q in range(16):
        p(f's_add_u32 m0, {T[2]}, {L_WO + q * 1024}')
        p(f's_add_u32 {T[0]}, {T[1]}, {q * 8192}')
        p(f'buffer_load_dwordx4 v3, {sWO}, {T[0]} offen lds')
        R.vm.issue('wo')
    p('v_and_b32 v10, 31, v1')
    p(f's_lshl_b32 {T[0]}, {s_rs}, 1')
    p(f's_add_u32 {T[0]}, {T[0]}, {s_t}')
    p(f's_lshl_b32 {T[0]}, {T[0]}, 5')
    p(f'v_add_u32 v10, {T[0]}, v10')
    p('v_lshlrev_b32 v10, 10, v10')
    p('v_lshrrev_b32 v11, 5, v1')
    p('v_lshl_add_u32 v10, v11, 3, v10')
    p(f's_lshl_b32 {T[0]}, {s_cb}, 7')
    p(f's_lshl_b32 {T[1]}, {s_kh}, 6')
    p(f's_add_u32 {T[0]}, {T[0]}, {T[1]}')
    p(f'v_add_u32 v9, {T[0]}, v10')
    for g in range(4):
        p(f'buffer_load_dwordx2 {vr(XRES + 2 * g, 2)}, v9, {sX}, 0 offen offset:{16 * g}')
        R.vm.issue('xres')


attention(R, True, cw_after_flag)
L = p.newlabel('L_nf')
p(f's_cmp_lg_u32 {s_w}, 0')
p(f's_cbranch_scc1 {L}')
flag_store(R, FO, 'v10', 'v11')
p.label(L)
R.vm.reset()
WOF, OF, ACC3 = 16, 144, 208
tr64_lanes('v4', 'v5')
p(f's_lshl_b32 {T[0]}, {s_kh}, 15')
p(f's_add_u32 {T[0]}, {T[0]}, {L_WO}')
p(f'v_add_u32 v6, {T[0]}, v4')
p(f'v_add_u32 v7, {T[0]}, v5')
for s in range(16):
    for nt in range(2):
        for rd in range(2):
            p(f'ds_read_b64_tr_b16 {vr(WOF + 8 * s + 4 * nt + 2 * rd, 2)}, v{6 + nt} offset:{s * 2048 + rd * 1024}')
    if s % 2 == 1:
        p('s_waitcnt lgkmcnt(4)')
p('s_waitcnt lgkmcnt(0)')
R.bar()
p('v_and_b32 v10, 15, v1')
p('v_lshlrev_b32 v10, 2, v10')
p(f's_lshl_b32 {T[1]}, {s_rb}, 7')
p(f'v_add_u32 v8, {T[1]}, v10')
p(f'v_add_u32 v10, {FO}, v8')
poll(R, 'v10', 'v11')
R.stamp('Opoll')
p(f's_lshl_b32 {T[0]}, {s_rs}, 1')
p(f's_add_u32 {T[0]}, {T[0]}, {s_t}')
p(f's_lshl_b32 {T[5]}, {T[0]}, 15')
p(f's_lshl_b32 {T[1]}, {s_kh}, 14')
p(f's_add_u32 {T[1]}, {T[1]}, {T[5]}')
for s in range(16):
    if s % 4 == 0:
        p(f's_add_u32 {T[2]}, {T[1]}, {OB + s * 1024}')
    p(f'buffer_load_dwordx4 {vr(OF + 4 * s, 4)}, v2, {sWS}, {T[2]} offen offset:{(s % 4) * 1024} sc1')
    R.vm.issue(('o', s))
for s in range(16):
    R.vm.wait([('o', s)])
    for nt in range(2):
        p(f'v_mfma_f32_32x32x16_bf16 {vr(ACC3 + 16 * nt, 16)}, {vr(WOF + 8 * s + 4 * nt, 4)}, {vr(OF + 4 * s, 4)}, {"0" if s == 0 else vr(ACC3 + 16 * nt, 16)}')


def exchange(R, acc, dst, pre_barrier):
    if pre_barrier:
        R.bar()
    p(f's_lshl_b32 {T[0]}, {s_w}, 12')
    p(f's_add_u32 {T[0]}, {T[0]}, {L_X}')
    p(f'v_add_u32 v10, {T[0]}, v2')
    p(f's_xor_b32 {T[0]}, {s_w}, 2')
    p(f's_lshl_b32 {T[0]}, {T[0]}, 12')
    p(f's_add_u32 {T[0]}, {T[0]}, {L_X}')
    p(f'v_add_u32 v11, {T[0]}, v2')
    La = p.newlabel('L_xa')
    Lb = p.newlabel('L_xb')
    p(f's_cmp_eq_u32 {s_kh}, 0')
    p(f's_cbranch_scc0 {La}')
    for g in range(4):
        p(f'ds_write_b128 v10, {vr(acc + 16 + 4 * g, 4)} offset:{g * 1024}')
    p(f's_branch {Lb}')
    p.label(La)
    for g in range(4):
        p(f'ds_write_b128 v10, {vr(acc + 4 * g, 4)} offset:{g * 1024}')
    p('s_waitcnt lgkmcnt(0)')
    for i in range(16):
        p(f'v_mov_b32 v{acc + i}, v{acc + 16 + i}')
    p.label(Lb)
    p('s_waitcnt lgkmcnt(0)')
    R.bar()
    for g in range(4):
        p(f'ds_read_b128 {vr(dst + 4 * g, 4)}, v11 offset:{g * 1024}')
    for g in range(4):
        p(f's_waitcnt lgkmcnt({3 - g})')
        for i in range(4):
            p(f'v_add_f32 v{dst + 4 * g + i}, v{dst + 4 * g + i}, v{acc + 4 * g + i}')
    R.lg.reset()


exchange(R, ACC3, 16, False)
R.bar()
for g in range(4):
    for k in range(2):
        x = XRES + 2 * g + k
        p(f'v_lshlrev_b32 v10, 16, v{x}')
        p(f'v_and_b32 v11, 0xffff0000, v{x}')
        p(f'v_add_f32 v{16 + 4 * g + 2 * k}, v{16 + 4 * g + 2 * k}, v10')
        p(f'v_add_f32 v{16 + 4 * g + 2 * k + 1}, v{16 + 4 * g + 2 * k + 1}, v11')
for r in range(8):
    p(f'v_cvt_pk_bf16_f32 v{HRES + r}, v{16 + 2 * r}, v{16 + 2 * r + 1}')
p('v_mov_b32 v18, 0x3f803f80')
p('v_mov_b32 v12, 0')
p('v_mov_b32 v13, 0')
for r in range(8):
    p(f'v_dot2c_f32_bf16 v12, v{HRES + r}, v18')
    p(f'v_dot2c_f32_bf16 v13, v{HRES + r}, v{HRES + r}')
half_sum('v12', 'v10')
half_sum('v13', 'v10')
p(f's_lshl_b32 {T[0]}, {s_cb}, 1')
p(f's_add_u32 {T[0]}, {T[0]}, {s_kh}')
p(f's_lshl_b32 {T[1]}, {T[0]}, 11')
p(f's_add_u32 {T[1]}, {T[1]}, {T[5]}')
p(f's_add_u32 {T[1]}, {T[1]}, {HB}')
p(f's_lshl_b32 {T[0]}, {T[0]}, 8')
p(f's_lshr_b32 {T[2]}, {T[5]}, 3')
p(f's_add_u32 {T[2]}, {T[2]}, {T[0]}')
p(f's_add_u32 {T[2]}, {T[2]}, {STB}')
p('v_and_b32 v14, 31, v1')
p('v_lshlrev_b32 v14, 3, v14')
moded_stores(R, [f'buffer_store_dwordx4 {vr(HRES, 4)}, v2, {sWS}, {T[1]} offen',
                 f'buffer_store_dwordx4 {vr(HRES + 4, 4)}, v2, {sWS}, {T[1]} offen offset:1024',
                 f'buffer_store_dwordx2 v[12:13], v14, {sWS}, {T[2]} offen'])
R.vm.wait_all()
R.bar()
R.stamp('B8')
L = p.newlabel('L_nf')
p(f's_cmp_lg_u32 {s_w}, 0')
p(f's_cbranch_scc1 {L}')
flag_store(R, FH, 'v10', 'v11')
p.label(L)
R.vm.reset()
HF, ACC4, W1B, STL = 16, 144, 192, 228
tr96_lane('v3')
p('v_add_u32 v6, 0x10000, v3')
W1A = ['v3', 'v6']


def w1_reads(s):
    b = W1B + 12 * (s % 3)
    for nt in range(3):
        for rd in range(2):
            dsr(R, 'ds_read_b64_tr_b16', vr(b + 4 * nt + 2 * rd, 2), W1A, w1_addr(s) + rd * 1536 + nt * 64, ('w1', s))


w1_reads(0)
w1_reads(1)
p(f'v_add_u32 v10, {FH}, v8')
poll(R, 'v10', 'v11')
R.stamp('Hpoll')
p(f's_lshl_b32 {T[0]}, {s_rb}, 2')
p(f's_add_u32 {T[0]}, {T[0]}, {s_w}')
p(f's_lshl_b32 {T[1]}, {T[0]}, 15')
p(f's_lshl_b32 {T[3]}, {T[0]}, 12')
p(f's_add_u32 {T[3]}, {T[3]}, {STB}')
p(f's_mul_i32 {T[5]}, {T[0]}, {96 * 1024}')
p('v_lshrrev_b32 v10, 5, v1')
p('v_lshlrev_b32 v10, 11, v10')
p('v_add_u32 v10, v10, v14')
for s in range(32):
    if s % 4 == 0:
        p(f's_add_u32 {T[2]}, {T[1]}, {HB + s * 1024}')
    p(f'buffer_load_dwordx4 {vr(HF + 4 * s, 4)}, v2, {sWS}, {T[2]} offen offset:{(s % 4) * 1024} sc1')
    R.vm.issue(('h', s))
    if s == 7:
        for q in range(8):
            p(f'buffer_load_dwordx2 {vr(STL + 2 * q, 2)}, v10, {sWS}, {T[3]} offen offset:{q * 256} sc1')
            R.vm.issue('stl')
for s in range(32):
    R.vm.wait([('h', s)])
    R.lg.wait([('w1', s)])
    b = W1B + 12 * (s % 3)
    for nt in range(3):
        p(f'v_mfma_f32_32x32x16_bf16 {vr(ACC4 + 16 * nt, 16)}, {vr(b + 4 * nt, 4)}, {vr(HF + 4 * s, 4)}, {"0" if s == 0 else vr(ACC4 + 16 * nt, 16)}')
        if nt == 0 and s + 2 < 32:
            w1_reads(s + 2)
    if s == 10:
        for q in range(1, 8):
            p(f'v_add_f32 v{STL}, v{STL}, v{STL + 2 * q}')
            p(f'v_add_f32 v{STL + 1}, v{STL + 1}, v{STL + 2 * q + 1}')
    if s == 11:
        half_sum(f'v{STL}', 'v10')
        half_sum(f'v{STL + 1}', 'v10')
        ln_finish(f'v{STL}', f'v{STL + 1}', 'v10', 'v244', 'v245')
W2R = 16
p(f's_lshl_b32 {T[0]}, {s_kh}, 13')
p(f's_add_u32 {T[0]}, {T[0]}, {L_X}')
p(f'v_add_u32 v6, {T[0]}, v4')
p(f'v_add_u32 v7, {T[0]}, v5')
for s in range(4):
    for nt in range(2):
        for rd in range(2):
            p(f'ds_read_b64_tr_b16 {vr(W2R + 8 * s + 4 * nt + 2 * rd, 2)}, v{6 + nt} offset:{s * 2048 + rd * 1024}')
    if s == 1:
        p('s_waitcnt lgkmcnt(4)')
p('s_waitcnt lgkmcnt(0)')
R.lg.reset()
R.bar()
R.stamp('B9')
p('v_lshrrev_b32 v12, 5, v1')
p('v_lshlrev_b32 v12, 4, v12')
CS1, B1R, PK = 48, 96, 192


def e_reads(nt):
    for g in range(4):
        p(f'ds_read_b128 {vr(CS1 + 16 * nt + 4 * g, 4)}, v12 offset:{S_CS1 + 128 * nt + 32 * g}')
        R.lg.issue(('e', nt))
    for g in range(4):
        p(f'ds_read_b128 {vr(B1R + 16 * nt + 4 * g, 4)}, v12 offset:{S_B1 + 128 * nt + 32 * g}')
        R.lg.issue(('e', nt))


e_reads(0)
p(f's_mul_i32 {T[0]}, {s_c}, 6144')
p(f's_add_u32 {T[0]}, {T[0]}, {T[5]}')
p(f's_add_u32 {T[1]}, {T[0]}, {H1B}')
p(f's_add_u32 {T[2]}, {T[1]}, 4096')
for nt in range(3):
    R.lg.wait([('e', nt)])
    if nt < 2:
        e_reads(nt + 1)
    for i in range(16):
        a = ACC4 + 16 * nt + i
        p(f'v_fma_f32 v{B1R + 16 * nt + i}, -v245, v{CS1 + 16 * nt + i}, v{B1R + 16 * nt + i}')
        p(f'v_fma_f32 v{a}, v{a}, v244, v{B1R + 16 * nt + i}')
        p(f'v_max_f32 v{a}, 0, v{a}')
        p(f'v_mul_f32 v{a}, v{a}, v{a}')
    for r in range(8):
        p(f'v_cvt_pk_bf16_f32 v{PK + 8 * nt + r}, v{ACC4 + 16 * nt + 2 * r}, v{ACC4 + 16 * nt + 2 * r + 1}')
    st = []
    for g in range(2):
        f = 2 * nt + g
        st.append(f'buffer_store_dwordx4 {vr(PK + 8 * nt + 4 * g, 4)}, v2, {sWS}, {T[1 + f // 4]} offen offset:{(f % 4) * 1024}')
    moded_stores(R, st)
R.vm.wait_all()
R.bar()
R.stamp('B10')
L = p.newlabel('L_nf')
p(f's_cmp_lg_u32 {s_w}, 0')
p(f's_cbranch_scc1 {L}')
flag_store(R, FH1, 'v10', 'v11')
p.label(L)
R.vm.reset()
ACC5, W2B, H1F, B2R = 48, 80, 104, 240
NRING = 34
p(f's_mul_i32 {T[0]}, {s_kh}, {11 * 2048}')
p(f'v_add_u32 v6, {T[0]}, v4')
p(f'v_add_u32 v7, {T[0]}, v5')
p('v_add_u32 v6, 0x10000, v6')
p('v_add_u32 v7, 0x10000, v7')
p('v_add_u32 v12, 0x10000, v6')
p('v_add_u32 v13, 0x10000, v7')
p(f's_lshl_b32 {T[0]}, {s_kh}, 11')
p(f'v_add_u32 v4, {T[0]}, v4')
p(f'v_add_u32 v5, {T[0]}, v5')
p('v_add_u32 v14, 0x10000, v4')
p('v_add_u32 v15, 0x10000, v5')
for i in range(4, 15):
    assert w2_pos[43 + i] - w2_pos[i] == 11 * 2048
for i in range(15, 43):
    assert w2_pos[43 + i] - w2_pos[i] == 2048


def w2_reads(i):
    b = W2B + 8 * (i % 3)
    for nt in range(2):
        if i < 15:
            bases = [None, 'v6' if nt == 0 else 'v7', 'v12' if nt == 0 else 'v13']
        else:
            bases = ['v4' if nt == 0 else 'v5', 'v14' if nt == 0 else 'v15']
        for rd in range(2):
            dsr(R, 'ds_read_b64_tr_b16', vr(b + 4 * nt + 2 * rd, 2), bases, w2_pos[i] + rd * 1024, ('w2', i))


p('v_lshrrev_b32 v10, 5, v1')
p('v_lshlrev_b32 v10, 3, v10')
p(f's_lshl_b32 {T[0]}, {s_cb}, 7')
p(f's_lshl_b32 {T[1]}, {s_kh}, 6')
p(f's_add_u32 {T[0]}, {T[0]}, {T[1]}')
for g in range(4):
    p(f'buffer_load_dwordx2 {vr(B2R + 2 * g, 2)}, v10, {sB2}, {T[0]} offen offset:{16 * g}')
p('v_and_b32 v10, 15, v1')
p('v_min_u32 v10, 14, v10')
p('v_lshlrev_b32 v10, 2, v10')
p(f's_lshl_b32 {T[1]}, {s_rb}, 7')
p(f's_add_u32 {T[1]}, {T[1]}, {FH1}')
p(f'v_add_u32 v10, {T[1]}, v10')
poll(R, 'v10', 'v11')
R.stamp('H1poll')
p(f's_lshl_b32 {T[0]}, {s_rs}, 1')
p(f's_add_u32 {T[0]}, {T[0]}, {s_t}')
p(f's_mul_i32 {T[1]}, {T[0]}, {96 * 1024}')
p(f's_mul_i32 {T[2]}, {s_kh}, {43 * 1024}')
p(f's_add_u32 {T[1]}, {T[1]}, {T[2]}')
p(f's_add_u32 {T[1]}, {T[1]}, {H1B}')


def h1_load(i):
    if i % 4 == 0:
        p(f's_add_u32 {T[2]}, {T[1]}, {i * 1024}')
    p(f'buffer_load_dwordx4 {vr(H1F + 4 * (i % NRING), 4)}, v2, {sWS}, {T[2]} offen offset:{(i % 4) * 1024} sc1')
    R.vm.issue(('h1', i))


for i in range(NRING):
    h1_load(i)
w2_reads(4)
w2_reads(5)
for i in range(43):
    if i == 13:
        R.bar()
    R.vm.wait([('h1', i)])
    if i >= 4:
        R.lg.wait([('w2', i)])
    b = W2R + 8 * i if i < 4 else W2B + 8 * (i % 3)
    for nt in range(2):
        p(f'v_mfma_f32_32x32x16_bf16 {vr(ACC5 + 16 * nt, 16)}, {vr(b + 4 * nt, 4)}, {vr(H1F + 4 * (i % NRING), 4)}, {"0" if i == 0 else vr(ACC5 + 16 * nt, 16)}')
        if nt == 0 and i >= 4 and i + 2 < 43:
            w2_reads(i + 2)
    if i + NRING < 43:
        h1_load(i + NRING)
exchange(R, ACC5, 16, True)
R.stamp('B13')
for g in range(4):
    for k in range(2):
        for (src, lo) in ((B2R + 2 * g + k, None), (HRES + 2 * g + k, None)):
            p(f'v_lshlrev_b32 v10, 16, v{src}')
            p(f'v_and_b32 v11, 0xffff0000, v{src}')
            p(f'v_add_f32 v{16 + 4 * g + 2 * k}, v{16 + 4 * g + 2 * k}, v10')
            p(f'v_add_f32 v{16 + 4 * g + 2 * k + 1}, v{16 + 4 * g + 2 * k + 1}, v11')
for r in range(8):
    p(f'v_cvt_pk_bf16_f32 v{32 + r}, v{16 + 2 * r}, v{16 + 2 * r + 1}')
p('v_lshrrev_b32 v10, 5, v1')
p('v_lshl_add_u32 v9, v10, 3, v9')
for q in range(2):
    p(f'v_permlane32_swap_b32 v{32 + 4 * q}, v{32 + 4 * q + 2}')
    p(f'v_permlane32_swap_b32 v{32 + 4 * q + 1}, v{32 + 4 * q + 3}')
    p(f'buffer_store_dwordx4 {vr(32 + 4 * q, 4)}, v9, {sOUT}, 0 offen offset:{32 * q}')


def dump_stamps(R):
    if not OPT['stamps']:
        return
    R.stamp('end')
    p(f's_lshl_b32 {T[0]}, s2, 3')
    p(f's_add_u32 {T[0]}, {T[0]}, {s_w}')
    p(f's_lshl_b32 {T[0]}, {T[0]}, 8')
    p(f's_add_u32 {T[0]}, {T[0]}, {STAMP}')
    p('v_lshlrev_b32 v10, 2, v1')
    p('v_mov_b32 v11, 0')
    for k in range(R.nstamp):
        p(f'v_writelane_b32 v11, s{66 + k}, {k}')
    p(f'buffer_store_dword v11, v10, {sWS}, {T[0]} offen')


dump_stamps(R)
p('s_endpgm')
for b in tail:
    b()
tail = []

HW = Role('HW')
R = HW
p.label('L_HW')
L7 = p.newlabel('L_n7')
p(f's_cmp_lg_u32 {s_w}, 7')
p(f's_cbranch_scc1 {L7}')
p('v_mov_b32 v10, 0')
p(f'buffer_load_dword v19, v10, {sWS}, 0 offen sc1')
p.label(L7)
for ch in range(NSLOT):
    p1_issue(R, ch, 2)
lane_consts_p1(64)
p('v_lshlrev_b32 v10, 4, v1')
p('v_mov_b32 v12, 0')
p('v_mov_b32 v13, 0')
p('v_mov_b32 v14, 0')
p('v_mov_b32 v15, 0')
p(f'ds_write_b128 v10, v[12:15] offset:{S_CS}')
L7 = p.newlabel('L_n7')
p(f's_cmp_lg_u32 {s_w}, 7')
p(f's_cbranch_scc1 {L7}')
p(f's_waitcnt vmcnt({4 * NSLOT})')
p('v_add_u32 v12, 1, v19')
p(f'v_mov_b32 v10, {S_TAG}')
p('ds_write_b32 v10, v12')
p(f's_getreg_b32 {T[0]}, hwreg(HW_REG_XCC_ID)')
p(f's_and_b32 {T[0]}, {T[0]}, 15')
p(f'v_mov_b32 v13, {T[0]}')
p(f's_lshl_b32 {T[0]}, {s_team}, 5')
p(f's_add_u32 {T[0]}, {T[0]}, {s_j}')
p(f's_lshl_b32 {T[0]}, {T[0]}, 3')
p(f's_add_u32 {T[0]}, {T[0]}, {ST}')
p(f'v_mov_b32 v10, {T[0]}')
p('s_mov_b64 exec, 1')
p(f'buffer_store_dwordx2 v[12:13], v10, {sWS}, 0 offen sc1')
p('s_mov_b64 exec, -1')
p.label(L7)
p(f'v_mov_b32 v19, {S_TAG}')
R.stamp('start')
p1_loop(R, False)
p1_epilogue(R, False)


def hw_after_flag():
    w1_dma_lanes(['v3', 'v4', 'v5'])
    p(f's_and_b32 {T[5]}, {s_w}, 3')
    for n in range(4):
        p(f's_add_u32 {T[0]}, {T[5]}, {4 * n}')
        p(f's_min_u32 {T[0]}, {T[0]}, {W1_EARLY - 1}')
        p(f's_mul_i32 {T[1]}, {T[0]}, {16 * 2752}')
        p(f's_mul_i32 {T[2]}, {T[0]}, 3072')
        for q in range(3):
            p(f's_add_u32 m0, {T[2]}, {4096 + q * 1024}')
            p(f'buffer_load_dwordx4 v{3 + q}, {sW1}, {T[1]} offen lds')
            R.vm.issue('w1')
    p('v_lshrrev_b32 v10, 4, v1')
    p('v_lshlrev_b32 v10, 15, v10')
    p('v_and_b32 v11, 15, v1')
    p('v_lshl_add_u32 v10, v11, 7, v10')
    p(f's_lshl_b32 {T[0]}, {s_rb}, 17')
    p(f's_lshl_b32 {T[1]}, {s_c}, 11')
    p(f's_add_u32 {T[0]}, {T[0]}, {T[1]}')
    p(f's_add_u32 {T[0]}, {T[0]}, {OB}')
    p(f'buffer_load_dword v200, v10, {sWS}, {T[0]} offen sc1')
    p('v_lshrrev_b32 v10, 5, v1')
    p('v_lshlrev_b32 v10, 15, v10')
    p('v_and_b32 v11, 31, v1')
    p('v_lshl_add_u32 v10, v11, 7, v10')
    p(f's_lshl_b32 {T[0]}, {s_rs}, 16')
    p(f's_lshl_b32 {T[1]}, {s_cb}, 12')
    p(f's_add_u32 {T[0]}, {T[0]}, {T[1]}')
    p(f's_add_u32 {T[0]}, {T[0]}, {HB}')
    p(f'buffer_load_dword v201, v10, {sWS}, {T[0]} offen sc1')
    p('v_bfe_u32 v10, v1, 2, 1')
    p('v_lshlrev_b32 v10, 12, v10')
    p('v_and_b32 v11, 3, v1')
    p('v_lshl_add_u32 v10, v11, 7, v10')
    p(f's_lshl_b32 {T[0]}, {s_rs}, 13')
    p(f's_lshl_b32 {T[1]}, {s_cb}, 9')
    p(f's_add_u32 {T[0]}, {T[0]}, {T[1]}')
    p(f's_add_u32 {T[0]}, {T[0]}, {STB}')
    p(f'buffer_load_dword v202, v10, {sWS}, {T[0]} offen sc1')
    p('v_and_b32 v10, 3, v1')
    p('v_min_u32 v10, 2, v10')
    p('v_lshlrev_b32 v10, 12, v10')
    p(f's_lshl_b32 {T[0]}, {s_rb}, 7')
    p(f's_add_u32 {T[0]}, {T[0]}, {FO}')
    p(f'buffer_load_dword v203, v10, {sWS}, {T[0]} offen sc1')
    p('v_min_u32 v10, 47, v1')
    p('v_lshlrev_b32 v10, 7, v10')
    p(f's_lshl_b32 {T[0]}, {s_rb}, 2')
    p(f's_add_u32 {T[0]}, {T[0]}, {T[5]}')
    p(f's_mul_i32 {T[0]}, {T[0]}, {96 * 1024}')
    p(f's_mul_i32 {T[1]}, {s_c}, 6144')
    p(f's_add_u32 {T[0]}, {T[0]}, {T[1]}')
    p(f's_add_u32 {T[0]}, {T[0]}, {H1B}')
    p(f'buffer_load_dword v204, v10, {sWS}, {T[0]} offen sc1')
    for k in range(5):
        R.vm.issue('touch')


attention(R, False, hw_after_flag)
R.bar()
p(f's_and_b32 {T[5]}, {s_w}, 3')
for n in range(5):
    p(f's_add_u32 {T[0]}, {T[5]}, {W1_EARLY + 4 * n}')
    p(f's_min_u32 {T[0]}, {T[0]}, 31')
    p(f's_mul_i32 {T[1]}, {T[0]}, {16 * 2752}')
    p(f's_mul_i32 {T[2]}, {T[0]}, 3072')
    for q in range(3):
        p(f's_add_u32 m0, {T[2]}, {4096 + q * 1024}')
        p(f'buffer_load_dwordx4 v{3 + q}, {sW1}, {T[1]} offen lds')
        R.vm.issue('w1')
w64_dma_lane('v6')
p('v_min_u32 v10, 47, v1')
p('v_lshlrev_b32 v11, 2, v10')
p(f's_mul_i32 {T[0]}, {s_c}, 192')
p(f'buffer_load_dword v12, v11, {sB1}, {T[0]} offen')
R.vm.issue('b1')


def w2_dma_list(lst):
    lst = list(lst)
    while len(lst) % 4:
        lst.append(lst[-1])
    for n in range(len(lst) // 4):
        ks = lst[4 * n:4 * n + 4]
        src = [k * 16 * 1024 for k in ks]
        dst = [w2_pos[k] for k in ks]
        ds, dd = src[1] - src[0], dst[1] - dst[0]
        if all(src[q] == src[0] + q * ds and dst[q] == dst[0] + q * dd for q in range(4)):
            p(f's_mul_i32 {T[1]}, {T[5]}, {ds}')
            p(f's_add_u32 {T[1]}, {T[1]}, {src[0]}')
            p(f's_mul_i32 {T[2]}, {T[5]}, {dd}')
            p(f's_add_u32 {T[2]}, {T[2]}, {dst[0]}')
        else:
            p(f's_mov_b32 {T[1]}, {src[0]}')
            p(f's_mov_b32 {T[2]}, {dst[0]}')
            for q in range(1, 4):
                p(f's_cmp_eq_u32 {T[5]}, {q}')
                p(f's_cselect_b32 {T[1]}, {src[q]}, {T[1]}')
                p(f's_cselect_b32 {T[2]}, {dst[q]}, {T[2]}')
        for q in range(2):
            p(f's_add_u32 m0, {T[2]}, {q * 1024}')
            p(f's_add_u32 {T[0]}, {T[1]}, {q * 8192}')
            p(f'buffer_load_dwordx4 v6, {sW2}, {T[0]} offen lds')
            R.vm.issue('w2')


w2_dma_list(W2_P1)
R.vm.wait(['b1'])
p('v_lshlrev_b32 v14, 16, v12')
p('v_and_b32 v15, 0xffff0000, v12')
p('v_lshlrev_b32 v11, 3, v10')
p(f'ds_write_b64 v11, v[14:15] offset:{S_B1}')
R.vm.wait(['w1'])
p('s_waitcnt lgkmcnt(0)')
R.bar()
R.bar()
w2_dma_list(W2_REG)
tr96_lane('v3')
p(f's_mul_i32 {T[0]}, {T[5]}, {8 * 3072}')
p(f's_add_u32 {T[0]}, {T[0]}, 4096')
p(f'v_add_u32 v3, {T[0]}, v3')
p('v_mov_b32 v18, 0x3f803f80')
for nt in range(3):
    p(f'v_mov_b32 v{100 + nt}, 0')
for s in range(8):
    for nt in range(3):
        for rd in range(2):
            p(f'ds_read_b64_tr_b16 {vr(20 + 12 * (s % 2) + 4 * nt + 2 * rd, 2)}, v3 offset:{s * 3072 + rd * 1536 + nt * 64}')
            R.lg.issue(('c', s))
    if s >= 1:
        R.lg.wait([('c', s - 1)])
        for nt in range(3):
            for r in range(4):
                p(f'v_dot2c_f32_bf16 v{100 + nt}, v{20 + 12 * ((s - 1) % 2) + 4 * nt + r}, v18')
R.lg.wait([('c', 7)])
for nt in range(3):
    for r in range(4):
        p(f'v_dot2c_f32_bf16 v{100 + nt}, v{20 + 12 + 4 * nt + r}, v18')
p('v_and_b32 v10, 31, v1')
p('v_lshlrev_b32 v10, 2, v10')
for nt in range(3):
    p(f'ds_add_f32 v10, v{100 + nt} offset:{S_CS1 + 128 * nt}')
R.vm.wait_all()
p('s_waitcnt lgkmcnt(0)')
R.lg.reset()
R.bar()
R.bar()
w2_dma_list(late_order)
R.bar()
R.vm.wait_all()
R.bar()
L7 = p.newlabel('L_n7')
p('s_cmp_lg_u32 s2, 0')
p(f's_cbranch_scc1 {L7}')
p(f's_cmp_lg_u32 {s_w}, 7')
p(f's_cbranch_scc1 {L7}')
p('v_lshlrev_b32 v12, 3, v1')
for q in range(4):
    p(f'v_add_u32 v10, {ST + 512 * q}, v12')
    poll(R, 'v10', 'v11')
p('v_mov_b32 v10, 0')
p(f'v_mov_b32 v11, {s_tag}')
p('s_mov_b64 exec, 1')
p(f'buffer_store_dword v11, v10, {sWS}, 0 offen sc1')
p('s_mov_b64 exec, -1')
p.label(L7)
R.bar()
R.bar()
dump_stamps(R)
p.label('L_end')
p('s_endpgm')
for b in tail:
    b()
assert CW.nbar == HW.nbar, (CW.nbar, HW.nbar)

p.fix_hazards()

hdr = open(os.path.join(os.path.dirname(os.path.abspath(__file__)), '..', 'cdna_kernels', NAME + '.s.ref')).read().split('\n')
top = [l for l in hdr if l.startswith(';') and '@launch' not in l and 'Override' not in l and 'grid=ceil' not in l]
out = '\n'.join(top) + '\n'
out += f'; @launch grid=(256,1,1) block=(512,1,1) lds={LDS_BYTES}\n'
out += f'''.amdgcn_target "amdgcn-amd-amdhsa--gfx950"
.text
.globl {KNAME}
.p2align 8
.type {KNAME},@function
'''
out += p.text()
out += f'''.section .rodata,"a"
.p2align 6
.amdhsa_kernel {KNAME}
  .amdhsa_next_free_vgpr 256
  .amdhsa_next_free_sgpr 102
  .amdhsa_accum_offset 256
  .amdhsa_group_segment_fixed_size 0
  .amdhsa_kernarg_size 88
  .amdhsa_user_sgpr_count 2
  .amdhsa_user_sgpr_kernarg_segment_ptr 1
  .amdhsa_system_sgpr_workgroup_id_x 1
.end_amdhsa_kernel
'''
open(sys.argv[1], 'w').write(out)
if OPT['stamps']:
    import json
    json.dump(STAMPS, open(sys.argv[1] + '.stamps.json', 'w'))
print('instructions:', sum(1 for x in p.ins if x.kind not in ('label', 'dir')), 'maxv', p.maxreg('v'), 'maxs', p.maxreg('s'), 'barriers', CW.nbar)
```

```python
import sys
import os
sys.path.insert(0, os.path.dirname(os.path.abspath(__file__)))
from asmlib import Prog, Cnt

NAME = 'sequential_preLN__sliding_block__dense_activation_squared_relu__prompt'
KNAME = NAME + '_kernel'

OPT = dict(stamps=False, force_safe=False, force_fallback=False, spin=200000, h1sc1=0, mallwarm=1, p1touch=1, la=3, t0=2, tmode=1)
for a in sys.argv[2:]:
    k, _, v = a.partition('=')
    OPT[k] = int(v) if v else True

EPOCH = 0x0
ST = 0x1000
FKV = 0x2000
FO = 0xA000
FH = 0xC000
FH1 = 0xE000
RST = 0x10000
KVB = 0x100000
OB = 0x500000
HB = 0x700000
STB = 0x900000
H1B = 0xA00000
WS_END = 0x1000000
STAMP = 0x1000000
WS_SIZE = 0x1100000

S_R = 0
S_M = 512
S_CS = 1024
S_CS1 = 1536
S_B1 = 2048
S_TAG = 2560
S_MODE = 2564
BASE = 3072
RING = BASE
SLOT = 28672
NSLOT = 4
L_WO = BASE
L_K = BASE + 64 * 1024
L_V = L_K + 24 * 1024
VSTR = 1040
L_HI = 116 * 1024
assert L_V + 24 * VSTR <= L_HI and RING + NSLOT * SLOT <= L_HI
L_X = BASE + 96 * 1024
LDS_BYTES = 160 * 1024


def w1_addr(s):
    return BASE + s * 3072


W2_REG = [0, 1, 2, 3, 43, 44, 45, 46]
W2_P1 = list(range(4, 15)) + list(range(47, 58))
W2_LATE = [s for s in range(86) if s not in W2_REG and s not in W2_P1]
w2_pos = {}
for i, s in enumerate(W2_REG):
    w2_pos[s] = L_X + i * 2048
for i, s in enumerate(W2_P1):
    w2_pos[s] = L_HI + i * 2048
late_order = []
lo = [s for s in W2_LATE if s < 43]
hi = [s for s in W2_LATE if s >= 43]
for a, b in zip(lo, hi):
    late_order += [a, b]
assert len(late_order) == 56
for i, s in enumerate(late_order):
    w2_pos[s] = BASE + i * 2048
assert BASE + 56 * 2048 <= L_HI

sX, sWQKV, sWO, sW1, sW2, sOUT, sWS, sB1, sB2, sDBG = [f's[{i}:{i + 3}]' for i in range(4, 44, 4)]
s_team, s_j, s_rb, s_c, s_rs, s_cb, s_w, s_tt, s_tag, s_mode, s_hd = [f's{i}' for i in range(44, 55)]
T = [f's{i}' for i in range(55, 64)]
s_xr = [f's{i}' for i in range(86, 90)]
s_wr = [f's{i}' for i in range(90, 94)]
s_t, s_kh = 's94', 's95'
s_tile = 's64'
s_last = 's96'
s_stamp = 's[98:99]'

LOG2E = 1.4426950408889634
BIG = 0xf149f2ca


def fhex(x):
    import struct
    return '0x%08x' % struct.unpack('<I', struct.pack('<f', x))[0]


def vr(a, n=1):
    return f'v{a}' if n == 1 else f'v[{a}:{a + n - 1}]'


p = Prog()
tail = []


class Role:
    def __init__(self, name):
        self.name = name
        self.vm = Cnt(p, 'vmcnt', 63)
        self.lg = Cnt(p, 'lgkmcnt', 15)
        self.nbar = 0
        self.nstamp = 0

    def bar(self):
        p('s_barrier')
        self.nbar += 1

    def dstamp(self, grp, label):
        if OPT.get('d' + grp):
            self.stamp(label, True)

    def stamp(self, label='', force=False):
        if not OPT['stamps']:
            return
        if not force and label not in ('start', 'end') and any(k.startswith('dP') for k in OPT):
            return
        k = self.nstamp
        self.nstamp += 1
        STAMPS.setdefault(self.name, []).append(label)
        assert k < 20
        p(f's_memtime {s_stamp}')
        p('s_waitcnt lgkmcnt(0)')
        self.lg.reset()
        p(f's_mov_b32 s{66 + k}, s98')


STAMPS = {}


def dsr(R, op, dst, bases, off, tag=None):
    k = off // 65536
    p(f'{op} {dst}, {bases[k]} offset:{off % 65536}')
    R.lg.issue(tag)


def dma(R, vaddr, srd, soff, ldsaddr, tag=None):
    p(f's_mov_b32 m0, {ldsaddr}')
    p(f'buffer_load_dwordx4 {vaddr}, {srd}, {soff} offen lds')
    R.vm.issue(tag)


def poll(R, vaddr, vtmp, wide=False):
    L = p.newlabel('L_poll')
    D = p.newlabel('L_polld')
    X = p.newlabel('L_pollx')
    p(f's_mov_b32 {T[0]}, 0')
    p.label(L)
    first = vtmp if not wide else 'v' + vtmp[2:vtmp.index(':')]
    p(f'buffer_load_dword{"x2" if wide else ""} {vtmp}, {vaddr}, {sWS}, 0 offen sc1')
    p('s_waitcnt vmcnt(0)')
    p(f'v_cmp_ne_u32 vcc, {s_tag}, {first}')
    p(f's_cbranch_vccnz {X}')
    p.label(D)
    R.vm.reset()

    def blk():
        p.label(X)
        p(f's_add_u32 {T[0]}, {T[0]}, 1')
        p(f's_cmp_lt_u32 {T[0]}, {OPT["spin"]}')
        p(f's_cbranch_scc1 {L}')
        p(f's_branch {D}')
    tail.append(blk)


def moded_stores(R, stores):
    Ls = p.newlabel('L_safe')
    Lb = p.newlabel('L_back')
    p(f's_cmp_eq_u32 {s_mode}, 1')
    p(f's_cbranch_scc0 {Ls}')
    for s in stores:
        p(s)
    p.label(Lb)
    for s in stores:
        if s.startswith('buffer_'):
            R.vm.issue('st')

    def blk():
        p.label(Ls)
        for s in stores:
            p(s + ' sc1' if s.startswith('buffer_') else s)
        p(f's_branch {Lb}')
    tail.append(blk)


def flag_store(R, saddr, vt0, vt1, moded=True):
    p(f'v_mov_b32 {vt0}, {saddr}')
    p(f'v_mov_b32 {vt1}, {s_tag}')
    R.vm.wait_all()
    p('s_mov_b64 exec, 1')
    if moded:
        moded_stores(R, [f'buffer_store_dword {vt1}, {vt0}, {sWS}, 0 offen'])
    else:
        p(f'buffer_store_dword {vt1}, {vt0}, {sWS}, 0 offen sc1')
        R.vm.issue('st')
    p('s_mov_b64 exec, -1')


CW = Role('CW')
HW = Role('HW')
s_q = T[8]
s_mx, s_mw, s_tw = 's96', 's97', 's3'


def srd(dst, lo, size):
    b = int(dst[2:dst.index(':')])
    p(f's_mov_b32 s{b}, s{lo}')
    p(f's_and_b32 s{b + 1}, s{lo + 1}, 0xffff')
    p(f's_mov_b32 s{b + 2}, {size}')
    p(f's_mov_b32 s{b + 3}, 0x20000')


p.label(KNAME)
p('s_cmp_ge_u32 s2, 256')
p('s_cbranch_scc1 L_end')
if OPT['stamps']:
    p('s_memtime s[100:101]')
p('s_load_dwordx16 s[64:79], s[0:1], 0')
p('s_load_dwordx4 s[80:83], s[0:1], 64')
p('s_load_dwordx2 s[84:85], s[0:1], 80')
p('v_and_b32 v1, 63, v0')
p('v_lshrrev_b32 v2, 6, v0')
p(f'v_readfirstlane_b32 {s_w}, v2')
p(f's_and_b32 {s_team}, s2, 7')
p(f's_lshr_b32 {s_j}, s2, 3')
p(f's_and_b32 {s_c}, {s_j}, 15')
p(f's_lshr_b32 {T[0]}, {s_j}, 4')
p(f's_lshl_b32 {s_rb}, {s_team}, 1')
p(f's_add_u32 {s_rb}, {s_rb}, {T[0]}')
p('v_lshlrev_b32 v2, 4, v1')
p(f's_and_b32 {s_q}, {s_w}, 3')
p('v_lshrrev_b32 v3, 3, v1')
p(f's_lshl_b32 {T[0]}, {s_q}, 5')
p(f'v_add_u32 v3, {T[0]}, v3')
p('v_and_b32 v10, 7, v1')
p(f's_lshl_b32 {T[1]}, {s_rb}, 17')
p('v_bfe_u32 v11, v3, 1, 3')
p('v_xor_b32 v11, v10, v11')
p('v_lshlrev_b32 v11, 4, v11')
p('v_lshl_add_u32 v4, v3, 10, v11')
p(f'v_add_u32 v4, {T[1]}, v4')
p('v_xor_b32 v5, 64, v4')
p('v_add_u32 v5, 8192, v5')
p(f's_mul_i32 {T[0]}, {s_q}, 192')
p(f's_lshl_b32 {T[1]}, {s_c}, 6')
p(f's_movk_i32 {T[3]}, 5462')
p(f's_movk_i32 {T[4]}, 3072')
for q in range(3):
    p(f'v_add_u32 v10, {T[0]}, v1')
    if q:
        p(f'v_add_u32 v10, {64 * q}, v10')
    p(f'v_mul_lo_u32 v11, v10, {T[3]}')
    p('v_lshrrev_b32 v11, 16, v11')
    p('v_mul_u32_u24 v12, 12, v11')
    p('v_sub_u32 v12, v10, v12')
    p('v_lshrrev_b32 v13, 2, v12')
    p('v_and_b32 v12, 3, v12')
    p('v_lshlrev_b32 v12, 4, v12')
    p('v_lshl_add_u32 v12, v13, 10, v12')
    p(f'v_mul_lo_u32 v11, v11, {T[4]}')
    p(f'v_add3_u32 v{6 + q}, v11, v12, {T[1]}')
p(f's_lshl_b32 {s_mx}, {s_q}, 12')
p(f's_mul_i32 {s_mw}, {s_q}, 3072')
p(f's_lshl_b32 {s_tw}, {s_j}, 2')
p(f's_add_u32 {s_tw}, {s_tw}, {s_q}')
p(f's_mul_i32 {s_tw}, {s_tw}, 1536')
p('v_min_u32 v17, 11, v1')
p('v_lshlrev_b32 v17, 7, v17')
p(f's_lshl_b32 {T[5]}, {s_rb}, 4')
p(f's_add_u32 {T[5]}, {T[5]}, {s_c}')
p(f's_lshl_b32 {T[5]}, {T[5]}, 3')
p(f's_add_u32 {T[5]}, {T[5]}, {s_w}')
p(f's_lshl_b32 {T[0]}, {T[5]}, 10')
p('s_waitcnt lgkmcnt(0)')
p(f's_load_dword {s_tag}, s[84:85], {EPOCH}')
srd(sX, 64, 2048 * 512 * 2)
p(f'buffer_load_dwordx4 v[20:23], v2, {sX}, {T[0]} offen')
for R in (CW, HW):
    R.vm.issue('row')
srd(sWQKV, 66, 512 * 1536 * 2)
if OPT['stamps']:
    p('s_memtime s[98:99]')
    p('s_waitcnt lgkmcnt(0)')
    p('s_mov_b32 s101, s98')
p(f's_cmp_lt_u32 {s_w}, 4')
p('s_cbranch_scc1 L_CW')


def chunk_groups(R, ch):
    slot = RING + (ch % NSLOT) * SLOT

    def xg(q):
        def f():
            p(f's_mov_b32 {T[7]}, {ch * 128 + (q >> 1) * 16384}')
            p(f's_add_u32 m0, {s_mx}, {slot + q * 1024}')
            p(f'buffer_load_dwordx4 v{4 + (q & 1)}, {sX}, {T[7]} offen lds')
            R.vm.issue(('ch', ch))
        return f

    def wg(q):
        def f():
            p(f's_mov_b32 {T[7]}, {ch * 64 * 3072}')
            p(f's_add_u32 m0, {s_mw}, {slot + 16384 + q * 1024}')
            p(f'buffer_load_dwordx4 v{6 + q}, {sWQKV}, {T[7]} offen lds')
            R.vm.issue(('ch', ch))
        return f
    return [wg(0), xg(0), wg(1), xg(1), wg(2), xg(2), xg(3)]


def wtouch(R, i):
    def f():
        if not OPT['p1touch']:
            return
        p(f's_add_u32 {T[7]}, {s_tw}, {i * 64 * 3072}')
        p(f'buffer_load_dword v252, v17, {sWQKV}, {T[7]} offen')
        R.vm.issue('t')
    return f


def mallwarm(R):
    def f():
        if not OPT['mallwarm']:
            return
        p(f's_lshl_b32 {T[7]}, s2, 2')
        p(f's_add_u32 {T[7]}, {T[7]}, {s_q}')
        p(f's_mul_i32 {T[6]}, {T[7]}, 1536')
        p(f's_lshl_b32 {T[7]}, {T[7]}, 9')
        p('v_and_b32 v3, 384, v17')
        p(f'buffer_load_dword v255, v3, {sWO}, {T[7]} offen')
        p(f'buffer_load_dword v252, v17, {sW2}, {T[6]} offen')
        for _ in range(2):
            R.vm.issue('t')
    return f


def srds_w():
    srd(sWO, 68, 512 * 512 * 2)
    srd(sW1, 72, 512 * 1376 * 2)
    srd(sW2, 76, 1376 * 512 * 2)


def common_setup(R):
    srd(sWS, 84, WS_SIZE if OPT['stamps'] else WS_END)
    srd(sB1, 74, 1376 * 2)
    srd(sB2, 78, 512 * 2)
    srd(sOUT, 80, 2048 * 512 * 2)
    p(f's_lshr_b32 {T[0]}, {s_j}, 3')
    p(f's_lshl_b32 {s_rs}, {s_team}, 2')
    p(f's_add_u32 {s_rs}, {s_rs}, {T[0]}')
    p(f's_and_b32 {s_cb}, {s_j}, 7')
    p(f's_lshr_b32 {s_hd}, {s_w}, 2')
    if R is CW:
        p(f's_mov_b32 {s_tt}, {s_w}')
        p(f's_and_b32 {s_t}, {s_w}, 1')
        p(f's_lshr_b32 {s_kh}, {s_w}, 1')
    else:
        p(f's_sub_u32 {s_tt}, 7, {s_w}')
    p('v_mov_b32 v18, 0x3f803f80')
    p('v_mov_b32 v24, 0')
    p('v_mov_b32 v26, 0')
    p(f's_lshl_b32 {T[5]}, {T[5]}, 4')
    p(f's_add_u32 {T[5]}, {T[5]}, {RST}')
    p(f'v_mov_b32 v10, {T[5]}')
    p('s_waitcnt lgkmcnt(0)')
    p(f's_add_u32 {s_tag}, {s_tag}, 1')
    R.vm.wait(['row'])
    for r in range(4):
        p(f'v_dot2c_f32_bf16 v24, v{20 + r}, v18')
        p(f'v_dot2c_f32_bf16 v26, v{20 + r}, v{20 + r}')
    for sh in (8, 4, 2, 1):
        p(f'v_add_f32_dpp v24, v24, v24 row_ror:{sh} row_mask:0xf bank_mask:0xf')
        p(f'v_add_f32_dpp v26, v26, v26 row_ror:{sh} row_mask:0xf bank_mask:0xf')
    for a in ('v24', 'v26'):
        p(f'v_mov_b32 v11, {a}')
        p(f'v_permlane16_swap_b32 {a}, v11')
        p(f'v_add_f32 {a}, {a}, v11')
        half_sum(a, 'v11')
    ln_finish('v24', 'v26', 'v28', 'v30')
    p(f'v_mov_b32 v29, {s_tag}')
    p(f'v_mov_b32 v31, {s_tag}')
    p('s_mov_b64 exec, 1')
    p(f'buffer_store_dwordx4 v[28:31], v10, {sWS}, 0 offen sc1')
    p('s_mov_b64 exec, -1')
    R.vm.issue('st')


VQ, MD, MF = 160, 164, 180
SB = [20, 36]
VP = 52
KF = [60, 64]
VF = [68, 76]
VO = 84
VKA, VVA = 'v100', 'v101'
HALO = 104


def make_masks():
    p('v_and_b32 v10, 31, v1')
    p('v_lshrrev_b32 v11, 5, v1')
    p('v_lshlrev_b32 v11, 2, v11')
    p('v_sub_u32 v10, v10, v11')
    p(f'v_mov_b32 v12, {BIG:#x}')
    p('v_mov_b32 v13, 0')
    for i0 in range(0, 16, 4):
        for i in range(i0, i0 + 4):
            key = 8 * (i >> 2) + (i & 3)
            p(f'v_cmp_le_i32 s[{56 + 2 * (i & 3)}:{57 + 2 * (i & 3)}], {key}, v10')
        for i in range(i0, i0 + 4):
            m = f's[{56 + 2 * (i & 3)}:{57 + 2 * (i & 3)}]'
            p(f'v_cndmask_b32 v{MD + i}, v12, v13, {m}')
            p(f'v_cndmask_b32 v{MF + i}, v13, v12, {m}')


def att_addrs():
    p(f's_lshl_b32 {T[0]}, {s_tt}, 11')
    p(f's_lshl_b32 {T[1]}, {s_hd}, 10')
    p(f's_add_u32 {T[0]}, {T[0]}, {T[1]}')
    p(f's_add_u32 {T[0]}, {T[0]}, {L_K}')
    p(f'v_add_u32 {VKA}, {T[0]}, v2')
    p('v_and_b32 v10, 47, v1')
    p(f's_lshl_b32 {T[1]}, {s_hd}, 4')
    p(f'v_add_u32 v10, {T[1]}, v10')
    p('v_lshlrev_b32 v10, 4, v10')
    p('v_and_b32 v11, 16, v1')
    p('v_cmp_ne_u32 vcc, 0, v11')
    p('v_mov_b32 v11, 1024')
    p('v_cndmask_b32 v10, v10, v11, vcc')
    p(f's_mul_i32 {T[0]}, {s_tt}, {2 * VSTR}')
    p(f's_add_u32 {T[0]}, {T[0]}, {L_V}')
    p(f'v_add_u32 {VVA}, {T[0]}, v10')


def half_sum(a, t):
    p(f'v_mov_b32 {t}, {a}')
    p(f'v_permlane32_swap_b32 {a}, {t}')
    p(f'v_add_f32 {a}, {a}, {t}')


def ln_finish(s1, s2, rstd, mrs):
    p(f'v_mul_f32 {s1}, {fhex(1.0 / 512)}, {s1}')
    p(f'v_mul_f32 {s2}, {fhex(1.0 / 512)}, {s2}')
    p(f'v_fma_f32 {s2}, -{s1}, {s1}, {s2}')
    p(f'v_max_f32 {s2}, 0, {s2}')
    p(f'v_add_f32 {s2}, {fhex(1e-5)}, {s2}')
    p(f'v_rsq_f32 {rstd}, {s2}')
    p(f'v_mul_f32 {mrs}, {s1}, {rstd}')


def att_load(R, j, b):
    p(f'ds_read_b128 {vr(KF[b], 4)}, {VKA} offset:{j * 2048}')
    R.lg.issue(('K', j))
    for g in range(2):
        p(f'ds_read_b128 {vr(VF[b] + 4 * g, 4)}, {VVA} offset:{(2 * j + g) * VSTR}')
        R.lg.issue(('V', j))


def att_qk(R, j, b):
    R.lg.wait([('K', j)])
    c = vr(MD, 16) if j == 8 else (vr(MF, 16) if j == 0 else '0')
    p(f'v_mfma_f32_32x32x16_bf16 {vr(SB[b], 16)}, {vr(KF[b], 4)}, {vr(VQ, 4)}, {c}')


def att_body(R, j, b, nxt, first, extra=()):
    S = SB[b]
    if nxt is not None:
        att_load(R, nxt, 1 - b)
    extra = list(extra)
    for g in range(2):
        for i in range(8):
            p(f'v_exp_f32 v{S + 8 * g + i}, v{S + 8 * g + i}')
            if i in (1, 5) and extra:
                extra.pop(0)()
        if g == 0 and nxt is not None:
            att_qk(R, nxt, 1 - b)
        for r in range(4):
            p(f'v_cvt_pk_bf16_f32 v{VP + 4 * g + r}, v{S + 8 * g + 2 * r}, v{S + 8 * g + 2 * r + 1}')
        R.lg.wait([('V', j)])
        c = '0' if (first and g == 0) else vr(VO, 16)
        p(f'v_mfma_f32_32x32x16_bf16 {vr(VO, 16)}, {vr(VF[b] + 4 * g, 4)}, {vr(VP + 4 * g, 4)}, {c}')
    assert not extra


def att_2a(R, after_first=None):
    Lx = p.newlabel('L_2a_done')
    att_load(R, 8, 0)
    att_qk(R, 8, 0)
    for n, j in enumerate((8, 7, 6, 5)):
        att_body(R, j, n & 1, j - 1 if j > 5 else None, n == 0)
        if n == 0 and after_first:
            after_first()
        if j > 5:
            p(f's_cmp_eq_u32 {s_tt}, {n}')
            p(f's_cbranch_scc1 {Lx}')
    p.label(Lx)
    p('s_waitcnt lgkmcnt(0)')
    R.lg.reset()
    R.stamp('2a')
    R.dstamp('P2', '2a')


def att_2b(R, extra, after_store):
    Lx = p.newlabel('L_2b_done')
    att_load(R, 0, 0)
    att_qk(R, 0, 0)
    extra = list(extra)
    assert len(extra) <= 20
    for j in range(8):
        att_body(R, j, j & 1, j + 1 if j < 7 else None, False, extra[4 * j:4 * j + 4])
        if 4 <= j < 7:
            p(f's_cmp_eq_u32 {s_tt}, {7 - j}')
            p(f's_cbranch_scc1 {Lx}')
    p.label(Lx)
    p('s_waitcnt lgkmcnt(0)')
    R.lg.reset()
    Lf = p.newlabel('L_fb')
    Lr = p.newlabel('L_fbret')
    p(f'v_mov_b32 v10, {fhex(2.0 ** -60)}')
    p(f'v_mov_b32 v11, {fhex(2.0 ** 60)}')
    p(f's_lshl_b32 {T[0]}, {s_rb}, 2')
    p(f's_add_u32 {T[0]}, {T[0]}, {s_tt}')
    p(f's_lshl_b32 {T[0]}, {T[0]}, 5')
    p(f's_lshl_b32 {T[6]}, {s_c}, 1')
    p(f's_add_u32 {T[0]}, {T[0]}, {T[6]}')
    p(f's_add_u32 {T[0]}, {T[0]}, {s_hd}')
    p(f's_lshl_b32 {T[7]}, {T[0]}, 2')
    p(f's_add_u32 {T[7]}, {T[7]}, {FO}')
    p(f's_lshl_b32 {T[0]}, {T[0]}, 10')
    p(f's_add_u32 {T[6]}, {T[0]}, {OB}')
    p(f'v_cmp_nlt_f32 vcc, v10, v{VO + 8}')
    p(f'v_cmp_nlt_f32 s[56:57], v{VO + 8}, v11')
    p('s_or_b64 vcc, vcc, s[56:57]')
    if OPT['force_fallback']:
        p(f's_branch {Lf}')
    else:
        p(f's_cbranch_vccnz {Lf}')
    p.label(Lr)
    tail.append(lambda: fallback(Lf, Lr))
    p(f'v_rcp_f32 v10, v{VO + 8}')
    for i in range(8):
        p(f'v_mul_f32 v{VO + i}, v{VO + i}, v10')
    for r in range(4):
        p(f'v_cvt_pk_bf16_f32 v{12 + r}, v{VO + 2 * r}, v{VO + 2 * r + 1}')
    R.dstamp('P2', '2b')
    moded_stores(R, [f'buffer_store_dwordx4 v[12:15], v2, {sWS}, {T[6]} offen'])
    after_store()
    flag_store(R, T[7], 'v10', 'v11')
    R.stamp('Oflag')
    R.dstamp('P2', 'Oflag')


def fallback(Lf, Lr):
    S = SB[0]
    p.label(Lf)
    p(f's_lshl_b32 {T[0]}, {s_rb}, 2')
    p(f's_add_u32 {T[0]}, {T[0]}, {s_tt}')
    p(f's_sub_i32 {T[0]}, 8, {T[0]}')
    p(f's_max_i32 {T[4]}, {T[0]}, 0')
    p(f'v_mov_b32 v14, {BIG:#x}')
    for pas in range(2):
        L = p.newlabel('L_fbl')
        Lm = p.newlabel('L_fbm')
        Ln = p.newlabel('L_fbn')
        Lc = p.newlabel('L_fbc')
        p(f's_mov_b32 {T[5]}, {T[4]}')
        if pas == 1:
            for i in range(16):
                p(f'v_mov_b32 v{VO + i}, 0')
        p.label(L)
        p(f's_lshl_b32 {T[0]}, {T[5]}, 11')
        p(f'v_add_u32 v10, {T[0]}, {VKA}')
        p(f's_mul_i32 {T[0]}, {T[5]}, {2 * VSTR}')
        p(f'v_add_u32 v11, {T[0]}, {VVA}')
        p(f'ds_read_b128 {vr(KF[0], 4)}, v10')
        p(f'ds_read_b128 {vr(VF[0], 4)}, v11')
        p(f'ds_read_b128 {vr(VF[0] + 4, 4)}, v11 offset:{VSTR}')
        p('s_waitcnt lgkmcnt(0)')
        p(f's_cmp_eq_u32 {T[5]}, 8')
        p(f's_cbranch_scc1 {Lm}')
        p(f's_cmp_eq_u32 {T[5]}, 0')
        p(f's_cbranch_scc1 {Ln}')
        p(f'v_mfma_f32_32x32x16_bf16 {vr(S, 16)}, {vr(KF[0], 4)}, {vr(VQ, 4)}, 0')
        p(f's_branch {Lc}')
        p.label(Lm)
        p(f'v_mfma_f32_32x32x16_bf16 {vr(S, 16)}, {vr(KF[0], 4)}, {vr(VQ, 4)}, {vr(MD, 16)}')
        p(f's_branch {Lc}')
        p.label(Ln)
        p(f'v_mfma_f32_32x32x16_bf16 {vr(S, 16)}, {vr(KF[0], 4)}, {vr(VQ, 4)}, {vr(MF, 16)}')
        p.label(Lc)
        if pas == 0:
            for i in range(16):
                p(f'v_max_f32 v14, v14, v{S + i}')
        else:
            for i in range(16):
                p(f'v_sub_f32 v{S + i}, v{S + i}, v14')
                p(f'v_exp_f32 v{S + i}, v{S + i}')
            for r in range(8):
                p(f'v_cvt_pk_bf16_f32 v{VP + r}, v{S + 2 * r}, v{S + 2 * r + 1}')
            for g in range(2):
                p(f'v_mfma_f32_32x32x16_bf16 {vr(VO, 16)}, {vr(VF[0] + 4 * g, 4)}, {vr(VP + 4 * g, 4)}, {vr(VO, 16)}')
        p(f's_add_u32 {T[5]}, {T[5]}, 1')
        p(f's_cmp_le_u32 {T[5]}, 8')
        p(f's_cbranch_scc1 {L}')
        if pas == 0:
            p('v_mov_b32 v15, v14')
            p('v_permlane32_swap_b32 v14, v15')
            p('v_max_f32 v14, v14, v15')
    p(f's_branch {Lr}')


def w64_dma_lane(dst):
    p('v_lshrrev_b32 v10, 3, v1')
    p('v_lshlrev_b32 v10, 10, v10')
    p('v_and_b32 v11, 7, v1')
    p('v_bfe_u32 v12, v1, 4, 1')
    p('v_lshlrev_b32 v12, 2, v12')
    p('v_xor_b32 v11, v11, v12')
    p('v_lshl_add_u32 v10, v11, 4, v10')
    p(f's_lshl_b32 {T[0]}, {s_cb}, 7')
    p(f'v_add_u32 {dst}, {T[0]}, v10')


def w1_dma_lanes(dsts):
    p(f's_movk_i32 {T[3]}, 5462')
    p(f's_movk_i32 {T[4]}, 2752')
    p(f's_mul_i32 {T[1]}, {s_c}, 192')
    for q, dst in enumerate(dsts):
        p(f'v_add_u32 v10, {64 * q}, v1')
        p(f'v_mul_lo_u32 v11, v10, {T[3]}')
        p('v_lshrrev_b32 v11, 16, v11')
        p('v_mul_u32_u24 v12, 12, v11')
        p('v_sub_u32 v12, v10, v12')
        p('v_lshlrev_b32 v12, 4, v12')
        p(f'v_mul_lo_u32 v11, v11, {T[4]}')
        p(f'v_add3_u32 {dst}, v11, v12, {T[1]}')


def tr64_lanes(a0, a1):
    p('v_bfe_u32 v10, v1, 2, 2')
    p('v_lshrrev_b32 v11, 5, v1')
    p('v_lshl_add_u32 v10, v11, 2, v10')
    p('v_lshlrev_b32 v10, 7, v10')
    p('v_bfe_u32 v11, v1, 4, 1')
    p('v_lshl_add_u32 v10, v11, 5, v10')
    p('v_and_b32 v11, 3, v1')
    p('v_lshl_add_u32 v10, v11, 3, v10')
    p('v_bfe_u32 v11, v1, 3, 1')
    p(f'v_lshl_add_u32 {a0}, v11, 6, v10')
    p(f'v_xor_b32 {a1}, 64, {a0}')


def tr_nat_lane(a):
    p('v_bfe_u32 v10, v1, 2, 2')
    p('v_lshrrev_b32 v11, 5, v1')
    p('v_lshl_add_u32 v10, v11, 3, v10')
    p('v_mul_u32_u24 v10, 192, v10')
    p('v_bfe_u32 v11, v1, 4, 1')
    p('v_lshl_add_u32 v10, v11, 5, v10')
    p('v_and_b32 v11, 3, v1')
    p(f'v_lshl_add_u32 {a}, v11, 3, v10')


def tr96_lane(a):
    p('v_bfe_u32 v10, v1, 2, 2')
    p('v_lshrrev_b32 v11, 5, v1')
    p('v_lshl_add_u32 v10, v11, 2, v10')
    p('v_mul_u32_u24 v10, 192, v10')
    p('v_bfe_u32 v11, v1, 4, 1')
    p('v_lshl_add_u32 v10, v11, 5, v10')
    p('v_and_b32 v11, 3, v1')
    p(f'v_lshl_add_u32 {a}, v11, 3, v10')


def dump_stamps(R):
    if not OPT['stamps']:
        return
    R.stamp('end')
    p(f's_lshl_b32 {T[0]}, s2, 3')
    p(f's_add_u32 {T[0]}, {T[0]}, {s_w}')
    p(f's_lshl_b32 {T[0]}, {T[0]}, 8')
    p(f's_add_u32 {T[0]}, {T[0]}, {STAMP}')
    p('v_lshlrev_b32 v10, 2, v1')
    p('v_mov_b32 v11, 0')
    for k in range(R.nstamp):
        p(f'v_writelane_b32 v11, s{66 + k}, {k}')
    p(f'v_writelane_b32 v11, {s_mode}, 63')
    p(f'v_writelane_b32 v11, s100, 62')
    p(f'v_writelane_b32 v11, s101, 61')
    p(f'buffer_store_dword v11, v10, {sWS}, {T[0]} offen')


R = HW
TM = OPT['tmode']
after = {0: [2], 1: [3, 4], 2: [5], 3: [6], 4: [7]} if TM == 1 else ({0: [2, 3], 1: [4, 5, 6, 7]} if TM == 2 else {})


def chunk_t(R, ch):
    gs = chunk_groups(R, ch) + [wtouch(R, i) for i in after.get(ch, [])]
    if ch == 7:
        gs.append(mallwarm(R))
    return gs


for g in chunk_t(R, 0) + chunk_t(R, 1) + [srds_w] + (chunk_t(R, 2) if OPT['la'] == 3 else []):
    g()
tr_nat_lane('v19')
p(f's_min_u32 {T[0]}, {s_q}, 2')
p(f's_lshl_b32 {T[0]}, {T[0]}, 6')
p(f'v_add_u32 v19, {T[0]}, v19')
STG = [120 + 4 * i for i in range(10)] + [196 + 4 * i for i in range(14)]
ONE, CSA = 104, 52
for r in range(4):
    p(f'v_mov_b32 v{ONE + r}, 0x3f803f80')


def w1_stage(n):
    def f():
        if n % 3 == 0:
            p(f's_mul_i32 {T[6]}, {s_q}, {8 * 16 * 2752}')
            p(f's_add_u32 {T[6]}, {T[6]}, {(n // 3) * 16 * 2752}')
        p(f'buffer_load_dwordx4 {vr(STG[n], 4)}, v{112 + n % 3}, {sW1}, {T[6]} offen')
        R.vm.issue('w1')
    return f


def publish_start():
    L7 = p.newlabel('L_n7')
    p(f's_cmp_lg_u32 {s_w}, 7')
    p(f's_cbranch_scc1 {L7}')
    p(f's_getreg_b32 {T[1]}, hwreg(HW_REG_XCC_ID)')
    p(f's_and_b32 {T[1]}, {T[1]}, 15')
    p(f'v_mov_b32 v13, {T[1]}')
    p(f's_lshl_b32 {T[1]}, {s_team}, 5')
    p(f's_add_u32 {T[1]}, {T[1]}, {s_j}')
    p(f's_lshl_b32 {T[1]}, {T[1]}, 3')
    p(f's_add_u32 {T[1]}, {T[1]}, {ST}')
    p(f'v_mov_b32 v10, {T[1]}')
    p(f'v_mov_b32 v12, {s_tag}')
    p('s_mov_b64 exec, 1')
    p(f'buffer_store_dwordx2 v[12:13], v10, {sWS}, 0 offen sc1')
    p('s_mov_b64 exec, -1')
    p.label(L7)


def hw_masks():
    make_masks()
    p(f's_and_b32 {s_q}, {s_w}, 3')


R.stamp('start')
late = [w1_stage(n) for n in range(24)]
fill = {0: [lambda: common_setup(R)], 1: [publish_start, lambda: w1_dma_lanes(['v112', 'v113', 'v114'])],
        2: [hw_masks], 3: [lambda: w64_dma_lane('v115'), att_addrs]}
for ch in range(8):
    slot = RING + (ch % NSLOT) * SLOT
    p(f'v_add_u32 v14, {slot + 16384}, v19')
    if ch >= 4:
        R.dstamp('P1', f'iss{ch}')
    R.vm.wait([('ch', ch)])
    if ch >= 4:
        R.dstamp('P1', f'vm{ch}')
    R.bar()
    R.dstamp('P1', f'bar{ch}')
    for ks in range(4):
        for rd in range(2):
            p(f'ds_read_b64_tr_b16 {vr(36 + 4 * ks + 2 * rd, 2)}, v14 offset:{ks * 3072 + rd * 768}')
    LA = OPT['la']
    if ch + LA < 8:
        extra = chunk_t(R, ch + LA)
    elif ch < 7:
        extra = late[:8]
        del late[:8]
    else:
        extra = []
    mf = [(lambda ks=ks: p(f'v_mfma_f32_32x32x16_bf16 {vr(CSA, 16)}, {vr(ONE, 4)}, {vr(36 + 4 * ks, 4)}, {"0" if ch == 0 and ks == 0 else vr(CSA, 16)}')) for ks in range(4)]
    other = [lambda: p('s_waitcnt lgkmcnt(0)')] + mf + fill.get(ch, [])
    for k, g in enumerate(extra):
        g()
        if k >= 1 and other:
            other.pop(0)()
            if k == 1:
                other.pop(0)()
    for g in other:
        g()
p('v_and_b32 v10, 31, v1')
p('v_lshlrev_b32 v10, 2, v10')
p(f's_min_u32 {T[0]}, {s_q}, 2')
p(f's_lshl_b32 {T[0]}, {T[0]}, 7')
p(f'v_add_u32 v10, {T[0]}, v10')
p(f'ds_write_b32 v10, v{CSA} offset:{S_CS}')
p('s_waitcnt lgkmcnt(0)')
R.bar()
R.stamp('B1')
R.dstamp('P2', 'B1')
p('v_min_u32 v15, 23, v1')
p('v_lshrrev_b32 v16, 3, v15')
p(f'v_add_u32 v16, {s_rb}, v16')
p('v_cmp_le_u32 vcc, 2, v16')
p('v_mov_b32 v17, 0')
p('v_cndmask_b32 v44, v17, v18, vcc')
p('v_mov_b32 v45, v44')
p('v_mov_b32 v46, v44')
p('v_mov_b32 v47, v44')
p(f'v_mul_u32_u24 v15, {VSTR}, v15')
p(f'v_add_u32 v15, {L_V + 1024}, v15')
p('ds_write_b128 v15, v[44:47]')
for g in late:
    g()
p(f's_lshl_b32 {T[0]}, {s_tt}, 10')
p(f's_add_u32 {T[0]}, {T[0]}, {L_HI}')
p(f'v_add_u32 v14, {T[0]}, v2')
R.dstamp('P2', 'epi')
p('s_waitcnt lgkmcnt(0)')
R.lg.reset()
R.bar()
R.stamp('B2')
R.dstamp('P2', 'B2')
p(f'ds_read_b128 {vr(VQ, 4)}, v14')
p(f's_lshl_b32 {T[1]}, {s_q}, 17')
p(f's_lshl_b32 {T[2]}, {s_q}, 14')
for q in range(16):
    p(f's_add_u32 m0, {T[2]}, {L_WO + q * 1024}')
    p(f's_add_u32 {T[0]}, {T[1]}, {q * 8192}')
    p(f'buffer_load_dwordx4 v115, {sWO}, {T[0]} offen lds')
    R.vm.issue('wo')


def touch_o():
    p('v_and_b32 v116, 15, v1')
    p('v_lshlrev_b32 v116, 7, v116')
    p(f's_lshl_b32 {T[6]}, {s_rb}, 2')
    p(f's_add_u32 {T[6]}, {T[6]}, {s_q}')
    p(f's_lshl_b32 {T[6]}, {T[6]}, 15')
    p(f's_lshl_b32 {T[7]}, {s_c}, 11')
    p(f's_add_u32 {T[6]}, {T[6]}, {T[7]}')
    p(f's_add_u32 {T[6]}, {T[6]}, {OB}')
    p(f'buffer_load_dword v252, v116, {sWS}, {T[6]} offen sc1')
    R.vm.issue('t')


def touch_h():
    p('v_and_b32 v116, 15, v1')
    p('v_lshlrev_b32 v116, 7, v116')
    p(f's_and_b32 {T[6]}, {s_q}, 1')
    p(f's_lshl_b32 {T[7]}, {s_rs}, 1')
    p(f's_add_u32 {T[6]}, {T[6]}, {T[7]}')
    p(f's_lshl_b32 {T[6]}, {T[6]}, 15')
    p(f's_lshr_b32 {T[7]}, {s_q}, 1')
    p(f's_lshl_b32 {T[7]}, {T[7]}, 11')
    p(f's_add_u32 {T[6]}, {T[6]}, {T[7]}')
    p(f's_lshl_b32 {T[7]}, {s_cb}, 12')
    p(f's_add_u32 {T[6]}, {T[6]}, {T[7]}')
    p(f's_add_u32 {T[6]}, {T[6]}, {HB}')
    p(f'buffer_load_dword v252, v116, {sWS}, {T[6]} offen sc1')
    R.vm.issue('t')


def touch_st():
    p('v_bfe_u32 v116, v1, 2, 1')
    p('v_lshlrev_b32 v116, 12, v116')
    p('v_and_b32 v117, 3, v1')
    p('v_lshl_add_u32 v116, v117, 7, v116')
    p(f's_lshl_b32 {T[6]}, {s_rs}, 13')
    p(f's_lshl_b32 {T[7]}, {s_cb}, 9')
    p(f's_add_u32 {T[6]}, {T[6]}, {T[7]}')
    p(f's_add_u32 {T[6]}, {T[6]}, {STB}')
    p(f'buffer_load_dword v253, v116, {sWS}, {T[6]} offen sc1')
    R.vm.issue('t')


def touch_fl():
    p('v_bfe_u32 v116, v1, 2, 2')
    p('v_min_u32 v116, 2, v116')
    p('v_lshlrev_b32 v116, 13, v116')
    p('v_and_b32 v117, 3, v1')
    p('v_lshl_add_u32 v116, v117, 7, v116')
    p(f's_lshl_b32 {T[6]}, {s_rb}, 9')
    p(f's_add_u32 {T[6]}, {T[6]}, {FO}')
    p(f'buffer_load_dword v254, v116, {sWS}, {T[6]} offen sc1')
    R.vm.issue('t')


def touch_h1():
    p('v_min_u32 v116, 47, v1')
    p('v_lshlrev_b32 v116, 7, v116')
    p(f's_lshl_b32 {T[6]}, {s_rb}, 2')
    p(f's_add_u32 {T[6]}, {T[6]}, {s_q}')
    p(f's_mul_i32 {T[6]}, {T[6]}, {96 * 1024}')
    p(f's_mul_i32 {T[7]}, {s_c}, 6144')
    p(f's_add_u32 {T[6]}, {T[6]}, {T[7]}')
    p(f's_add_u32 {T[6]}, {T[6]}, {H1B}')
    p(f'buffer_load_dword v255, v116, {sWS}, {T[6]} offen sc1')
    R.vm.issue('t')


touch_o()
touch_fl()
R.dstamp('P2', 'pref')
att_2a(R)
R.vm.wait(['wo'])
R.dstamp('P2', 'wo')
R.bar()
R.stamp('B3')
R.dstamp('P2', 'B3')
p(f'v_mov_b32 v10, {S_MODE}')
p('ds_read_b32 v10, v10')
p('s_waitcnt lgkmcnt(0)')
p(f'v_readfirstlane_b32 {s_mode}, v10')


def w2_groups(lst, regs=None):
    lst = list(lst)
    while len(lst) % 4:
        lst.append(lst[-1])
    gs = []
    for n in range(len(lst) // 4):
        ks = lst[4 * n:4 * n + 4]
        src = [k * 16 * 1024 for k in ks]
        dst = [w2_pos[k] for k in ks]

        def sel(reg, vals):
            d = vals[1] - vals[0]
            if all(vals[q] == vals[0] + q * d for q in range(4)):
                p(f's_mul_i32 {reg}, {s_q}, {d}')
                p(f's_add_u32 {reg}, {reg}, {vals[0]}')
            else:
                p(f's_mov_b32 {reg}, {vals[0]}')
                for q in range(1, 4):
                    p(f's_cmp_eq_u32 {s_q}, {q}')
                    p(f's_cselect_b32 {reg}, {vals[q]}, {reg}')

        def g0(src=src, dst=dst, n=n):
            sel(T[6], src)
            if regs is None:
                sel(T[7], dst)
                p(f's_mov_b32 m0, {T[7]}')
                p(f'buffer_load_dwordx4 v115, {sW2}, {T[6]} offen lds')
            else:
                p(f'buffer_load_dwordx4 {vr(regs[2 * n], 4)}, v115, {sW2}, {T[6]} offen')
            R.vm.issue(('w2', 2 * n))

        def g1(n=n):
            p(f's_add_u32 {T[6]}, {T[6]}, 8192')
            if regs is None:
                p(f's_add_u32 m0, {T[7]}, 1024')
                p(f'buffer_load_dwordx4 v115, {sW2}, {T[6]} offen lds')
            else:
                p(f'buffer_load_dwordx4 {vr(regs[2 * n + 1], 4)}, v115, {sW2}, {T[6]} offen')
            R.vm.issue(('w2', 2 * n + 1))
        gs += [g0, g1]
    return gs


ex = [touch_h, touch_st]
if not OPT['h1sc1']:
    ex.append(touch_h1)
ex += w2_groups(W2_P1)
att_2b(R, ex, lambda: None)
p('v_min_u32 v10, 47, v1')
p('v_lshlrev_b32 v11, 2, v10')
p(f's_mul_i32 {T[0]}, {s_c}, 192')
p(f'buffer_load_dword v12, v11, {sB1}, {T[0]} offen')
R.vm.issue('b1')
p(f's_mul_i32 {T[0]}, {s_q}, {8 * 3072}')
p(f's_add_u32 {T[0]}, {T[0]}, {BASE}')
p(f'v_add_u32 v3, {T[0]}, v2')
R.bar()
for n in range(24):
    p(f'ds_write_b128 v3, {vr(STG[n], 4)} offset:{n * 1024}')
    if n % 4 == 3:
        p('s_waitcnt lgkmcnt(4)')
R.vm.wait(['b1'])
p('v_lshlrev_b32 v14, 16, v12')
p('v_and_b32 v15, 0xffff0000, v12')
p('v_lshlrev_b32 v11, 3, v10')
p(f'ds_write_b64 v11, v[14:15] offset:{S_B1}')
tr96_lane('v3')
p(f's_min_u32 {T[0]}, {s_q}, 2')
p(f's_lshl_b32 {T[0]}, {T[0]}, 6')
p(f'v_add_u32 v3, {T[0]}, v3')
p('v_add_u32 v4, 0x10000, v3')
p('s_waitcnt lgkmcnt(0)')
R.dstamp('P3', 'w1wr')
R.bar()
p('v_mov_b32 v18, 0x3f803f80')
p('v_mov_b32 v100, 0')
p('v_mov_b32 v101, 0')
R.bar()
for g in w2_groups(W2_REG):
    g()
for s0 in range(0, 36, 4):
    if s0 < 32:
        for s in range(s0, s0 + 4):
            for rd in range(2):
                dsr(R, 'ds_read_b64_tr_b16', vr(20 + 16 * ((s0 // 4) % 2) + 4 * (s % 4) + 2 * rd, 2), ['v3', 'v4'], w1_addr(s) + rd * 1536, ('c', s0))
    if s0 >= 4:
        R.lg.wait([('c', s0 - 4)])
        for r in range(16):
            p(f'v_dot2c_f32_bf16 v{100 + (r & 1)}, v{20 + 16 * ((s0 // 4 - 1) % 2) + r}, v18')
p('v_add_f32 v100, v100, v101')
half_sum('v100', 'v101')
p('v_and_b32 v10, 31, v1')
p('v_lshlrev_b32 v10, 2, v10')
p(f's_lshl_b32 {T[0]}, {T[0]}, 1')
p(f'v_add_u32 v10, {T[0]}, v10')
p(f'ds_write_b32 v10, v100 offset:{S_CS1}')
R.vm.wait_all()
p('s_waitcnt lgkmcnt(0)')
R.lg.reset()
R.dstamp('P3', 'cs1')
R.dstamp('P4', 'cs1')
R.bar()
LST = [120 + 4 * i for i in range(28)]
for g in w2_groups(late_order, LST):
    g()
p(f's_lshl_b32 {T[0]}, {s_q}, 11')
p(f's_add_u32 {T[0]}, {T[0]}, {BASE}')
p(f'v_add_u32 v3, {T[0]}, v2')
p('v_add_u32 v4, 0x10000, v3')
R.dstamp('P4', 'late')
R.bar()
for n in range(28):
    R.vm.wait([('w2', n)])
    off = (n // 2) * 8192 + (n % 2) * 1024
    p(f'ds_write_b128 v{3 + off // 65536}, {vr(LST[n], 4)} offset:{off % 65536}')
    if n % 4 == 3:
        p('s_waitcnt lgkmcnt(4)')
p('s_waitcnt lgkmcnt(0)')
R.dstamp('P5', 'latedone')
R.bar()
L7 = p.newlabel('L_n7')
p('s_cmp_lg_u32 s2, 0')
p(f's_cbranch_scc1 {L7}')
p(f's_cmp_lg_u32 {s_w}, 7')
p(f's_cbranch_scc1 {L7}')
p('v_lshlrev_b32 v12, 3, v1')
for q in range(4):
    p(f'v_add_u32 v10, {ST + 512 * q}, v12')
    poll(R, 'v10', 'v11')
p('v_mov_b32 v10, 0')
p(f'v_mov_b32 v11, {s_tag}')
p('s_mov_b64 exec, 1')
p(f'buffer_store_dword v11, v10, {sWS}, 0 offen sc1')
p('s_mov_b64 exec, -1')
p.label(L7)
R.bar()
R.bar()
dump_stamps(R)
p.label('L_end')
p('s_endpgm')
for b in tail:
    b()
tail = []

R = CW
p.label('L_CW')
srds_w()
if OPT['tmode'] == 0:
    for i in range(OPT['t0'], 8):
        wtouch(R, i)()
common_setup(R)
make_masks()
p(f's_and_b32 {s_q}, {s_w}, 3')
p('v_and_b32 v10, 31, v1')
p(f's_lshl_b32 {T[0]}, {s_tt}, 5')
p(f'v_add_u32 v10, {T[0]}, v10')
p('v_bfe_u32 v11, v10, 1, 3')
p('v_lshrrev_b32 v12, 5, v1')
p('v_xor_b32 v11, v11, v12')
p('v_lshlrev_b32 v11, 4, v11')
p('v_lshl_add_u32 v9, v10, 7, v11')
p(f's_lshl_b32 {T[0]}, {s_rb}, 11')
p(f's_add_u32 {T[0]}, {T[0]}, {RST}')
p(f'v_lshlrev_b32 v8, 4, v10')
p(f'v_add_u32 v8, {T[0]}, v8')
tr_nat_lane('v19')
XF = [20, 36]
WF = [52, 100]
AQ, AK, AV = 196, 212, 228
GR = 148


def p1_addrs(ch):
    slot = RING + (ch % NSLOT) * SLOT
    p(f'v_add_u32 v10, {slot}, v9')
    for ks in range(1, 4):
        p(f'v_xor_b32 v{10 + ks}, {32 * ks}, v10')
    p(f'v_add_u32 v14, {slot + 16384}, v19')


def p1_reads(ch):
    b = ch & 1
    out = []
    for ks in range(4):
        out.append(f'ds_read_b128 {vr(XF[b] + 4 * ks, 4)}, v{10 + ks}')
        for sec in (1, 2, 0):
            for rd in range(2):
                out.append(f'ds_read_b64_tr_b16 {vr(WF[b] + 16 * sec + 4 * ks + 2 * rd, 2)}, v14 offset:{ks * 3072 + rd * 768 + sec * 64}')
    return out


def p1_mfmas(ch):
    a = ch & 1
    out = []
    for ks in range(4):
        first = ch == 0 and ks == 0
        x = vr(XF[a] + 4 * ks, 4)
        c = lambda r: '0' if first else vr(r, 16)
        out.append(f'v_mfma_f32_32x32x16_bf16 {vr(AK, 16)}, {vr(WF[a] + 16 + 4 * ks, 4)}, {x}, {c(AK)}')
        out.append(f'v_mfma_f32_32x32x16_bf16 {vr(AV, 16)}, {x}, {vr(WF[a] + 32 + 4 * ks, 4)}, {c(AV)}')
        out.append(f'v_mfma_f32_32x32x16_bf16 {vr(AQ, 16)}, {vr(WF[a] + 4 * ks, 4)}, {x}, {c(AQ)}')
    return out


def weave(R, mf, lds, extra=(), per=3):
    lds = list(lds)
    extra = list(extra)
    n = 0

    def emit_lds(k):
        nonlocal n
        for _ in range(k):
            if not lds:
                return
            if n and n % 7 == 0 and n >= 14:
                p('s_waitcnt lgkmcnt(7)')
            p(lds.pop(0))
            n += 1
    for i, m in enumerate(mf):
        p(m)
        emit_lds(per)
        if extra and i % 3 == 2:
            extra.pop(0)()
    emit_lds(99)
    for g in extra:
        g()


p1_addrs(0)
R.stamp('start')
CSQ, CSK, RR, MM, CSV = 52, 68, 20, 84, 152
for ch in range(8):
    p('s_waitcnt lgkmcnt(0)')
    if ch >= 4:
        R.dstamp('P1', f'pre{ch}')
    R.bar()
    R.dstamp('P1', f'bar{ch}')
    extra = []
    if ch == 5:
        def ld():
            p(f'buffer_load_dwordx4 {vr(GR, 4)}, v8, {sWS}, 0 offen sc1')
            R.vm.issue('gr')
        extra = [ld]
    weave(R, p1_mfmas(ch - 1) if ch else [], p1_reads(ch), extra)
    if ch < 7:
        p1_addrs(ch + 1)
Lg = p.newlabel('L_gr')
Lgx = p.newlabel('L_grx')
R.vm.wait(['gr'])
p(f's_mov_b32 {T[0]}, 0')
p.label(Lg)
p(f'v_cmp_ne_u32 vcc, {s_tag}, v{GR + 1}')
p(f'v_cmp_ne_u32 s[56:57], {s_tag}, v{GR + 3}')
p('s_or_b64 vcc, vcc, s[56:57]')
p(f's_cbranch_vccnz {Lgx}')
Lgd = p.newlabel('L_grd')
p.label(Lgd)


def gr_retry():
    p.label(Lgx)
    p(f'buffer_load_dwordx4 {vr(GR, 4)}, v8, {sWS}, 0 offen sc1')
    p('s_waitcnt vmcnt(0)')
    p(f's_add_u32 {T[0]}, {T[0]}, 1')
    p(f's_cmp_lt_u32 {T[0]}, {OPT["spin"]}')
    p(f's_cbranch_scc1 {Lg}')
    p(f's_branch {Lgd}')


tail.append(gr_retry)
p('v_and_b32 v10, 31, v1')
p('v_lshlrev_b32 v10, 2, v10')
p(f's_lshl_b32 {T[0]}, {s_tt}, 7')
p(f'v_add_u32 v11, {T[0]}, v10')
p(f'ds_write_b32 v11, v{GR} offset:{S_R}')
p(f'ds_write_b32 v11, v{GR + 2} offset:{S_M}')
p('v_lshrrev_b32 v12, 5, v1')
p('v_lshlrev_b32 v12, 4, v12')
p(f'v_add_u32 v13, {T[0]}, v12')
p('s_waitcnt lgkmcnt(0)')
R.bar()
R.stamp('B1')
R.dstamp('P2', 'B1')
lds = [f'ds_read_b128 {vr(CSK + 4 * g, 4)}, v12 offset:{S_CS + 128 + 32 * g}' for g in range(4)]
lds += [f'ds_read_b32 v{CSV}, v10 offset:{S_CS + 256}']
lds += [f'ds_read_b128 {vr(MM + 4 * g, 4)}, v13 offset:{S_M + 32 * g}' for g in range(4)]
lds += [f'ds_read_b128 {vr(RR + 4 * g, 4)}, v13 offset:{S_R + 32 * g}' for g in range(4)]
lds += [f'ds_read_b128 {vr(CSQ + 4 * g, 4)}, v12 offset:{S_CS + 32 * g}' for g in range(4)]


def pub_addrs():
    p(f's_lshl_b32 {T[0]}, {s_tt}, 11')
    p(f's_add_u32 {T[1]}, {T[0]}, {L_K + 8 * 2048}')
    p(f'v_add_u32 v15, {T[1]}, v2')
    p(f's_mul_i32 {T[0]}, {s_tt}, {2 * VSTR}')
    p(f's_add_u32 {T[0]}, {T[0]}, {L_V + 16 * VSTR}')
    p(f'v_add_u32 v16, {T[0]}, v2')
    p(f's_lshl_b32 {T[2]}, {s_rb}, 4')
    p(f's_add_u32 {T[2]}, {T[2]}, {s_c}')
    p(f's_lshl_b32 {T[4]}, {T[2]}, 5')
    p(f's_add_u32 {T[4]}, {T[4]}, {s_w}')
    p(f's_lshl_b32 {T[4]}, {T[4]}, 2')
    p(f's_add_u32 {T[4]}, {T[4]}, {FKV}')
    p(f's_lshl_b32 {T[2]}, {T[2]}, 2')
    p(f's_add_u32 {T[2]}, {T[2]}, {s_w}')
    p(f's_lshl_b32 {T[2]}, {T[2]}, 12')
    p(f's_add_u32 {T[2]}, {T[2]}, {KVB}')


def pre_k():
    p('s_waitcnt lgkmcnt(4)')
    for i in range(16):
        p(f'v_mul_f32 v{CSK + i}, v{GR + 2}, v{CSK + i}')


def pre_v():
    for i in range(16):
        p(f'v_mul_f32 v{MM + i}, v{CSV}, v{MM + i}')


def pre_q():
    p('s_waitcnt lgkmcnt(0)')
    p(f'v_mul_f32 v153, {fhex(0.25 * LOG2E)}, v{GR}')
    p(f'v_mul_f32 v154, {fhex(0.25 * LOG2E)}, v{GR + 2}')
    for i in range(16):
        p(f'v_mul_f32 v{CSQ + i}, v154, v{CSQ + i}')


mf = p1_mfmas(7)
mf = [m for m in mf if vr(AK, 16) + ',' in m.split(' ', 1)[1][:12]] + [m for m in mf if vr(AV, 16) + ',' in m.split(' ', 1)[1][:12]] + [m for m in mf if vr(AQ, 16) + ',' in m.split(' ', 1)[1][:12]]
assert len(mf) == 12
weave(R, mf, lds, [pub_addrs, pre_k, pre_v, pre_q], per=6)
for i in range(16):
    p(f'v_fma_f32 v{AK + i}, v{AK + i}, v{GR}, -v{CSK + i}')
for r in range(8):
    p(f'v_cvt_pk_bf16_f32 v{104 + r}, v{AK + 2 * r}, v{AK + 2 * r + 1}')
for g in range(2):
    p(f'buffer_store_dwordx4 {vr(104 + 4 * g, 4)}, v2, {sWS}, {T[2]} offen offset:{g * 1024} sc1')
    R.vm.issue('st')
for i in range(16):
    p(f'v_fma_f32 v{AV + i}, v{AV + i}, v{RR + i}, -v{MM + i}')
for r in range(8):
    p(f'v_cvt_pk_bf16_f32 v{112 + r}, v{AV + 2 * r}, v{AV + 2 * r + 1}')
for g in range(2):
    p(f'buffer_store_dwordx4 {vr(112 + 4 * g, 4)}, v2, {sWS}, {T[2]} offen offset:{2048 + g * 1024} sc1')
    R.vm.issue('st')
for g in range(2):
    p(f'ds_write_b128 v15, {vr(104 + 4 * g, 4)} offset:{g * 1024}')
    p(f'ds_write_b128 v16, {vr(112 + 4 * g, 4)} offset:{g * VSTR}')
for i in range(16):
    p(f'v_fma_f32 v{AQ + i}, v{AQ + i}, v153, -v{CSQ + i}')
for r in range(4):
    p(f'v_cvt_pk_bf16_f32 v{120 + r}, v{AQ + 8 + 2 * r}, v{AQ + 8 + 2 * r + 1}')
p(f's_lshl_b32 {T[0]}, {s_tt}, 10')
p(f's_add_u32 {T[0]}, {T[0]}, {L_HI}')
p(f'v_add_u32 v12, {T[0]}, v2')
p('ds_write_b128 v12, v[120:123]')
for r in range(4):
    p(f'v_cvt_pk_bf16_f32 v{VQ + r}, v{AQ + 2 * r}, v{AQ + 2 * r + 1}')
att_addrs()
R.dstamp('P2', 'epi')
p('s_waitcnt lgkmcnt(0)')
R.lg.reset()
R.bar()
R.stamp('B2')
R.dstamp('P2', 'B2')
att_2a(R, lambda: flag_store(R, T[4], 'v10', 'v11', moded=False))
p('v_and_b32 v10, 31, v1')
p('v_lshlrev_b32 v10, 3, v10')
p(f's_lshl_b32 {T[1]}, {s_team}, 8')
p(f's_add_u32 {T[1]}, {T[1]}, {ST}')
p(f'v_add_u32 v10, {T[1]}, v10')
poll(R, 'v10', 'v[12:13]', wide=True)
R.dstamp('P2', 'team')
p(f'v_readfirstlane_b32 {T[1]}, v13')
p(f'v_cmp_ne_u32 vcc, {T[1]}, v13')
p('s_cmp_eq_u64 vcc, 0')
p(f's_cselect_b32 {s_mode}, 1, 0')
if OPT['force_safe']:
    p(f's_mov_b32 {s_mode}, 0')
p(f'v_mov_b32 v10, {S_MODE}')
p(f'v_mov_b32 v11, {s_mode}')
p('ds_write_b32 v10, v11')
for d in (1, 2):
    H = HALO + 16 * (2 - d)
    Lz = p.newlabel('L_nohalo')
    Lw = p.newlabel('L_halow')
    p(f's_cmp_lt_u32 {s_rb}, {d}')
    p(f's_cbranch_scc1 {Lz}')
    p(f's_sub_u32 {T[1]}, {T[4]}, {d * 16 * 128}')
    p(f'v_mov_b32 v10, {T[1]}')
    p(f's_sub_u32 {T[3]}, {T[2]}, {d * 16 * 16384}')
    poll(R, 'v10', 'v11')
    for q in range(4):
        p(f'buffer_load_dwordx4 {vr(H + 4 * q, 4)}, v2, {sWS}, {T[3]} offen offset:{q * 1024} sc1')
    p.label(Lw)

    def zero_blk(Lz=Lz, Lw=Lw, H=H):
        p.label(Lz)
        for r in range(16):
            p(f'v_mov_b32 v{H + r}, 0')
        p('s_waitcnt vmcnt(0)')
        p(f's_branch {Lw}')
    tail.append(zero_blk)
    R.dstamp('P2', f'kvpoll{d}')
    if d == 1:
        p(f'v_subrev_u32 v15, {8 * 2048}, v15')
        p(f'v_subrev_u32 v16, {16 * VSTR}, v16')
    if d == 2:
        for g in range(2):
            p(f'ds_write_b128 v15, {vr(HALO + 16 + 4 * g, 4)} offset:{4 * 2048 + g * 1024}')
            p(f'ds_write_b128 v16, {vr(HALO + 24 + 4 * g, 4)} offset:{(8 + g) * VSTR}')
XRES = 240
HRES = 248
p('v_and_b32 v10, 31, v1')
p(f's_lshl_b32 {T[0]}, {s_rs}, 1')
p(f's_add_u32 {s_tile}, {T[0]}, {s_t}')
p(f's_lshl_b32 {T[0]}, {s_tile}, 5')
p(f'v_add_u32 v10, {T[0]}, v10')
p('v_lshlrev_b32 v10, 10, v10')
p('v_lshrrev_b32 v11, 5, v1')
p('v_lshl_add_u32 v10, v11, 3, v10')
p(f's_lshl_b32 {T[0]}, {s_cb}, 7')
p(f's_lshl_b32 {T[1]}, {s_kh}, 6')
p(f's_add_u32 {T[0]}, {T[0]}, {T[1]}')
p(f'v_add_u32 v9, {T[0]}, v10')
p('s_waitcnt vmcnt(0)')
for g in range(2):
    p(f'ds_write_b128 v15, {vr(HALO + 4 * g, 4)} offset:{g * 1024}')
    p(f'ds_write_b128 v16, {vr(HALO + 8 + 4 * g, 4)} offset:{g * VSTR}')
R.vm.reset()
for g in range(4):
    p(f'buffer_load_dwordx2 {vr(XRES + 2 * g, 2)}, v9, {sX}, 0 offen offset:{16 * g}')
    R.vm.issue('xres')
tr64_lanes('v4', 'v5')
p(f's_lshl_b32 {T[0]}, {s_kh}, 15')
p(f's_add_u32 {T[0]}, {T[0]}, {L_WO}')
p(f'v_add_u32 v6, {T[0]}, v4')
p(f'v_add_u32 v7, {T[0]}, v5')
p('s_waitcnt lgkmcnt(0)')
R.dstamp('P2', 'halo')
R.bar()
R.stamp('B3')
R.dstamp('P2', 'B3')
WOF, OF, ACC3 = 16, 144, 208


def wo_reads(lo, hi):
    for s in range(lo, hi):
        for nt in range(2):
            for rd in range(2):
                p(f'ds_read_b64_tr_b16 {vr(WOF + 8 * s + 4 * nt + 2 * rd, 2)}, v{6 + nt} offset:{s * 2048 + rd * 1024}')
        if s % 2 == 1:
            p('s_waitcnt lgkmcnt(4)')


att_2b(R, [], lambda: wo_reads(0, 8))
p('s_setprio 2')
wo_reads(8, 16)
p('v_and_b32 v8, 15, v1')
p('v_lshlrev_b32 v8, 2, v8')
p(f's_lshl_b32 {T[0]}, {s_tile}, 1')
p(f's_add_u32 {T[0]}, {T[0]}, {s_kh}')
p(f's_lshl_b32 {T[1]}, {T[0]}, 14')
p(f's_lshl_b32 {T[0]}, {T[0]}, 6')
p(f's_add_u32 {T[0]}, {T[0]}, {FO}')
p(f'v_add_u32 v10, {T[0]}, v8')
p('s_waitcnt lgkmcnt(0)')
R.bar()
R.dstamp('P3', 'B5')
poll(R, 'v10', 'v11')
R.stamp('Opoll')
R.dstamp('P3', 'Opoll')


def o_load(s):
    if s % 4 == 0:
        p(f's_add_u32 {T[2]}, {T[1]}, {OB + s * 1024}')
    p(f'buffer_load_dwordx4 {vr(OF + 4 * s, 4)}, v2, {sWS}, {T[2]} offen offset:{(s % 4) * 1024} sc1')
    R.vm.issue(('o', s))


AH = 6
for s in range(AH):
    o_load(s)
for s in range(16):
    R.vm.wait([('o', s)])
    for nt in range(2):
        p(f'v_mfma_f32_32x32x16_bf16 {vr(ACC3 + 16 * nt, 16)}, {vr(WOF + 8 * s + 4 * nt, 4)}, {vr(OF + 4 * s, 4)}, {"0" if s == 0 else vr(ACC3 + 16 * nt, 16)}')
        if nt == 0 and s + AH < 16:
            o_load(s + AH)
R.dstamp('P3', 'loop')


def exchange(R, acc, dst, pre_barrier):
    p(f's_lshl_b32 {T[0]}, {s_w}, 12')
    p(f's_add_u32 {T[0]}, {T[0]}, {L_X}')
    p(f'v_add_u32 v10, {T[0]}, v2')
    p(f's_xor_b32 {T[0]}, {s_w}, 2')
    p(f's_lshl_b32 {T[0]}, {T[0]}, 12')
    p(f's_add_u32 {T[0]}, {T[0]}, {L_X}')
    p(f'v_add_u32 v11, {T[0]}, v2')
    if pre_barrier:
        R.bar()
    La = p.newlabel('L_xa')
    Lb = p.newlabel('L_xb')
    p(f's_cmp_eq_u32 {s_kh}, 0')
    p(f's_cbranch_scc0 {La}')
    for g in range(4):
        p(f'ds_write_b128 v10, {vr(acc + 16 + 4 * g, 4)} offset:{g * 1024}')
    p.label(Lb)

    def blk():
        p.label(La)
        for g in range(4):
            p(f'ds_write_b128 v10, {vr(acc + 4 * g, 4)} offset:{g * 1024}')
        p('s_waitcnt lgkmcnt(0)')
        for i in range(16):
            p(f'v_mov_b32 v{acc + i}, v{acc + 16 + i}')
        p(f's_branch {Lb}')
    tail.append(blk)
    p('s_waitcnt lgkmcnt(0)')
    R.bar()
    for g in range(4):
        p(f'ds_read_b128 {vr(dst + 4 * g, 4)}, v11 offset:{g * 1024}')
    for g in range(4):
        p(f's_waitcnt lgkmcnt({3 - g})')
        for i in range(4):
            p(f'v_add_f32 v{dst + 4 * g + i}, v{dst + 4 * g + i}, v{acc + 4 * g + i}')
    R.lg.reset()


exchange(R, ACC3, 16, False)
R.dstamp('P3', 'xchg')
for g in range(4):
    for k in range(2):
        x = XRES + 2 * g + k
        p(f'v_lshlrev_b32 v10, 16, v{x}')
        p(f'v_and_b32 v11, 0xffff0000, v{x}')
        p(f'v_add_f32 v{16 + 4 * g + 2 * k}, v{16 + 4 * g + 2 * k}, v10')
        p(f'v_add_f32 v{16 + 4 * g + 2 * k + 1}, v{16 + 4 * g + 2 * k + 1}, v11')
for r in range(8):
    p(f'v_cvt_pk_bf16_f32 v{HRES + r}, v{16 + 2 * r}, v{16 + 2 * r + 1}')
p(f's_lshl_b32 {T[0]}, {s_cb}, 1')
p(f's_add_u32 {T[0]}, {T[0]}, {s_kh}')
p(f's_lshl_b32 {T[3]}, {s_tile}, 4')
p(f's_add_u32 {T[3]}, {T[3]}, {T[0]}')
p(f's_lshl_b32 {T[1]}, {T[3]}, 11')
p(f's_add_u32 {T[1]}, {T[1]}, {HB}')
moded_stores(R, [f'buffer_store_dwordx4 {vr(HRES, 4)}, v2, {sWS}, {T[1]} offen',
                 f'buffer_store_dwordx4 {vr(HRES + 4, 4)}, v2, {sWS}, {T[1]} offen offset:1024'])
p('v_mov_b32 v18, 0x3f803f80')
p('v_mov_b32 v12, 0')
p('v_mov_b32 v13, 0')
for r in range(8):
    p(f'v_dot2c_f32_bf16 v12, v{HRES + r}, v18')
    p(f'v_dot2c_f32_bf16 v13, v{HRES + r}, v{HRES + r}')
p(f's_lshl_b32 {T[2]}, {T[3]}, 8')
p(f's_add_u32 {T[2]}, {T[2]}, {STB}')
p(f's_lshl_b32 {T[3]}, {s_tile}, 5')
p(f's_add_u32 {T[3]}, {T[3]}, {T[0]}')
p(f's_lshl_b32 {T[3]}, {T[3]}, 2')
p(f's_add_u32 {T[3]}, {T[3]}, {FH}')
p('v_and_b32 v14, 31, v1')
p('v_lshlrev_b32 v14, 3, v14')
half_sum('v12', 'v10')
half_sum('v13', 'v10')
moded_stores(R, [f'buffer_store_dwordx2 v[12:13], v14, {sWS}, {T[2]} offen'])
R.bar()
HF, ACC4, W1B, STL = 16, 144, 192, 228
tr96_lane('v3')
p('v_add_u32 v6, 0x10000, v3')
W1A = ['v3', 'v6']


def w1_reads(s):
    b = W1B + 12 * (s % 3)
    for nt in range(3):
        for rd in range(2):
            dsr(R, 'ds_read_b64_tr_b16', vr(b + 4 * nt + 2 * rd, 2), W1A, w1_addr(s) + rd * 1536 + nt * 64, ('w1', s))


w1_reads(0)
w1_reads(1)
flag_store(R, T[3], 'v10', 'v11')
R.stamp('Hflag')
R.dstamp('P3', 'Hflag')
p(f's_lshl_b32 {T[0]}, {s_rb}, 2')
p(f's_add_u32 {T[5]}, {T[0]}, {s_w}')
p(f's_lshl_b32 {T[1]}, {T[5]}, 15')
p(f's_lshl_b32 {T[3]}, {T[5]}, 12')
p(f's_add_u32 {T[3]}, {T[3]}, {STB}')
p('v_lshrrev_b32 v12, 5, v1')
p('v_lshlrev_b32 v12, 11, v12')
p('v_add_u32 v12, v12, v14')
p(f's_lshl_b32 {T[0]}, {T[5]}, 7')
p(f's_add_u32 {T[0]}, {T[0]}, {FH}')
p(f'v_add_u32 v10, {T[0]}, v8')
poll(R, 'v10', 'v11')
R.stamp('Hpoll')
R.dstamp('P4', 'Hpoll')


def h_load(s):
    if s % 4 == 0:
        p(f's_add_u32 {T[2]}, {T[1]}, {HB + s * 1024}')
    p(f'buffer_load_dwordx4 {vr(HF + 4 * s, 4)}, v2, {sWS}, {T[2]} offen offset:{(s % 4) * 1024} sc1')
    R.vm.issue(('h', s))


nh = 0
for s in range(6):
    h_load(nh)
    nh += 1
nst = 0
b8b = False
for s in range(32):
    R.vm.wait([('h', s)])
    if s in (0, 8, 16, 24, 31):
        R.dstamp('P4', f'h{s}')
    R.lg.wait([('w1', s)])
    b = W1B + 12 * (s % 3)
    for nt in range(3):
        p(f'v_mfma_f32_32x32x16_bf16 {vr(ACC4 + 16 * nt, 16)}, {vr(b + 4 * nt, 4)}, {vr(HF + 4 * s, 4)}, {"0" if s == 0 else vr(ACC4 + 16 * nt, 16)}')
        if nt == 0 and s + 2 < 32:
            w1_reads(s + 2)
        if nt >= 1 and nh < 32 and (nt == 1 or s % 2 == 0):
            h_load(nh)
            nh += 1
        elif nt >= 1 and nh >= 32 and nst < 8:
            p(f'buffer_load_dwordx2 {vr(STL + 2 * nst, 2)}, v12, {sWS}, {T[3]} offen offset:{nst * 256} sc1')
            R.vm.issue('stl')
            nst += 1
    if nst == 8 and not b8b:
        b8b = True
        R.bar()
        R.dstamp('P4', 'B8')
    if s == 27:
        R.vm.wait(['stl'])
        for q in range(1, 8):
            p(f'v_add_f32 v{STL}, v{STL}, v{STL + 2 * q}')
            p(f'v_add_f32 v{STL + 1}, v{STL + 1}, v{STL + 2 * q + 1}')
    if s == 28:
        half_sum(f'v{STL}', 'v10')
        half_sum(f'v{STL + 1}', 'v10')
        ln_finish(f'v{STL}', f'v{STL + 1}', 'v244', 'v245')
assert nh == 32 and nst == 8
W2R = 16
p(f's_lshl_b32 {T[0]}, {s_kh}, 13')
p(f's_add_u32 {T[0]}, {T[0]}, {L_X}')
p(f'v_add_u32 v6, {T[0]}, v4')
p(f'v_add_u32 v7, {T[0]}, v5')
for s in range(4):
    for nt in range(2):
        for rd in range(2):
            p(f'ds_read_b64_tr_b16 {vr(W2R + 8 * s + 4 * nt + 2 * rd, 2)}, v{6 + nt} offset:{s * 2048 + rd * 1024}')
    if s == 1:
        p('s_waitcnt lgkmcnt(4)')
p('v_lshrrev_b32 v12, 5, v1')
p('v_lshlrev_b32 v12, 4, v12')
CS1, B1R, PK = 48, 96, 192


def e_reads(nt):
    for g in range(4):
        p(f'ds_read_b128 {vr(CS1 + 16 * nt + 4 * g, 4)}, v12 offset:{S_CS1 + 128 * nt + 32 * g}')
        R.lg.issue(('e', nt))
    for g in range(4):
        p(f'ds_read_b128 {vr(B1R + 16 * nt + 4 * g, 4)}, v12 offset:{S_B1 + 128 * nt + 32 * g}')
        R.lg.issue(('e', nt))


p('s_waitcnt lgkmcnt(0)')
R.lg.reset()
e_reads(0)
R.dstamp('P4', 'preB9')
R.bar()
R.stamp('B9')
R.dstamp('P4', 'B9')
p(f's_mul_i32 {T[0]}, {s_c}, 6144')
p(f's_mul_i32 {T[1]}, {T[5]}, {96 * 1024}')
p(f's_add_u32 {T[1]}, {T[1]}, {T[0]}')
p(f's_add_u32 {T[1]}, {T[1]}, {H1B}')
p(f's_add_u32 {T[2]}, {T[1]}, 4096')
p(f's_lshl_b32 {T[3]}, {T[5]}, 5')
p(f's_add_u32 {T[3]}, {T[3]}, {s_c}')
p(f's_lshl_b32 {T[3]}, {T[3]}, 2')
p(f's_add_u32 {T[3]}, {T[3]}, {FH1}')
for nt in range(3):
    R.lg.wait([('e', nt)])
    if nt < 2:
        e_reads(nt + 1)
    for i in range(16):
        a = ACC4 + 16 * nt + i
        p(f'v_fma_f32 v{B1R + 16 * nt + i}, -v245, v{CS1 + 16 * nt + i}, v{B1R + 16 * nt + i}')
        p(f'v_fma_f32 v{a}, v{a}, v244, v{B1R + 16 * nt + i}')
        p(f'v_max_f32 v{a}, 0, v{a}')
        p(f'v_mul_f32 v{a}, v{a}, v{a}')
    for r in range(8):
        p(f'v_cvt_pk_bf16_f32 v{PK + 8 * nt + r}, v{ACC4 + 16 * nt + 2 * r}, v{ACC4 + 16 * nt + 2 * r + 1}')
    st = []
    for g in range(2):
        f = 2 * nt + g
        st.append(f'buffer_store_dwordx4 {vr(PK + 8 * nt + 4 * g, 4)}, v2, {sWS}, {T[1 + f // 4]} offen offset:{(f % 4) * 1024}')
    if OPT['h1sc1']:
        for x in st:
            p(x + ' sc1')
            R.vm.issue('st')
    else:
        moded_stores(R, st)
R.dstamp('P4', 'epi')
ACC5, W2B, H1F, B2R = 48, 80, 104, 240
NRING = 16
p(f's_mul_i32 {T[0]}, {s_kh}, {11 * 2048}')
p(f'v_add_u32 v6, {T[0]}, v4')
p(f'v_add_u32 v7, {T[0]}, v5')
p('v_add_u32 v6, 0x10000, v6')
p('v_add_u32 v7, 0x10000, v7')
p('v_add_u32 v12, 0x10000, v6')
p('v_add_u32 v13, 0x10000, v7')
p(f's_lshl_b32 {T[0]}, {s_kh}, 11')
p(f'v_add_u32 v4, {T[0]}, v4')
p(f'v_add_u32 v5, {T[0]}, v5')
p('v_add_u32 v14, 0x10000, v4')
p('v_add_u32 v15, 0x10000, v5')
for i in range(4, 15):
    assert w2_pos[43 + i] - w2_pos[i] == 11 * 2048
for i in range(15, 43):
    assert w2_pos[43 + i] - w2_pos[i] == 2048


def w2_reads(i):
    b = W2B + 8 * (i % 3)
    for nt in range(2):
        if i < 15:
            bases = [None, 'v6' if nt == 0 else 'v7', 'v12' if nt == 0 else 'v13']
        else:
            bases = ['v4' if nt == 0 else 'v5', 'v14' if nt == 0 else 'v15']
        for rd in range(2):
            dsr(R, 'ds_read_b64_tr_b16', vr(b + 4 * nt + 2 * rd, 2), bases, w2_pos[i] + rd * 1024, ('w2', i))


w2_reads(4)
w2_reads(5)
flag_store(R, T[3], 'v10', 'v11')
R.stamp('H1flag')
R.dstamp('P4', 'H1flag')
R.dstamp('P5', 'H1flag')
p('v_lshrrev_b32 v10, 5, v1')
p('v_lshlrev_b32 v10, 3, v10')
p(f's_lshl_b32 {T[0]}, {s_cb}, 7')
p(f's_lshl_b32 {T[1]}, {s_kh}, 6')
p(f's_add_u32 {T[0]}, {T[0]}, {T[1]}')
for g in range(4):
    p(f'buffer_load_dwordx2 {vr(B2R + 2 * g, 2)}, v10, {sB2}, {T[0]} offen offset:{16 * g}')
p('v_and_b32 v10, 28, v8')
p(f's_lshl_b32 {T[1]}, {s_tile}, 7')
p(f's_mul_i32 {T[0]}, {s_kh}, 28')
p(f's_add_u32 {T[1]}, {T[1]}, {T[0]}')
p(f's_add_u32 {T[1]}, {T[1]}, {FH1}')
p(f'v_add_u32 v10, {T[1]}, v10')
p(f's_mul_i32 {T[1]}, {s_tile}, {96 * 1024}')
p(f's_mul_i32 {T[2]}, {s_kh}, {43 * 1024}')
p(f's_add_u32 {T[1]}, {T[1]}, {T[2]}')
p(f's_add_u32 {T[1]}, {T[1]}, {H1B}')
poll(R, 'v10', 'v11')
R.stamp('H1poll')
R.dstamp('P5', 'H1poll')


def h1_load(i):
    if i % 4 == 0:
        p(f's_add_u32 {T[2]}, {T[1]}, {i * 1024}')
    p(f'buffer_load_dwordx4 {vr(H1F + 4 * (i % NRING), 4)}, v2, {sWS}, {T[2]} offen offset:{(i % 4) * 1024} sc1')
    R.vm.issue(('h1', i))


AH = 8
for i in range(AH):
    h1_load(i)
for i in range(43):
    if i == 13:
        R.dstamp('P5', 'preB11')
        R.bar()
        R.dstamp('P5', 'B11')
    R.vm.wait([('h1', i)])
    if i in (0, 28):
        R.dstamp('P5', f'h1_{i}')
    if i >= 4:
        R.lg.wait([('w2', i)])
    b = W2R + 8 * i if i < 4 else W2B + 8 * (i % 3)
    for nt in range(2):
        p(f'v_mfma_f32_32x32x16_bf16 {vr(ACC5 + 16 * nt, 16)}, {vr(b + 4 * nt, 4)}, {vr(H1F + 4 * (i % NRING), 4)}, {"0" if i == 0 else vr(ACC5 + 16 * nt, 16)}')
        if nt == 0 and i >= 4 and i + 2 < 43:
            w2_reads(i + 2)
        if nt == 1 and i + AH < 43:
            h1_load(i + AH)
R.dstamp('P5', 'loop')
exchange(R, ACC5, 16, True)
R.stamp('B13')
R.dstamp('P5', 'B13')
for g in range(4):
    for k in range(2):
        for src in (B2R + 2 * g + k, HRES + 2 * g + k):
            p(f'v_lshlrev_b32 v10, 16, v{src}')
            p(f'v_and_b32 v11, 0xffff0000, v{src}')
            p(f'v_add_f32 v{16 + 4 * g + 2 * k}, v{16 + 4 * g + 2 * k}, v10')
            p(f'v_add_f32 v{16 + 4 * g + 2 * k + 1}, v{16 + 4 * g + 2 * k + 1}, v11')
for r in range(8):
    p(f'v_cvt_pk_bf16_f32 v{32 + r}, v{16 + 2 * r}, v{16 + 2 * r + 1}')
p('v_lshrrev_b32 v10, 5, v1')
p('v_lshl_add_u32 v9, v10, 3, v9')
for q in range(2):
    p(f'v_permlane32_swap_b32 v{32 + 4 * q}, v{32 + 4 * q + 2}')
    p(f'v_permlane32_swap_b32 v{32 + 4 * q + 1}, v{32 + 4 * q + 3}')
    p(f'buffer_store_dwordx4 {vr(32 + 4 * q, 4)}, v9, {sOUT}, 0 offen offset:{32 * q}')
dump_stamps(R)
p('s_endpgm')
for b in tail:
    b()
tail = []

assert CW.nbar == HW.nbar, (CW.nbar, HW.nbar)

p.fix_hazards()

hdr = open(os.path.join(os.path.dirname(os.path.abspath(__file__)), '..', 'cdna_kernels', NAME + '.s.ref')).read().split('\n')
top = [l for l in hdr if l.startswith(';') and '@launch' not in l and 'Override' not in l and 'grid=ceil' not in l]
out = '\n'.join(top) + '\n'
out += f'; @launch grid=(256,1,1) block=(512,1,1) lds={LDS_BYTES}\n'
out += f'''.amdgcn_target "amdgcn-amd-amdhsa--gfx950"
.text
.globl {KNAME}
.p2align 8
.type {KNAME},@function
'''
out += p.text()
out += f'''.section .rodata,"a"
.p2align 6
.amdhsa_kernel {KNAME}
  .amdhsa_next_free_vgpr 256
  .amdhsa_next_free_sgpr 102
  .amdhsa_accum_offset 256
  .amdhsa_group_segment_fixed_size 0
  .amdhsa_kernarg_size 88
  .amdhsa_user_sgpr_count 2
  .amdhsa_user_sgpr_kernarg_segment_ptr 1
  .amdhsa_system_sgpr_workgroup_id_x 1
.end_amdhsa_kernel
'''
open(sys.argv[1], 'w').write(out)
if OPT['stamps']:
    import json
    json.dump(STAMPS, open(sys.argv[1] + '.stamps.json', 'w'))
print('instructions:', sum(1 for x in p.ins if x.kind not in ('label', 'dir')), 'maxv', p.maxreg('v'), 'maxs', p.maxreg('s'), 'barriers', CW.nbar)
```

```python
import sys
import os
sys.path.insert(0, os.path.dirname(os.path.abspath(__file__)))
from asmlib import Prog, Cnt

NAME = 'sequential_preLN__sliding_block__dense_activation_squared_relu__prompt'
KNAME = NAME + '_kernel'

OPT = dict(stamps=False, force_safe=False, force_fallback=False, spin=200000, h1sc1=0, mallwarm=1, p1touch=1, la=3, t0=2, tmode=1)
for a in sys.argv[2:]:
    k, _, v = a.partition('=')
    OPT[k] = int(v) if v else True

EPOCH = 0x0
ST = 0x1000
FKV = 0x2000
FO = 0xA000
FH = 0xC000
FH1 = 0xE000
RST = 0x10000
KVB = 0x100000
OB = 0x500000
HB = 0x700000
STB = 0x900000
H1B = 0xA00000
WS_END = 0x1000000
STAMP = 0x1000000
WS_SIZE = 0x1100000

S_R = 0
S_M = 512
S_CS = 1024
S_CS1 = 1536
S_B1 = 2048
S_TAG = 2560
S_MODE = 2564
BASE = 3072
RING = BASE
SLOT = 28672
NSLOT = 4
L_WO = BASE
L_K = BASE + 64 * 1024
L_V = L_K + 24 * 1024
VSTR = 1040
L_HI = 116 * 1024
assert L_V + 24 * VSTR <= L_HI and RING + NSLOT * SLOT <= L_HI
L_X = BASE + 96 * 1024
LDS_BYTES = 160 * 1024


def w1_addr(s):
    return BASE + s * 3072


W2_REG = [0, 1, 2, 3, 43, 44, 45, 46]
W2_P1 = list(range(4, 15)) + list(range(47, 58))
W2_LATE = [s for s in range(86) if s not in W2_REG and s not in W2_P1]
w2_pos = {}
for i, s in enumerate(W2_REG):
    w2_pos[s] = L_X + i * 2048
for i, s in enumerate(W2_P1):
    w2_pos[s] = L_HI + i * 2048
late_order = []
lo = [s for s in W2_LATE if s < 43]
hi = [s for s in W2_LATE if s >= 43]
for a, b in zip(lo, hi):
    late_order += [a, b]
assert len(late_order) == 56
for i, s in enumerate(late_order):
    w2_pos[s] = BASE + i * 2048
assert BASE + 56 * 2048 <= L_HI

sX, sWQKV, sWO, sW1, sW2, sOUT, sWS, sB1, sB2, sDBG = [f's[{i}:{i + 3}]' for i in range(4, 44, 4)]
s_team, s_j, s_rb, s_c, s_rs, s_cb, s_w, s_tt, s_tag, s_mode, s_hd = [f's{i}' for i in range(44, 55)]
T = [f's{i}' for i in range(55, 64)]
s_xr = [f's{i}' for i in range(86, 90)]
s_wr = [f's{i}' for i in range(90, 94)]
s_t, s_kh = 's94', 's95'
s_tile = 's64'
s_last = 's96'
s_stamp = 's[98:99]'

LOG2E = 1.4426950408889634
BIG = 0xf149f2ca


def fhex(x):
    import struct
    return '0x%08x' % struct.unpack('<I', struct.pack('<f', x))[0]


def vr(a, n=1):
    return f'v{a}' if n == 1 else f'v[{a}:{a + n - 1}]'


p = Prog()
tail = []


class Role:
    def __init__(self, name):
        self.name = name
        self.vm = Cnt(p, 'vmcnt', 63)
        self.lg = Cnt(p, 'lgkmcnt', 15)
        self.nbar = 0
        self.nstamp = 0

    def bar(self):
        p('s_barrier')
        self.nbar += 1

    def dstamp(self, grp, label):
        if OPT.get('d' + grp):
            self.stamp(label, True)

    def stamp(self, label='', force=False):
        if not OPT['stamps']:
            return
        if not force and label not in ('start', 'end') and any(k.startswith('dP') for k in OPT):
            return
        k = self.nstamp
        self.nstamp += 1
        STAMPS.setdefault(self.name, []).append(label)
        assert k < 20
        p(f's_memtime {s_stamp}')
        p('s_waitcnt lgkmcnt(0)')
        self.lg.reset()
        p(f's_mov_b32 s{66 + k}, s98')


STAMPS = {}


def dsr(R, op, dst, bases, off, tag=None):
    k = off // 65536
    p(f'{op} {dst}, {bases[k]} offset:{off % 65536}')
    R.lg.issue(tag)


def dma(R, vaddr, srd, soff, ldsaddr, tag=None):
    p(f's_mov_b32 m0, {ldsaddr}')
    p(f'buffer_load_dwordx4 {vaddr}, {srd}, {soff} offen lds')
    R.vm.issue(tag)


def poll(R, vaddr, vtmp, wide=False):
    L = p.newlabel('L_poll')
    D = p.newlabel('L_polld')
    X = p.newlabel('L_pollx')
    p(f's_mov_b32 {T[0]}, 0')
    p.label(L)
    first = vtmp if not wide else 'v' + vtmp[2:vtmp.index(':')]
    p(f'buffer_load_dword{"x2" if wide else ""} {vtmp}, {vaddr}, {sWS}, 0 offen sc1')
    p('s_waitcnt vmcnt(0)')
    p(f'v_cmp_ne_u32 vcc, {s_tag}, {first}')
    p(f's_cbranch_vccnz {X}')
    p.label(D)
    R.vm.reset()

    def blk():
        p.label(X)
        p(f's_add_u32 {T[0]}, {T[0]}, 1')
        p(f's_cmp_lt_u32 {T[0]}, {OPT["spin"]}')
        p(f's_cbranch_scc1 {L}')
        p(f's_branch {D}')
    tail.append(blk)


def moded_stores(R, stores):
    Ls = p.newlabel('L_safe')
    Lb = p.newlabel('L_back')
    p(f's_cmp_eq_u32 {s_mode}, 1')
    p(f's_cbranch_scc0 {Ls}')
    for s in stores:
        p(s)
    p.label(Lb)
    for s in stores:
        if s.startswith('buffer_'):
            R.vm.issue('st')

    def blk():
        p.label(Ls)
        for s in stores:
            p(s + ' sc1' if s.startswith('buffer_') else s)
        p(f's_branch {Lb}')
    tail.append(blk)


def flag_store(R, saddr, vt0, vt1, moded=True):
    p(f'v_mov_b32 {vt0}, {saddr}')
    p(f'v_mov_b32 {vt1}, {s_tag}')
    R.vm.wait_all()
    p('s_mov_b64 exec, 1')
    if moded:
        moded_stores(R, [f'buffer_store_dword {vt1}, {vt0}, {sWS}, 0 offen'])
    else:
        p(f'buffer_store_dword {vt1}, {vt0}, {sWS}, 0 offen sc1')
        R.vm.issue('st')
    p('s_mov_b64 exec, -1')


CW = Role('CW')
HW = Role('HW')
s_q = T[8]
s_mx, s_mw, s_tw = 's96', 's97', 's3'


def srd(dst, lo, size):
    b = int(dst[2:dst.index(':')])
    p(f's_mov_b32 s{b}, s{lo}')
    p(f's_and_b32 s{b + 1}, s{lo + 1}, 0xffff')
    p(f's_mov_b32 s{b + 2}, {size}')
    p(f's_mov_b32 s{b + 3}, 0x20000')


p.label(KNAME)
p('s_cmp_ge_u32 s2, 256')
p('s_cbranch_scc1 L_end')
if OPT['stamps']:
    p('s_memtime s[100:101]')
if OPT.get('dbgout'):
    p('s_memrealtime s[86:87]')
p('s_load_dwordx16 s[64:79], s[0:1], 0')
p('s_load_dwordx4 s[80:83], s[0:1], 64')
p('s_load_dwordx2 s[84:85], s[0:1], 80')
p('v_and_b32 v1, 63, v0')
p('v_lshrrev_b32 v2, 6, v0')
p(f'v_readfirstlane_b32 {s_w}, v2')
p(f's_and_b32 {s_team}, s2, 7')
p(f's_lshr_b32 {s_j}, s2, 3')
p(f's_and_b32 {s_c}, {s_j}, 15')
p(f's_lshr_b32 {T[0]}, {s_j}, 4')
p(f's_lshl_b32 {s_rb}, {s_team}, 1')
p(f's_add_u32 {s_rb}, {s_rb}, {T[0]}')
p('v_lshlrev_b32 v2, 4, v1')
p(f's_and_b32 {s_q}, {s_w}, 3')
p('v_lshrrev_b32 v3, 3, v1')
p(f's_lshl_b32 {T[0]}, {s_q}, 5')
p(f'v_add_u32 v3, {T[0]}, v3')
p('v_and_b32 v10, 7, v1')
p(f's_lshl_b32 {T[1]}, {s_rb}, 17')
p('v_bfe_u32 v11, v3, 1, 3')
p('v_xor_b32 v11, v10, v11')
p('v_lshlrev_b32 v11, 4, v11')
p('v_lshl_add_u32 v4, v3, 10, v11')
p(f'v_add_u32 v4, {T[1]}, v4')
p('v_xor_b32 v5, 64, v4')
p('v_add_u32 v5, 8192, v5')
p(f's_mul_i32 {T[0]}, {s_q}, 192')
p(f's_lshl_b32 {T[1]}, {s_c}, 6')
p(f's_movk_i32 {T[3]}, 5462')
p(f's_movk_i32 {T[4]}, 3072')
for q in range(3):
    p(f'v_add_u32 v10, {T[0]}, v1')
    if q:
        p(f'v_add_u32 v10, {64 * q}, v10')
    p(f'v_mul_lo_u32 v11, v10, {T[3]}')
    p('v_lshrrev_b32 v11, 16, v11')
    p('v_mul_u32_u24 v12, 12, v11')
    p('v_sub_u32 v12, v10, v12')
    p('v_lshrrev_b32 v13, 2, v12')
    p('v_and_b32 v12, 3, v12')
    p('v_lshlrev_b32 v12, 4, v12')
    p('v_lshl_add_u32 v12, v13, 10, v12')
    p(f'v_mul_lo_u32 v11, v11, {T[4]}')
    p(f'v_add3_u32 v{6 + q}, v11, v12, {T[1]}')
p(f's_lshl_b32 {s_mx}, {s_q}, 12')
p(f's_mul_i32 {s_mw}, {s_q}, 3072')
p(f's_lshl_b32 {s_tw}, {s_j}, 2')
p(f's_add_u32 {s_tw}, {s_tw}, {s_q}')
p(f's_mul_i32 {s_tw}, {s_tw}, 1536')
p('v_min_u32 v17, 11, v1')
p('v_lshlrev_b32 v17, 7, v17')
p(f's_lshl_b32 {T[5]}, {s_rb}, 4')
p(f's_add_u32 {T[5]}, {T[5]}, {s_c}')
p(f's_lshl_b32 {T[5]}, {T[5]}, 3')
p(f's_add_u32 {T[5]}, {T[5]}, {s_w}')
p(f's_lshl_b32 {T[0]}, {T[5]}, 10')
p('s_waitcnt lgkmcnt(0)')
p(f's_load_dword {s_tag}, s[84:85], {EPOCH}')
srd(sX, 64, 2048 * 512 * 2)
p(f'buffer_load_dwordx4 v[20:23], v2, {sX}, {T[0]} offen')
for R in (CW, HW):
    R.vm.issue('row')
srd(sWQKV, 66, 512 * 1536 * 2)
if OPT['stamps']:
    p('s_memtime s[98:99]')
    p('s_waitcnt lgkmcnt(0)')
    p('s_mov_b32 s101, s98')
p(f's_cmp_lt_u32 {s_w}, 4')
p('s_cbranch_scc1 L_CW')


def chunk_groups(R, ch):
    slot = RING + (ch % NSLOT) * SLOT

    def xg(q):
        def f():
            p(f's_mov_b32 {T[7]}, {ch * 128 + (q >> 1) * 16384}')
            p(f's_add_u32 m0, {s_mx}, {slot + q * 1024}')
            p(f'buffer_load_dwordx4 v{4 + (q & 1)}, {sX}, {T[7]} offen lds')
            R.vm.issue(('ch', ch))
        return f

    def wg(q):
        def f():
            p(f's_mov_b32 {T[7]}, {ch * 64 * 3072}')
            p(f's_add_u32 m0, {s_mw}, {slot + 16384 + q * 1024}')
            p(f'buffer_load_dwordx4 v{6 + q}, {sWQKV}, {T[7]} offen lds')
            R.vm.issue(('ch', ch))
        return f
    return [wg(0), xg(0), wg(1), xg(1), wg(2), xg(2), xg(3)]


def wtouch(R, i):
    def f():
        if not OPT['p1touch']:
            return
        p(f's_add_u32 {T[7]}, {s_tw}, {i * 64 * 3072}')
        p(f'buffer_load_dword v252, v17, {sWQKV}, {T[7]} offen')
        R.vm.issue('t')
    return f


def mallwarm(R):
    def f():
        if not OPT['mallwarm']:
            return
        p(f's_lshl_b32 {T[7]}, s2, 2')
        p(f's_add_u32 {T[7]}, {T[7]}, {s_q}')
        p(f's_mul_i32 {T[6]}, {T[7]}, 1536')
        p(f's_lshl_b32 {T[7]}, {T[7]}, 9')
        p('v_and_b32 v3, 384, v17')
        p(f'buffer_load_dword v255, v3, {sWO}, {T[7]} offen')
        p(f'buffer_load_dword v252, v17, {sW2}, {T[6]} offen')
        for _ in range(2):
            R.vm.issue('t')
    return f


def srds_w():
    srd(sWO, 68, 512 * 512 * 2)
    srd(sW1, 72, 512 * 1376 * 2)
    srd(sW2, 76, 1376 * 512 * 2)


def common_setup(R):
    srd(sWS, 84, WS_SIZE if OPT['stamps'] else WS_END)
    srd(sB1, 74, 1376 * 2)
    srd(sB2, 78, 512 * 2)
    srd(sOUT, 80, 2048 * 512 * 2)
    p(f's_lshr_b32 {T[0]}, {s_j}, 3')
    p(f's_lshl_b32 {s_rs}, {s_team}, 2')
    p(f's_add_u32 {s_rs}, {s_rs}, {T[0]}')
    p(f's_and_b32 {s_cb}, {s_j}, 7')
    p(f's_lshr_b32 {s_hd}, {s_w}, 2')
    if R is CW:
        p(f's_mov_b32 {s_tt}, {s_w}')
        p(f's_and_b32 {s_t}, {s_w}, 1')
        p(f's_lshr_b32 {s_kh}, {s_w}, 1')
    else:
        p(f's_sub_u32 {s_tt}, 7, {s_w}')
    p('v_mov_b32 v18, 0x3f803f80')
    p('v_mov_b32 v24, 0')
    p('v_mov_b32 v26, 0')
    p(f's_lshl_b32 {T[5]}, {T[5]}, 4')
    p(f's_add_u32 {T[5]}, {T[5]}, {RST}')
    p(f'v_mov_b32 v10, {T[5]}')
    p('s_waitcnt lgkmcnt(0)')
    p(f's_add_u32 {s_tag}, {s_tag}, 1')
    R.vm.wait(['row'])
    for r in range(4):
        p(f'v_dot2c_f32_bf16 v24, v{20 + r}, v18')
        p(f'v_dot2c_f32_bf16 v26, v{20 + r}, v{20 + r}')
    for sh in (8, 4, 2, 1):
        p(f'v_add_f32_dpp v24, v24, v24 row_ror:{sh} row_mask:0xf bank_mask:0xf')
        p(f'v_add_f32_dpp v26, v26, v26 row_ror:{sh} row_mask:0xf bank_mask:0xf')
    for a in ('v24', 'v26'):
        p(f'v_mov_b32 v11, {a}')
        p(f'v_permlane16_swap_b32 {a}, v11')
        p(f'v_add_f32 {a}, {a}, v11')
        half_sum(a, 'v11')
    ln_finish('v24', 'v26', 'v28', 'v30')
    p(f'v_mov_b32 v29, {s_tag}')
    p(f'v_mov_b32 v31, {s_tag}')
    p('s_mov_b64 exec, 1')
    p(f'buffer_store_dwordx4 v[28:31], v10, {sWS}, 0 offen sc1')
    p('s_mov_b64 exec, -1')
    R.vm.issue('st')


VQ, MD, MF = 160, 164, 180
SB = [20, 36]
VP = 52
KF = [60, 64]
VF = [68, 76]
VO = 84
VKA, VVA = 'v100', 'v101'
HALO = 104


def make_masks():
    p('v_and_b32 v10, 31, v1')
    p('v_lshrrev_b32 v11, 5, v1')
    p('v_lshlrev_b32 v11, 2, v11')
    p('v_sub_u32 v10, v10, v11')
    p(f'v_mov_b32 v12, {BIG:#x}')
    p('v_mov_b32 v13, 0')
    for i0 in range(0, 16, 4):
        for i in range(i0, i0 + 4):
            key = 8 * (i >> 2) + (i & 3)
            p(f'v_cmp_le_i32 s[{56 + 2 * (i & 3)}:{57 + 2 * (i & 3)}], {key}, v10')
        for i in range(i0, i0 + 4):
            m = f's[{56 + 2 * (i & 3)}:{57 + 2 * (i & 3)}]'
            p(f'v_cndmask_b32 v{MD + i}, v12, v13, {m}')
            p(f'v_cndmask_b32 v{MF + i}, v13, v12, {m}')


def att_addrs():
    p(f's_lshl_b32 {T[0]}, {s_tt}, 11')
    p(f's_lshl_b32 {T[1]}, {s_hd}, 10')
    p(f's_add_u32 {T[0]}, {T[0]}, {T[1]}')
    p(f's_add_u32 {T[0]}, {T[0]}, {L_K}')
    p(f'v_add_u32 {VKA}, {T[0]}, v2')
    p('v_and_b32 v10, 47, v1')
    p(f's_lshl_b32 {T[1]}, {s_hd}, 4')
    p(f'v_add_u32 v10, {T[1]}, v10')
    p('v_lshlrev_b32 v10, 4, v10')
    p('v_and_b32 v11, 16, v1')
    p('v_cmp_ne_u32 vcc, 0, v11')
    p('v_mov_b32 v11, 1024')
    p('v_cndmask_b32 v10, v10, v11, vcc')
    p(f's_mul_i32 {T[0]}, {s_tt}, {2 * VSTR}')
    p(f's_add_u32 {T[0]}, {T[0]}, {L_V}')
    p(f'v_add_u32 {VVA}, {T[0]}, v10')


def half_sum(a, t):
    p(f'v_mov_b32 {t}, {a}')
    p(f'v_permlane32_swap_b32 {a}, {t}')
    p(f'v_add_f32 {a}, {a}, {t}')


def ln_finish(s1, s2, rstd, mrs):
    p(f'v_mul_f32 {s1}, {fhex(1.0 / 512)}, {s1}')
    p(f'v_mul_f32 {s2}, {fhex(1.0 / 512)}, {s2}')
    p(f'v_fma_f32 {s2}, -{s1}, {s1}, {s2}')
    p(f'v_max_f32 {s2}, 0, {s2}')
    p(f'v_add_f32 {s2}, {fhex(1e-5)}, {s2}')
    p(f'v_rsq_f32 {rstd}, {s2}')
    p(f'v_mul_f32 {mrs}, {s1}, {rstd}')


def att_load(R, j, b):
    p(f'ds_read_b128 {vr(KF[b], 4)}, {VKA} offset:{j * 2048}')
    R.lg.issue(('K', j))
    for g in range(2):
        p(f'ds_read_b128 {vr(VF[b] + 4 * g, 4)}, {VVA} offset:{(2 * j + g) * VSTR}')
        R.lg.issue(('V', j))


def att_qk(R, j, b):
    R.lg.wait([('K', j)])
    c = vr(MD, 16) if j == 8 else (vr(MF, 16) if j == 0 else '0')
    p(f'v_mfma_f32_32x32x16_bf16 {vr(SB[b], 16)}, {vr(KF[b], 4)}, {vr(VQ, 4)}, {c}')


def att_body(R, j, b, nxt, first, extra=()):
    S = SB[b]
    if nxt is not None:
        att_load(R, nxt, 1 - b)
    extra = list(extra)
    for g in range(2):
        for i in range(8):
            p(f'v_exp_f32 v{S + 8 * g + i}, v{S + 8 * g + i}')
            if i in (1, 5) and extra:
                extra.pop(0)()
        if g == 0 and nxt is not None:
            att_qk(R, nxt, 1 - b)
        for r in range(4):
            p(f'v_cvt_pk_bf16_f32 v{VP + 4 * g + r}, v{S + 8 * g + 2 * r}, v{S + 8 * g + 2 * r + 1}')
        R.lg.wait([('V', j)])
        c = '0' if (first and g == 0) else vr(VO, 16)
        p(f'v_mfma_f32_32x32x16_bf16 {vr(VO, 16)}, {vr(VF[b] + 4 * g, 4)}, {vr(VP + 4 * g, 4)}, {c}')
    assert not extra


def att_2a(R, after_first=None):
    Lx = p.newlabel('L_2a_done')
    att_load(R, 8, 0)
    att_qk(R, 8, 0)
    for n, j in enumerate((8, 7, 6, 5)):
        att_body(R, j, n & 1, j - 1 if j > 5 else None, n == 0)
        if n == 0 and after_first:
            after_first()
        if j > 5:
            p(f's_cmp_eq_u32 {s_tt}, {n}')
            p(f's_cbranch_scc1 {Lx}')
    p.label(Lx)
    p('s_waitcnt lgkmcnt(0)')
    R.lg.reset()
    R.stamp('2a')
    R.dstamp('P2', '2a')


def att_2b(R, extra, after_store):
    Lx = p.newlabel('L_2b_done')
    att_load(R, 0, 0)
    att_qk(R, 0, 0)
    extra = list(extra)
    assert len(extra) <= 20
    for j in range(8):
        att_body(R, j, j & 1, j + 1 if j < 7 else None, False, extra[4 * j:4 * j + 4])
        if 4 <= j < 7:
            p(f's_cmp_eq_u32 {s_tt}, {7 - j}')
            p(f's_cbranch_scc1 {Lx}')
    p.label(Lx)
    p('s_waitcnt lgkmcnt(0)')
    R.lg.reset()
    Lf = p.newlabel('L_fb')
    Lr = p.newlabel('L_fbret')
    p(f'v_mov_b32 v10, {fhex(2.0 ** -60)}')
    p(f'v_mov_b32 v11, {fhex(2.0 ** 60)}')
    p(f's_lshl_b32 {T[0]}, {s_rb}, 2')
    p(f's_add_u32 {T[0]}, {T[0]}, {s_tt}')
    p(f's_lshl_b32 {T[0]}, {T[0]}, 5')
    p(f's_lshl_b32 {T[6]}, {s_c}, 1')
    p(f's_add_u32 {T[0]}, {T[0]}, {T[6]}')
    p(f's_add_u32 {T[0]}, {T[0]}, {s_hd}')
    p(f's_lshl_b32 {T[7]}, {T[0]}, 2')
    p(f's_add_u32 {T[7]}, {T[7]}, {FO}')
    p(f's_lshl_b32 {T[0]}, {T[0]}, 10')
    p(f's_add_u32 {T[6]}, {T[0]}, {OB}')
    p(f'v_cmp_nlt_f32 vcc, v10, v{VO + 8}')
    p(f'v_cmp_nlt_f32 s[56:57], v{VO + 8}, v11')
    p('s_or_b64 vcc, vcc, s[56:57]')
    if OPT['force_fallback']:
        p(f's_branch {Lf}')
    else:
        p(f's_cbranch_vccnz {Lf}')
    p.label(Lr)
    tail.append(lambda: fallback(Lf, Lr))
    p(f'v_rcp_f32 v10, v{VO + 8}')
    for i in range(8):
        p(f'v_mul_f32 v{VO + i}, v{VO + i}, v10')
    for r in range(4):
        p(f'v_cvt_pk_bf16_f32 v{12 + r}, v{VO + 2 * r}, v{VO + 2 * r + 1}')
    R.dstamp('P2', '2b')
    moded_stores(R, [f'buffer_store_dwordx4 v[12:15], v2, {sWS}, {T[6]} offen'])
    after_store()
    flag_store(R, T[7], 'v10', 'v11')
    R.stamp('Oflag')
    R.dstamp('P2', 'Oflag')


def fallback(Lf, Lr):
    S = SB[0]
    p.label(Lf)
    p(f's_lshl_b32 {T[0]}, {s_rb}, 2')
    p(f's_add_u32 {T[0]}, {T[0]}, {s_tt}')
    p(f's_sub_i32 {T[0]}, 8, {T[0]}')
    p(f's_max_i32 {T[4]}, {T[0]}, 0')
    p(f'v_mov_b32 v14, {BIG:#x}')
    for pas in range(2):
        L = p.newlabel('L_fbl')
        Lm = p.newlabel('L_fbm')
        Ln = p.newlabel('L_fbn')
        Lc = p.newlabel('L_fbc')
        p(f's_mov_b32 {T[5]}, {T[4]}')
        if pas == 1:
            for i in range(16):
                p(f'v_mov_b32 v{VO + i}, 0')
        p.label(L)
        p(f's_lshl_b32 {T[0]}, {T[5]}, 11')
        p(f'v_add_u32 v10, {T[0]}, {VKA}')
        p(f's_mul_i32 {T[0]}, {T[5]}, {2 * VSTR}')
        p(f'v_add_u32 v11, {T[0]}, {VVA}')
        p(f'ds_read_b128 {vr(KF[0], 4)}, v10')
        p(f'ds_read_b128 {vr(VF[0], 4)}, v11')
        p(f'ds_read_b128 {vr(VF[0] + 4, 4)}, v11 offset:{VSTR}')
        p('s_waitcnt lgkmcnt(0)')
        p(f's_cmp_eq_u32 {T[5]}, 8')
        p(f's_cbranch_scc1 {Lm}')
        p(f's_cmp_eq_u32 {T[5]}, 0')
        p(f's_cbranch_scc1 {Ln}')
        p(f'v_mfma_f32_32x32x16_bf16 {vr(S, 16)}, {vr(KF[0], 4)}, {vr(VQ, 4)}, 0')
        p(f's_branch {Lc}')
        p.label(Lm)
        p(f'v_mfma_f32_32x32x16_bf16 {vr(S, 16)}, {vr(KF[0], 4)}, {vr(VQ, 4)}, {vr(MD, 16)}')
        p(f's_branch {Lc}')
        p.label(Ln)
        p(f'v_mfma_f32_32x32x16_bf16 {vr(S, 16)}, {vr(KF[0], 4)}, {vr(VQ, 4)}, {vr(MF, 16)}')
        p.label(Lc)
        if pas == 0:
            for i in range(16):
                p(f'v_max_f32 v14, v14, v{S + i}')
        else:
            for i in range(16):
                p(f'v_sub_f32 v{S + i}, v{S + i}, v14')
                p(f'v_exp_f32 v{S + i}, v{S + i}')
            for r in range(8):
                p(f'v_cvt_pk_bf16_f32 v{VP + r}, v{S + 2 * r}, v{S + 2 * r + 1}')
            for g in range(2):
                p(f'v_mfma_f32_32x32x16_bf16 {vr(VO, 16)}, {vr(VF[0] + 4 * g, 4)}, {vr(VP + 4 * g, 4)}, {vr(VO, 16)}')
        p(f's_add_u32 {T[5]}, {T[5]}, 1')
        p(f's_cmp_le_u32 {T[5]}, 8')
        p(f's_cbranch_scc1 {L}')
        if pas == 0:
            p('v_mov_b32 v15, v14')
            p('v_permlane32_swap_b32 v14, v15')
            p('v_max_f32 v14, v14, v15')
    p(f's_branch {Lr}')


def w64_dma_lane(dst):
    p('v_lshrrev_b32 v10, 3, v1')
    p('v_lshlrev_b32 v10, 10, v10')
    p('v_and_b32 v11, 7, v1')
    p('v_bfe_u32 v12, v1, 4, 1')
    p('v_lshlrev_b32 v12, 2, v12')
    p('v_xor_b32 v11, v11, v12')
    p('v_lshl_add_u32 v10, v11, 4, v10')
    p(f's_lshl_b32 {T[0]}, {s_cb}, 7')
    p(f'v_add_u32 {dst}, {T[0]}, v10')


def w1_dma_lanes(dsts):
    p(f's_movk_i32 {T[3]}, 5462')
    p(f's_movk_i32 {T[4]}, 2752')
    p(f's_mul_i32 {T[1]}, {s_c}, 192')
    for q, dst in enumerate(dsts):
        p(f'v_add_u32 v10, {64 * q}, v1')
        p(f'v_mul_lo_u32 v11, v10, {T[3]}')
        p('v_lshrrev_b32 v11, 16, v11')
        p('v_mul_u32_u24 v12, 12, v11')
        p('v_sub_u32 v12, v10, v12')
        p('v_lshlrev_b32 v12, 4, v12')
        p(f'v_mul_lo_u32 v11, v11, {T[4]}')
        p(f'v_add3_u32 {dst}, v11, v12, {T[1]}')


def tr64_lanes(a0, a1):
    p('v_bfe_u32 v10, v1, 2, 2')
    p('v_lshrrev_b32 v11, 5, v1')
    p('v_lshl_add_u32 v10, v11, 2, v10')
    p('v_lshlrev_b32 v10, 7, v10')
    p('v_bfe_u32 v11, v1, 4, 1')
    p('v_lshl_add_u32 v10, v11, 5, v10')
    p('v_and_b32 v11, 3, v1')
    p('v_lshl_add_u32 v10, v11, 3, v10')
    p('v_bfe_u32 v11, v1, 3, 1')
    p(f'v_lshl_add_u32 {a0}, v11, 6, v10')
    p(f'v_xor_b32 {a1}, 64, {a0}')


def tr_nat_lane(a):
    p('v_bfe_u32 v10, v1, 2, 2')
    p('v_lshrrev_b32 v11, 5, v1')
    p('v_lshl_add_u32 v10, v11, 3, v10')
    p('v_mul_u32_u24 v10, 192, v10')
    p('v_bfe_u32 v11, v1, 4, 1')
    p('v_lshl_add_u32 v10, v11, 5, v10')
    p('v_and_b32 v11, 3, v1')
    p(f'v_lshl_add_u32 {a}, v11, 3, v10')


def tr96_lane(a):
    p('v_bfe_u32 v10, v1, 2, 2')
    p('v_lshrrev_b32 v11, 5, v1')
    p('v_lshl_add_u32 v10, v11, 2, v10')
    p('v_mul_u32_u24 v10, 192, v10')
    p('v_bfe_u32 v11, v1, 4, 1')
    p('v_lshl_add_u32 v10, v11, 5, v10')
    p('v_and_b32 v11, 3, v1')
    p(f'v_lshl_add_u32 {a}, v11, 3, v10')


def dump_stamps(R):
    if not OPT['stamps']:
        return
    R.stamp('end')
    p(f's_lshl_b32 {T[0]}, s2, 3')
    p(f's_add_u32 {T[0]}, {T[0]}, {s_w}')
    p(f's_lshl_b32 {T[0]}, {T[0]}, 8')
    p(f's_add_u32 {T[0]}, {T[0]}, {STAMP}')
    p('v_lshlrev_b32 v10, 2, v1')
    p('v_mov_b32 v11, 0')
    for k in range(R.nstamp):
        p(f'v_writelane_b32 v11, s{66 + k}, {k}')
    p(f'v_writelane_b32 v11, {s_mode}, 63')
    p(f'v_writelane_b32 v11, s100, 62')
    p(f'v_writelane_b32 v11, s101, 61')
    p(f'buffer_store_dword v11, v10, {sWS}, {T[0]} offen')
    if OPT.get('dbgout') and R is CW:
        L = p.newlabel('L_dbg')
        p(f's_cmp_lg_u32 s2, {OPT["dbgout"]}')
        p(f's_cbranch_scc1 {L}')
        p(f's_cmp_lg_u32 {s_w}, 0')
        p(f's_cbranch_scc1 {L}')
        p('s_load_dwordx2 s[40:41], s[0:1], 72')
        p('s_memrealtime s[98:99]')
        p('s_waitcnt lgkmcnt(0)')
        p('s_and_b32 s41, s41, 0xffff')
        p('s_mov_b32 s42, 256')
        p('s_mov_b32 s43, 0x20000')
        p('v_subrev_u32 v11, s100, v11')
        p('s_sub_u32 s98, s98, s65')
        p('v_writelane_b32 v11, s98, 15')
        p('buffer_store_dword v11, v10, s[40:43], 0 offen')
        p.label(L)


R = HW
TM = OPT['tmode']
after = {0: [2], 1: [3, 4], 2: [5], 3: [6], 4: [7]} if TM == 1 else ({0: [2, 3], 1: [4, 5, 6, 7]} if TM == 2 else {})


def chunk_t(R, ch):
    gs = chunk_groups(R, ch) + [wtouch(R, i) for i in after.get(ch, [])]
    if ch == 7:
        gs.append(mallwarm(R))
    return gs


for g in chunk_t(R, 0) + chunk_t(R, 1) + [srds_w] + (chunk_t(R, 2) if OPT['la'] == 3 else []):
    g()
tr_nat_lane('v19')
p(f's_min_u32 {T[0]}, {s_q}, 2')
p(f's_lshl_b32 {T[0]}, {T[0]}, 6')
p(f'v_add_u32 v19, {T[0]}, v19')
STG = [120 + 4 * i for i in range(10)] + [196 + 4 * i for i in range(14)]
ONE, CSA = 104, 52
for r in range(4):
    p(f'v_mov_b32 v{ONE + r}, 0x3f803f80')


def w1_stage(n):
    def f():
        if n % 3 == 0:
            p(f's_mul_i32 {T[6]}, {s_q}, {8 * 16 * 2752}')
            p(f's_add_u32 {T[6]}, {T[6]}, {(n // 3) * 16 * 2752}')
        p(f'buffer_load_dwordx4 {vr(STG[n], 4)}, v{112 + n % 3}, {sW1}, {T[6]} offen')
        R.vm.issue('w1')
    return f


def publish_start():
    L7 = p.newlabel('L_n7')
    p(f's_cmp_lg_u32 {s_w}, 7')
    p(f's_cbranch_scc1 {L7}')
    p(f's_getreg_b32 {T[1]}, hwreg(HW_REG_XCC_ID)')
    p(f's_and_b32 {T[1]}, {T[1]}, 15')
    p(f'v_mov_b32 v13, {T[1]}')
    p(f's_lshl_b32 {T[1]}, {s_team}, 5')
    p(f's_add_u32 {T[1]}, {T[1]}, {s_j}')
    p(f's_lshl_b32 {T[1]}, {T[1]}, 3')
    p(f's_add_u32 {T[1]}, {T[1]}, {ST}')
    p(f'v_mov_b32 v10, {T[1]}')
    p(f'v_mov_b32 v12, {s_tag}')
    p('s_mov_b64 exec, 1')
    p(f'buffer_store_dwordx2 v[12:13], v10, {sWS}, 0 offen sc1')
    p('s_mov_b64 exec, -1')
    p.label(L7)


def hw_masks():
    make_masks()
    p(f's_and_b32 {s_q}, {s_w}, 3')


R.stamp('start')
late = [w1_stage(n) for n in range(24)]
fill = {0: [lambda: common_setup(R)], 1: [publish_start, lambda: w1_dma_lanes(['v112', 'v113', 'v114'])],
        2: [hw_masks], 3: [lambda: w64_dma_lane('v115'), att_addrs]}
for ch in range(8):
    slot = RING + (ch % NSLOT) * SLOT
    p(f'v_add_u32 v14, {slot + 16384}, v19')
    if ch >= 4:
        R.dstamp('P1', f'iss{ch}')
    R.vm.wait([('ch', ch)])
    if ch >= 4:
        R.dstamp('P1', f'vm{ch}')
    R.bar()
    R.dstamp('P1', f'bar{ch}')
    for ks in range(4):
        for rd in range(2):
            p(f'ds_read_b64_tr_b16 {vr(36 + 4 * ks + 2 * rd, 2)}, v14 offset:{ks * 3072 + rd * 768}')
    LA = OPT['la']
    if ch + LA < 8:
        extra = chunk_t(R, ch + LA)
    elif ch < 7:
        extra = late[:8]
        del late[:8]
    else:
        extra = []
    mf = [(lambda ks=ks: p(f'v_mfma_f32_32x32x16_bf16 {vr(CSA, 16)}, {vr(ONE, 4)}, {vr(36 + 4 * ks, 4)}, {"0" if ch == 0 and ks == 0 else vr(CSA, 16)}')) for ks in range(4)]
    other = [lambda: p('s_waitcnt lgkmcnt(0)')] + mf + fill.get(ch, [])
    for k, g in enumerate(extra):
        g()
        if k >= 1 and other:
            other.pop(0)()
            if k == 1:
                other.pop(0)()
    for g in other:
        g()
p('v_and_b32 v10, 31, v1')
p('v_lshlrev_b32 v10, 2, v10')
p(f's_min_u32 {T[0]}, {s_q}, 2')
p(f's_lshl_b32 {T[0]}, {T[0]}, 7')
p(f'v_add_u32 v10, {T[0]}, v10')
p(f'ds_write_b32 v10, v{CSA} offset:{S_CS}')
p('s_waitcnt lgkmcnt(0)')
R.bar()
R.stamp('B1')
R.dstamp('P2', 'B1')
p('v_min_u32 v15, 23, v1')
p('v_lshrrev_b32 v16, 3, v15')
p(f'v_add_u32 v16, {s_rb}, v16')
p('v_cmp_le_u32 vcc, 2, v16')
p('v_mov_b32 v17, 0')
p('v_cndmask_b32 v44, v17, v18, vcc')
p('v_mov_b32 v45, v44')
p('v_mov_b32 v46, v44')
p('v_mov_b32 v47, v44')
p(f'v_mul_u32_u24 v15, {VSTR}, v15')
p(f'v_add_u32 v15, {L_V + 1024}, v15')
p('ds_write_b128 v15, v[44:47]')
for g in late:
    g()
p(f's_lshl_b32 {T[0]}, {s_tt}, 10')
p(f's_add_u32 {T[0]}, {T[0]}, {L_HI}')
p(f'v_add_u32 v14, {T[0]}, v2')
R.dstamp('P2', 'epi')
p('s_waitcnt lgkmcnt(0)')
R.lg.reset()
R.bar()
R.stamp('B2')
R.dstamp('P2', 'B2')
p(f'ds_read_b128 {vr(VQ, 4)}, v14')
p(f's_lshl_b32 {T[1]}, {s_q}, 17')
p(f's_lshl_b32 {T[2]}, {s_q}, 14')
for q in range(16):
    p(f's_add_u32 m0, {T[2]}, {L_WO + q * 1024}')
    p(f's_add_u32 {T[0]}, {T[1]}, {q * 8192}')
    p(f'buffer_load_dwordx4 v115, {sWO}, {T[0]} offen lds')
    R.vm.issue('wo')


def touch_o():
    p('v_and_b32 v116, 15, v1')
    p('v_lshlrev_b32 v116, 7, v116')
    p(f's_lshl_b32 {T[6]}, {s_rb}, 2')
    p(f's_add_u32 {T[6]}, {T[6]}, {s_q}')
    p(f's_lshl_b32 {T[6]}, {T[6]}, 15')
    p(f's_lshl_b32 {T[7]}, {s_c}, 11')
    p(f's_add_u32 {T[6]}, {T[6]}, {T[7]}')
    p(f's_add_u32 {T[6]}, {T[6]}, {OB}')
    p(f'buffer_load_dword v252, v116, {sWS}, {T[6]} offen sc1')
    R.vm.issue('t')


def touch_h():
    p('v_and_b32 v116, 15, v1')
    p('v_lshlrev_b32 v116, 7, v116')
    p(f's_and_b32 {T[6]}, {s_q}, 1')
    p(f's_lshl_b32 {T[7]}, {s_rs}, 1')
    p(f's_add_u32 {T[6]}, {T[6]}, {T[7]}')
    p(f's_lshl_b32 {T[6]}, {T[6]}, 15')
    p(f's_lshr_b32 {T[7]}, {s_q}, 1')
    p(f's_lshl_b32 {T[7]}, {T[7]}, 11')
    p(f's_add_u32 {T[6]}, {T[6]}, {T[7]}')
    p(f's_lshl_b32 {T[7]}, {s_cb}, 12')
    p(f's_add_u32 {T[6]}, {T[6]}, {T[7]}')
    p(f's_add_u32 {T[6]}, {T[6]}, {HB}')
    p(f'buffer_load_dword v252, v116, {sWS}, {T[6]} offen sc1')
    R.vm.issue('t')


def touch_st():
    p('v_bfe_u32 v116, v1, 2, 1')
    p('v_lshlrev_b32 v116, 12, v116')
    p('v_and_b32 v117, 3, v1')
    p('v_lshl_add_u32 v116, v117, 7, v116')
    p(f's_lshl_b32 {T[6]}, {s_rs}, 13')
    p(f's_lshl_b32 {T[7]}, {s_cb}, 9')
    p(f's_add_u32 {T[6]}, {T[6]}, {T[7]}')
    p(f's_add_u32 {T[6]}, {T[6]}, {STB}')
    p(f'buffer_load_dword v253, v116, {sWS}, {T[6]} offen sc1')
    R.vm.issue('t')


def touch_fl():
    p('v_bfe_u32 v116, v1, 2, 2')
    p('v_min_u32 v116, 2, v116')
    p('v_lshlrev_b32 v116, 13, v116')
    p('v_and_b32 v117, 3, v1')
    p('v_lshl_add_u32 v116, v117, 7, v116')
    p(f's_lshl_b32 {T[6]}, {s_rb}, 9')
    p(f's_add_u32 {T[6]}, {T[6]}, {FO}')
    p(f'buffer_load_dword v254, v116, {sWS}, {T[6]} offen sc1')
    R.vm.issue('t')


def touch_h1():
    p('v_min_u32 v116, 47, v1')
    p('v_lshlrev_b32 v116, 7, v116')
    p(f's_lshl_b32 {T[6]}, {s_rb}, 2')
    p(f's_add_u32 {T[6]}, {T[6]}, {s_q}')
    p(f's_mul_i32 {T[6]}, {T[6]}, {96 * 1024}')
    p(f's_mul_i32 {T[7]}, {s_c}, 6144')
    p(f's_add_u32 {T[6]}, {T[6]}, {T[7]}')
    p(f's_add_u32 {T[6]}, {T[6]}, {H1B}')
    p(f'buffer_load_dword v255, v116, {sWS}, {T[6]} offen sc1')
    R.vm.issue('t')


touch_o()
touch_fl()
R.dstamp('P2', 'pref')
att_2a(R)
R.vm.wait(['wo'])
R.dstamp('P2', 'wo')
R.bar()
R.stamp('B3')
R.dstamp('P2', 'B3')
p(f'v_mov_b32 v10, {S_MODE}')
p('ds_read_b32 v10, v10')
p('s_waitcnt lgkmcnt(0)')
p(f'v_readfirstlane_b32 {s_mode}, v10')


def w2_groups(lst, regs=None):
    lst = list(lst)
    while len(lst) % 4:
        lst.append(lst[-1])
    gs = []
    for n in range(len(lst) // 4):
        ks = lst[4 * n:4 * n + 4]
        src = [k * 16 * 1024 for k in ks]
        dst = [w2_pos[k] for k in ks]

        def sel(reg, vals):
            d = vals[1] - vals[0]
            if all(vals[q] == vals[0] + q * d for q in range(4)):
                p(f's_mul_i32 {reg}, {s_q}, {d}')
                p(f's_add_u32 {reg}, {reg}, {vals[0]}')
            else:
                p(f's_mov_b32 {reg}, {vals[0]}')
                for q in range(1, 4):
                    p(f's_cmp_eq_u32 {s_q}, {q}')
                    p(f's_cselect_b32 {reg}, {vals[q]}, {reg}')

        def g0(src=src, dst=dst, n=n):
            sel(T[6], src)
            if regs is None:
                sel(T[7], dst)
                p(f's_mov_b32 m0, {T[7]}')
                p(f'buffer_load_dwordx4 v115, {sW2}, {T[6]} offen lds')
            else:
                p(f'buffer_load_dwordx4 {vr(regs[2 * n], 4)}, v115, {sW2}, {T[6]} offen')
            R.vm.issue(('w2', 2 * n))

        def g1(n=n):
            p(f's_add_u32 {T[6]}, {T[6]}, 8192')
            if regs is None:
                p(f's_add_u32 m0, {T[7]}, 1024')
                p(f'buffer_load_dwordx4 v115, {sW2}, {T[6]} offen lds')
            else:
                p(f'buffer_load_dwordx4 {vr(regs[2 * n + 1], 4)}, v115, {sW2}, {T[6]} offen')
            R.vm.issue(('w2', 2 * n + 1))
        gs += [g0, g1]
    return gs


ex = [touch_h, touch_st]
if not OPT['h1sc1']:
    ex.append(touch_h1)
ex += w2_groups(W2_P1)
att_2b(R, ex, lambda: None)
p('v_min_u32 v10, 47, v1')
p('v_lshlrev_b32 v11, 2, v10')
p(f's_mul_i32 {T[0]}, {s_c}, 192')
p(f'buffer_load_dword v12, v11, {sB1}, {T[0]} offen')
R.vm.issue('b1')
p(f's_mul_i32 {T[0]}, {s_q}, {8 * 3072}')
p(f's_add_u32 {T[0]}, {T[0]}, {BASE}')
p(f'v_add_u32 v3, {T[0]}, v2')
R.bar()
for n in range(24):
    p(f'ds_write_b128 v3, {vr(STG[n], 4)} offset:{n * 1024}')
    if n % 4 == 3:
        p('s_waitcnt lgkmcnt(4)')
R.vm.wait(['b1'])
p('v_lshlrev_b32 v14, 16, v12')
p('v_and_b32 v15, 0xffff0000, v12')
p('v_lshlrev_b32 v11, 3, v10')
p(f'ds_write_b64 v11, v[14:15] offset:{S_B1}')
tr96_lane('v3')
p(f's_min_u32 {T[0]}, {s_q}, 2')
p(f's_lshl_b32 {T[0]}, {T[0]}, 6')
p(f'v_add_u32 v3, {T[0]}, v3')
p('v_add_u32 v4, 0x10000, v3')
p('s_waitcnt lgkmcnt(0)')
R.dstamp('P3', 'w1wr')
R.bar()
p('v_mov_b32 v18, 0x3f803f80')
p('v_mov_b32 v100, 0')
p('v_mov_b32 v101, 0')
R.bar()
for g in w2_groups(W2_REG):
    g()
for s0 in range(0, 36, 4):
    if s0 < 32:
        for s in range(s0, s0 + 4):
            for rd in range(2):
                dsr(R, 'ds_read_b64_tr_b16', vr(20 + 16 * ((s0 // 4) % 2) + 4 * (s % 4) + 2 * rd, 2), ['v3', 'v4'], w1_addr(s) + rd * 1536, ('c', s0))
    if s0 >= 4:
        R.lg.wait([('c', s0 - 4)])
        for r in range(16):
            p(f'v_dot2c_f32_bf16 v{100 + (r & 1)}, v{20 + 16 * ((s0 // 4 - 1) % 2) + r}, v18')
p('v_add_f32 v100, v100, v101')
half_sum('v100', 'v101')
p('v_and_b32 v10, 31, v1')
p('v_lshlrev_b32 v10, 2, v10')
p(f's_lshl_b32 {T[0]}, {T[0]}, 1')
p(f'v_add_u32 v10, {T[0]}, v10')
p(f'ds_write_b32 v10, v100 offset:{S_CS1}')
R.vm.wait_all()
p('s_waitcnt lgkmcnt(0)')
R.lg.reset()
R.dstamp('P3', 'cs1')
R.dstamp('P4', 'cs1')
R.bar()
LST = [120 + 4 * i for i in range(28)]
for g in w2_groups(late_order, LST):
    g()
p(f's_lshl_b32 {T[0]}, {s_q}, 11')
p(f's_add_u32 {T[0]}, {T[0]}, {BASE}')
p(f'v_add_u32 v3, {T[0]}, v2')
p('v_add_u32 v4, 0x10000, v3')
R.dstamp('P4', 'late')
R.bar()
for n in range(28):
    R.vm.wait([('w2', n)])
    off = (n // 2) * 8192 + (n % 2) * 1024
    p(f'ds_write_b128 v{3 + off // 65536}, {vr(LST[n], 4)} offset:{off % 65536}')
    if n % 4 == 3:
        p('s_waitcnt lgkmcnt(4)')
p('s_waitcnt lgkmcnt(0)')
R.dstamp('P5', 'latedone')
R.bar()
L7 = p.newlabel('L_n7')
p('s_cmp_lg_u32 s2, 0')
p(f's_cbranch_scc1 {L7}')
p(f's_cmp_lg_u32 {s_w}, 7')
p(f's_cbranch_scc1 {L7}')
p('v_lshlrev_b32 v12, 3, v1')
for q in range(4):
    p(f'v_add_u32 v10, {ST + 512 * q}, v12')
    poll(R, 'v10', 'v11')
p('v_mov_b32 v10, 0')
p(f'v_mov_b32 v11, {s_tag}')
p('s_mov_b64 exec, 1')
p(f'buffer_store_dword v11, v10, {sWS}, 0 offen sc1')
p('s_mov_b64 exec, -1')
p.label(L7)
R.bar()
R.bar()
dump_stamps(R)
p.label('L_end')
p('s_endpgm')
for b in tail:
    b()
tail = []

R = CW
p.label('L_CW')
if OPT.get('dbgout'):
    p('s_mov_b32 s65, s86')
srds_w()
if OPT['tmode'] == 0:
    for i in range(OPT['t0'], 8):
        wtouch(R, i)()
common_setup(R)
make_masks()
p(f's_and_b32 {s_q}, {s_w}, 3')
p('v_and_b32 v10, 31, v1')
p(f's_lshl_b32 {T[0]}, {s_tt}, 5')
p(f'v_add_u32 v10, {T[0]}, v10')
p('v_bfe_u32 v11, v10, 1, 3')
p('v_lshrrev_b32 v12, 5, v1')
p('v_xor_b32 v11, v11, v12')
p('v_lshlrev_b32 v11, 4, v11')
p('v_lshl_add_u32 v9, v10, 7, v11')
p(f's_lshl_b32 {T[0]}, {s_rb}, 11')
p(f's_add_u32 {T[0]}, {T[0]}, {RST}')
p(f'v_lshlrev_b32 v8, 4, v10')
p(f'v_add_u32 v8, {T[0]}, v8')
tr_nat_lane('v19')
XF = [20, 36]
WF = [52, 100]
AQ, AK, AV = 196, 212, 228
GR = 148


def p1_addrs(ch):
    slot = RING + (ch % NSLOT) * SLOT
    p(f'v_add_u32 v10, {slot}, v9')
    for ks in range(1, 4):
        p(f'v_xor_b32 v{10 + ks}, {32 * ks}, v10')
    p(f'v_add_u32 v14, {slot + 16384}, v19')


def p1_reads(ch):
    b = ch & 1
    out = []
    for ks in range(4):
        out.append(f'ds_read_b128 {vr(XF[b] + 4 * ks, 4)}, v{10 + ks}')
        for sec in (1, 2, 0):
            for rd in range(2):
                out.append(f'ds_read_b64_tr_b16 {vr(WF[b] + 16 * sec + 4 * ks + 2 * rd, 2)}, v14 offset:{ks * 3072 + rd * 768 + sec * 64}')
    return out


def p1_mfmas(ch):
    a = ch & 1
    out = []
    for ks in range(4):
        first = ch == 0 and ks == 0
        x = vr(XF[a] + 4 * ks, 4)
        c = lambda r: '0' if first else vr(r, 16)
        out.append(f'v_mfma_f32_32x32x16_bf16 {vr(AK, 16)}, {vr(WF[a] + 16 + 4 * ks, 4)}, {x}, {c(AK)}')
        out.append(f'v_mfma_f32_32x32x16_bf16 {vr(AV, 16)}, {x}, {vr(WF[a] + 32 + 4 * ks, 4)}, {c(AV)}')
        out.append(f'v_mfma_f32_32x32x16_bf16 {vr(AQ, 16)}, {vr(WF[a] + 4 * ks, 4)}, {x}, {c(AQ)}')
    return out


def weave(R, mf, lds, extra=(), per=3):
    lds = list(lds)
    extra = list(extra)
    n = 0

    def emit_lds(k):
        nonlocal n
        for _ in range(k):
            if not lds:
                return
            if n and n % 7 == 0 and n >= 14:
                p('s_waitcnt lgkmcnt(7)')
            p(lds.pop(0))
            n += 1
    for i, m in enumerate(mf):
        p(m)
        emit_lds(per)
        if extra and i % 3 == 2:
            extra.pop(0)()
    emit_lds(99)
    for g in extra:
        g()


p1_addrs(0)
R.stamp('start')
CSQ, CSK, RR, MM, CSV = 52, 68, 20, 84, 152
for ch in range(8):
    p('s_waitcnt lgkmcnt(0)')
    if ch >= 4:
        R.dstamp('P1', f'pre{ch}')
    R.bar()
    R.dstamp('P1', f'bar{ch}')
    extra = []
    if ch == 5:
        def ld():
            p(f'buffer_load_dwordx4 {vr(GR, 4)}, v8, {sWS}, 0 offen sc1')
            R.vm.issue('gr')
        extra = [ld]
    weave(R, p1_mfmas(ch - 1) if ch else [], p1_reads(ch), extra)
    if ch < 7:
        p1_addrs(ch + 1)
Lg = p.newlabel('L_gr')
Lgx = p.newlabel('L_grx')
R.vm.wait(['gr'])
p(f's_mov_b32 {T[0]}, 0')
p.label(Lg)
p(f'v_cmp_ne_u32 vcc, {s_tag}, v{GR + 1}')
p(f'v_cmp_ne_u32 s[56:57], {s_tag}, v{GR + 3}')
p('s_or_b64 vcc, vcc, s[56:57]')
p(f's_cbranch_vccnz {Lgx}')
Lgd = p.newlabel('L_grd')
p.label(Lgd)


def gr_retry():
    p.label(Lgx)
    p(f'buffer_load_dwordx4 {vr(GR, 4)}, v8, {sWS}, 0 offen sc1')
    p('s_waitcnt vmcnt(0)')
    p(f's_add_u32 {T[0]}, {T[0]}, 1')
    p(f's_cmp_lt_u32 {T[0]}, {OPT["spin"]}')
    p(f's_cbranch_scc1 {Lg}')
    p(f's_branch {Lgd}')


tail.append(gr_retry)
p('v_and_b32 v10, 31, v1')
p('v_lshlrev_b32 v10, 2, v10')
p(f's_lshl_b32 {T[0]}, {s_tt}, 7')
p(f'v_add_u32 v11, {T[0]}, v10')
p(f'ds_write_b32 v11, v{GR} offset:{S_R}')
p(f'ds_write_b32 v11, v{GR + 2} offset:{S_M}')
p('v_lshrrev_b32 v12, 5, v1')
p('v_lshlrev_b32 v12, 4, v12')
p(f'v_add_u32 v13, {T[0]}, v12')
p('s_waitcnt lgkmcnt(0)')
R.bar()
R.stamp('B1')
R.dstamp('P2', 'B1')
lds = [f'ds_read_b128 {vr(CSK + 4 * g, 4)}, v12 offset:{S_CS + 128 + 32 * g}' for g in range(4)]
lds += [f'ds_read_b32 v{CSV}, v10 offset:{S_CS + 256}']
lds += [f'ds_read_b128 {vr(MM + 4 * g, 4)}, v13 offset:{S_M + 32 * g}' for g in range(4)]
lds += [f'ds_read_b128 {vr(RR + 4 * g, 4)}, v13 offset:{S_R + 32 * g}' for g in range(4)]
lds += [f'ds_read_b128 {vr(CSQ + 4 * g, 4)}, v12 offset:{S_CS + 32 * g}' for g in range(4)]


def pub_addrs():
    p(f's_lshl_b32 {T[0]}, {s_tt}, 11')
    p(f's_add_u32 {T[1]}, {T[0]}, {L_K + 8 * 2048}')
    p(f'v_add_u32 v15, {T[1]}, v2')
    p(f's_mul_i32 {T[0]}, {s_tt}, {2 * VSTR}')
    p(f's_add_u32 {T[0]}, {T[0]}, {L_V + 16 * VSTR}')
    p(f'v_add_u32 v16, {T[0]}, v2')
    p(f's_lshl_b32 {T[2]}, {s_rb}, 4')
    p(f's_add_u32 {T[2]}, {T[2]}, {s_c}')
    p(f's_lshl_b32 {T[4]}, {T[2]}, 5')
    p(f's_add_u32 {T[4]}, {T[4]}, {s_w}')
    p(f's_lshl_b32 {T[4]}, {T[4]}, 2')
    p(f's_add_u32 {T[4]}, {T[4]}, {FKV}')
    p(f's_lshl_b32 {T[2]}, {T[2]}, 2')
    p(f's_add_u32 {T[2]}, {T[2]}, {s_w}')
    p(f's_lshl_b32 {T[2]}, {T[2]}, 12')
    p(f's_add_u32 {T[2]}, {T[2]}, {KVB}')


def pre_k():
    p('s_waitcnt lgkmcnt(4)')
    for i in range(16):
        p(f'v_mul_f32 v{CSK + i}, v{GR + 2}, v{CSK + i}')


def pre_v():
    for i in range(16):
        p(f'v_mul_f32 v{MM + i}, v{CSV}, v{MM + i}')


def pre_q():
    p('s_waitcnt lgkmcnt(0)')
    p(f'v_mul_f32 v153, {fhex(0.25 * LOG2E)}, v{GR}')
    p(f'v_mul_f32 v154, {fhex(0.25 * LOG2E)}, v{GR + 2}')
    for i in range(16):
        p(f'v_mul_f32 v{CSQ + i}, v154, v{CSQ + i}')


mf = p1_mfmas(7)
mf = [m for m in mf if vr(AK, 16) + ',' in m.split(' ', 1)[1][:12]] + [m for m in mf if vr(AV, 16) + ',' in m.split(' ', 1)[1][:12]] + [m for m in mf if vr(AQ, 16) + ',' in m.split(' ', 1)[1][:12]]
assert len(mf) == 12
weave(R, mf, lds, [pub_addrs, pre_k, pre_v, pre_q], per=6)
for i in range(16):
    p(f'v_fma_f32 v{AK + i}, v{AK + i}, v{GR}, -v{CSK + i}')
for r in range(8):
    p(f'v_cvt_pk_bf16_f32 v{104 + r}, v{AK + 2 * r}, v{AK + 2 * r + 1}')
for g in range(2):
    p(f'buffer_store_dwordx4 {vr(104 + 4 * g, 4)}, v2, {sWS}, {T[2]} offen offset:{g * 1024} sc1')
    R.vm.issue('st')
for i in range(16):
    p(f'v_fma_f32 v{AV + i}, v{AV + i}, v{RR + i}, -v{MM + i}')
for r in range(8):
    p(f'v_cvt_pk_bf16_f32 v{112 + r}, v{AV + 2 * r}, v{AV + 2 * r + 1}')
for g in range(2):
    p(f'buffer_store_dwordx4 {vr(112 + 4 * g, 4)}, v2, {sWS}, {T[2]} offen offset:{2048 + g * 1024} sc1')
    R.vm.issue('st')
for g in range(2):
    p(f'ds_write_b128 v15, {vr(104 + 4 * g, 4)} offset:{g * 1024}')
    p(f'ds_write_b128 v16, {vr(112 + 4 * g, 4)} offset:{g * VSTR}')
for i in range(16):
    p(f'v_fma_f32 v{AQ + i}, v{AQ + i}, v153, -v{CSQ + i}')
for r in range(4):
    p(f'v_cvt_pk_bf16_f32 v{120 + r}, v{AQ + 8 + 2 * r}, v{AQ + 8 + 2 * r + 1}')
p(f's_lshl_b32 {T[0]}, {s_tt}, 10')
p(f's_add_u32 {T[0]}, {T[0]}, {L_HI}')
p(f'v_add_u32 v12, {T[0]}, v2')
p('ds_write_b128 v12, v[120:123]')
for r in range(4):
    p(f'v_cvt_pk_bf16_f32 v{VQ + r}, v{AQ + 2 * r}, v{AQ + 2 * r + 1}')
att_addrs()
R.dstamp('P2', 'epi')
p('s_waitcnt lgkmcnt(0)')
R.lg.reset()
R.bar()
R.stamp('B2')
R.dstamp('P2', 'B2')
att_2a(R, lambda: flag_store(R, T[4], 'v10', 'v11', moded=False))
p('v_and_b32 v10, 31, v1')
p('v_lshlrev_b32 v10, 3, v10')
p(f's_lshl_b32 {T[1]}, {s_team}, 8')
p(f's_add_u32 {T[1]}, {T[1]}, {ST}')
p(f'v_add_u32 v10, {T[1]}, v10')
poll(R, 'v10', 'v[12:13]', wide=True)
R.dstamp('P2', 'team')
p(f'v_readfirstlane_b32 {T[1]}, v13')
p(f'v_cmp_ne_u32 vcc, {T[1]}, v13')
p('s_cmp_eq_u64 vcc, 0')
p(f's_cselect_b32 {s_mode}, 1, 0')
if OPT['force_safe']:
    p(f's_mov_b32 {s_mode}, 0')
p(f'v_mov_b32 v10, {S_MODE}')
p(f'v_mov_b32 v11, {s_mode}')
p('ds_write_b32 v10, v11')
for d in (1, 2):
    H = HALO + 16 * (2 - d)
    Lz = p.newlabel('L_nohalo')
    Lw = p.newlabel('L_halow')
    p(f's_cmp_lt_u32 {s_rb}, {d}')
    p(f's_cbranch_scc1 {Lz}')
    p(f's_sub_u32 {T[1]}, {T[4]}, {d * 16 * 128}')
    p(f'v_mov_b32 v10, {T[1]}')
    p(f's_sub_u32 {T[3]}, {T[2]}, {d * 16 * 16384}')
    poll(R, 'v10', 'v11')
    for q in range(4):
        p(f'buffer_load_dwordx4 {vr(H + 4 * q, 4)}, v2, {sWS}, {T[3]} offen offset:{q * 1024} sc1')
    p.label(Lw)

    def zero_blk(Lz=Lz, Lw=Lw, H=H):
        p.label(Lz)
        for r in range(16):
            p(f'v_mov_b32 v{H + r}, 0')
        p('s_waitcnt vmcnt(0)')
        p(f's_branch {Lw}')
    tail.append(zero_blk)
    R.dstamp('P2', f'kvpoll{d}')
    if d == 1:
        p(f'v_subrev_u32 v15, {8 * 2048}, v15')
        p(f'v_subrev_u32 v16, {16 * VSTR}, v16')
    if d == 2:
        for g in range(2):
            p(f'ds_write_b128 v15, {vr(HALO + 16 + 4 * g, 4)} offset:{4 * 2048 + g * 1024}')
            p(f'ds_write_b128 v16, {vr(HALO + 24 + 4 * g, 4)} offset:{(8 + g) * VSTR}')
XRES = 240
HRES = 248
p('v_and_b32 v10, 31, v1')
p(f's_lshl_b32 {T[0]}, {s_rs}, 1')
p(f's_add_u32 {s_tile}, {T[0]}, {s_t}')
p(f's_lshl_b32 {T[0]}, {s_tile}, 5')
p(f'v_add_u32 v10, {T[0]}, v10')
p('v_lshlrev_b32 v10, 10, v10')
p('v_lshrrev_b32 v11, 5, v1')
p('v_lshl_add_u32 v10, v11, 3, v10')
p(f's_lshl_b32 {T[0]}, {s_cb}, 7')
p(f's_lshl_b32 {T[1]}, {s_kh}, 6')
p(f's_add_u32 {T[0]}, {T[0]}, {T[1]}')
p(f'v_add_u32 v9, {T[0]}, v10')
p('s_waitcnt vmcnt(0)')
for g in range(2):
    p(f'ds_write_b128 v15, {vr(HALO + 4 * g, 4)} offset:{g * 1024}')
    p(f'ds_write_b128 v16, {vr(HALO + 8 + 4 * g, 4)} offset:{g * VSTR}')
R.vm.reset()
for g in range(4):
    p(f'buffer_load_dwordx2 {vr(XRES + 2 * g, 2)}, v9, {sX}, 0 offen offset:{16 * g}')
    R.vm.issue('xres')
tr64_lanes('v4', 'v5')
p(f's_lshl_b32 {T[0]}, {s_kh}, 15')
p(f's_add_u32 {T[0]}, {T[0]}, {L_WO}')
p(f'v_add_u32 v6, {T[0]}, v4')
p(f'v_add_u32 v7, {T[0]}, v5')
p('s_waitcnt lgkmcnt(0)')
R.dstamp('P2', 'halo')
R.bar()
R.stamp('B3')
R.dstamp('P2', 'B3')
WOF, OF, ACC3 = 16, 144, 208


def wo_reads(lo, hi):
    for s in range(lo, hi):
        for nt in range(2):
            for rd in range(2):
                p(f'ds_read_b64_tr_b16 {vr(WOF + 8 * s + 4 * nt + 2 * rd, 2)}, v{6 + nt} offset:{s * 2048 + rd * 1024}')
        if s % 2 == 1:
            p('s_waitcnt lgkmcnt(4)')


att_2b(R, [], lambda: wo_reads(0, 8))
p('s_setprio 2')
wo_reads(8, 16)
p('v_and_b32 v8, 15, v1')
p('v_lshlrev_b32 v8, 2, v8')
p(f's_lshl_b32 {T[0]}, {s_tile}, 1')
p(f's_add_u32 {T[0]}, {T[0]}, {s_kh}')
p(f's_lshl_b32 {T[1]}, {T[0]}, 14')
p(f's_lshl_b32 {T[0]}, {T[0]}, 6')
p(f's_add_u32 {T[0]}, {T[0]}, {FO}')
p(f'v_add_u32 v10, {T[0]}, v8')
p('s_waitcnt lgkmcnt(0)')
R.bar()
R.dstamp('P3', 'B5')
poll(R, 'v10', 'v11')
R.stamp('Opoll')
R.dstamp('P3', 'Opoll')


def o_load(s):
    if s % 4 == 0:
        p(f's_add_u32 {T[2]}, {T[1]}, {OB + s * 1024}')
    p(f'buffer_load_dwordx4 {vr(OF + 4 * s, 4)}, v2, {sWS}, {T[2]} offen offset:{(s % 4) * 1024} sc1')
    R.vm.issue(('o', s))


AH = 6
for s in range(AH):
    o_load(s)
for s in range(16):
    R.vm.wait([('o', s)])
    for nt in range(2):
        p(f'v_mfma_f32_32x32x16_bf16 {vr(ACC3 + 16 * nt, 16)}, {vr(WOF + 8 * s + 4 * nt, 4)}, {vr(OF + 4 * s, 4)}, {"0" if s == 0 else vr(ACC3 + 16 * nt, 16)}')
        if nt == 0 and s + AH < 16:
            o_load(s + AH)
R.dstamp('P3', 'loop')


def exchange(R, acc, dst, pre_barrier):
    p(f's_lshl_b32 {T[0]}, {s_w}, 12')
    p(f's_add_u32 {T[0]}, {T[0]}, {L_X}')
    p(f'v_add_u32 v10, {T[0]}, v2')
    p(f's_xor_b32 {T[0]}, {s_w}, 2')
    p(f's_lshl_b32 {T[0]}, {T[0]}, 12')
    p(f's_add_u32 {T[0]}, {T[0]}, {L_X}')
    p(f'v_add_u32 v11, {T[0]}, v2')
    if pre_barrier:
        R.bar()
    La = p.newlabel('L_xa')
    Lb = p.newlabel('L_xb')
    p(f's_cmp_eq_u32 {s_kh}, 0')
    p(f's_cbranch_scc0 {La}')
    for g in range(4):
        p(f'ds_write_b128 v10, {vr(acc + 16 + 4 * g, 4)} offset:{g * 1024}')
    p.label(Lb)

    def blk():
        p.label(La)
        for g in range(4):
            p(f'ds_write_b128 v10, {vr(acc + 4 * g, 4)} offset:{g * 1024}')
        p('s_waitcnt lgkmcnt(0)')
        for i in range(16):
            p(f'v_mov_b32 v{acc + i}, v{acc + 16 + i}')
        p(f's_branch {Lb}')
    tail.append(blk)
    p('s_waitcnt lgkmcnt(0)')
    R.bar()
    for g in range(4):
        p(f'ds_read_b128 {vr(dst + 4 * g, 4)}, v11 offset:{g * 1024}')
    for g in range(4):
        p(f's_waitcnt lgkmcnt({3 - g})')
        for i in range(4):
            p(f'v_add_f32 v{dst + 4 * g + i}, v{dst + 4 * g + i}, v{acc + 4 * g + i}')
    R.lg.reset()


exchange(R, ACC3, 16, False)
R.dstamp('P3', 'xchg')
for g in range(4):
    for k in range(2):
        x = XRES + 2 * g + k
        p(f'v_lshlrev_b32 v10, 16, v{x}')
        p(f'v_and_b32 v11, 0xffff0000, v{x}')
        p(f'v_add_f32 v{16 + 4 * g + 2 * k}, v{16 + 4 * g + 2 * k}, v10')
        p(f'v_add_f32 v{16 + 4 * g + 2 * k + 1}, v{16 + 4 * g + 2 * k + 1}, v11')
for r in range(8):
    p(f'v_cvt_pk_bf16_f32 v{HRES + r}, v{16 + 2 * r}, v{16 + 2 * r + 1}')
p(f's_lshl_b32 {T[0]}, {s_cb}, 1')
p(f's_add_u32 {T[0]}, {T[0]}, {s_kh}')
p(f's_lshl_b32 {T[3]}, {s_tile}, 4')
p(f's_add_u32 {T[3]}, {T[3]}, {T[0]}')
p(f's_lshl_b32 {T[1]}, {T[3]}, 11')
p(f's_add_u32 {T[1]}, {T[1]}, {HB}')
moded_stores(R, [f'buffer_store_dwordx4 {vr(HRES, 4)}, v2, {sWS}, {T[1]} offen',
                 f'buffer_store_dwordx4 {vr(HRES + 4, 4)}, v2, {sWS}, {T[1]} offen offset:1024'])
p('v_mov_b32 v18, 0x3f803f80')
p('v_mov_b32 v12, 0')
p('v_mov_b32 v13, 0')
for r in range(8):
    p(f'v_dot2c_f32_bf16 v12, v{HRES + r}, v18')
    p(f'v_dot2c_f32_bf16 v13, v{HRES + r}, v{HRES + r}')
p(f's_lshl_b32 {T[2]}, {T[3]}, 8')
p(f's_add_u32 {T[2]}, {T[2]}, {STB}')
p(f's_lshl_b32 {T[3]}, {s_tile}, 5')
p(f's_add_u32 {T[3]}, {T[3]}, {T[0]}')
p(f's_lshl_b32 {T[3]}, {T[3]}, 2')
p(f's_add_u32 {T[3]}, {T[3]}, {FH}')
p('v_and_b32 v14, 31, v1')
p('v_lshlrev_b32 v14, 3, v14')
half_sum('v12', 'v10')
half_sum('v13', 'v10')
moded_stores(R, [f'buffer_store_dwordx2 v[12:13], v14, {sWS}, {T[2]} offen'])
R.bar()
HF, ACC4, W1B, STL = 16, 144, 192, 228
tr96_lane('v3')
p('v_add_u32 v6, 0x10000, v3')
W1A = ['v3', 'v6']


def w1_reads(s):
    b = W1B + 12 * (s % 3)
    for nt in range(3):
        for rd in range(2):
            dsr(R, 'ds_read_b64_tr_b16', vr(b + 4 * nt + 2 * rd, 2), W1A, w1_addr(s) + rd * 1536 + nt * 64, ('w1', s))


w1_reads(0)
w1_reads(1)
flag_store(R, T[3], 'v10', 'v11')
R.stamp('Hflag')
R.dstamp('P3', 'Hflag')
p(f's_lshl_b32 {T[0]}, {s_rb}, 2')
p(f's_add_u32 {T[5]}, {T[0]}, {s_w}')
p(f's_lshl_b32 {T[1]}, {T[5]}, 15')
p(f's_lshl_b32 {T[3]}, {T[5]}, 12')
p(f's_add_u32 {T[3]}, {T[3]}, {STB}')
p('v_lshrrev_b32 v12, 5, v1')
p('v_lshlrev_b32 v12, 11, v12')
p('v_add_u32 v12, v12, v14')
p(f's_lshl_b32 {T[0]}, {T[5]}, 7')
p(f's_add_u32 {T[0]}, {T[0]}, {FH}')
p(f'v_add_u32 v10, {T[0]}, v8')
poll(R, 'v10', 'v11')
R.stamp('Hpoll')
R.dstamp('P4', 'Hpoll')


def h_load(s):
    if s % 4 == 0:
        p(f's_add_u32 {T[2]}, {T[1]}, {HB + s * 1024}')
    p(f'buffer_load_dwordx4 {vr(HF + 4 * s, 4)}, v2, {sWS}, {T[2]} offen offset:{(s % 4) * 1024} sc1')
    R.vm.issue(('h', s))


nh = 0
for s in range(6):
    h_load(nh)
    nh += 1
nst = 0
b8b = False
for s in range(32):
    R.vm.wait([('h', s)])
    if s in (0, 8, 16, 24, 31):
        R.dstamp('P4', f'h{s}')
    R.lg.wait([('w1', s)])
    b = W1B + 12 * (s % 3)
    for nt in range(3):
        p(f'v_mfma_f32_32x32x16_bf16 {vr(ACC4 + 16 * nt, 16)}, {vr(b + 4 * nt, 4)}, {vr(HF + 4 * s, 4)}, {"0" if s == 0 else vr(ACC4 + 16 * nt, 16)}')
        if nt == 0 and s + 2 < 32:
            w1_reads(s + 2)
        if nt >= 1 and nh < 32 and (nt == 1 or s % 2 == 0):
            h_load(nh)
            nh += 1
        elif nt >= 1 and nh >= 32 and nst < 8:
            p(f'buffer_load_dwordx2 {vr(STL + 2 * nst, 2)}, v12, {sWS}, {T[3]} offen offset:{nst * 256} sc1')
            R.vm.issue('stl')
            nst += 1
    if nst == 8 and not b8b:
        b8b = True
        R.bar()
        R.dstamp('P4', 'B8')
    if s == 27:
        R.vm.wait(['stl'])
        for q in range(1, 8):
            p(f'v_add_f32 v{STL}, v{STL}, v{STL + 2 * q}')
            p(f'v_add_f32 v{STL + 1}, v{STL + 1}, v{STL + 2 * q + 1}')
    if s == 28:
        half_sum(f'v{STL}', 'v10')
        half_sum(f'v{STL + 1}', 'v10')
        ln_finish(f'v{STL}', f'v{STL + 1}', 'v244', 'v245')
assert nh == 32 and nst == 8
W2R = 16
p(f's_lshl_b32 {T[0]}, {s_kh}, 13')
p(f's_add_u32 {T[0]}, {T[0]}, {L_X}')
p(f'v_add_u32 v6, {T[0]}, v4')
p(f'v_add_u32 v7, {T[0]}, v5')
for s in range(4):
    for nt in range(2):
        for rd in range(2):
            p(f'ds_read_b64_tr_b16 {vr(W2R + 8 * s + 4 * nt + 2 * rd, 2)}, v{6 + nt} offset:{s * 2048 + rd * 1024}')
    if s == 1:
        p('s_waitcnt lgkmcnt(4)')
p('v_lshrrev_b32 v12, 5, v1')
p('v_lshlrev_b32 v12, 4, v12')
CS1, B1R, PK = 48, 96, 192


def e_reads(nt):
    for g in range(4):
        p(f'ds_read_b128 {vr(CS1 + 16 * nt + 4 * g, 4)}, v12 offset:{S_CS1 + 128 * nt + 32 * g}')
        R.lg.issue(('e', nt))
    for g in range(4):
        p(f'ds_read_b128 {vr(B1R + 16 * nt + 4 * g, 4)}, v12 offset:{S_B1 + 128 * nt + 32 * g}')
        R.lg.issue(('e', nt))


p('s_waitcnt lgkmcnt(0)')
R.lg.reset()
e_reads(0)
R.dstamp('P4', 'preB9')
R.bar()
R.stamp('B9')
R.dstamp('P4', 'B9')
p(f's_mul_i32 {T[0]}, {s_c}, 6144')
p(f's_mul_i32 {T[1]}, {T[5]}, {96 * 1024}')
p(f's_add_u32 {T[1]}, {T[1]}, {T[0]}')
p(f's_add_u32 {T[1]}, {T[1]}, {H1B}')
p(f's_add_u32 {T[2]}, {T[1]}, 4096')
p(f's_lshl_b32 {T[3]}, {T[5]}, 5')
p(f's_add_u32 {T[3]}, {T[3]}, {s_c}')
p(f's_lshl_b32 {T[3]}, {T[3]}, 2')
p(f's_add_u32 {T[3]}, {T[3]}, {FH1}')
for nt in range(3):
    R.lg.wait([('e', nt)])
    if nt < 2:
        e_reads(nt + 1)
    for i in range(16):
        a = ACC4 + 16 * nt + i
        p(f'v_fma_f32 v{B1R + 16 * nt + i}, -v245, v{CS1 + 16 * nt + i}, v{B1R + 16 * nt + i}')
        p(f'v_fma_f32 v{a}, v{a}, v244, v{B1R + 16 * nt + i}')
        p(f'v_max_f32 v{a}, 0, v{a}')
        p(f'v_mul_f32 v{a}, v{a}, v{a}')
    for r in range(8):
        p(f'v_cvt_pk_bf16_f32 v{PK + 8 * nt + r}, v{ACC4 + 16 * nt + 2 * r}, v{ACC4 + 16 * nt + 2 * r + 1}')
    st = []
    for g in range(2):
        f = 2 * nt + g
        st.append(f'buffer_store_dwordx4 {vr(PK + 8 * nt + 4 * g, 4)}, v2, {sWS}, {T[1 + f // 4]} offen offset:{(f % 4) * 1024}')
    if OPT['h1sc1']:
        for x in st:
            p(x + ' sc1')
            R.vm.issue('st')
    else:
        moded_stores(R, st)
R.dstamp('P4', 'epi')
ACC5, W2B, H1F, B2R = 48, 80, 104, 240
NRING = 16
p(f's_mul_i32 {T[0]}, {s_kh}, {11 * 2048}')
p(f'v_add_u32 v6, {T[0]}, v4')
p(f'v_add_u32 v7, {T[0]}, v5')
p('v_add_u32 v6, 0x10000, v6')
p('v_add_u32 v7, 0x10000, v7')
p('v_add_u32 v12, 0x10000, v6')
p('v_add_u32 v13, 0x10000, v7')
p(f's_lshl_b32 {T[0]}, {s_kh}, 11')
p(f'v_add_u32 v4, {T[0]}, v4')
p(f'v_add_u32 v5, {T[0]}, v5')
p('v_add_u32 v14, 0x10000, v4')
p('v_add_u32 v15, 0x10000, v5')
for i in range(4, 15):
    assert w2_pos[43 + i] - w2_pos[i] == 11 * 2048
for i in range(15, 43):
    assert w2_pos[43 + i] - w2_pos[i] == 2048


def w2_reads(i):
    b = W2B + 8 * (i % 3)
    for nt in range(2):
        if i < 15:
            bases = [None, 'v6' if nt == 0 else 'v7', 'v12' if nt == 0 else 'v13']
        else:
            bases = ['v4' if nt == 0 else 'v5', 'v14' if nt == 0 else 'v15']
        for rd in range(2):
            dsr(R, 'ds_read_b64_tr_b16', vr(b + 4 * nt + 2 * rd, 2), bases, w2_pos[i] + rd * 1024, ('w2', i))


w2_reads(4)
w2_reads(5)
flag_store(R, T[3], 'v10', 'v11')
R.stamp('H1flag')
R.dstamp('P4', 'H1flag')
R.dstamp('P5', 'H1flag')
p('v_lshrrev_b32 v10, 5, v1')
p('v_lshlrev_b32 v10, 3, v10')
p(f's_lshl_b32 {T[0]}, {s_cb}, 7')
p(f's_lshl_b32 {T[1]}, {s_kh}, 6')
p(f's_add_u32 {T[0]}, {T[0]}, {T[1]}')
for g in range(4):
    p(f'buffer_load_dwordx2 {vr(B2R + 2 * g, 2)}, v10, {sB2}, {T[0]} offen offset:{16 * g}')
p('v_and_b32 v10, 28, v8')
p(f's_lshl_b32 {T[1]}, {s_tile}, 7')
p(f's_mul_i32 {T[0]}, {s_kh}, 28')
p(f's_add_u32 {T[1]}, {T[1]}, {T[0]}')
p(f's_add_u32 {T[1]}, {T[1]}, {FH1}')
p(f'v_add_u32 v10, {T[1]}, v10')
p(f's_mul_i32 {T[1]}, {s_tile}, {96 * 1024}')
p(f's_mul_i32 {T[2]}, {s_kh}, {43 * 1024}')
p(f's_add_u32 {T[1]}, {T[1]}, {T[2]}')
p(f's_add_u32 {T[1]}, {T[1]}, {H1B}')
poll(R, 'v10', 'v11')
R.stamp('H1poll')
R.dstamp('P5', 'H1poll')


def h1_load(i):
    if i % 4 == 0:
        p(f's_add_u32 {T[2]}, {T[1]}, {i * 1024}')
    p(f'buffer_load_dwordx4 {vr(H1F + 4 * (i % NRING), 4)}, v2, {sWS}, {T[2]} offen offset:{(i % 4) * 1024} sc1')
    R.vm.issue(('h1', i))


AH = 8
for i in range(AH):
    h1_load(i)
for i in range(43):
    if i == 13:
        R.dstamp('P5', 'preB11')
        R.bar()
        R.dstamp('P5', 'B11')
    R.vm.wait([('h1', i)])
    if i in (0, 28):
        R.dstamp('P5', f'h1_{i}')
    if i >= 4:
        R.lg.wait([('w2', i)])
    b = W2R + 8 * i if i < 4 else W2B + 8 * (i % 3)
    for nt in range(2):
        p(f'v_mfma_f32_32x32x16_bf16 {vr(ACC5 + 16 * nt, 16)}, {vr(b + 4 * nt, 4)}, {vr(H1F + 4 * (i % NRING), 4)}, {"0" if i == 0 else vr(ACC5 + 16 * nt, 16)}')
        if nt == 0 and i >= 4 and i + 2 < 43:
            w2_reads(i + 2)
        if nt == 1 and i + AH < 43:
            h1_load(i + AH)
R.dstamp('P5', 'loop')
exchange(R, ACC5, 16, True)
R.stamp('B13')
R.dstamp('P5', 'B13')
for g in range(4):
    for k in range(2):
        for src in (B2R + 2 * g + k, HRES + 2 * g + k):
            p(f'v_lshlrev_b32 v10, 16, v{src}')
            p(f'v_and_b32 v11, 0xffff0000, v{src}')
            p(f'v_add_f32 v{16 + 4 * g + 2 * k}, v{16 + 4 * g + 2 * k}, v10')
            p(f'v_add_f32 v{16 + 4 * g + 2 * k + 1}, v{16 + 4 * g + 2 * k + 1}, v11')
for r in range(8):
    p(f'v_cvt_pk_bf16_f32 v{32 + r}, v{16 + 2 * r}, v{16 + 2 * r + 1}')
p('v_lshrrev_b32 v10, 5, v1')
p('v_lshl_add_u32 v9, v10, 3, v9')
for q in range(2):
    p(f'v_permlane32_swap_b32 v{32 + 4 * q}, v{32 + 4 * q + 2}')
    p(f'v_permlane32_swap_b32 v{32 + 4 * q + 1}, v{32 + 4 * q + 3}')
    p(f'buffer_store_dwordx4 {vr(32 + 4 * q, 4)}, v9, {sOUT}, 0 offen offset:{32 * q}')
dump_stamps(R)
p('s_endpgm')
for b in tail:
    b()
tail = []

assert CW.nbar == HW.nbar, (CW.nbar, HW.nbar)

p.fix_hazards()

hdr = open(os.path.join(os.path.dirname(os.path.abspath(__file__)), '..', 'cdna_kernels', NAME + '.s.ref')).read().split('\n')
top = [l for l in hdr if l.startswith(';') and '@launch' not in l and 'Override' not in l and 'grid=ceil' not in l]
out = '\n'.join(top) + '\n'
out += f'; @launch grid=(256,1,1) block=(512,1,1) lds={LDS_BYTES}\n'
out += f'''.amdgcn_target "amdgcn-amd-amdhsa--gfx950"
.text
.globl {KNAME}
.p2align 8
.type {KNAME},@function
'''
out += p.text()
out += f'''.section .rodata,"a"
.p2align 6
.amdhsa_kernel {KNAME}
  .amdhsa_next_free_vgpr 256
  .amdhsa_next_free_sgpr 102
  .amdhsa_accum_offset 256
  .amdhsa_group_segment_fixed_size 0
  .amdhsa_kernarg_size 88
  .amdhsa_user_sgpr_count 2
  .amdhsa_user_sgpr_kernarg_segment_ptr 1
  .amdhsa_system_sgpr_workgroup_id_x 1
.end_amdhsa_kernel
'''
open(sys.argv[1], 'w').write(out)
if OPT['stamps']:
    import json
    json.dump(STAMPS, open(sys.argv[1] + '.stamps.json', 'w'))
print('instructions:', sum(1 for x in p.ins if x.kind not in ('label', 'dir')), 'maxv', p.maxreg('v'), 'maxs', p.maxreg('s'), 'barriers', CW.nbar)
```

```python
import re

REG_RE = re.compile(r'^(-?)(?:abs\()?([vsa])(?:(\d+)|\[(\d+):(\d+)\])\)?$')


def regs_of(tok):
    tok = tok.strip()
    if tok in ('vcc', 'exec', 'm0', 'scc'):
        return {(tok, 0)}
    if tok in ('vcc_lo', 'vcc_hi'):
        return {('vcc', 0)}
    if tok in ('exec_lo', 'exec_hi'):
        return {('exec', 0)}
    m = REG_RE.match(tok)
    if not m:
        return set()
    k = m.group(2)
    if m.group(3) is not None:
        return {(k, int(m.group(3)))}
    return {(k, i) for i in range(int(m.group(4)), int(m.group(5)) + 1)}


TRANS = ('v_exp_', 'v_log_', 'v_rcp_', 'v_rsq_', 'v_sqrt_', 'v_sin_', 'v_cos_')


class Ins:
    __slots__ = ('text', 'op', 'ops', 'kind', 'wr', 'rd', 'srcc', 'ab', 'label', 'target', 'data', 'lds', 'comment')

    def __init__(self, text):
        self.text = text
        self.label = None
        self.target = None
        self.wr = set()
        self.rd = set()
        self.srcc = set()
        self.ab = set()
        self.data = set()
        self.lds = False
        t = text.split(';')[0].strip()
        if t.endswith(':'):
            self.label = t[:-1]
            self.kind = 'label'
            self.op = ''
            return
        if t.startswith('.') or not t:
            self.kind = 'dir'
            self.op = ''
            return
        parts = t.split(None, 1)
        op = parts[0]
        self.op = op
        rest = parts[1] if len(parts) > 1 else ''
        ops = [o.strip() for o in rest.split(',')] if rest else []
        mods = ''
        if ops:
            lastp = ops[-1].split(None, 1)
            ops[-1] = lastp[0] if lastp else ''
            mods = lastp[1] if len(lastp) > 1 else ''
        self.ops = ops
        R = regs_of
        if op.startswith('v_mfma'):
            self.kind = 'mfma'
            self.wr = R(ops[0])
            self.ab = R(ops[1]) | R(ops[2])
            self.srcc = R(ops[3])
            self.rd = self.ab | self.srcc
        elif op.startswith('v_'):
            self.kind = 'valu'
            if op.startswith('v_cmp'):
                self.wr = R(ops[0])
                for o in ops[1:]:
                    self.rd |= R(o)
            elif op.startswith('v_permlane') and 'swap' in op:
                self.wr = R(ops[0]) | R(ops[1])
                self.rd = set(self.wr)
            else:
                self.wr = R(ops[0])
                for o in ops[1:]:
                    self.rd |= R(o)
                if op.startswith(('v_dot2c', 'v_fmac', 'v_writelane')):
                    self.rd |= self.wr
                if op.startswith('v_cndmask') and len(ops) == 3:
                    self.rd |= {('vcc', 0)}
                if 'dpp' in op or 'row_' in mods or 'quad_perm' in mods:
                    self.rd |= self.wr
        elif op.startswith('ds_'):
            self.kind = 'ds'
            if op.startswith(('ds_read', 'ds_bpermute', 'ds_permute', 'ds_swizzle')):
                self.wr = R(ops[0])
                for o in ops[1:]:
                    self.rd |= R(o)
            else:
                for o in ops:
                    self.rd |= R(o)
        elif op.startswith(('buffer_', 'global_')):
            self.kind = 'vmem'
            allm = ' ' + mods + ' '
            if op in ('buffer_inv', 'buffer_wbl2'):
                return
            if ' lds ' in allm or 'load_lds' in op:
                self.lds = True
                for o in ops:
                    self.rd |= R(o)
                self.rd |= {('m0', 0)}
            elif '_load' in op:
                self.wr = R(ops[0])
                for o in ops[1:]:
                    self.rd |= R(o)
            elif op.startswith('buffer_store'):
                for o in ops:
                    self.rd |= R(o)
                if 'x4' in op or 'x3' in op:
                    self.data = R(ops[0])
            elif op.startswith('global_store'):
                for o in ops:
                    self.rd |= R(o)
                if 'x4' in op or 'x3' in op:
                    self.data = R(ops[1])
            elif 'atomic' in op:
                for o in ops:
                    self.rd |= R(o)
                if ' sc0 ' in allm:
                    self.wr = R(ops[0])
            else:
                raise ValueError(text)
        elif op.startswith('s_'):
            self.kind = 'salu'
            if op in ('s_branch',) or op.startswith('s_cbranch'):
                self.kind = 'branch'
                self.target = ops[0]
            elif op.startswith(('s_cmp', 's_waitcnt', 's_nop', 's_barrier', 's_endpgm', 's_sleep', 's_setprio', 's_bitcmp')):
                for o in ops:
                    self.rd |= R(o)
            else:
                if ops:
                    self.wr = R(ops[0])
                for o in ops[1:]:
                    self.rd |= R(o)
                if 'saveexec' in op:
                    self.wr |= {('exec', 0)}
        else:
            raise ValueError('unknown instruction: ' + text)

    def states(self):
        if self.kind in ('label', 'dir'):
            return 0
        if self.op == 's_nop':
            return int(self.ops[0], 0) + 1
        return 1


def is_trans(i):
    return i.kind == 'valu' and i.op.startswith(TRANS)


def is_dot(i):
    return i.kind == 'valu' and i.op.startswith('v_dot')


def vregs(s):
    return {r for r in s if r[0] in ('v', 'a')}


def sregs(s):
    return {r for r in s if r[0] in ('s', 'vcc', 'exec')}


def mfma_passes(i):
    return 8 if '32x32x16' in i.op else 4


def need(p, c):
    n = 0
    if p.kind == 'valu':
        pw = vregs(p.wr)
        if c.kind == 'mfma' and pw & c.rd:
            n = max(n, 2)
        if c.kind == 'valu':
            if is_trans(p) and not is_trans(c) and pw & c.rd:
                n = max(n, 1)
            if c.op.startswith(('v_readlane', 'v_readfirstlane')) and pw & c.rd:
                n = max(n, 1)
            if c.op.startswith('v_permlane') and pw & c.rd:
                n = max(n, 2)
            if ('dpp' in c.op or 'row_' in c.text) and pw & c.rd:
                n = max(n, 2)
        if is_dot(p):
            if pw & (c.rd | c.wr):
                if c.kind == 'valu' and c.op == p.op and not (pw & (regs_of(c.ops[1]) | regs_of(c.ops[2]))):
                    pass
                elif c.kind in ('valu', 'mfma', 'ds', 'vmem'):
                    n = max(n, 3)
        ps = sregs(p.wr)
        if ps:
            if c.kind in ('valu', 'mfma') and ps & c.rd:
                n = max(n, 4 if c.op.startswith(('v_readlane', 'v_writelane')) else 2)
            if c.kind == 'vmem' and ps & c.rd:
                n = max(n, 5)
            if ('exec', 0) in ps and c.kind in ('mfma', 'valu'):
                n = max(n, 5)
    if p.kind == 'mfma':
        P = mfma_passes(p)
        full = {8: 12, 4: 8}[P]
        part = {8: 10, 4: 6}[P]
        war = {8: 7, 4: 3}[P]
        if c.kind == 'mfma':
            if p.wr & c.ab:
                n = max(n, full)
            if p.wr & c.srcc:
                if not (p.wr == c.srcc and mfma_passes(c) == P):
                    n = max(n, part)
            elif p.wr & c.wr:
                n = max(n, part)
        elif c.kind in ('valu', 'ds', 'vmem'):
            if p.wr & (c.rd | c.wr):
                n = max(n, full)
            if p.srcc & c.wr:
                n = max(n, war)
    if p.kind == 'salu' and ('m0', 0) in p.wr and c.kind == 'vmem' and c.lds:
        n = max(n, 1)
    if p.kind == 'vmem' and p.data and (p.data & c.wr):
        n = max(n, 2)
    return n


MAXD = 13


class Prog:
    def __init__(self):
        self.ins = []
        self.uid = 0

    def __call__(self, text):
        for line in text.strip('\n').split('\n'):
            line = line.strip()
            if not line or line.startswith(';'):
                continue
            self.ins.append(Ins(line))

    def label(self, name):
        self.ins.append(Ins(name + ':'))

    def newlabel(self, base):
        self.uid += 1
        return f'{base}_{self.uid}'

    def fix_hazards(self):
        changed = True
        rounds = 0
        while changed:
            changed = False
            rounds += 1
            assert rounds < 50
            ins = self.ins
            labels = {x.label: k for k, x in enumerate(ins) if x.label}
            srcs = {}
            for k, x in enumerate(ins):
                if x.kind == 'branch':
                    srcs.setdefault(labels[x.target], []).append(k)

            def preds(k, dist, seen):
                out = []
                stack = [(k, dist)]
                best = {}
                while stack:
                    q, d = stack.pop()
                    while q > 0 and d < MAXD:
                        if ins[q].label and q in srcs:
                            for b in srcs[q]:
                                key = b
                                if best.get(('b', key), 99) > d:
                                    best[('b', key)] = d
                                    out.append((b, d))
                                    stack.append((b, d + 1))
                        q -= 1
                        x = ins[q]
                        if x.op in ('s_branch', 's_endpgm'):
                            break
                        if x.kind in ('label', 'dir'):
                            continue
                        if best.get(q, 99) <= d:
                            break
                        best[q] = d
                        out.append((q, d))
                        d += x.states()
                return out

            k = 0
            while k < len(ins):
                c = ins[k]
                if c.kind in ('label', 'dir') or c.op in ('s_nop', 's_waitcnt', 's_barrier'):
                    k += 1
                    continue
                req = 0
                for q, d in preds(k, 0, None):
                    n = need(ins[q], c)
                    if n > d:
                        req = max(req, n - d)
                if req:
                    ins.insert(k, Ins(f's_nop {req - 1}'))
                    changed = True
                    labels = {x.label: kk for kk, x in enumerate(ins) if x.label}
                    srcs = {}
                    for kk, x in enumerate(ins):
                        if x.kind == 'branch':
                            srcs.setdefault(labels[x.target], []).append(kk)
                    k += 1
                k += 1

    def text(self):
        out = []
        for x in self.ins:
            out.append(x.text if x.kind == 'label' else '    ' + x.text)
        return '\n'.join(out) + '\n'

    def maxreg(self, kind):
        m = -1
        for x in self.ins:
            for r in x.rd | x.wr:
                if r[0] == kind:
                    m = max(m, r[1])
        return m


class Cnt:
    def __init__(self, p, name, maxv):
        self.p = p
        self.name = name
        self.maxv = maxv
        self.q = []

    def issue(self, tag=None):
        self.q.append(tag)

    def wait(self, tag):
        tags = tag if isinstance(tag, (set, list, tuple)) else [tag]
        idx = -1
        for k, t in enumerate(self.q):
            if t in tags:
                idx = k
        if idx < 0:
            return
        n = len(self.q) - 1 - idx
        n = min(n, self.maxv)
        self.p(f's_waitcnt {self.name}({n})')
        self.q = self.q[len(self.q) - n:] if n else []

    def room(self, n):
        if len(self.q) + n > self.maxv:
            k = self.maxv - n
            self.p(f's_waitcnt {self.name}({k})')
            self.q = self.q[len(self.q) - k:] if k else []

    def wait_all(self):
        self.p(f's_waitcnt {self.name}(0)')
        self.q = []

    def reset(self):
        self.q = []
```

```python
import sys
import os
sys.path.insert(0, os.path.dirname(os.path.abspath(__file__)))
from asmlib import Prog, Cnt

NAME = 'sequential_preLN__sliding_block__dense_activation_squared_relu__prompt'
KNAME = NAME + '_kernel'

OPT = dict(stamps=False, force_safe=False, force_fallback=False, spin=200000, h1sc1=1, osc1=1, hsc1=1, mallwarm=1, p1touch=1, la=2, t0=2, tmode=1, codewarm=1, tlbwarm=1)
for a in sys.argv[2:]:
    k, _, v = a.partition('=')
    OPT[k] = int(v) if v else True

EPOCH = 0x0
ST = 0x1000
FKV = 0x2000
FO = 0xA000
FH = 0xC000
FH1 = 0xE000
RST = 0x10000
KVB = 0x100000
OB = 0x500000
HB = 0x700000
STB = 0x900000
H1B = 0xA00000
WS_END = 0x1000000
STAMP = 0x1000000
WS_SIZE = 0x1100000

S_R = 0
S_M = 512
S_CS = 1024
S_CS1 = 1536
S_B1 = 2048
S_TAG = 2560
S_MODE = 2564
S_SYNC = 2816
C_ISS, C_END, H_TAB, H_P1, H_LATE = [S_SYNC + 4 * i for i in range(5)]
BASE = 3072
RING = BASE
SLOT = 28672
NSLOT = 4
L_WO = BASE
L_K = BASE + 64 * 1024
L_V = L_K + 24 * 1024
VSTR = 1040
L_HI = 116 * 1024
assert L_V + 24 * VSTR <= L_HI and RING + NSLOT * SLOT <= L_HI
L_X = BASE + 96 * 1024
LDS_BYTES = 160 * 1024


def w1_addr(s):
    return BASE + s * 3072


W2_REG = [0, 1, 2, 3, 43, 44, 45, 46]
W2_P1 = list(range(4, 15)) + list(range(47, 58))
W2_LATE = [s for s in range(86) if s not in W2_REG and s not in W2_P1]
w2_pos = {}
for i, s in enumerate(W2_REG):
    w2_pos[s] = L_X + i * 2048
for i, s in enumerate(W2_P1):
    w2_pos[s] = L_HI + i * 2048
late_order = []
lo = [s for s in W2_LATE if s < 43]
hi = [s for s in W2_LATE if s >= 43]
for a, b in zip(lo, hi):
    late_order += [a, b]
assert len(late_order) == 56
for i, s in enumerate(late_order):
    w2_pos[s] = BASE + i * 2048
assert BASE + 56 * 2048 <= L_HI

sX, sWQKV, sWO, sW1, sW2, sOUT, sWS, sB1, sB2, sDBG = [f's[{i}:{i + 3}]' for i in range(4, 44, 4)]
s_team, s_j, s_rb, s_c, s_rs, s_cb, s_w, s_tt, s_tag, s_mode, s_hd = [f's{i}' for i in range(44, 55)]
T = [f's{i}' for i in range(55, 64)]
s_xr = [f's{i}' for i in range(86, 90)]
s_wr = [f's{i}' for i in range(90, 94)]
s_t, s_kh = 's94', 's95'
s_tile = 's64'
s_last = 's96'
s_stamp = 's[98:99]'

LOG2E = 1.4426950408889634
BIG = 0xf149f2ca


def fhex(x):
    import struct
    return '0x%08x' % struct.unpack('<I', struct.pack('<f', x))[0]


def vr(a, n=1):
    return f'v{a}' if n == 1 else f'v[{a}:{a + n - 1}]'


p = Prog()
tail = []


class Role:
    def __init__(self, name):
        self.name = name
        self.vm = Cnt(p, 'vmcnt', 63)
        self.lg = Cnt(p, 'lgkmcnt', 15)
        self.nbar = 0
        self.nstamp = 0

    def bar(self):
        p('s_barrier')
        self.nbar += 1

    def dstamp(self, grp, label):
        if OPT.get('d' + grp):
            self.stamp(label, True)

    def stamp(self, label='', force=False):
        if not OPT['stamps']:
            return
        if not force and label not in ('start', 'end') and any(k.startswith('dP') for k in OPT):
            return
        k = self.nstamp
        self.nstamp += 1
        STAMPS.setdefault(self.name, []).append(label)
        assert k < 20
        p(f's_memtime {s_stamp}')
        p('s_waitcnt lgkmcnt(0)')
        self.lg.reset()
        p(f's_mov_b32 s{66 + k}, s98')


STAMPS = {}


def dsr(R, op, dst, bases, off, tag=None):
    k = off // 65536
    R.lg.room(1)
    p(f'{op} {dst}, {bases[k]} offset:{off % 65536}')
    R.lg.issue(tag)


def dma(R, vaddr, srd, soff, ldsaddr, tag=None):
    p(f's_mov_b32 m0, {ldsaddr}')
    p(f'buffer_load_dwordx4 {vaddr}, {srd}, {soff} offen lds')
    R.vm.issue(tag)


def poll(R, vaddr, vtmp, wide=False):
    L = p.newlabel('L_poll')
    D = p.newlabel('L_polld')
    X = p.newlabel('L_pollx')
    p(f's_mov_b32 {T[0]}, 0')
    p.label(L)
    first = vtmp if not wide else 'v' + vtmp[2:vtmp.index(':')]
    p(f'buffer_load_dword{"x2" if wide else ""} {vtmp}, {vaddr}, {sWS}, 0 offen sc1')
    p('s_waitcnt vmcnt(0)')
    p(f'v_cmp_ne_u32 vcc, {s_tag}, {first}')
    p(f's_cbranch_vccnz {X}')
    p.label(D)
    R.vm.reset()

    def blk():
        p.label(X)
        p(f's_add_u32 {T[0]}, {T[0]}, 1')
        p(f's_cmp_lt_u32 {T[0]}, {OPT["spin"]}')
        p(f's_cbranch_scc1 {L}')
        p(f's_branch {D}')
    tail.append(blk)


def moded_stores(R, stores, wt=False):
    if wt:
        for s in stores:
            p(s + ' sc1')
            R.vm.issue('st')
        return
    Ls = p.newlabel('L_safe')
    Lb = p.newlabel('L_back')
    p(f's_cmp_eq_u32 {s_mode}, 1')
    p(f's_cbranch_scc0 {Ls}')
    for s in stores:
        p(s)
    p.label(Lb)
    for s in stores:
        if s.startswith('buffer_'):
            R.vm.issue('st')

    def blk():
        p.label(Ls)
        for s in stores:
            p(s + ' sc1' if s.startswith('buffer_') else s)
        p(f's_branch {Lb}')
    tail.append(blk)


def signal(R, word, vz, vone):
    p('s_mov_b64 exec, 1')
    p(f'ds_add_u32 {vz}, {vone} offset:{word}')
    p('s_mov_b64 exec, -1')
    R.lg.issue('sig')


def lwait(R, word, vz, vt, early=False):
    L = p.newlabel('L_lw')
    X = p.newlabel('L_lwx')
    if early:
        R.lg.wait([word])
    else:
        p(f'ds_read_b32 {vt}, {vz} offset:{word}')
        p('s_waitcnt lgkmcnt(0)')
        R.lg.reset()
    p(f'v_cmp_gt_u32 vcc, 4, {vt}')
    p(f's_cbranch_vccnz {X}')
    p.label(L)

    def blk():
        Y = p.newlabel('L_lwy')
        p.label(X)
        p(f's_mov_b32 {T[0]}, 0')
        p.label(Y)
        p(f'ds_read_b32 {vt}, {vz} offset:{word}')
        p('s_waitcnt lgkmcnt(0)')
        p(f'v_cmp_gt_u32 vcc, 4, {vt}')
        p(f's_cbranch_vccz {L}')
        p(f's_add_u32 {T[0]}, {T[0]}, 1')
        p(f's_cmp_lt_u32 {T[0]}, {OPT["spin"] * 8}')
        p(f's_cbranch_scc1 {Y}')
        p(f's_branch {L}')
    tail.append(blk)


def flag_store(R, saddr, vt0, vt1, moded=True):
    p(f'v_mov_b32 {vt0}, {saddr}')
    p(f'v_mov_b32 {vt1}, {s_tag}')
    R.vm.wait_all()
    p('s_mov_b64 exec, 1')
    if moded:
        moded_stores(R, [f'buffer_store_dword {vt1}, {vt0}, {sWS}, 0 offen'])
    else:
        p(f'buffer_store_dword {vt1}, {vt0}, {sWS}, 0 offen sc1')
        R.vm.issue('st')
    p('s_mov_b64 exec, -1')


CW = Role('CW')
HW = Role('HW')
s_q = T[8]
s_mx, s_mw, s_tw = 's96', 's97', 's3'


def srd(dst, lo, size):
    b = int(dst[2:dst.index(':')])
    p(f's_mov_b32 s{b}, s{lo}')
    p(f's_and_b32 s{b + 1}, s{lo + 1}, 0xffff')
    p(f's_mov_b32 s{b + 2}, {size}')
    p(f's_mov_b32 s{b + 3}, 0x20000')


p.label(KNAME)
p('s_cmp_ge_u32 s2, 256')
p('s_cbranch_scc1 L_end')
if OPT['stamps']:
    p('s_memtime s[100:101]')
if OPT.get('dbgout'):
    p('s_memrealtime s[86:87]')
p('s_load_dwordx16 s[64:79], s[0:1], 0')
p('s_load_dwordx4 s[80:83], s[0:1], 64')
p('s_load_dwordx2 s[84:85], s[0:1], 80')
p('v_and_b32 v1, 63, v0')
p('v_lshrrev_b32 v2, 6, v0')
p(f'v_readfirstlane_b32 {s_w}, v2')
p(f's_and_b32 {s_team}, s2, 7')
p(f's_lshr_b32 {s_j}, s2, 3')
p(f's_and_b32 {s_c}, {s_j}, 15')
p(f's_lshr_b32 {T[0]}, {s_j}, 4')
p(f's_lshl_b32 {s_rb}, {s_team}, 1')
p(f's_add_u32 {s_rb}, {s_rb}, {T[0]}')
p('v_lshlrev_b32 v2, 4, v1')
p(f's_and_b32 {s_q}, {s_w}, 3')
p('v_lshrrev_b32 v3, 3, v1')
p(f's_lshl_b32 {T[0]}, {s_q}, 5')
p(f'v_add_u32 v3, {T[0]}, v3')
p('v_and_b32 v10, 7, v1')
p(f's_lshl_b32 {T[1]}, {s_rb}, 17')
p('v_bfe_u32 v11, v3, 1, 3')
p('v_xor_b32 v11, v10, v11')
p('v_lshlrev_b32 v11, 4, v11')
p('v_lshl_add_u32 v4, v3, 10, v11')
p(f'v_add_u32 v4, {T[1]}, v4')
p('v_xor_b32 v5, 64, v4')
p('v_add_u32 v5, 8192, v5')
p(f's_mul_i32 {T[0]}, {s_q}, 192')
p(f's_lshl_b32 {T[1]}, {s_c}, 6')
p(f's_movk_i32 {T[3]}, 5462')
p(f's_movk_i32 {T[4]}, 3072')
for q in range(3):
    p(f'v_add_u32 v10, {T[0]}, v1')
    if q:
        p(f'v_add_u32 v10, {64 * q}, v10')
    p(f'v_mul_lo_u32 v11, v10, {T[3]}')
    p('v_lshrrev_b32 v11, 16, v11')
    p('v_mul_u32_u24 v12, 12, v11')
    p('v_sub_u32 v12, v10, v12')
    p('v_lshrrev_b32 v13, 2, v12')
    p('v_and_b32 v12, 3, v12')
    p('v_lshlrev_b32 v12, 4, v12')
    p('v_lshl_add_u32 v12, v13, 10, v12')
    p(f'v_mul_lo_u32 v11, v11, {T[4]}')
    p(f'v_add3_u32 v{6 + q}, v11, v12, {T[1]}')
p(f's_lshl_b32 {s_mx}, {s_q}, 12')
p(f's_mul_i32 {s_mw}, {s_q}, 3072')
p(f's_lshl_b32 {s_tw}, {s_j}, 2')
p(f's_add_u32 {s_tw}, {s_tw}, {s_q}')
p(f's_mul_i32 {s_tw}, {s_tw}, 1536')
p('v_min_u32 v17, 11, v1')
p('v_lshlrev_b32 v17, 7, v17')
p(f's_lshl_b32 {T[5]}, {s_rb}, 4')
p(f's_add_u32 {T[5]}, {T[5]}, {s_c}')
p(f's_lshl_b32 {T[5]}, {T[5]}, 3')
p(f's_add_u32 {T[5]}, {T[5]}, {s_q}')
p('s_waitcnt lgkmcnt(0)')
p(f's_load_dword {s_tag}, s[84:85], {EPOCH}')
srd(sX, 64, 2048 * 512 * 2)
p(f's_cmp_ge_u32 {s_w}, 4')
p('s_cbranch_scc1 L_norow')
p(f's_lshl_b32 {T[0]}, {T[5]}, 10')
p(f's_add_u32 {T[1]}, {T[0]}, 4096')
p(f'buffer_load_dwordx4 v[196:199], v2, {sX}, {T[0]} offen')
p(f'buffer_load_dwordx4 v[208:211], v2, {sX}, {T[1]} offen')
CW.vm.issue('row')
CW.vm.issue('row')
p.label('L_norow')
srd(sWQKV, 66, 512 * 1536 * 2)
if OPT['stamps']:
    p('s_memtime s[98:99]')
    p('s_waitcnt lgkmcnt(0)')
    p('s_mov_b32 s101, s98')
p(f's_cmp_lt_u32 {s_w}, 4')
p('s_cbranch_scc1 L_CW')


def chunk_groups(R, ch):
    slot = RING + (ch % NSLOT) * SLOT

    def xg(q):
        def f():
            p(f's_mov_b32 {T[7]}, {ch * 128 + (q >> 1) * 16384}')
            p(f's_add_u32 m0, {s_mx}, {slot + q * 1024}')
            p(f'buffer_load_dwordx4 v{4 + (q & 1)}, {sX}, {T[7]} offen lds')
            R.vm.issue(('ch', ch))
        return f

    def wg(q):
        def f():
            p(f's_mov_b32 {T[7]}, {ch * 64 * 3072}')
            p(f's_add_u32 m0, {s_mw}, {slot + 16384 + q * 1024}')
            p(f'buffer_load_dwordx4 v{6 + q}, {sWQKV}, {T[7]} offen lds')
            R.vm.issue(('ch', ch))
        return f
    return [wg(0), xg(0), wg(1), xg(1), wg(2), xg(2), xg(3)]


def wtouch(R, i):
    def f():
        if not OPT['p1touch']:
            return
        p(f's_add_u32 {T[7]}, {s_tw}, {i * 64 * 3072}')
        p(f'buffer_load_dword v252, v17, {sWQKV}, {T[7]} offen')
        R.vm.issue('t')
    return f


def mallwarm(R):
    def f():
        if not OPT['mallwarm']:
            return
        p(f's_lshl_b32 {T[7]}, {s_j}, 2')
        p(f's_add_u32 {T[7]}, {T[7]}, {s_q}')
        p(f's_lshl_b32 {T[7]}, {T[7]}, 12')
        p('v_and_b32 v3, 31, v1')
        p('v_lshlrev_b32 v3, 7, v3')
        p(f'buffer_load_dword v255, v3, {sWO}, {T[7]} offen')
        p(f's_lshl_b32 {T[7]}, s2, 2')
        p(f's_add_u32 {T[7]}, {T[7]}, {s_q}')
        p(f's_mul_i32 {T[6]}, {T[7]}, 1536')
        p(f'buffer_load_dword v254, v17, {sW1}, {T[6]} offen')
        p(f'buffer_load_dword v252, v17, {sW2}, {T[6]} offen')
        for _ in range(3):
            R.vm.issue('t')
    return f


def srds_w():
    srd(sWO, 68, 512 * 512 * 2)
    srd(sW1, 72, 512 * 1376 * 2)
    srd(sW2, 76, 1376 * 512 * 2)


def common_setup(R):
    srd(sWS, 84, WS_SIZE if OPT['stamps'] else WS_END)
    srd(sB1, 74, 1376 * 2)
    srd(sB2, 78, 512 * 2)
    srd(sOUT, 80, 2048 * 512 * 2)
    p(f's_lshr_b32 {T[0]}, {s_j}, 3')
    p(f's_lshl_b32 {s_rs}, {s_team}, 2')
    p(f's_add_u32 {s_rs}, {s_rs}, {T[0]}')
    p(f's_and_b32 {s_cb}, {s_j}, 7')
    p(f's_lshr_b32 {s_hd}, {s_w}, 2')
    if R is CW:
        p(f's_mov_b32 {s_tt}, {s_w}')
        p(f's_and_b32 {s_t}, {s_w}, 1')
        p(f's_lshr_b32 {s_kh}, {s_w}, 1')
    else:
        p(f's_sub_u32 {s_tt}, 7, {s_w}')
    p('v_mov_b32 v18, 0x3f803f80')
    p('s_waitcnt lgkmcnt(0)')
    p(f's_add_u32 {s_tag}, {s_tag}, 1')


def row_stats(R):
    p(f's_lshl_b32 s65, s65, 4')
    p(f's_add_u32 s65, s65, {RST}')
    p(f'v_mov_b32 v3, s65')
    for k in (200, 202, 212, 214):
        p(f'v_mov_b32 v{k}, 0')
    R.vm.wait(['row'])
    for r in range(4):
        for o in (0, 12):
            p(f'v_dot2c_f32_bf16 v{200 + o}, v{196 + o + r}, v18')
            p(f'v_dot2c_f32_bf16 v{202 + o}, v{196 + o + r}, v{196 + o + r}')
    for sh in (8, 4, 2, 1):
        for k in (200, 202, 212, 214):
            p(f'v_add_f32_dpp v{k}, v{k}, v{k} row_ror:{sh} row_mask:0xf bank_mask:0xf')
    for op in ('v_permlane16_swap_b32', 'v_permlane32_swap_b32'):
        for k in (200, 202, 212, 214):
            p(f'v_mov_b32 v{k + 1}, v{k}')
        for k in (200, 202, 212, 214):
            p(f'{op} v{k}, v{k + 1}')
        for k in (200, 202, 212, 214):
            p(f'v_add_f32 v{k}, v{k}, v{k + 1}')
    for o in (0, 12):
        ln_finish(f'v{200 + o}', f'v{202 + o}', f'v{204 + o}', f'v{206 + o}')
        p(f'v_mov_b32 v{205 + o}, {s_tag}')
        p(f'v_mov_b32 v{207 + o}, {s_tag}')
    p('s_mov_b64 exec, 1')
    p(f'buffer_store_dwordx4 v[204:207], v3, {sWS}, 0 offen sc1')
    p(f'buffer_store_dwordx4 v[216:219], v3, {sWS}, 0 offen offset:64 sc1')
    p('s_mov_b64 exec, -1')
    R.vm.issue('st')
    R.vm.issue('st')


VQ, MD, MF = 160, 164, 180
SB = [20, 36]
VP = 52
KF = [60, 64]
VF = [68, 76]
VO = 84
VKA, VVA = 'v100', 'v101'
HALO = 104


def make_masks():
    p('v_and_b32 v10, 31, v1')
    p('v_lshrrev_b32 v11, 5, v1')
    p('v_lshlrev_b32 v11, 2, v11')
    p('v_sub_u32 v10, v10, v11')
    p(f'v_mov_b32 v12, {BIG:#x}')
    p('v_mov_b32 v13, 0')
    for i0 in range(0, 16, 4):
        for i in range(i0, i0 + 4):
            key = 8 * (i >> 2) + (i & 3)
            p(f'v_cmp_le_i32 s[{56 + 2 * (i & 3)}:{57 + 2 * (i & 3)}], {key}, v10')
        for i in range(i0, i0 + 4):
            m = f's[{56 + 2 * (i & 3)}:{57 + 2 * (i & 3)}]'
            p(f'v_cndmask_b32 v{MD + i}, v12, v13, {m}')
            p(f'v_cndmask_b32 v{MF + i}, v13, v12, {m}')


def att_addrs():
    p(f's_lshl_b32 {T[0]}, {s_tt}, 11')
    p(f's_lshl_b32 {T[1]}, {s_hd}, 10')
    p(f's_add_u32 {T[0]}, {T[0]}, {T[1]}')
    p(f's_add_u32 {T[0]}, {T[0]}, {L_K}')
    p(f'v_add_u32 {VKA}, {T[0]}, v2')
    p('v_and_b32 v10, 47, v1')
    p(f's_lshl_b32 {T[1]}, {s_hd}, 4')
    p(f'v_add_u32 v10, {T[1]}, v10')
    p('v_lshlrev_b32 v10, 4, v10')
    p('v_and_b32 v11, 16, v1')
    p('v_cmp_ne_u32 vcc, 0, v11')
    p('v_mov_b32 v11, 1024')
    p('v_cndmask_b32 v10, v10, v11, vcc')
    p(f's_mul_i32 {T[0]}, {s_tt}, {2 * VSTR}')
    p(f's_add_u32 {T[0]}, {T[0]}, {L_V}')
    p(f'v_add_u32 {VVA}, {T[0]}, v10')


def half_sum(a, t):
    p(f'v_mov_b32 {t}, {a}')
    p(f'v_permlane32_swap_b32 {a}, {t}')
    p(f'v_add_f32 {a}, {a}, {t}')


def ln_finish(s1, s2, rstd, mrs):
    p(f'v_mul_f32 {s1}, {fhex(1.0 / 512)}, {s1}')
    p(f'v_mul_f32 {s2}, {fhex(1.0 / 512)}, {s2}')
    p(f'v_fma_f32 {s2}, -{s1}, {s1}, {s2}')
    p(f'v_max_f32 {s2}, 0, {s2}')
    p(f'v_add_f32 {s2}, {fhex(1e-5)}, {s2}')
    p(f'v_rsq_f32 {rstd}, {s2}')
    p(f'v_mul_f32 {mrs}, {s1}, {rstd}')


def att_load(R, j, b):
    p(f'ds_read_b128 {vr(KF[b], 4)}, {VKA} offset:{j * 2048}')
    R.lg.issue(('K', j))
    for g in range(2):
        p(f'ds_read_b128 {vr(VF[b] + 4 * g, 4)}, {VVA} offset:{(2 * j + g) * VSTR}')
        R.lg.issue(('V', j))


def att_qk(R, j, b):
    R.lg.wait([('K', j)])
    c = vr(MD, 16) if j == 8 else (vr(MF, 16) if j == 0 else '0')
    p(f'v_mfma_f32_32x32x16_bf16 {vr(SB[b], 16)}, {vr(KF[b], 4)}, {vr(VQ, 4)}, {c}')


def att_body(R, j, b, nxt, first, extra=()):
    S = SB[b]
    if nxt is not None:
        att_load(R, nxt, 1 - b)
    extra = list(extra)
    for g in range(2):
        for i in range(8):
            p(f'v_exp_f32 v{S + 8 * g + i}, v{S + 8 * g + i}')
            if i in (1, 4, 7) and extra:
                extra.pop(0)()
        if g == 0 and nxt is not None:
            att_qk(R, nxt, 1 - b)
        for r in range(4):
            p(f'v_cvt_pk_bf16_f32 v{VP + 4 * g + r}, v{S + 8 * g + 2 * r}, v{S + 8 * g + 2 * r + 1}')
        R.lg.wait([('V', j)])
        c = '0' if (first and g == 0) else vr(VO, 16)
        p(f'v_mfma_f32_32x32x16_bf16 {vr(VO, 16)}, {vr(VF[b] + 4 * g, 4)}, {vr(VP + 4 * g, 4)}, {c}')
    assert not extra


def att_2a(R, after_first=None):
    Lx = p.newlabel('L_2a_done')
    att_load(R, 8, 0)
    att_qk(R, 8, 0)
    for n, j in enumerate((8, 7, 6, 5)):
        att_body(R, j, n & 1, j - 1 if j > 5 else None, n == 0)
        if n == 0 and after_first:
            after_first()
        if j > 5:
            p(f's_cmp_eq_u32 {s_tt}, {n}')
            p(f's_cbranch_scc1 {Lx}')
    p.label(Lx)
    p('s_waitcnt lgkmcnt(0)')
    R.lg.reset()
    R.stamp('2a')
    R.dstamp('P2', '2a')


def att_2b(R, extra, after_store):
    Lx = p.newlabel('L_2b_done')
    att_load(R, 0, 0)
    att_qk(R, 0, 0)
    extra = list(extra)
    assert len(extra) <= 30
    for j in range(8):
        att_body(R, j, j & 1, j + 1 if j < 7 else None, False, extra[6 * j:6 * j + 6])
        if 4 <= j < 7:
            p(f's_cmp_eq_u32 {s_tt}, {7 - j}')
            p(f's_cbranch_scc1 {Lx}')
    p.label(Lx)
    p('s_waitcnt lgkmcnt(0)')
    R.lg.reset()
    Lf = p.newlabel('L_fb')
    Lr = p.newlabel('L_fbret')
    p(f'v_mov_b32 v10, {fhex(2.0 ** -60)}')
    p(f'v_mov_b32 v11, {fhex(2.0 ** 60)}')
    p(f's_lshl_b32 {T[0]}, {s_rb}, 2')
    p(f's_add_u32 {T[0]}, {T[0]}, {s_tt}')
    p(f's_lshl_b32 {T[0]}, {T[0]}, 5')
    p(f's_lshl_b32 {T[6]}, {s_c}, 1')
    p(f's_add_u32 {T[0]}, {T[0]}, {T[6]}')
    p(f's_add_u32 {T[0]}, {T[0]}, {s_hd}')
    p(f's_lshl_b32 {T[7]}, {T[0]}, 2')
    p(f's_add_u32 {T[7]}, {T[7]}, {FO}')
    p(f's_lshl_b32 {T[0]}, {T[0]}, 10')
    p(f's_add_u32 {T[6]}, {T[0]}, {OB}')
    p(f'v_cmp_nlt_f32 vcc, v10, v{VO + 8}')
    p(f'v_cmp_nlt_f32 s[56:57], v{VO + 8}, v11')
    p('s_or_b64 vcc, vcc, s[56:57]')
    if OPT['force_fallback']:
        p(f's_branch {Lf}')
    else:
        p(f's_cbranch_vccnz {Lf}')
    p.label(Lr)
    tail.append(lambda: fallback(Lf, Lr))
    p(f'v_rcp_f32 v10, v{VO + 8}')
    for i in range(8):
        p(f'v_mul_f32 v{VO + i}, v{VO + i}, v10')
    for r in range(4):
        p(f'v_cvt_pk_bf16_f32 v{12 + r}, v{VO + 2 * r}, v{VO + 2 * r + 1}')
    R.dstamp('P2', '2b')
    moded_stores(R, [f'buffer_store_dwordx4 v[12:15], v2, {sWS}, {T[6]} offen'], OPT['osc1'])
    after_store()
    flag_store(R, T[7], 'v10', 'v11')
    R.stamp('Oflag')
    R.dstamp('P2', 'Oflag')


def fallback(Lf, Lr):
    S = SB[0]
    p.label(Lf)
    p(f's_lshl_b32 {T[0]}, {s_rb}, 2')
    p(f's_add_u32 {T[0]}, {T[0]}, {s_tt}')
    p(f's_sub_i32 {T[0]}, 8, {T[0]}')
    p(f's_max_i32 {T[4]}, {T[0]}, 0')
    p(f'v_mov_b32 v14, {BIG:#x}')
    for pas in range(2):
        L = p.newlabel('L_fbl')
        Lm = p.newlabel('L_fbm')
        Ln = p.newlabel('L_fbn')
        Lc = p.newlabel('L_fbc')
        p(f's_mov_b32 {T[5]}, {T[4]}')
        if pas == 1:
            for i in range(16):
                p(f'v_mov_b32 v{VO + i}, 0')
        p.label(L)
        p(f's_lshl_b32 {T[0]}, {T[5]}, 11')
        p(f'v_add_u32 v10, {T[0]}, {VKA}')
        p(f's_mul_i32 {T[0]}, {T[5]}, {2 * VSTR}')
        p(f'v_add_u32 v11, {T[0]}, {VVA}')
        p(f'ds_read_b128 {vr(KF[0], 4)}, v10')
        p(f'ds_read_b128 {vr(VF[0], 4)}, v11')
        p(f'ds_read_b128 {vr(VF[0] + 4, 4)}, v11 offset:{VSTR}')
        p('s_waitcnt lgkmcnt(0)')
        p(f's_cmp_eq_u32 {T[5]}, 8')
        p(f's_cbranch_scc1 {Lm}')
        p(f's_cmp_eq_u32 {T[5]}, 0')
        p(f's_cbranch_scc1 {Ln}')
        p(f'v_mfma_f32_32x32x16_bf16 {vr(S, 16)}, {vr(KF[0], 4)}, {vr(VQ, 4)}, 0')
        p(f's_branch {Lc}')
        p.label(Lm)
        p(f'v_mfma_f32_32x32x16_bf16 {vr(S, 16)}, {vr(KF[0], 4)}, {vr(VQ, 4)}, {vr(MD, 16)}')
        p(f's_branch {Lc}')
        p.label(Ln)
        p(f'v_mfma_f32_32x32x16_bf16 {vr(S, 16)}, {vr(KF[0], 4)}, {vr(VQ, 4)}, {vr(MF, 16)}')
        p.label(Lc)
        if pas == 0:
            for i in range(16):
                p(f'v_max_f32 v14, v14, v{S + i}')
        else:
            for i in range(16):
                p(f'v_sub_f32 v{S + i}, v{S + i}, v14')
                p(f'v_exp_f32 v{S + i}, v{S + i}')
            for r in range(8):
                p(f'v_cvt_pk_bf16_f32 v{VP + r}, v{S + 2 * r}, v{S + 2 * r + 1}')
            for g in range(2):
                p(f'v_mfma_f32_32x32x16_bf16 {vr(VO, 16)}, {vr(VF[0] + 4 * g, 4)}, {vr(VP + 4 * g, 4)}, {vr(VO, 16)}')
        p(f's_add_u32 {T[5]}, {T[5]}, 1')
        p(f's_cmp_le_u32 {T[5]}, 8')
        p(f's_cbranch_scc1 {L}')
        if pas == 0:
            p('v_mov_b32 v15, v14')
            p('v_permlane32_swap_b32 v14, v15')
            p('v_max_f32 v14, v14, v15')
    p(f's_branch {Lr}')


def w64_dma_lane(dst):
    p('v_lshrrev_b32 v10, 3, v1')
    p('v_lshlrev_b32 v10, 10, v10')
    p('v_and_b32 v11, 7, v1')
    p('v_bfe_u32 v12, v1, 4, 1')
    p('v_lshlrev_b32 v12, 2, v12')
    p('v_xor_b32 v11, v11, v12')
    p('v_lshl_add_u32 v10, v11, 4, v10')
    p(f's_lshl_b32 {T[0]}, {s_cb}, 7')
    p(f'v_add_u32 {dst}, {T[0]}, v10')


def w1_dma_lanes(dsts):
    p(f's_movk_i32 {T[3]}, 5462')
    p(f's_movk_i32 {T[4]}, 2752')
    p(f's_mul_i32 {T[1]}, {s_c}, 192')
    for q, dst in enumerate(dsts):
        p(f'v_add_u32 v10, {64 * q}, v1')
        p(f'v_mul_lo_u32 v11, v10, {T[3]}')
        p('v_lshrrev_b32 v11, 16, v11')
        p('v_mul_u32_u24 v12, 12, v11')
        p('v_sub_u32 v12, v10, v12')
        p('v_lshlrev_b32 v12, 4, v12')
        p(f'v_mul_lo_u32 v11, v11, {T[4]}')
        p(f'v_add3_u32 {dst}, v11, v12, {T[1]}')


def tr64_lanes(a0, a1):
    p('v_bfe_u32 v10, v1, 2, 2')
    p('v_lshrrev_b32 v11, 5, v1')
    p('v_lshl_add_u32 v10, v11, 2, v10')
    p('v_lshlrev_b32 v10, 7, v10')
    p('v_bfe_u32 v11, v1, 4, 1')
    p('v_lshl_add_u32 v10, v11, 5, v10')
    p('v_and_b32 v11, 3, v1')
    p('v_lshl_add_u32 v10, v11, 3, v10')
    p('v_bfe_u32 v11, v1, 3, 1')
    p(f'v_lshl_add_u32 {a0}, v11, 6, v10')
    p(f'v_xor_b32 {a1}, 64, {a0}')


def tr_nat_lane(a):
    p('v_bfe_u32 v10, v1, 2, 2')
    p('v_lshrrev_b32 v11, 5, v1')
    p('v_lshl_add_u32 v10, v11, 3, v10')
    p('v_mul_u32_u24 v10, 192, v10')
    p('v_bfe_u32 v11, v1, 4, 1')
    p('v_lshl_add_u32 v10, v11, 5, v10')
    p('v_and_b32 v11, 3, v1')
    p(f'v_lshl_add_u32 {a}, v11, 3, v10')


def tr96_lane(a):
    p('v_bfe_u32 v10, v1, 2, 2')
    p('v_lshrrev_b32 v11, 5, v1')
    p('v_lshl_add_u32 v10, v11, 2, v10')
    p('v_mul_u32_u24 v10, 192, v10')
    p('v_bfe_u32 v11, v1, 4, 1')
    p('v_lshl_add_u32 v10, v11, 5, v10')
    p('v_and_b32 v11, 3, v1')
    p(f'v_lshl_add_u32 {a}, v11, 3, v10')


def dump_stamps(R):
    if not OPT['stamps']:
        return
    R.stamp('end')
    p(f's_lshl_b32 {T[0]}, s2, 3')
    p(f's_add_u32 {T[0]}, {T[0]}, {s_w}')
    p(f's_lshl_b32 {T[0]}, {T[0]}, 8')
    p(f's_add_u32 {T[0]}, {T[0]}, {STAMP}')
    p('v_lshlrev_b32 v10, 2, v1')
    p('v_mov_b32 v11, 0')
    for k in range(R.nstamp):
        p(f'v_writelane_b32 v11, s{66 + k}, {k}')
    p(f'v_writelane_b32 v11, {s_mode}, 63')
    p(f'v_writelane_b32 v11, s100, 62')
    p(f'v_writelane_b32 v11, s101, 61')
    p(f'buffer_store_dword v11, v10, {sWS}, {T[0]} offen')
    if OPT.get('dbgout') and R is CW:
        L = p.newlabel('L_dbg')
        p(f's_cmp_lg_u32 s2, {OPT["dbgout"]}')
        p(f's_cbranch_scc1 {L}')
        p(f's_cmp_lg_u32 {s_w}, 0')
        p(f's_cbranch_scc1 {L}')
        p('s_load_dwordx2 s[40:41], s[0:1], 72')
        p('s_memrealtime s[98:99]')
        p('s_waitcnt lgkmcnt(0)')
        p('s_and_b32 s41, s41, 0xffff')
        p('s_mov_b32 s42, 256')
        p('s_mov_b32 s43, 0x20000')
        p('v_subrev_u32 v11, s100, v11')
        p('s_sub_u32 s98, s98, s86')
        p('v_writelane_b32 v11, s98, 15')
        p('buffer_store_dword v11, v10, s[40:43], 0 offen')
        p.label(L)


R = HW
def touch_o():
    p('v_and_b32 v116, 15, v1')
    p('v_lshlrev_b32 v116, 7, v116')
    p(f's_lshl_b32 {T[6]}, {s_rb}, 2')
    p(f's_add_u32 {T[6]}, {T[6]}, {s_q}')
    p(f's_lshl_b32 {T[6]}, {T[6]}, 15')
    p(f's_lshl_b32 {T[7]}, {s_c}, 11')
    p(f's_add_u32 {T[6]}, {T[6]}, {T[7]}')
    p(f's_add_u32 {T[6]}, {T[6]}, {OB}')
    p(f'buffer_load_dword v252, v116, {sWS}, {T[6]} offen sc1')
    R.vm.issue('t')


def touch_h():
    p('v_and_b32 v116, 15, v1')
    p('v_lshlrev_b32 v116, 7, v116')
    p(f's_and_b32 {T[6]}, {s_q}, 1')
    p(f's_lshl_b32 {T[7]}, {s_rs}, 1')
    p(f's_add_u32 {T[6]}, {T[6]}, {T[7]}')
    p(f's_lshl_b32 {T[6]}, {T[6]}, 15')
    p(f's_lshr_b32 {T[7]}, {s_q}, 1')
    p(f's_lshl_b32 {T[7]}, {T[7]}, 11')
    p(f's_add_u32 {T[6]}, {T[6]}, {T[7]}')
    p(f's_lshl_b32 {T[7]}, {s_cb}, 12')
    p(f's_add_u32 {T[6]}, {T[6]}, {T[7]}')
    p(f's_add_u32 {T[6]}, {T[6]}, {HB}')
    p(f'buffer_load_dword v252, v116, {sWS}, {T[6]} offen sc1')
    R.vm.issue('t')


def touch_st():
    p('v_bfe_u32 v116, v1, 2, 1')
    p('v_lshlrev_b32 v116, 12, v116')
    p('v_and_b32 v117, 3, v1')
    p('v_lshl_add_u32 v116, v117, 7, v116')
    p(f's_lshl_b32 {T[6]}, {s_rs}, 13')
    p(f's_lshl_b32 {T[7]}, {s_cb}, 9')
    p(f's_add_u32 {T[6]}, {T[6]}, {T[7]}')
    p(f's_add_u32 {T[6]}, {T[6]}, {STB}')
    p(f'buffer_load_dword v253, v116, {sWS}, {T[6]} offen sc1')
    R.vm.issue('t')


def touch_fl():
    p('v_bfe_u32 v116, v1, 2, 2')
    p('v_min_u32 v116, 2, v116')
    p('v_lshlrev_b32 v116, 13, v116')
    p('v_and_b32 v117, 3, v1')
    p('v_lshl_add_u32 v116, v117, 7, v116')
    p(f's_lshl_b32 {T[6]}, {s_rb}, 9')
    p(f's_add_u32 {T[6]}, {T[6]}, {FO}')
    p(f'buffer_load_dword v254, v116, {sWS}, {T[6]} offen sc1')
    R.vm.issue('t')


def touch_h1():
    p('v_min_u32 v116, 47, v1')
    p('v_lshlrev_b32 v116, 7, v116')
    p(f's_lshl_b32 {T[6]}, {s_rb}, 2')
    p(f's_add_u32 {T[6]}, {T[6]}, {s_q}')
    p(f's_mul_i32 {T[6]}, {T[6]}, {96 * 1024}')
    p(f's_mul_i32 {T[7]}, {s_c}, 6144')
    p(f's_add_u32 {T[6]}, {T[6]}, {T[7]}')
    p(f's_add_u32 {T[6]}, {T[6]}, {H1B}')
    p(f'buffer_load_dword v255, v116, {sWS}, {T[6]} offen sc1')
    R.vm.issue('t')


TM = OPT['tmode']
after = {0: [2], 1: [3, 4], 2: [5], 3: [6], 4: [7]} if TM == 1 else ({0: [2, 3], 1: [4, 5, 6, 7]} if TM == 2 else {})


def chunk_t(R, ch):
    gs = chunk_groups(R, ch) + [wtouch(R, i) for i in after.get(ch, [])]
    if ch == 7:
        gs += [mallwarm(R), touch_fl] + ([] if OPT['osc1'] else [touch_o]) + ([] if OPT['hsc1'] else [touch_h, touch_st])
    return gs


for g in chunk_t(R, 0) + chunk_t(R, 1) + [srds_w] + (chunk_t(R, 2) if OPT['la'] == 3 else []):
    g()
tr_nat_lane('v19')
p(f's_min_u32 {T[0]}, {s_q}, 2')
p(f's_lshl_b32 {T[0]}, {T[0]}, 6')
p(f'v_add_u32 v19, {T[0]}, v19')
STG = [120 + 4 * i for i in range(10)] + [196 + 4 * i for i in range(14)]
ONE, CSA = 104, 52
for r in range(4):
    p(f'v_mov_b32 v{ONE + r}, 0x3f803f80')


def w1_stage(n):
    def f():
        if n % 3 == 0:
            p(f's_mul_i32 {T[6]}, {s_q}, {8 * 16 * 2752}')
            p(f's_add_u32 {T[6]}, {T[6]}, {(n // 3) * 16 * 2752}')
        p(f'buffer_load_dwordx4 {vr(STG[n], 4)}, v{112 + n % 3}, {sW1}, {T[6]} offen')
        R.vm.issue('w1')
    return f


def publish_start():
    L7 = p.newlabel('L_n7')
    p(f's_cmp_lg_u32 {s_w}, 7')
    p(f's_cbranch_scc1 {L7}')
    p(f's_getreg_b32 {T[1]}, hwreg(HW_REG_XCC_ID)')
    p(f's_and_b32 {T[1]}, {T[1]}, 15')
    p(f'v_mov_b32 v13, {T[1]}')
    p(f's_lshl_b32 {T[1]}, {s_team}, 5')
    p(f's_add_u32 {T[1]}, {T[1]}, {s_j}')
    p(f's_lshl_b32 {T[1]}, {T[1]}, 3')
    p(f's_add_u32 {T[1]}, {T[1]}, {ST}')
    p(f'v_mov_b32 v10, {T[1]}')
    p(f'v_mov_b32 v12, {s_tag}')
    p('s_mov_b64 exec, 1')
    p(f'buffer_store_dwordx2 v[12:13], v10, {sWS}, 0 offen sc1')
    p('s_mov_b64 exec, -1')
    p.label(L7)


def hw_masks():
    make_masks()
    p(f's_and_b32 {s_q}, {s_w}, 3')


p('v_mov_b32 v10, 0')
p('v_mov_b32 v11, 0')
p('v_lshlrev_b32 v12, 3, v1')
p('v_and_b32 v12, 63, v12')
p(f'ds_write_b64 v12, v[10:11] offset:{S_SYNC}')
R.stamp('start')
late = [w1_stage(n) for n in range(24)]
fill = {0: [lambda: common_setup(R)], 1: [publish_start, lambda: w1_dma_lanes(['v112', 'v113', 'v114'])],
        2: [hw_masks], 3: [lambda: w64_dma_lane('v115'), att_addrs]}
for ch in range(8):
    slot = RING + (ch % NSLOT) * SLOT
    p(f'v_add_u32 v14, {slot + 16384}, v19')
    if ch >= 4:
        R.dstamp('P1', f'iss{ch}')
    R.vm.wait([('ch', ch)])
    if ch == 0:
        p('s_waitcnt lgkmcnt(0)')
    if ch >= 4:
        R.dstamp('P1', f'vm{ch}')
    R.bar()
    R.dstamp('P1', f'bar{ch}')
    for ks in range(4):
        for rd in range(2):
            p(f'ds_read_b64_tr_b16 {vr(36 + 4 * ks + 2 * rd, 2)}, v14 offset:{ks * 3072 + rd * 768}')
    LA = OPT['la']
    if ch + LA < 8:
        extra = chunk_t(R, ch + LA)
    else:
        extra = []
    mf = [(lambda ks=ks: p(f'v_mfma_f32_32x32x16_bf16 {vr(CSA, 16)}, {vr(ONE, 4)}, {vr(36 + 4 * ks, 4)}, {"0" if ch == 0 and ks == 0 else vr(CSA, 16)}')) for ks in range(4)]
    other = [lambda: p('s_waitcnt lgkmcnt(0)')] + mf + fill.get(ch, [])
    for k, g in enumerate(extra):
        g()
        if k >= 1 and other:
            other.pop(0)()
            if k == 1:
                other.pop(0)()
    for g in other:
        g()
p('v_and_b32 v10, 31, v1')
p('v_lshlrev_b32 v10, 2, v10')
p(f's_min_u32 {T[0]}, {s_q}, 2')
p(f's_lshl_b32 {T[0]}, {T[0]}, 7')
p(f'v_add_u32 v10, {T[0]}, v10')
p(f'ds_write_b32 v10, v{CSA} offset:{S_CS}')
p('s_waitcnt lgkmcnt(0)')
R.bar()
R.stamp('B1')
R.dstamp('P2', 'B1')
p('v_min_u32 v15, 23, v1')
p('v_lshrrev_b32 v16, 3, v15')
p(f'v_add_u32 v16, {s_rb}, v16')
p('v_cmp_le_u32 vcc, 2, v16')
p('v_mov_b32 v17, 0')
p('v_cndmask_b32 v44, v17, v18, vcc')
p('v_mov_b32 v45, v44')
p('v_mov_b32 v46, v44')
p('v_mov_b32 v47, v44')
p(f'v_mul_u32_u24 v15, {VSTR}, v15')
p(f'v_add_u32 v15, {L_V + 1024}, v15')
p('ds_write_b128 v15, v[44:47]')
p(f's_lshl_b32 {T[0]}, {s_tt}, 10')
p(f's_add_u32 {T[0]}, {T[0]}, {L_HI}')
p(f'v_add_u32 v14, {T[0]}, v2')
R.dstamp('P2', 'epi')
p('s_waitcnt lgkmcnt(0)')
R.lg.reset()
R.bar()
R.stamp('B2')
R.dstamp('P2', 'B2')
p(f'ds_read_b128 {vr(VQ, 4)}, v14')
p(f's_lshl_b32 {T[1]}, {s_q}, 17')
p(f's_lshl_b32 {T[2]}, {s_q}, 14')
for q in range(16):
    p(f's_add_u32 m0, {T[2]}, {L_WO + q * 1024}')
    p(f's_add_u32 {T[0]}, {T[1]}, {q * 8192}')
    p(f'buffer_load_dwordx4 v115, {sWO}, {T[0]} offen lds')
    R.vm.issue('wo')


R.dstamp('P2', 'pref')
att_2a(R)
R.vm.wait(['wo'])
R.dstamp('P2', 'wo')
R.bar()
R.stamp('B3')
R.dstamp('P2', 'B3')
p(f'v_mov_b32 v10, {S_MODE}')
p('ds_read_b32 v10, v10')
p('s_waitcnt lgkmcnt(0)')
p(f'v_readfirstlane_b32 {s_mode}, v10')


def w2_groups(lst, regs=None):
    lst = list(lst)
    while len(lst) % 4:
        lst.append(lst[-1])
    gs = []
    for n in range(len(lst) // 4):
        ks = lst[4 * n:4 * n + 4]
        src = [k * 16 * 1024 for k in ks]
        dst = [w2_pos[k] for k in ks]

        def sel(reg, vals):
            d = vals[1] - vals[0]
            if all(vals[q] == vals[0] + q * d for q in range(4)):
                p(f's_mul_i32 {reg}, {s_q}, {d}')
                p(f's_add_u32 {reg}, {reg}, {vals[0]}')
            else:
                p(f's_mov_b32 {reg}, {vals[0]}')
                for q in range(1, 4):
                    p(f's_cmp_eq_u32 {s_q}, {q}')
                    p(f's_cselect_b32 {reg}, {vals[q]}, {reg}')

        def g0(src=src, dst=dst, n=n):
            sel(T[6], src)
            if regs is None:
                sel(T[7], dst)
                p(f's_mov_b32 m0, {T[7]}')
                p(f'buffer_load_dwordx4 v115, {sW2}, {T[6]} offen lds')
            else:
                p(f'buffer_load_dwordx4 {vr(regs[2 * n], 4)}, v115, {sW2}, {T[6]} offen')
            R.vm.issue(('w2', 2 * n))

        def g1(n=n):
            p(f's_add_u32 {T[6]}, {T[6]}, 8192')
            if regs is None:
                p(f's_add_u32 m0, {T[7]}, 1024')
                p(f'buffer_load_dwordx4 v115, {sW2}, {T[6]} offen lds')
            else:
                p(f'buffer_load_dwordx4 {vr(regs[2 * n + 1], 4)}, v115, {sW2}, {T[6]} offen')
            R.vm.issue(('w2', 2 * n + 1))
        gs += [g0, g1]
    return gs


p('s_setprio 1')
att_2b(R, late, lambda: None)
p('s_setprio 0')
p('v_min_u32 v10, 47, v1')
p('v_lshlrev_b32 v11, 2, v10')
p(f's_mul_i32 {T[0]}, {s_c}, 192')
p(f'buffer_load_dword v12, v11, {sB1}, {T[0]} offen')
R.vm.issue('b1')
p(f's_mul_i32 {T[0]}, {s_q}, {8 * 3072}')
p(f's_add_u32 {T[0]}, {T[0]}, {BASE}')
p(f'v_add_u32 v3, {T[0]}, v2')
R.bar()
for n in range(24):
    p(f'ds_write_b128 v3, {vr(STG[n], 4)} offset:{n * 1024}')
    if n % 4 == 3:
        p('s_waitcnt lgkmcnt(4)')
R.vm.wait(['b1'])
p('v_lshlrev_b32 v14, 16, v12')
p('v_and_b32 v15, 0xffff0000, v12')
p('v_lshlrev_b32 v11, 3, v10')
p(f'ds_write_b64 v11, v[14:15] offset:{S_B1}')
tr96_lane('v3')
p(f's_min_u32 {T[0]}, {s_q}, 2')
p(f's_lshl_b32 {T[0]}, {T[0]}, 6')
p(f'v_add_u32 v3, {T[0]}, v3')
p('v_add_u32 v4, 0x10000, v3')
p('s_waitcnt lgkmcnt(0)')
R.dstamp('P3', 'w1wr')
R.bar()
p('v_mov_b32 v18, 0x3f803f80')
p('v_mov_b32 v100, 0')
p('v_mov_b32 v101, 0')
R.bar()
for g in w2_groups(W2_REG):
    g()
for s0 in range(0, 36, 4):
    if s0 < 32:
        for s in range(s0, s0 + 4):
            for rd in range(2):
                dsr(R, 'ds_read_b64_tr_b16', vr(20 + 16 * ((s0 // 4) % 2) + 4 * (s % 4) + 2 * rd, 2), ['v3', 'v4'], w1_addr(s) + rd * 1536, ('c', s0))
    if s0 >= 4:
        R.lg.wait([('c', s0 - 4)])
        for r in range(16):
            p(f'v_dot2c_f32_bf16 v{100 + (r & 1)}, v{20 + 16 * ((s0 // 4 - 1) % 2) + r}, v18')
p('v_add_f32 v100, v100, v101')
half_sum('v100', 'v101')
p('v_and_b32 v10, 31, v1')
p('v_lshlrev_b32 v10, 2, v10')
p(f's_lshl_b32 {T[0]}, {T[0]}, 1')
p(f'v_add_u32 v10, {T[0]}, v10')
p(f'ds_write_b32 v10, v100 offset:{S_CS1}')
p('v_mov_b32 v16, 0')
p('v_mov_b32 v17, 1')
R.vm.wait_all()
signal(R, H_TAB, 'v16', 'v17')
R.dstamp('P3', 'cs1')
R.dstamp('P4', 'cs1')
p(f's_lshl_b32 {T[0]}, {s_q}, 11')
p(f's_add_u32 {T[0]}, {T[0]}, {BASE}')
p(f'v_add_u32 v3, {T[0]}, v2')
p('v_add_u32 v4, 0x10000, v3')
lwait(R, C_ISS, 'v16', 'v10')
R.dstamp('P4', 'iss')
LST = [120 + 4 * i for i in range(28)]
for g in w2_groups(W2_P1):
    g()
R.vm.q = ['w2p1' for _ in R.vm.q]
gl = w2_groups(late_order, LST)
for g in gl[:8]:
    g()
R.vm.wait(['w2p1'])
signal(R, H_P1, 'v16', 'v17')
for g in gl[8:]:
    g()
R.dstamp('P4', 'late')
lwait(R, C_END, 'v16', 'v10')
for n in range(28):
    R.vm.wait([('w2', n)])
    off = (n // 2) * 8192 + (n % 2) * 1024
    p(f'ds_write_b128 v{3 + off // 65536}, {vr(LST[n], 4)} offset:{off % 65536}')
    if n % 4 == 3:
        p('s_waitcnt lgkmcnt(4)')
signal(R, H_LATE, 'v16', 'v17')
R.dstamp('P5', 'latedone')
L7 = p.newlabel('L_n7')
p('s_cmp_lg_u32 s2, 0')
p(f's_cbranch_scc1 {L7}')
p(f's_cmp_lg_u32 {s_w}, 7')
p(f's_cbranch_scc1 {L7}')
p('v_lshlrev_b32 v12, 3, v1')
for q in range(4):
    p(f'v_add_u32 v10, {ST + 512 * q}, v12')
    poll(R, 'v10', 'v11')
p('v_mov_b32 v10, 0')
p(f'v_mov_b32 v11, {s_tag}')
p('s_mov_b64 exec, 1')
p(f'buffer_store_dword v11, v10, {sWS}, 0 offen sc1')
p('s_mov_b64 exec, -1')
p.label(L7)
dump_stamps(R)
p.label('L_end')
p('s_endpgm')
for b in tail:
    b()
tail = []

R = CW
p.label('L_CW')
if OPT['codewarm']:
    p('s_getpc_b64 s[56:57]')
    p.label('L_pc')
    p(f's_sub_u32 s56, s56, L_pc-{KNAME}')
    p('s_subb_u32 s57, s57, 0')
    p(f's_lshl_b32 {T[0]}, {s_j}, 2')
    p(f's_add_u32 {T[0]}, {T[0]}, {s_q}')
    p(f's_mul_i32 {T[0]}, {T[0]}, 384')
    p('v_min_u32 v10, 2, v1')
    p('v_lshlrev_b32 v10, 7, v10')
    p(f'v_add_u32 v10, {T[0]}, v10')
    p(f'v_min_u32 v10, L_codeend-{KNAME}-4, v10')
    p('global_load_dword v253, v10, s[56:57]')
    R.vm.issue('t')
srds_w()
common_setup(R)
if OPT['tlbwarm']:
    p('v_and_b32 v10, 7, v1')
    p('v_lshlrev_b32 v10, 21, v10')
    p('v_mov_b32 v11, 0')
    p(f'buffer_load_dword v252, v10, {sWS}, 0 offen offset:2048 sc1')
    for k, d in enumerate((sWO, sW1, sW2, sOUT, sB1, sB2)):
        p(f'buffer_load_dword v{254 + (k & 1)}, v11, {d}, 0 offen')
    for _ in range(7):
        R.vm.issue('t')
p(f's_mov_b32 s65, {T[5]}')
make_masks()
p(f's_and_b32 {s_q}, {s_w}, 3')
p('v_and_b32 v10, 31, v1')
p(f's_lshl_b32 {T[0]}, {s_tt}, 5')
p(f'v_add_u32 v10, {T[0]}, v10')
p('v_bfe_u32 v11, v10, 1, 3')
p('v_lshrrev_b32 v12, 5, v1')
p('v_xor_b32 v11, v11, v12')
p('v_lshlrev_b32 v11, 4, v11')
p('v_lshl_add_u32 v9, v10, 7, v11')
p(f's_lshl_b32 {T[0]}, {s_rb}, 11')
p(f's_add_u32 {T[0]}, {T[0]}, {RST}')
p(f'v_lshlrev_b32 v8, 4, v10')
p(f'v_add_u32 v8, {T[0]}, v8')
p('v_and_b32 v7, 31, v1')
p('v_lshlrev_b32 v7, 3, v7')
p(f's_lshl_b32 {T[1]}, {s_team}, 8')
p(f's_add_u32 {T[1]}, {T[1]}, {ST}')
p(f'v_add_u32 v7, {T[1]}, v7')
tr_nat_lane('v19')
XF = [20, 36]
WF = [52, 100]
AQ, AK, AV = 196, 212, 228
GR = 148


def p1_addrs(ch):
    slot = RING + (ch % NSLOT) * SLOT
    p(f'v_add_u32 v10, {slot}, v9')
    for ks in range(1, 4):
        p(f'v_xor_b32 v{10 + ks}, {32 * ks}, v10')
    p(f'v_add_u32 v14, {slot + 16384}, v19')


def p1_reads(ch):
    b = ch & 1
    out = []
    for ks in range(4):
        out.append(f'ds_read_b128 {vr(XF[b] + 4 * ks, 4)}, v{10 + ks}')
        for sec in (1, 2, 0):
            for rd in range(2):
                out.append(f'ds_read_b64_tr_b16 {vr(WF[b] + 16 * sec + 4 * ks + 2 * rd, 2)}, v14 offset:{ks * 3072 + rd * 768 + sec * 64}')
    return out


def p1_mfmas(ch):
    a = ch & 1
    out = []
    for ks in range(4):
        first = ch == 0 and ks == 0
        x = vr(XF[a] + 4 * ks, 4)
        c = lambda r: '0' if first else vr(r, 16)
        out.append(f'v_mfma_f32_32x32x16_bf16 {vr(AK, 16)}, {vr(WF[a] + 16 + 4 * ks, 4)}, {x}, {c(AK)}')
        out.append(f'v_mfma_f32_32x32x16_bf16 {vr(AV, 16)}, {x}, {vr(WF[a] + 32 + 4 * ks, 4)}, {c(AV)}')
        out.append(f'v_mfma_f32_32x32x16_bf16 {vr(AQ, 16)}, {vr(WF[a] + 4 * ks, 4)}, {x}, {c(AQ)}')
    return out


def weave(R, mf, lds, extra=(), per=3):
    lds = list(lds)
    extra = list(extra)
    n = 0

    def emit_lds(k):
        nonlocal n
        for _ in range(k):
            if not lds:
                return
            if n and n % 7 == 0 and n >= 14:
                p('s_waitcnt lgkmcnt(7)')
            p(lds.pop(0))
            n += 1
    for i, m in enumerate(mf):
        p(m)
        emit_lds(per)
        if extra and i % 3 == 2:
            extra.pop(0)()
    emit_lds(99)
    for g in extra:
        g()


p1_addrs(0)
R.stamp('start')
CSQ, CSK, RR, MM, CSV = 52, 68, 20, 84, 152
for ch in range(8):
    p('s_waitcnt lgkmcnt(0)')
    if ch >= 4:
        R.dstamp('P1', f'pre{ch}')
    R.bar()
    R.dstamp('P1', f'bar{ch}')
    extra = []
    if ch == 5:
        def ld():
            p(f'buffer_load_dwordx4 {vr(GR, 4)}, v8, {sWS}, 0 offen sc1')
            p(f'buffer_load_dwordx2 v[156:157], v7, {sWS}, 0 offen sc1')
            R.vm.issue('gr')
            R.vm.issue('gr')
        extra = [ld]
    if ch == 0:
        extra = [lambda: row_stats(R)]
    weave(R, p1_mfmas(ch - 1) if ch else [], p1_reads(ch), extra)
    if ch < 7:
        p1_addrs(ch + 1)
Lg = p.newlabel('L_gr')
Lgx = p.newlabel('L_grx')
R.vm.wait(['gr'])
p(f's_mov_b32 {T[0]}, 0')
p.label(Lg)
p(f'v_cmp_ne_u32 vcc, {s_tag}, v{GR + 1}')
p(f'v_cmp_ne_u32 s[56:57], {s_tag}, v{GR + 3}')
p('s_or_b64 vcc, vcc, s[56:57]')
p(f'v_cmp_ne_u32 s[56:57], {s_tag}, v156')
p('s_or_b64 vcc, vcc, s[56:57]')
p(f's_cbranch_vccnz {Lgx}')
Lgd = p.newlabel('L_grd')
p.label(Lgd)


def gr_retry():
    p.label(Lgx)
    p(f'buffer_load_dwordx4 {vr(GR, 4)}, v8, {sWS}, 0 offen sc1')
    p(f'buffer_load_dwordx2 v[156:157], v7, {sWS}, 0 offen sc1')
    p('s_waitcnt vmcnt(0)')
    p(f's_add_u32 {T[0]}, {T[0]}, 1')
    p(f's_cmp_lt_u32 {T[0]}, {OPT["spin"]}')
    p(f's_cbranch_scc1 {Lg}')
    p(f's_branch {Lgd}')


tail.append(gr_retry)
p(f'v_readfirstlane_b32 {T[1]}, v157')
p(f'v_cmp_ne_u32 vcc, {T[1]}, v157')
p('s_cmp_eq_u64 vcc, 0')
p(f's_cselect_b32 {s_mode}, 1, 0')
if OPT['force_safe']:
    p(f's_mov_b32 {s_mode}, 0')
p(f'v_mov_b32 v10, {S_MODE}')
p(f'v_mov_b32 v11, {s_mode}')
p('ds_write_b32 v10, v11')
p('v_and_b32 v10, 31, v1')
p('v_lshlrev_b32 v10, 2, v10')
p(f's_lshl_b32 {T[0]}, {s_tt}, 7')
p(f'v_add_u32 v11, {T[0]}, v10')
p(f'ds_write_b32 v11, v{GR} offset:{S_R}')
p(f'ds_write_b32 v11, v{GR + 2} offset:{S_M}')
p('v_lshrrev_b32 v12, 5, v1')
p('v_lshlrev_b32 v12, 4, v12')
p(f'v_add_u32 v13, {T[0]}, v12')
p('s_waitcnt lgkmcnt(0)')
R.bar()
R.stamp('B1')
R.dstamp('P2', 'B1')
lds = [f'ds_read_b128 {vr(CSK + 4 * g, 4)}, v12 offset:{S_CS + 128 + 32 * g}' for g in range(4)]
lds += [f'ds_read_b32 v{CSV}, v10 offset:{S_CS + 256}']
lds += [f'ds_read_b128 {vr(MM + 4 * g, 4)}, v13 offset:{S_M + 32 * g}' for g in range(4)]
lds += [f'ds_read_b128 {vr(RR + 4 * g, 4)}, v13 offset:{S_R + 32 * g}' for g in range(4)]
lds += [f'ds_read_b128 {vr(CSQ + 4 * g, 4)}, v12 offset:{S_CS + 32 * g}' for g in range(4)]


def pub_addrs():
    p(f's_lshl_b32 {T[0]}, {s_tt}, 11')
    p(f's_add_u32 {T[1]}, {T[0]}, {L_K + 8 * 2048}')
    p(f'v_add_u32 v15, {T[1]}, v2')
    p(f's_mul_i32 {T[0]}, {s_tt}, {2 * VSTR}')
    p(f's_add_u32 {T[0]}, {T[0]}, {L_V + 16 * VSTR}')
    p(f'v_add_u32 v16, {T[0]}, v2')
    p(f's_lshl_b32 {T[2]}, {s_rb}, 4')
    p(f's_add_u32 {T[2]}, {T[2]}, {s_c}')
    p(f's_lshl_b32 {T[4]}, {T[2]}, 5')
    p(f's_add_u32 {T[4]}, {T[4]}, {s_w}')
    p(f's_lshl_b32 {T[4]}, {T[4]}, 2')
    p(f's_add_u32 {T[4]}, {T[4]}, {FKV}')
    p(f's_lshl_b32 {T[2]}, {T[2]}, 2')
    p(f's_add_u32 {T[2]}, {T[2]}, {s_w}')
    p(f's_lshl_b32 {T[2]}, {T[2]}, 12')
    p(f's_add_u32 {T[2]}, {T[2]}, {KVB}')


def pre_k():
    p('s_waitcnt lgkmcnt(4)')
    for i in range(16):
        p(f'v_mul_f32 v{CSK + i}, v{GR + 2}, v{CSK + i}')


def pre_v():
    for i in range(16):
        p(f'v_mul_f32 v{MM + i}, v{CSV}, v{MM + i}')


def pre_q():
    p('s_waitcnt lgkmcnt(0)')
    p(f'v_mul_f32 v153, {fhex(0.25 * LOG2E)}, v{GR}')
    p(f'v_mul_f32 v154, {fhex(0.25 * LOG2E)}, v{GR + 2}')
    for i in range(16):
        p(f'v_mul_f32 v{CSQ + i}, v154, v{CSQ + i}')


mf = p1_mfmas(7)
mf = [m for m in mf if vr(AK, 16) + ',' in m.split(' ', 1)[1][:12]] + [m for m in mf if vr(AV, 16) + ',' in m.split(' ', 1)[1][:12]] + [m for m in mf if vr(AQ, 16) + ',' in m.split(' ', 1)[1][:12]]
assert len(mf) == 12
weave(R, mf, lds, [pub_addrs, pre_k, pre_v, pre_q], per=6)
for i in range(16):
    p(f'v_fma_f32 v{AK + i}, v{AK + i}, v{GR}, -v{CSK + i}')
for r in range(8):
    p(f'v_cvt_pk_bf16_f32 v{104 + r}, v{AK + 2 * r}, v{AK + 2 * r + 1}')
for g in range(2):
    p(f'buffer_store_dwordx4 {vr(104 + 4 * g, 4)}, v2, {sWS}, {T[2]} offen offset:{g * 1024} sc1')
    R.vm.issue('st')
for i in range(16):
    p(f'v_fma_f32 v{AV + i}, v{AV + i}, v{RR + i}, -v{MM + i}')
for r in range(8):
    p(f'v_cvt_pk_bf16_f32 v{112 + r}, v{AV + 2 * r}, v{AV + 2 * r + 1}')
for g in range(2):
    p(f'buffer_store_dwordx4 {vr(112 + 4 * g, 4)}, v2, {sWS}, {T[2]} offen offset:{2048 + g * 1024} sc1')
    R.vm.issue('st')
for g in range(2):
    p(f'ds_write_b128 v15, {vr(104 + 4 * g, 4)} offset:{g * 1024}')
    p(f'ds_write_b128 v16, {vr(112 + 4 * g, 4)} offset:{g * VSTR}')
for i in range(16):
    p(f'v_fma_f32 v{AQ + i}, v{AQ + i}, v153, -v{CSQ + i}')
for r in range(4):
    p(f'v_cvt_pk_bf16_f32 v{120 + r}, v{AQ + 8 + 2 * r}, v{AQ + 8 + 2 * r + 1}')
p(f's_lshl_b32 {T[0]}, {s_tt}, 10')
p(f's_add_u32 {T[0]}, {T[0]}, {L_HI}')
p(f'v_add_u32 v12, {T[0]}, v2')
p('ds_write_b128 v12, v[120:123]')
for r in range(4):
    p(f'v_cvt_pk_bf16_f32 v{VQ + r}, v{AQ + 2 * r}, v{AQ + 2 * r + 1}')
att_addrs()
R.dstamp('P2', 'epi')
p('s_waitcnt lgkmcnt(0)')
R.lg.reset()
R.bar()
R.stamp('B2')
R.dstamp('P2', 'B2')
att_2a(R, lambda: flag_store(R, T[4], 'v10', 'v11', moded=False))
p(f's_cmp_ge_u32 {s_rb}, 1')
p(f's_cselect_b32 {T[0]}, {16 * 128}, 0')
p(f's_sub_u32 {T[0]}, {T[4]}, {T[0]}')
p(f's_cmp_ge_u32 {s_rb}, 2')
p(f's_cselect_b32 {T[1]}, {2 * 16 * 128}, 0')
p(f's_sub_u32 {T[1]}, {T[4]}, {T[1]}')
p(f'v_mov_b32 v10, {T[0]}')
p(f'v_mov_b32 v11, {T[1]}')
p('v_and_b32 v12, 1, v1')
p('v_cmp_eq_u32 vcc, 1, v12')
p('v_cndmask_b32 v10, v10, v11, vcc')
p(f's_sub_u32 {T[3]}, {T[2]}, {2 * 16 * 16384}')
p(f's_cmp_ge_u32 {s_rb}, 2')
p(f's_cselect_b32 {T[3]}, {T[3]}, {0x7ff00000}')
p(f's_sub_u32 {T[1]}, {T[2]}, {16 * 16384}')
p(f's_cmp_ge_u32 {s_rb}, 1')
p(f's_cselect_b32 {T[1]}, {T[1]}, {0x7ff00000}')
p(f'v_subrev_u32 v15, {8 * 2048}, v15')
p(f'v_subrev_u32 v16, {16 * VSTR}, v16')
poll(R, 'v10', 'v11')
R.dstamp('P2', 'kvpoll')
for d in (1, 2):
    for q in range(4):
        p(f'buffer_load_dwordx4 {vr(HALO + 16 * (2 - d) + 4 * q, 4)}, v2, {sWS}, {T[1] if d == 1 else T[3]} offen offset:{q * 1024} sc1')
XRES = 240
HRES = 248
p('v_and_b32 v10, 31, v1')
p(f's_lshl_b32 {T[0]}, {s_rs}, 1')
p(f's_add_u32 {s_tile}, {T[0]}, {s_t}')
p(f's_lshl_b32 {T[0]}, {s_tile}, 5')
p(f'v_add_u32 v10, {T[0]}, v10')
p('v_lshlrev_b32 v10, 10, v10')
p('v_lshrrev_b32 v11, 5, v1')
p('v_lshl_add_u32 v10, v11, 3, v10')
p(f's_lshl_b32 {T[0]}, {s_cb}, 7')
p(f's_lshl_b32 {T[1]}, {s_kh}, 6')
p(f's_add_u32 {T[0]}, {T[0]}, {T[1]}')
p(f'v_add_u32 v9, {T[0]}, v10')
for blk in (1, 0):
    for g in range(2):
        p(f's_waitcnt vmcnt({4 * blk + 3 - g})')
        p(f'ds_write_b128 v15, {vr(HALO + 16 * blk + 4 * g, 4)} offset:{blk * 4 * 2048 + g * 1024}')
    for g in range(2):
        p(f's_waitcnt vmcnt({4 * blk + 1 - g})')
        p(f'ds_write_b128 v16, {vr(HALO + 16 * blk + 8 + 4 * g, 4)} offset:{(blk * 8 + g) * VSTR}')
R.vm.reset()
for g in range(4):
    p(f'buffer_load_dwordx2 {vr(XRES + 2 * g, 2)}, v9, {sX}, 0 offen offset:{16 * g}')
    R.vm.issue('xres')
tr64_lanes('v4', 'v5')
p(f's_lshl_b32 {T[0]}, {s_kh}, 15')
p(f's_add_u32 {T[0]}, {T[0]}, {L_WO}')
p(f'v_add_u32 v6, {T[0]}, v4')
p(f'v_add_u32 v7, {T[0]}, v5')
p('s_waitcnt lgkmcnt(0)')
R.dstamp('P2', 'halo')
R.bar()
R.stamp('B3')
R.dstamp('P2', 'B3')
WOF, OF, ACC3 = 16, 144, 208


def wo_reads(lo, hi):
    for s in range(lo, hi):
        for nt in range(2):
            for rd in range(2):
                p(f'ds_read_b64_tr_b16 {vr(WOF + 8 * s + 4 * nt + 2 * rd, 2)}, v{6 + nt} offset:{s * 2048 + rd * 1024}')
        if s % 2 == 1:
            p('s_waitcnt lgkmcnt(4)')


att_2b(R, [], lambda: wo_reads(0, 8))
p('s_setprio 2')
wo_reads(8, 16)
p('v_and_b32 v8, 15, v1')
p('v_lshlrev_b32 v8, 2, v8')
p(f's_lshl_b32 {T[0]}, {s_tile}, 1')
p(f's_add_u32 {T[0]}, {T[0]}, {s_kh}')
p(f's_lshl_b32 {T[1]}, {T[0]}, 14')
p(f's_lshl_b32 {T[0]}, {T[0]}, 6')
p(f's_add_u32 {T[0]}, {T[0]}, {FO}')
p(f'v_add_u32 v10, {T[0]}, v8')
p('s_waitcnt lgkmcnt(0)')
R.bar()
R.dstamp('P3', 'B5')
poll(R, 'v10', 'v11')
R.stamp('Opoll')
R.dstamp('P3', 'Opoll')


def o_load(s):
    if s % 4 == 0:
        p(f's_add_u32 {T[2]}, {T[1]}, {OB + s * 1024}')
    p(f'buffer_load_dwordx4 {vr(OF + 4 * s, 4)}, v2, {sWS}, {T[2]} offen offset:{(s % 4) * 1024} sc1')
    R.vm.issue(('o', s))


AH = 12
for s in range(AH):
    o_load(s)
for s in range(16):
    R.vm.wait([('o', s)])
    for nt in range(2):
        p(f'v_mfma_f32_32x32x16_bf16 {vr(ACC3 + 16 * nt, 16)}, {vr(WOF + 8 * s + 4 * nt, 4)}, {vr(OF + 4 * s, 4)}, {"0" if s == 0 else vr(ACC3 + 16 * nt, 16)}')
        if nt == 0 and s + AH < 16:
            o_load(s + AH)
R.dstamp('P3', 'loop')


def exchange(R, acc, dst, pre_barrier):
    p(f's_lshl_b32 {T[0]}, {s_w}, 12')
    p(f's_add_u32 {T[0]}, {T[0]}, {L_X}')
    p(f'v_add_u32 v10, {T[0]}, v2')
    p(f's_xor_b32 {T[0]}, {s_w}, 2')
    p(f's_lshl_b32 {T[0]}, {T[0]}, 12')
    p(f's_add_u32 {T[0]}, {T[0]}, {L_X}')
    p(f'v_add_u32 v11, {T[0]}, v2')
    if pre_barrier:
        R.bar()
    La = p.newlabel('L_xa')
    Lb = p.newlabel('L_xb')
    p(f's_cmp_eq_u32 {s_kh}, 0')
    p(f's_cbranch_scc0 {La}')
    for g in range(4):
        p(f'ds_write_b128 v10, {vr(acc + 16 + 4 * g, 4)} offset:{g * 1024}')
    p.label(Lb)

    def blk():
        p.label(La)
        for g in range(4):
            p(f'ds_write_b128 v10, {vr(acc + 4 * g, 4)} offset:{g * 1024}')
        p('s_waitcnt lgkmcnt(0)')
        for i in range(16):
            p(f'v_mov_b32 v{acc + i}, v{acc + 16 + i}')
        p(f's_branch {Lb}')
    tail.append(blk)
    p('s_waitcnt lgkmcnt(0)')
    R.bar()
    for g in range(4):
        p(f'ds_read_b128 {vr(dst + 4 * g, 4)}, v11 offset:{g * 1024}')
    for g in range(4):
        p(f's_waitcnt lgkmcnt({3 - g})')
        for i in range(4):
            p(f'v_add_f32 v{dst + 4 * g + i}, v{dst + 4 * g + i}, v{acc + 4 * g + i}')
    R.lg.reset()


exchange(R, ACC3, 16, False)
R.dstamp('P3', 'xchg')
for g in range(4):
    for k in range(2):
        x = XRES + 2 * g + k
        p(f'v_lshlrev_b32 v10, 16, v{x}')
        p(f'v_and_b32 v11, 0xffff0000, v{x}')
        p(f'v_add_f32 v{16 + 4 * g + 2 * k}, v{16 + 4 * g + 2 * k}, v10')
        p(f'v_add_f32 v{16 + 4 * g + 2 * k + 1}, v{16 + 4 * g + 2 * k + 1}, v11')
for r in range(8):
    p(f'v_cvt_pk_bf16_f32 v{HRES + r}, v{16 + 2 * r}, v{16 + 2 * r + 1}')
p(f's_lshl_b32 {T[0]}, {s_cb}, 1')
p(f's_add_u32 {T[0]}, {T[0]}, {s_kh}')
p(f's_lshl_b32 {T[3]}, {s_tile}, 4')
p(f's_add_u32 {T[3]}, {T[3]}, {T[0]}')
p(f's_lshl_b32 {T[1]}, {T[3]}, 11')
p(f's_add_u32 {T[1]}, {T[1]}, {HB}')
moded_stores(R, [f'buffer_store_dwordx4 {vr(HRES, 4)}, v2, {sWS}, {T[1]} offen',
                 f'buffer_store_dwordx4 {vr(HRES + 4, 4)}, v2, {sWS}, {T[1]} offen offset:1024'], OPT['hsc1'])
p('v_mov_b32 v18, 0x3f803f80')
p('v_mov_b32 v12, 0')
p('v_mov_b32 v13, 0')
for r in range(8):
    p(f'v_dot2c_f32_bf16 v12, v{HRES + r}, v18')
    p(f'v_dot2c_f32_bf16 v13, v{HRES + r}, v{HRES + r}')
p(f's_lshl_b32 {T[2]}, {T[3]}, 8')
p(f's_add_u32 {T[2]}, {T[2]}, {STB}')
p(f's_lshl_b32 {T[3]}, {s_tile}, 5')
p(f's_add_u32 {T[3]}, {T[3]}, {T[0]}')
p(f's_lshl_b32 {T[3]}, {T[3]}, 2')
p(f's_add_u32 {T[3]}, {T[3]}, {FH}')
p('v_and_b32 v14, 31, v1')
p('v_lshlrev_b32 v14, 3, v14')
half_sum('v12', 'v10')
half_sum('v13', 'v10')
moded_stores(R, [f'buffer_store_dwordx2 v[12:13], v14, {sWS}, {T[2]} offen'], OPT['hsc1'])
R.bar()
HF, ACC4, W1B, STL = 16, 144, 192, 228
tr96_lane('v3')
p('v_add_u32 v6, 0x10000, v3')
W1A = ['v3', 'v6']


def w1_reads(s):
    b = W1B + 12 * (s % 3)
    for nt in range(3):
        for rd in range(2):
            dsr(R, 'ds_read_b64_tr_b16', vr(b + 4 * nt + 2 * rd, 2), W1A, w1_addr(s) + rd * 1536 + nt * 64, ('w1', s))


w1_reads(0)
w1_reads(1)
flag_store(R, T[3], 'v10', 'v11')
R.stamp('Hflag')
R.dstamp('P3', 'Hflag')
p(f's_lshl_b32 {T[0]}, {s_rb}, 2')
p(f's_add_u32 {T[5]}, {T[0]}, {s_w}')
p(f's_lshl_b32 {T[1]}, {T[5]}, 15')
p(f's_lshl_b32 {T[3]}, {T[5]}, 12')
p(f's_add_u32 {T[3]}, {T[3]}, {STB}')
p('v_lshrrev_b32 v12, 5, v1')
p('v_lshlrev_b32 v12, 11, v12')
p('v_add_u32 v12, v12, v14')
p(f's_lshl_b32 {T[0]}, {T[5]}, 7')
p(f's_add_u32 {T[0]}, {T[0]}, {FH}')
p(f'v_add_u32 v10, {T[0]}, v8')
poll(R, 'v10', 'v11')
R.stamp('Hpoll')
R.dstamp('P4', 'Hpoll')


def h_load(s):
    if s % 4 == 0:
        p(f's_add_u32 {T[2]}, {T[1]}, {HB + s * 1024}')
    p(f'buffer_load_dwordx4 {vr(HF + 4 * s, 4)}, v2, {sWS}, {T[2]} offen offset:{(s % 4) * 1024} sc1')
    R.vm.issue(('h', s))


p('v_mov_b32 v246, 0')
p('v_mov_b32 v247, 1')
S0 = 20
nh = 0
for s in range(12):
    h_load(nh)
    nh += 1
for q in range(8):
    p(f'buffer_load_dwordx2 {vr(STL + 2 * q, 2)}, v12, {sWS}, {T[3]} offen offset:{q * 256} sc1')
    R.vm.issue('stl')
p('v_lshrrev_b32 v12, 5, v1')
p('v_lshlrev_b32 v12, 4, v12')
p(f's_mul_i32 {T[0]}, {s_c}, 6144')
p(f's_mul_i32 {T[4]}, {T[5]}, {96 * 1024}')
p(f's_add_u32 {T[4]}, {T[4]}, {T[0]}')
p(f's_add_u32 {T[4]}, {T[4]}, {H1B}')
p(f's_add_u32 {T[6]}, {T[4]}, 4096')
p(f's_lshl_b32 {T[3]}, {T[5]}, 5')
p(f's_add_u32 {T[3]}, {T[3]}, {s_c}')
p(f's_lshl_b32 {T[3]}, {T[3]}, 2')
p(f's_add_u32 {T[3]}, {T[3]}, {FH1}')


seq = [(s, nt) for s in range(S0) for nt in range(3)] + [(s, nt) for nt in range(3) for s in range(S0, 32)]
EB = [48, 16, 48]


def epi_ops(nt):
    e = EB[nt]
    pk = STL + 8 * (nt & 1)
    ops = []
    for i in range(16):
        a = ACC4 + 16 * nt + i
        ops.append(f'v_fma_f32 v{a}, v{a}, v244, v{e + 16 + i}')
        if i >= 1:
            ops.append(f'v_max_f32 v{a - 1}, 0, v{a - 1}')
        if i >= 2:
            ops.append(f'v_mul_f32 v{a - 2}, v{a - 2}, v{a - 2}')
        if i >= 4 and i % 2 == 0:
            ops.append(f'v_cvt_pk_bf16_f32 v{pk + (i - 4) // 2}, v{a - 4}, v{a - 3}')
    a = ACC4 + 16 * nt
    ops += [f'v_max_f32 v{a + 15}, 0, v{a + 15}', f'v_mul_f32 v{a + 14}, v{a + 14}, v{a + 14}', f'v_mul_f32 v{a + 15}, v{a + 15}, v{a + 15}',
            f'v_cvt_pk_bf16_f32 v{pk + 6}, v{a + 12}, v{a + 13}', f'v_cvt_pk_bf16_f32 v{pk + 7}, v{a + 14}, v{a + 15}']
    for g in range(2):
        f = 2 * nt + g
        ops.append(f'buffer_store_dwordx4 {vr(pk + 4 * g, 4)}, v2, {sWS}, {T[4] if f < 4 else T[6]} offen offset:{(f % 4) * 1024} sc1')
    return ops


def e_reads(nt):
    R.lg.room(8)
    for g in range(4):
        p(f'ds_read_b128 {vr(EB[nt] + 4 * g, 4)}, v12 offset:{S_CS1 + 128 * nt + 32 * g}')
        R.lg.issue(('e', nt))
    for g in range(4):
        p(f'ds_read_b128 {vr(EB[nt] + 16 + 4 * g, 4)}, v12 offset:{S_B1 + 128 * nt + 32 * g}')
        R.lg.issue(('e', nt))


def e_comb(nt):
    return [f'v_fma_f32 v{EB[nt] + 16 + i}, -v245, v{EB[nt] + i}, v{EB[nt] + 16 + i}' for i in range(16)]


W2R = 16
PRE = 6
bufs = {}
for k in range(PRE):
    s, nt = seq[k]
    bufs[k] = W1B + 4 * k
valu = []
issued_all = False
for k, (s, nt) in enumerate(seq):
    if s < S0 and nt == 0 or s >= S0 and nt == 0:
        R.vm.wait([('h', s)])
    if nt == 0 and s in (0, 8, 16):
        R.dstamp('P4', f'h{s}')
    R.lg.wait([('w1', s) if k < PRE else ('w1', s, nt)])
    p(f'v_mfma_f32_32x32x16_bf16 {vr(ACC4 + 16 * nt, 16)}, {vr(bufs[k], 4)}, {vr(HF + 4 * s, 4)}, {"0" if s == 0 else vr(ACC4 + 16 * nt, 16)}')
    if k + PRE < len(seq):
        s2, nt2 = seq[k + PRE]
        b = W1B + 4 * ((k + PRE) % 9)
        bufs[k + PRE] = b
        for rd in range(2):
            dsr(R, 'ds_read_b64_tr_b16', vr(b + 2 * rd, 2), W1A, w1_addr(s2) + rd * 1536 + nt2 * 64, ('w1', s2, nt2))
    if nh < 32 and k % 2 == 1:
        h_load(nh)
        nh += 1
        if nh == 32:
            signal(R, C_ISS, 'v246', 'v247')
    if k == 24:
        R.vm.wait(['stl'])
        for q in range(1, 8):
            valu += [f'v_add_f32 v{STL}, v{STL}, v{STL + 2 * q}', f'v_add_f32 v{STL + 1}, v{STL + 1}, v{STL + 2 * q + 1}']
    if k == 30:
        assert not valu
        half_sum(f'v{STL}', 'v10')
        half_sum(f'v{STL + 1}', 'v10')
        ln_finish(f'v{STL}', f'v{STL + 1}', 'v244', 'v245')
    if k == 3 * S0 - 6:
        p(f'ds_read_b32 v10, v246 offset:{H_TAB}')
        R.lg.issue(H_TAB)
    seg = (k - 3 * S0) // (32 - S0) if k >= 3 * S0 else -1
    pos = (k - 3 * S0) % (32 - S0)
    if k == 3 * S0:
        lwait(R, H_TAB, 'v246', 'v10', early=True)
        R.dstamp('P4', 'tab')
    if seg >= 0 and pos == (1 if seg == 0 else 7):
        e_reads(seg)
    if seg >= 0 and pos == (5 if seg == 0 else 9):
        R.lg.wait([('e', seg)])
        valu += e_comb(seg)
    if seg >= 1 and pos == 1:
        valu += epi_ops(seg - 1)
    n = 7 if seg >= 1 else 4
    for _ in range(n):
        if valu:
            x = valu.pop(0)
            p(x)
            if x.startswith('buffer_'):
                R.vm.issue('st')
for x in valu:
    p(x)
    if x.startswith('buffer_'):
        R.vm.issue('st')
R.dstamp('P4', 'loop')
p(f's_lshl_b32 {T[0]}, {s_kh}, 13')
p(f's_add_u32 {T[0]}, {T[0]}, {L_X}')
p(f'v_add_u32 v6, {T[0]}, v4')
p(f'v_add_u32 v7, {T[0]}, v5')
for s in range(4):
    for nt in range(2):
        for rd in range(2):
            p(f'ds_read_b64_tr_b16 {vr(W2R + 8 * s + 4 * nt + 2 * rd, 2)}, v{6 + nt} offset:{s * 2048 + rd * 1024}')
    if s == 1:
        p('s_waitcnt lgkmcnt(4)')
R.lg.reset()
signal(R, C_END, 'v246', 'v247')
R.stamp('P4end')
for x in epi_ops(2):
    p(x)
    if x.startswith('buffer_'):
        R.vm.issue('st')
R.dstamp('P4', 'epi')
ACC5, W2B, H1F, B2R = 48, 80, 104, 168
NRING = 16
p(f's_mul_i32 {T[0]}, {s_kh}, {11 * 2048}')
p(f'v_add_u32 v6, {T[0]}, v4')
p(f'v_add_u32 v7, {T[0]}, v5')
p('v_add_u32 v6, 0x10000, v6')
p('v_add_u32 v7, 0x10000, v7')
p('v_add_u32 v12, 0x10000, v6')
p('v_add_u32 v13, 0x10000, v7')
p(f's_lshl_b32 {T[0]}, {s_kh}, 11')
p(f'v_add_u32 v4, {T[0]}, v4')
p(f'v_add_u32 v5, {T[0]}, v5')
p('v_add_u32 v14, 0x10000, v4')
p('v_add_u32 v15, 0x10000, v5')
for i in range(4, 15):
    assert w2_pos[43 + i] - w2_pos[i] == 11 * 2048
for i in range(15, 43):
    assert w2_pos[43 + i] - w2_pos[i] == 2048


def w2_reads(i):
    b = W2B + 8 * (i % 3)
    for nt in range(2):
        if i < 15:
            bases = [None, 'v6' if nt == 0 else 'v7', 'v12' if nt == 0 else 'v13']
        else:
            bases = ['v4' if nt == 0 else 'v5', 'v14' if nt == 0 else 'v15']
        for rd in range(2):
            dsr(R, 'ds_read_b64_tr_b16', vr(b + 4 * nt + 2 * rd, 2), bases, w2_pos[i] + rd * 1024, ('w2', i))


p('s_waitcnt lgkmcnt(0)')
R.lg.reset()
flag_store(R, T[3], 'v10', 'v11')
R.stamp('H1flag')
R.dstamp('P4', 'H1flag')
R.dstamp('P5', 'H1flag')
p('v_lshrrev_b32 v10, 5, v1')
p('v_lshlrev_b32 v10, 3, v10')
p(f's_lshl_b32 {T[0]}, {s_cb}, 7')
p(f's_lshl_b32 {T[1]}, {s_kh}, 6')
p(f's_add_u32 {T[0]}, {T[0]}, {T[1]}')
for g in range(4):
    p(f'buffer_load_dwordx2 {vr(B2R + 2 * g, 2)}, v10, {sB2}, {T[0]} offen offset:{16 * g}')
p('v_and_b32 v10, 28, v8')
p(f's_lshl_b32 {T[1]}, {s_tile}, 7')
p(f's_mul_i32 {T[0]}, {s_kh}, 28')
p(f's_add_u32 {T[1]}, {T[1]}, {T[0]}')
p(f's_add_u32 {T[1]}, {T[1]}, {FH1}')
p(f'v_add_u32 v10, {T[1]}, v10')
p(f's_mul_i32 {T[1]}, {s_tile}, {96 * 1024}')
p(f's_mul_i32 {T[2]}, {s_kh}, {43 * 1024}')
p(f's_add_u32 {T[1]}, {T[1]}, {T[2]}')
p(f's_add_u32 {T[1]}, {T[1]}, {H1B}')
poll(R, 'v10', 'v11')
R.stamp('H1poll')
R.dstamp('P5', 'H1poll')


def h1_load(i):
    if i % 4 == 0:
        p(f's_add_u32 {T[2]}, {T[1]}, {i * 1024}')
    p(f'buffer_load_dwordx4 {vr(H1F + 4 * (i % NRING), 4)}, v2, {sWS}, {T[2]} offen offset:{(i % 4) * 1024} sc1')
    R.vm.issue(('h1', i))


AH = 14
for i in range(AH):
    h1_load(i)
lwait(R, H_P1, 'v246', 'v10')
w2_reads(4)
w2_reads(5)
for i in range(43):
    if i == 10:
        p(f'ds_read_b32 v10, v246 offset:{H_LATE}')
        R.lg.issue(H_LATE)
    if i == 13:
        R.dstamp('P5', 'preL')
        lwait(R, H_LATE, 'v246', 'v10', early=True)
        R.dstamp('P5', 'late')
    R.vm.wait([('h1', i)])
    if i in (0, 28):
        R.dstamp('P5', f'h1_{i}')
    if i >= 4:
        R.lg.wait([('w2', i)])
    b = W2R + 8 * i if i < 4 else W2B + 8 * (i % 3)
    for nt in range(2):
        p(f'v_mfma_f32_32x32x16_bf16 {vr(ACC5 + 16 * nt, 16)}, {vr(b + 4 * nt, 4)}, {vr(H1F + 4 * (i % NRING), 4)}, {"0" if i == 0 else vr(ACC5 + 16 * nt, 16)}')
        if nt == 0 and i >= 4 and i + 2 < 43:
            w2_reads(i + 2)
        if nt == 1 and i + AH < 43:
            h1_load(i + AH)
R.dstamp('P5', 'loop')
exchange(R, ACC5, 16, True)
R.stamp('B13')
R.dstamp('P5', 'B13')
for g in range(4):
    for k in range(2):
        for src in (B2R + 2 * g + k, HRES + 2 * g + k):
            p(f'v_lshlrev_b32 v10, 16, v{src}')
            p(f'v_and_b32 v11, 0xffff0000, v{src}')
            p(f'v_add_f32 v{16 + 4 * g + 2 * k}, v{16 + 4 * g + 2 * k}, v10')
            p(f'v_add_f32 v{16 + 4 * g + 2 * k + 1}, v{16 + 4 * g + 2 * k + 1}, v11')
for r in range(8):
    p(f'v_cvt_pk_bf16_f32 v{32 + r}, v{16 + 2 * r}, v{16 + 2 * r + 1}')
p('v_lshrrev_b32 v10, 5, v1')
p('v_lshl_add_u32 v9, v10, 3, v9')
for q in range(2):
    p(f'v_permlane32_swap_b32 v{32 + 4 * q}, v{32 + 4 * q + 2}')
    p(f'v_permlane32_swap_b32 v{32 + 4 * q + 1}, v{32 + 4 * q + 3}')
    p(f'buffer_store_dwordx4 {vr(32 + 4 * q, 4)}, v9, {sOUT}, 0 offen offset:{32 * q}')
dump_stamps(R)
p('s_endpgm')
for b in tail:
    b()
tail = []

assert CW.nbar == HW.nbar + 2, (CW.nbar, HW.nbar)
p.label('L_codeend')

p.fix_hazards()

hdr = open(os.path.join(os.path.dirname(os.path.abspath(__file__)), '..', 'cdna_kernels', NAME + '.s.ref')).read().split('\n')
top = [l for l in hdr if l.startswith(';') and '@launch' not in l and 'Override' not in l and 'grid=ceil' not in l]
out = '\n'.join(top) + '\n'
out += f'; @launch grid=(256,1,1) block=(512,1,1) lds={LDS_BYTES}\n'
out += f'''.amdgcn_target "amdgcn-amd-amdhsa--gfx950"
.text
.globl {KNAME}
.p2align 8
.type {KNAME},@function
'''
out += p.text()
out += f'''.section .rodata,"a"
.p2align 6
.amdhsa_kernel {KNAME}
  .amdhsa_next_free_vgpr 256
  .amdhsa_next_free_sgpr 102
  .amdhsa_accum_offset 256
  .amdhsa_group_segment_fixed_size 0
  .amdhsa_kernarg_size 88
  .amdhsa_user_sgpr_count 2
  .amdhsa_user_sgpr_kernarg_segment_ptr 1
  .amdhsa_system_sgpr_workgroup_id_x 1
.end_amdhsa_kernel
'''
open(sys.argv[1], 'w').write(out)
if OPT['stamps']:
    import json
    json.dump(STAMPS, open(sys.argv[1] + '.stamps.json', 'w'))
print('instructions:', sum(1 for x in p.ins if x.kind not in ('label', 'dir')), 'maxv', p.maxreg('v'), 'maxs', p.maxreg('s'), 'barriers', CW.nbar)
```

```python
import sys
import os
sys.path.insert(0, os.path.dirname(os.path.abspath(__file__)))
from asmlib import Prog, Cnt

NAME = 'sequential_preLN__sliding_block__dense_activation_squared_relu__prompt'
KNAME = NAME + '_kernel'

OPT = dict(stamps=False, force_safe=False, force_fallback=False, spin=200000, h1sc1=0, osc1=0, hsc1=0, mallwarm=1, p1touch=1, la=2, t0=2, tmode=1, codewarm=1, tlbwarm=1, aho=8, ahh=6, ah1=10, mallat=9, m2early=1, a_first=1, wopos=0, fkvt=1, tfirst=2, s0=16, wolate=0, kvtag=0, flagearly=1, w2c=12, clrat=-1, clrdone=4, hrate=2, early0=0)
for a in sys.argv[2:]:
    k, _, v = a.partition('=')
    OPT[k] = int(v) if v else True

EPOCH = 0x0
ST = 0x1000
FKV = 0x2000
FO = 0xA000
FH = 0xC000
FH1 = 0xE000
RST = 0x10000
AREA = 0x100000
H1B = 0x600000
STB = 0xA00000
WS_END = 0xB00000
STAMP = 0x1000000
WS_SIZE = 0x1100000

S_R = 0
S_M = 512
S_CS = 1024
S_CS1 = 1536
S_B1 = 2048
S_TAG = 2560
S_MODE = 2564
S_SYNC = 2816
C_ISS, C_END, H_TAB, H_P1, H_LATE, H_WO, C_OIS, H_WQ, H_CSQ, H_Q, C_KV, C_HALO, C_FLAG = [S_SYNC + 4 * i for i in range(13)]
BASE = 3072
RING = BASE
SLOT = 24576
NSLOT = 4
L_WO = BASE
L_K = BASE + 64 * 1024
L_V = L_K + 24 * 1024
VSTR = 1040
L_HI = 116 * 1024
assert L_V + 24 * VSTR <= L_HI and RING + NSLOT * SLOT <= L_HI
L_WQ = L_HI
L_QX = L_HI + 32 * 1024
S_CSQ = S_CS1
L_X = BASE + 96 * 1024
LDS_BYTES = 160 * 1024


def w1_addr(s):
    return BASE + s * 3072


KORD = [6 * c + f for c in range(7) for f in (4, 5)] + [6 * c + f for c in range(7) for f in range(4)] + [42, 43]
W2_REG = KORD[:4] + [42 + k for k in KORD[:4]]
W2_P1 = KORD[4:15] + [42 + k for k in KORD[4:15]]
w2_pos = {}
for i, s in enumerate(W2_REG):
    w2_pos[s] = L_X + i * 2048
for i, s in enumerate(W2_P1):
    w2_pos[s] = L_HI + i * 2048
late_order = []
for i in range(15, 42):
    late_order += [KORD[i], 42 + KORD[i]]
late_order += [84, 85]
assert len(late_order) == 56
for i, s in enumerate(late_order):
    w2_pos[s] = BASE + i * 2048
assert BASE + 56 * 2048 <= L_HI


def w2_rd_pos(i):
    return w2_pos[KORD[i]] if i < 42 else w2_pos[42 + KORD[i]] - 2048


sX, sWQKV, sWO, sW1, sW2, sOUT, sWS, sB1, sB2, sDBG = [f's[{i}:{i + 3}]' for i in range(4, 44, 4)]
s_team, s_j, s_rb, s_c, s_rs, s_cb, s_w, s_tt, s_tag, s_mode, s_hd = [f's{i}' for i in range(44, 55)]
T = [f's{i}' for i in range(55, 64)]
s_xr = [f's{i}' for i in range(86, 90)]
s_wr = [f's{i}' for i in range(90, 94)]
s_t, s_kh = 's94', 's95'
s_tile = 's64'
s_area = 's88'
s_last = 's96'
s_stamp = 's[98:99]'

LOG2E = 1.4426950408889634
BIG = 0xf149f2ca


def fhex(x):
    import struct
    return '0x%08x' % struct.unpack('<I', struct.pack('<f', x))[0]


def vr(a, n=1):
    return f'v{a}' if n == 1 else f'v[{a}:{a + n - 1}]'


p = Prog()
tail = []


class Role:
    def __init__(self, name):
        self.name = name
        self.vm = Cnt(p, 'vmcnt', 63)
        self.lg = Cnt(p, 'lgkmcnt', 15)
        self.nbar = 0
        self.nstamp = 0

    def bar(self):
        p('s_barrier')
        self.nbar += 1

    def dstamp(self, grp, label):
        if OPT.get('d' + grp):
            self.stamp(label, True)

    def stamp(self, label='', force=False):
        if not OPT['stamps']:
            return
        if not force and label not in ('start', 'end') and any(k.startswith('dP') for k in OPT):
            return
        k = self.nstamp
        self.nstamp += 1
        STAMPS.setdefault(self.name, []).append(label)
        assert k < 20
        p(f's_memtime {s_stamp}')
        p('s_waitcnt lgkmcnt(0)')
        self.lg.reset()
        p(f's_mov_b32 s{66 + k}, s98')


STAMPS = {}


def dsr(R, op, dst, bases, off, tag=None):
    k = off // 65536
    R.lg.room(1)
    p(f'{op} {dst}, {bases[k]} offset:{off % 65536}')
    R.lg.issue(tag)


def dma(R, vaddr, srd, soff, ldsaddr, tag=None):
    p(f's_mov_b32 m0, {ldsaddr}')
    p(f'buffer_load_dwordx4 {vaddr}, {srd}, {soff} offen lds')
    R.vm.issue(tag)


def poll(R, vaddr, vtmp, wide=False):
    L = p.newlabel('L_poll')
    D = p.newlabel('L_polld')
    X = p.newlabel('L_pollx')
    p(f's_mov_b32 {T[0]}, 0')
    p.label(L)
    first = vtmp if not wide else 'v' + vtmp[2:vtmp.index(':')]
    p(f'buffer_load_dword{"x2" if wide else ""} {vtmp}, {vaddr}, {sWS}, 0 offen sc1')
    p('s_waitcnt vmcnt(0)')
    p(f'v_cmp_ne_u32 vcc, {s_tag}, {first}')
    p(f's_cbranch_vccnz {X}')
    p.label(D)
    R.vm.reset()

    def blk():
        p.label(X)
        p(f's_add_u32 {T[0]}, {T[0]}, 1')
        p(f's_cmp_lt_u32 {T[0]}, {OPT["spin"]}')
        p(f's_cbranch_scc1 {L}')
        p(f's_branch {D}')
    tail.append(blk)


def moded_stores(R, stores, wt=False):
    if wt:
        for s in stores:
            p(s + ' sc1')
            R.vm.issue('st')
        return
    Ls = p.newlabel('L_safe')
    Lb = p.newlabel('L_back')
    p(f's_cmp_eq_u32 {s_mode}, 1')
    p(f's_cbranch_scc0 {Ls}')
    for s in stores:
        p(s)
    p.label(Lb)
    for s in stores:
        if s.startswith('buffer_'):
            R.vm.issue('st')

    def blk():
        p.label(Ls)
        for s in stores:
            p(s + ' sc1' if s.startswith('buffer_') else s)
        p(f's_branch {Lb}')
    tail.append(blk)


def signal(R, word, vz, vone):
    p('s_mov_b64 exec, 1')
    p(f'ds_add_u32 {vz}, {vone} offset:{word}')
    p('s_mov_b64 exec, -1')
    R.lg.issue('sig')


def lwait(R, word, vz, vt, early=False):
    L = p.newlabel('L_lw')
    X = p.newlabel('L_lwx')
    if early:
        R.lg.wait([word])
    else:
        p(f'ds_read_b32 {vt}, {vz} offset:{word}')
        p('s_waitcnt lgkmcnt(0)')
        R.lg.reset()
    p(f'v_cmp_gt_u32 vcc, 4, {vt}')
    p(f's_cbranch_vccnz {X}')
    p.label(L)

    def blk():
        Y = p.newlabel('L_lwy')
        p.label(X)
        p(f's_mov_b32 {T[0]}, 0')
        p.label(Y)
        p(f'ds_read_b32 {vt}, {vz} offset:{word}')
        p('s_waitcnt lgkmcnt(0)')
        p(f'v_cmp_gt_u32 vcc, 4, {vt}')
        p(f's_cbranch_vccz {L}')
        p(f's_add_u32 {T[0]}, {T[0]}, 1')
        p(f's_cmp_lt_u32 {T[0]}, {OPT["spin"] * 8}')
        p(f's_cbranch_scc1 {Y}')
        p(f's_branch {L}')
    tail.append(blk)


def flag_store(R, saddr, vt0, vt1, moded=True):
    p(f'v_mov_b32 {vt0}, {saddr}')
    p(f'v_mov_b32 {vt1}, {s_tag}')
    R.vm.wait_all()
    p('s_mov_b64 exec, 1')
    if moded:
        moded_stores(R, [f'buffer_store_dword {vt1}, {vt0}, {sWS}, 0 offen'])
    else:
        p(f'buffer_store_dword {vt1}, {vt0}, {sWS}, 0 offen sc1')
        R.vm.issue('st')
    p('s_mov_b64 exec, -1')


CW = Role('CW')
HW = Role('HW')
s_q = T[8]
s_mx, s_mw, s_tw = 's96', 's97', 's3'


def srd(dst, lo, size):
    b = int(dst[2:dst.index(':')])
    p(f's_mov_b32 s{b}, s{lo}')
    p(f's_and_b32 s{b + 1}, s{lo + 1}, 0xffff')
    p(f's_mov_b32 s{b + 2}, {size}')
    p(f's_mov_b32 s{b + 3}, 0x20000')


p.label(KNAME)
p('s_cmp_ge_u32 s2, 256')
p('s_cbranch_scc1 L_end')
if OPT['stamps']:
    p('s_memtime s[100:101]')
if OPT.get('dbgout'):
    p('s_memrealtime s[86:87]')
p('s_load_dwordx16 s[64:79], s[0:1], 0')
p('s_load_dwordx4 s[80:83], s[0:1], 64')
p('s_load_dwordx2 s[84:85], s[0:1], 80')
p('v_and_b32 v1, 63, v0')
p('v_lshrrev_b32 v2, 6, v0')
p(f'v_readfirstlane_b32 {s_w}, v2')
p(f's_and_b32 {s_team}, s2, 7')
p(f's_lshr_b32 {s_j}, s2, 3')
p(f's_and_b32 {s_c}, {s_j}, 15')
p(f's_lshr_b32 {T[0]}, {s_j}, 4')
p(f's_lshl_b32 {s_rb}, {s_team}, 1')
p(f's_add_u32 {s_rb}, {s_rb}, {T[0]}')
p('v_lshlrev_b32 v2, 4, v1')
p(f's_and_b32 {s_q}, {s_w}, 3')
p('v_lshrrev_b32 v3, 3, v1')
p(f's_lshl_b32 {T[0]}, {s_q}, 5')
p(f'v_add_u32 v3, {T[0]}, v3')
p('v_and_b32 v10, 7, v1')
p(f's_lshl_b32 {T[1]}, {s_rb}, 17')
p('v_bfe_u32 v11, v3, 1, 3')
p('v_xor_b32 v11, v10, v11')
p('v_lshlrev_b32 v11, 4, v11')
p('v_lshl_add_u32 v4, v3, 10, v11')
p(f'v_add_u32 v4, {T[1]}, v4')
p('v_xor_b32 v5, 64, v4')
p('v_add_u32 v5, 8192, v5')
p('v_lshrrev_b32 v10, 3, v1')
p(f's_lshl_b32 {T[0]}, {s_q}, 4')
p(f'v_add_u32 v10, {T[0]}, v10')
p(f's_movk_i32 {T[4]}, 3072')
p(f'v_mul_lo_u32 v10, v10, {T[4]}')
p('v_bfe_u32 v11, v1, 2, 1')
p('v_bfe_u32 v12, v1, 4, 1')
p('v_xor_b32 v11, v11, v12')
p('v_lshl_add_u32 v10, v11, 10, v10')
p('v_and_b32 v11, 3, v1')
p('v_lshl_add_u32 v10, v11, 4, v10')
p(f's_lshl_b32 {T[1]}, {s_c}, 6')
p(f's_add_u32 {T[1]}, {T[1]}, 1024')
p(f'v_add_u32 v6, {T[1]}, v10')
p(f's_lshl_b32 {s_mx}, {s_q}, 12')
p(f's_lshl_b32 {s_mw}, {s_q}, 11')
p(f's_lshl_b32 {s_tw}, {s_j}, 2')
p(f's_add_u32 {s_tw}, {s_tw}, {s_q}')
p(f's_mul_i32 {s_tw}, {s_tw}, 1536')
p('v_min_u32 v17, 11, v1')
p('v_lshlrev_b32 v17, 7, v17')
p(f's_lshl_b32 {T[5]}, {s_rb}, 4')
p(f's_add_u32 {T[5]}, {T[5]}, {s_c}')
p(f's_lshl_b32 {T[5]}, {T[5]}, 3')
p(f's_add_u32 {T[5]}, {T[5]}, {s_q}')
p('s_waitcnt lgkmcnt(0)')
p(f's_load_dword {s_tag}, s[84:85], {EPOCH}')
srd(sX, 64, 2048 * 512 * 2)
p(f's_cmp_ge_u32 {s_w}, 4')
p('s_cbranch_scc1 L_norow')
if OPT['kvtag'] and OPT['clrat'] == -2:
    srd(sWS, 84, WS_SIZE if OPT['stamps'] else WS_END)
    p(f's_lshr_b32 {T[0]}, {T[5]}, 3')
    p(f's_lshl_b32 {T[0]}, {T[0]}, 2')
    p(f's_add_u32 {T[0]}, {T[0]}, {s_q}')
    p(f's_lshl_b32 {T[0]}, {T[0]}, 12')
    p(f's_add_u32 {T[0]}, {T[0]}, {AREA + 32 * 16384}')
    for r in range(4):
        p(f'v_mov_b32 v{244 + r}, -1')
    for q in range(4):
        p(f'buffer_store_dwordx4 v[244:247], v2, {sWS}, {T[0]} offen offset:{q * 1024} sc1')
        CW.vm.issue('st')
p(f's_lshl_b32 {T[0]}, {T[5]}, 10')
p(f's_add_u32 {T[1]}, {T[0]}, 4096')
p(f'buffer_load_dwordx4 v[196:199], v2, {sX}, {T[0]} offen')
p(f'buffer_load_dwordx4 v[208:211], v2, {sX}, {T[1]} offen')
CW.vm.issue('row')
CW.vm.issue('row')
p.label('L_norow')
srd(sWQKV, 66, 512 * 1536 * 2)
if OPT['stamps']:
    p('s_memtime s[98:99]')
    p('s_waitcnt lgkmcnt(0)')
    p('s_mov_b32 s101, s98')
p(f's_cmp_lt_u32 {s_w}, 4')
p('s_cbranch_scc1 L_CW')


def chunk_groups(R, ch):
    slot = RING + (ch % NSLOT) * SLOT

    def xg(q):
        def f():
            p(f's_mov_b32 {T[7]}, {ch * 128 + (q >> 1) * 16384}')
            p(f's_add_u32 m0, {s_mx}, {slot + q * 1024}')
            p(f'buffer_load_dwordx4 v{4 + (q & 1)}, {sX}, {T[7]} offen lds')
            R.vm.issue(('ch', ch))
        return f

    def wg(q):
        def f():
            p(f's_mov_b32 {T[7]}, {(ch * 64 + q * 8) * 3072}')
            p(f's_add_u32 m0, {s_mw}, {slot + 16384 + q * 1024}')
            p(f'buffer_load_dwordx4 v6, {sWQKV}, {T[7]} offen lds')
            R.vm.issue(('ch', ch))
        return f
    return [wg(0), xg(0), xg(1), wg(1), xg(2), xg(3)]


def wtouch(R, i):
    def f():
        if not OPT['p1touch']:
            return
        p(f's_add_u32 {T[7]}, {s_tw}, {i * 64 * 3072}')
        p(f'buffer_load_dword v252, v17, {sWQKV}, {T[7]} offen')
        R.vm.issue('t')
    return f


def warm_wo(R):
    def f():
        p(f's_lshl_b32 {T[7]}, {s_j}, 2')
        p(f's_add_u32 {T[7]}, {T[7]}, {s_q}')
        p(f's_lshl_b32 {T[7]}, {T[7]}, 12')
        p('v_and_b32 v3, 31, v1')
        p('v_lshlrev_b32 v3, 7, v3')
        p(f'buffer_load_dword v255, v3, {sWO}, {T[7]} offen')
        R.vm.issue('t')
    return f


def warm_mall(R, srd_):
    def f():
        p(f's_lshl_b32 {T[7]}, s2, 2')
        p(f's_add_u32 {T[7]}, {T[7]}, {s_q}')
        p(f's_mul_i32 {T[7]}, {T[7]}, 1536')
        p(f'buffer_load_dword v254, v17, {srd_}, {T[7]} offen')
        R.vm.issue('t')
    return f


def srds_w():
    srd(sWO, 68, 512 * 512 * 2)
    srd(sW1, 72, 512 * 1376 * 2)
    srd(sW2, 76, 1376 * 512 * 2)


def common_setup(R):
    srd(sWS, 84, WS_SIZE if OPT['stamps'] else WS_END)
    srd(sB1, 74, 1376 * 2)
    srd(sB2, 78, 512 * 2)
    srd(sOUT, 80, 2048 * 512 * 2)
    p(f's_lshr_b32 {T[0]}, {s_j}, 3')
    p(f's_lshl_b32 {s_rs}, {s_team}, 2')
    p(f's_add_u32 {s_rs}, {s_rs}, {T[0]}')
    p(f's_and_b32 {s_cb}, {s_j}, 7')
    p(f's_lshr_b32 {s_hd}, {s_w}, 2')
    p(f's_lshl_b32 {s_area}, {s_rb}, 4')
    p(f's_add_u32 {s_area}, {s_area}, {s_c}')
    p(f's_lshl_b32 {s_area}, {s_area}, 14')
    p(f's_add_u32 {s_area}, {s_area}, {AREA}')
    if R is CW:
        p(f's_mov_b32 {s_tt}, {s_w}')
        p(f's_and_b32 {s_t}, {s_w}, 1')
        p(f's_lshr_b32 {s_kh}, {s_w}, 1')
    else:
        p(f's_sub_u32 {s_tt}, 7, {s_w}')
    p('v_mov_b32 v18, 0x3f803f80')
    p('s_waitcnt lgkmcnt(0)')
    p(f's_add_u32 {s_tag}, {s_tag}, 1')


def row_stats(R):
    p(f's_lshl_b32 s65, s65, 4')
    p(f's_add_u32 s65, s65, {RST}')
    p(f'v_mov_b32 v3, s65')
    for k in (200, 202, 212, 214):
        p(f'v_mov_b32 v{k}, 0')
    R.vm.wait(['row'])
    for r in range(4):
        for o in (0, 12):
            p(f'v_dot2c_f32_bf16 v{200 + o}, v{196 + o + r}, v18')
            p(f'v_dot2c_f32_bf16 v{202 + o}, v{196 + o + r}, v{196 + o + r}')
    for sh in (8, 4, 2, 1):
        for k in (200, 202, 212, 214):
            p(f'v_add_f32_dpp v{k}, v{k}, v{k} row_ror:{sh} row_mask:0xf bank_mask:0xf')
    for op in ('v_permlane16_swap_b32', 'v_permlane32_swap_b32'):
        for k in (200, 202, 212, 214):
            p(f'v_mov_b32 v{k + 1}, v{k}')
        for k in (200, 202, 212, 214):
            p(f'{op} v{k}, v{k + 1}')
        for k in (200, 202, 212, 214):
            p(f'v_add_f32 v{k}, v{k}, v{k + 1}')
    for o in (0, 12):
        ln_finish(f'v{200 + o}', f'v{202 + o}', f'v{204 + o}', f'v{206 + o}')
        p(f'v_mov_b32 v{205 + o}, {s_tag}')
        p(f'v_mov_b32 v{207 + o}, {s_tag}')
    p('s_mov_b64 exec, 1')
    p(f'buffer_store_dwordx4 v[204:207], v3, {sWS}, 0 offen sc1')
    p(f'buffer_store_dwordx4 v[216:219], v3, {sWS}, 0 offen offset:64 sc1')
    p('s_mov_b64 exec, -1')
    R.vm.issue('st')
    R.vm.issue('st')


VQ, MD, MF = 160, 164, 180
SB = [20, 36]
VP = 52
KF = [60, 64]
VF = [68, 76]
VO = 84
VKA, VVA = 'v100', 'v101'
HALO = 120


def make_masks():
    p('v_and_b32 v10, 31, v1')
    p('v_lshrrev_b32 v11, 5, v1')
    p('v_lshlrev_b32 v11, 2, v11')
    p('v_sub_u32 v10, v10, v11')
    p(f'v_mov_b32 v12, {BIG:#x}')
    p('v_mov_b32 v13, 0')
    for i0 in range(0, 16, 4):
        for i in range(i0, i0 + 4):
            key = 8 * (i >> 2) + (i & 3)
            p(f'v_cmp_le_i32 s[{56 + 2 * (i & 3)}:{57 + 2 * (i & 3)}], {key}, v10')
        for i in range(i0, i0 + 4):
            m = f's[{56 + 2 * (i & 3)}:{57 + 2 * (i & 3)}]'
            p(f'v_cndmask_b32 v{MD + i}, v12, v13, {m}')
            p(f'v_cndmask_b32 v{MF + i}, v13, v12, {m}')


def att_addrs():
    p(f's_lshl_b32 {T[0]}, {s_tt}, 11')
    p(f's_lshl_b32 {T[1]}, {s_hd}, 10')
    p(f's_add_u32 {T[0]}, {T[0]}, {T[1]}')
    p(f's_add_u32 {T[0]}, {T[0]}, {L_K}')
    p(f'v_add_u32 {VKA}, {T[0]}, v2')
    p('v_and_b32 v10, 47, v1')
    p(f's_lshl_b32 {T[1]}, {s_hd}, 4')
    p(f'v_add_u32 v10, {T[1]}, v10')
    p('v_lshlrev_b32 v10, 4, v10')
    p('v_and_b32 v11, 16, v1')
    p('v_cmp_ne_u32 vcc, 0, v11')
    p('v_mov_b32 v11, 1024')
    p('v_cndmask_b32 v10, v10, v11, vcc')
    p(f's_mul_i32 {T[0]}, {s_tt}, {2 * VSTR}')
    p(f's_add_u32 {T[0]}, {T[0]}, {L_V}')
    p(f'v_add_u32 {VVA}, {T[0]}, v10')


def half_sum(a, t):
    p(f'v_mov_b32 {t}, {a}')
    p(f'v_permlane32_swap_b32 {a}, {t}')
    p(f'v_add_f32 {a}, {a}, {t}')


def ln_finish(s1, s2, rstd, mrs):
    p(f'v_mul_f32 {s1}, {fhex(1.0 / 512)}, {s1}')
    p(f'v_mul_f32 {s2}, {fhex(1.0 / 512)}, {s2}')
    p(f'v_fma_f32 {s2}, -{s1}, {s1}, {s2}')
    p(f'v_max_f32 {s2}, 0, {s2}')
    p(f'v_add_f32 {s2}, {fhex(1e-5)}, {s2}')
    p(f'v_rsq_f32 {rstd}, {s2}')
    p(f'v_mul_f32 {mrs}, {s1}, {rstd}')


def att_load(R, u, b, base):
    p(f'ds_read_b128 {vr(KF[b], 4)}, {base[0]} offset:{u * 2048}')
    R.lg.issue(('K', u))
    for g in range(2):
        p(f'ds_read_b128 {vr(VF[b] + 4 * g, 4)}, {base[1]} offset:{(2 * u + g) * VSTR}')
        R.lg.issue(('V', u))


def att_qk(R, u, b, c):
    R.lg.wait([('K', u)])
    p(f'v_mfma_f32_32x32x16_bf16 {vr(SB[b], 16)}, {vr(KF[b], 4)}, {vr(VQ, 4)}, {c}')


def att_body(R, u, b, nxt, first, extra=()):
    S = SB[b]
    if nxt is not None:
        att_load(R, nxt[0], 1 - b, nxt[1])
    extra = list(extra)
    for g in range(2):
        for i in range(8):
            p(f'v_exp_f32 v{S + 8 * g + i}, v{S + 8 * g + i}')
            if i in (0, 2, 3, 5, 7) and extra:
                extra.pop(0)()
        if g == 0 and nxt is not None:
            att_qk(R, nxt[0], 1 - b, nxt[2])
        for r in range(4):
            p(f'v_cvt_pk_bf16_f32 v{VP + 4 * g + r}, v{S + 8 * g + 2 * r}, v{S + 8 * g + 2 * r + 1}')
        R.lg.wait([('V', u)])
        c = '0' if (first and g == 0) else vr(VO, 16)
        p(f'v_mfma_f32_32x32x16_bf16 {vr(VO, 16)}, {vr(VF[b] + 4 * g, 4)}, {vr(VP + 4 * g, 4)}, {c}')
    assert not extra


REL = (VKA, VVA)
ABS = ('v116', 'v117')


def att_2a(R, after_first=None):
    Lx = p.newlabel('L_2a_done')
    att_load(R, 8, 0, REL)
    att_qk(R, 8, 0, vr(MD, 16))
    for n, j in enumerate((8, 7, 6, 5)):
        att_body(R, j, n & 1, (j - 1, REL, '0') if j > 5 else None, n == 0)
        if n == 0 and after_first:
            after_first()
        if j > 5:
            p(f's_cmp_eq_u32 {s_tt}, {n}')
            p(f's_cbranch_scc1 {Lx}')
    p.label(Lx)
    p('s_waitcnt lgkmcnt(0)')
    R.lg.reset()
    R.stamp('2a')
    R.dstamp('P2', '2a')


def att_2b(R, extra, after_store):
    p(f's_max_i32 {T[0]}, {s_rb}, 1')
    p(f's_sub_u32 {T[0]}, {T[0]}, 1')
    p(f's_lshl_b32 {T[0]}, {T[0]}, 4')
    p(f's_add_u32 {T[0]}, {T[0]}, {s_c}')
    p(f's_lshl_b32 {T[0]}, {T[0]}, 7')
    p(f's_add_u32 {T[0]}, {T[0]}, {FKV + 16}')
    p('v_and_b32 v102, 3, v1')
    p('v_lshlrev_b32 v102, 2, v102')
    p(f'v_add_u32 v102, {T[0]}, v102')

    def rd_check():
        p(f'buffer_load_dword v103, v102, {sWS}, 0 offen sc1')
        R.vm.issue('rd')
    Lx = p.newlabel('L_2b_done')
    att_load(R, 0, 0, REL)
    att_qk(R, 0, 0, vr(MF, 16))
    extra = list(extra)
    extra += [lambda: None] * (44 - len(extra)) + [rd_check]
    assert len(extra) <= 50
    for j in range(8):
        att_body(R, j, j & 1, (j + 1, REL, '0') if j < 7 else None, False, extra[10 * j:10 * j + 10])
        if 4 <= j < 7:
            p(f's_cmp_eq_u32 {s_tt}, {7 - j}')
            p(f's_cbranch_scc1 {Lx}')
    p.label(Lx)
    p('s_waitcnt lgkmcnt(0)')
    R.lg.reset()
    Lf = p.newlabel('L_fb')
    Lr = p.newlabel('L_fbret')
    p(f'v_mov_b32 v10, {fhex(2.0 ** -60)}')
    p(f'v_mov_b32 v11, {fhex(2.0 ** 60)}')
    p(f's_lshl_b32 {T[0]}, {s_rb}, 2')
    p(f's_add_u32 {T[0]}, {T[0]}, {s_tt}')
    p(f's_lshl_b32 {T[0]}, {T[0]}, 5')
    p(f's_lshl_b32 {T[6]}, {s_c}, 1')
    p(f's_add_u32 {T[0]}, {T[0]}, {T[6]}')
    p(f's_add_u32 {T[0]}, {T[0]}, {s_hd}')
    p(f's_lshl_b32 {T[7]}, {T[0]}, 2')
    p(f's_add_u32 {T[7]}, {T[7]}, {FO}')
    p(f's_lshl_b32 {T[0]}, {s_tt}, 2')
    p(f's_add_u32 {T[0]}, {T[0]}, {s_hd}')
    p(f's_lshl_b32 {T[0]}, {T[0]}, 10')
    p(f's_add_u32 {T[6]}, {T[0]}, {s_area}')
    p(f'v_cmp_nlt_f32 vcc, v10, v{VO + 8}')
    p(f'v_cmp_nlt_f32 s[56:57], v{VO + 8}, v11')
    p('s_or_b64 vcc, vcc, s[56:57]')
    if OPT['force_fallback']:
        p(f's_branch {Lf}')
    else:
        p(f's_cbranch_vccnz {Lf}')
    p.label(Lr)
    tail.append(lambda: fallback(Lf, Lr))
    p(f'v_rcp_f32 v10, v{VO + 8}')
    for i in range(8):
        p(f'v_mul_f32 v{VO + i}, v{VO + i}, v10')
    for r in range(4):
        p(f'v_cvt_pk_bf16_f32 v{12 + r}, v{VO + 2 * r}, v{VO + 2 * r + 1}')
    R.dstamp('P2', '2b')
    Lc = p.newlabel('L_rdc')
    Lcx = p.newlabel('L_rdx')
    R.vm.wait(['rd'])
    p(f'v_cmp_ne_u32 vcc, {s_tag}, v103')
    p(f's_cbranch_vccnz {Lcx}')
    p.label(Lc)

    def rd_slow():
        p.label(Lcx)
        poll(R2, 'v102', 'v103')
        p(f's_branch {Lc}')
    R2 = Role('tmp')
    tail.append(rd_slow)
    moded_stores(R, [f'buffer_store_dwordx4 v[12:15], v2, {sWS}, {T[6]} offen'], OPT['osc1'])
    after_store()
    flag_store(R, T[7], 'v10', 'v11')
    R.stamp('Oflag')
    R.dstamp('P2', 'Oflag')


def fallback(Lf, Lr):
    S = SB[0]
    p.label(Lf)
    p(f's_lshl_b32 {T[0]}, {s_rb}, 2')
    p(f's_add_u32 {T[0]}, {T[0]}, {s_tt}')
    p(f's_sub_i32 {T[0]}, 8, {T[0]}')
    p(f's_max_i32 s89, {T[0]}, 0')
    p(f'v_mov_b32 v14, {BIG:#x}')
    for pas in range(2):
        L = p.newlabel('L_fbl')
        Lm = p.newlabel('L_fbm')
        Ln = p.newlabel('L_fbn')
        Lc = p.newlabel('L_fbc')
        p(f's_mov_b32 s90, s89')
        if pas == 1:
            for i in range(16):
                p(f'v_mov_b32 v{VO + i}, 0')
        p.label(L)
        p(f's_lshl_b32 {T[0]}, s90, 11')
        p(f'v_add_u32 v10, {T[0]}, {VKA}')
        p(f's_mul_i32 {T[0]}, s90, {2 * VSTR}')
        p(f'v_add_u32 v11, {T[0]}, {VVA}')
        p(f'ds_read_b128 {vr(KF[0], 4)}, v10')
        p(f'ds_read_b128 {vr(VF[0], 4)}, v11')
        p(f'ds_read_b128 {vr(VF[0] + 4, 4)}, v11 offset:{VSTR}')
        p('s_waitcnt lgkmcnt(0)')
        p(f's_cmp_eq_u32 s90, 8')
        p(f's_cbranch_scc1 {Lm}')
        p(f's_cmp_eq_u32 s90, 0')
        p(f's_cbranch_scc1 {Ln}')
        p(f'v_mfma_f32_32x32x16_bf16 {vr(S, 16)}, {vr(KF[0], 4)}, {vr(VQ, 4)}, 0')
        p(f's_branch {Lc}')
        p.label(Lm)
        p(f'v_mfma_f32_32x32x16_bf16 {vr(S, 16)}, {vr(KF[0], 4)}, {vr(VQ, 4)}, {vr(MD, 16)}')
        p(f's_branch {Lc}')
        p.label(Ln)
        p(f'v_mfma_f32_32x32x16_bf16 {vr(S, 16)}, {vr(KF[0], 4)}, {vr(VQ, 4)}, {vr(MF, 16)}')
        p.label(Lc)
        if pas == 0:
            for i in range(16):
                p(f'v_max_f32 v14, v14, v{S + i}')
        else:
            for i in range(16):
                p(f'v_sub_f32 v{S + i}, v{S + i}, v14')
                p(f'v_exp_f32 v{S + i}, v{S + i}')
            for r in range(8):
                p(f'v_cvt_pk_bf16_f32 v{VP + r}, v{S + 2 * r}, v{S + 2 * r + 1}')
            for g in range(2):
                p(f'v_mfma_f32_32x32x16_bf16 {vr(VO, 16)}, {vr(VF[0] + 4 * g, 4)}, {vr(VP + 4 * g, 4)}, {vr(VO, 16)}')
        p(f's_add_u32 s90, s90, 1')
        p(f's_cmp_le_u32 s90, 8')
        p(f's_cbranch_scc1 {L}')
        if pas == 0:
            p('v_mov_b32 v15, v14')
            p('v_permlane32_swap_b32 v14, v15')
            p('v_max_f32 v14, v14, v15')
    p(f's_branch {Lr}')


def w64_dma_lane(dst):
    p('v_lshrrev_b32 v10, 3, v1')
    p('v_lshlrev_b32 v10, 10, v10')
    p('v_and_b32 v11, 7, v1')
    p('v_bfe_u32 v12, v1, 4, 1')
    p('v_lshlrev_b32 v12, 2, v12')
    p('v_xor_b32 v11, v11, v12')
    p('v_lshl_add_u32 v10, v11, 4, v10')
    p(f's_lshl_b32 {T[0]}, {s_cb}, 7')
    p(f'v_add_u32 {dst}, {T[0]}, v10')


def w1_dma_lanes(dsts):
    p(f's_movk_i32 {T[3]}, 5462')
    p(f's_movk_i32 {T[4]}, 2752')
    p(f's_mul_i32 {T[1]}, {s_c}, 192')
    for q, dst in enumerate(dsts):
        p(f'v_add_u32 v10, {64 * q}, v1')
        p(f'v_mul_lo_u32 v11, v10, {T[3]}')
        p('v_lshrrev_b32 v11, 16, v11')
        p('v_mul_u32_u24 v12, 12, v11')
        p('v_sub_u32 v12, v10, v12')
        p('v_lshlrev_b32 v12, 4, v12')
        p(f'v_mul_lo_u32 v11, v11, {T[4]}')
        p(f'v_add3_u32 {dst}, v11, v12, {T[1]}')


def tr64_lanes(a0, a1):
    p('v_bfe_u32 v10, v1, 2, 2')
    p('v_lshrrev_b32 v11, 5, v1')
    p('v_lshl_add_u32 v10, v11, 2, v10')
    p('v_lshlrev_b32 v10, 7, v10')
    p('v_bfe_u32 v11, v1, 4, 1')
    p('v_lshl_add_u32 v10, v11, 5, v10')
    p('v_and_b32 v11, 3, v1')
    p('v_lshl_add_u32 v10, v11, 3, v10')
    p('v_bfe_u32 v11, v1, 3, 1')
    p(f'v_lshl_add_u32 {a0}, v11, 6, v10')
    p(f'v_xor_b32 {a1}, 64, {a0}')


def tr_kv_lane(a):
    p('v_bfe_u32 v10, v1, 2, 2')
    p('v_lshrrev_b32 v11, 5, v1')
    p('v_lshl_add_u32 v10, v11, 3, v10')
    p('v_lshlrev_b32 v10, 7, v10')
    p('v_bfe_u32 v11, v1, 4, 1')
    p('v_lshl_add_u32 v10, v11, 5, v10')
    p('v_and_b32 v11, 3, v1')
    p('v_lshl_add_u32 v10, v11, 3, v10')
    p('v_bfe_u32 v11, v1, 3, 1')
    p(f'v_lshl_add_u32 {a}, v11, 6, v10')


def x_lane(a):
    p('v_and_b32 v10, 31, v1')
    p(f's_lshl_b32 {T[0]}, {s_tt}, 5')
    p(f'v_add_u32 v10, {T[0]}, v10')
    p('v_bfe_u32 v11, v10, 1, 3')
    p('v_lshrrev_b32 v12, 5, v1')
    p('v_xor_b32 v11, v11, v12')
    p('v_lshlrev_b32 v11, 4, v11')
    p(f'v_lshl_add_u32 {a}, v10, 7, v11')


def tr96_lane(a):
    p('v_bfe_u32 v10, v1, 2, 2')
    p('v_lshrrev_b32 v11, 5, v1')
    p('v_lshl_add_u32 v10, v11, 2, v10')
    p('v_mul_u32_u24 v10, 192, v10')
    p('v_bfe_u32 v11, v1, 4, 1')
    p('v_lshl_add_u32 v10, v11, 5, v10')
    p('v_and_b32 v11, 3, v1')
    p(f'v_lshl_add_u32 {a}, v11, 3, v10')


def dump_stamps(R):
    if not OPT['stamps']:
        return
    R.stamp('end')
    p(f's_lshl_b32 {T[0]}, s2, 3')
    p(f's_add_u32 {T[0]}, {T[0]}, {s_w}')
    p(f's_lshl_b32 {T[0]}, {T[0]}, 8')
    p(f's_add_u32 {T[0]}, {T[0]}, {STAMP}')
    p('v_lshlrev_b32 v10, 2, v1')
    p('v_mov_b32 v11, 0')
    for k in range(R.nstamp):
        p(f'v_writelane_b32 v11, s{66 + k}, {k}')
    p(f'v_writelane_b32 v11, {s_mode}, 63')
    p(f'v_writelane_b32 v11, s100, 62')
    p(f'v_writelane_b32 v11, s101, 61')
    p(f'buffer_store_dword v11, v10, {sWS}, {T[0]} offen')
    if OPT.get('dbgout') and R is CW:
        L = p.newlabel('L_dbg')
        p(f's_cmp_lg_u32 s2, {OPT["dbgout"]}')
        p(f's_cbranch_scc1 {L}')
        p(f's_cmp_lg_u32 {s_w}, 0')
        p(f's_cbranch_scc1 {L}')
        p('s_load_dwordx2 s[40:41], s[0:1], 72')
        p('s_memrealtime s[98:99]')
        p('s_waitcnt lgkmcnt(0)')
        p('s_and_b32 s41, s41, 0xffff')
        p('s_mov_b32 s42, 256')
        p('s_mov_b32 s43, 0x20000')
        p('v_subrev_u32 v11, s100, v11')
        p('s_sub_u32 s98, s98, s86')
        p('v_writelane_b32 v11, s98, 15')
        p('buffer_store_dword v11, v10, s[40:43], 0 offen')
        p.label(L)


R = HW
def touch_st():
    p('v_bfe_u32 v110, v1, 2, 1')
    p('v_lshlrev_b32 v110, 12, v110')
    p('v_and_b32 v111, 3, v1')
    p('v_lshl_add_u32 v110, v111, 7, v110')
    p(f's_lshl_b32 {T[6]}, {s_rs}, 13')
    p(f's_lshl_b32 {T[7]}, {s_cb}, 9')
    p(f's_add_u32 {T[6]}, {T[6]}, {T[7]}')
    p(f's_add_u32 {T[6]}, {T[6]}, {STB}')
    p(f'buffer_load_dword v253, v110, {sWS}, {T[6]} offen sc1')
    R.vm.issue('t')


def touch_fl():
    p('v_bfe_u32 v110, v1, 2, 2')
    p('v_min_u32 v110, 2, v110')
    p('v_lshlrev_b32 v110, 13, v110')
    p('v_and_b32 v111, 3, v1')
    p('v_lshl_add_u32 v110, v111, 7, v110')
    p(f's_lshl_b32 {T[6]}, {s_rb}, 9')
    p(f's_add_u32 {T[6]}, {T[6]}, {FO}')
    p(f'buffer_load_dword v254, v110, {sWS}, {T[6]} offen sc1')
    R.vm.issue('t')


TM = OPT['tmode']
after = {1: {0: [2], 1: [3, 4], 2: [5], 3: [6], 4: [7]}, 2: {0: [2, 3], 1: [4, 5, 6, 7]}, 3: {0: [2, 3], 1: [4], 2: [5, 6], 3: [7]}, 4: {0: [1, 2, 3], 1: [4, 5], 2: [6, 7]}}[TM]


def chunk_t(R, ch):
    gs = chunk_groups(R, ch) + [wtouch(R, i) for i in after.get(ch, [])]
    if OPT['mallat'] < 8:
        m = OPT['mallat']
        gs += {m: [warm_mall(R, sW1)], m + 1: [warm_mall(R, sW2)], m + 2: [warm_wo(R), touch_fl, touch_st]}.get(ch, [])
    return gs


for g in [wtouch(R, i) for i in range(OPT['tfirst'])] + chunk_t(R, 0) + ([] if OPT['early0'] else chunk_t(R, 1)) + [srds_w] + (chunk_t(R, 2) if OPT['la'] == 3 else []):
    g()
tr_kv_lane('v19')
p(f's_and_b32 {T[0]}, {s_q}, 1')
p(f's_lshl_b32 {T[0]}, {T[0]}, 6')
p(f'v_xor_b32 v19, {T[0]}, v19')
p(f's_sub_u32 {s_tt}, 7, {s_w}')
x_lane('v9')
XQ = [20 + 4 * i for i in range(4)] + [68 + 4 * i for i in range(8)] + [120 + 4 * i for i in range(10)] + [196 + 4 * i for i in range(10)]
AQ = 236


def wq_lane():
    p('v_lshrrev_b32 v10, 2, v1')
    p(f's_lshl_b32 {T[0]}, {s_q}, 7')
    p(f'v_add_u32 v10, {T[0]}, v10')
    p(f's_movk_i32 {T[1]}, 3072')
    p(f'v_mul_lo_u32 v10, v10, {T[1]}')
    p('v_and_b32 v11, 3, v1')
    p('v_lshl_add_u32 v10, v11, 4, v10')
    p(f's_lshl_b32 {T[1]}, {s_c}, 6')
    p(f'v_add_u32 v7, {T[1]}, v10')
    p('v_bfe_u32 v10, v1, 2, 2')
    p('v_lshrrev_b32 v11, 5, v1')
    p('v_lshl_add_u32 v10, v11, 3, v10')
    p('v_lshlrev_b32 v10, 6, v10')
    p('v_bfe_u32 v11, v1, 4, 1')
    p('v_lshl_add_u32 v10, v11, 5, v10')
    p('v_and_b32 v11, 3, v1')
    p('v_lshl_add_u32 v10, v11, 3, v10')
    p(f'v_add_u32 v8, {L_WQ}, v10')


def wq_piece(n):
    def f():
        p(f's_lshl_b32 {T[7]}, {s_q}, 13')
        p(f's_add_u32 m0, {T[7]}, {L_WQ + n * 1024}')
        p(f's_mov_b32 {T[7]}, {n * 16 * 3072}')
        p(f'buffer_load_dwordx4 v7, {sWQKV}, {T[7]} offen lds')
        R.vm.issue('wq')
    return f

STG = [120 + 4 * i for i in range(10)] + [196 + 4 * i for i in range(14)]
ONE, CSA = 104, 52
for r in range(4):
    p(f'v_mov_b32 v{ONE + r}, 0x3f803f80')


def w1_stage(n):
    def f():
        if n % 3 == 0:
            p(f's_mul_i32 {T[6]}, {s_q}, {8 * 16 * 2752}')
            p(f's_add_u32 {T[6]}, {T[6]}, {(n // 3) * 16 * 2752}')
        p(f'buffer_load_dwordx4 {vr(STG[n], 4)}, v{112 + n % 3}, {sW1}, {T[6]} offen')
        R.vm.issue('w1')
    return f


def publish_start():
    L7 = p.newlabel('L_n7')
    p(f's_cmp_lg_u32 {s_w}, 7')
    p(f's_cbranch_scc1 {L7}')
    p(f's_getreg_b32 {T[1]}, hwreg(HW_REG_XCC_ID)')
    p(f's_and_b32 {T[1]}, {T[1]}, 15')
    p(f'v_mov_b32 v13, {T[1]}')
    p(f's_lshl_b32 {T[1]}, {s_team}, 5')
    p(f's_add_u32 {T[1]}, {T[1]}, {s_j}')
    p(f's_lshl_b32 {T[1]}, {T[1]}, 3')
    p(f's_add_u32 {T[1]}, {T[1]}, {ST}')
    p(f'v_mov_b32 v10, {T[1]}')
    p(f'v_mov_b32 v12, {s_tag}')
    p('s_mov_b64 exec, 1')
    p(f'buffer_store_dwordx2 v[12:13], v10, {sWS}, 0 offen sc1')
    p('s_mov_b64 exec, -1')
    p.label(L7)


def hw_masks():
    make_masks()
    p(f's_and_b32 {s_q}, {s_w}, 3')


p('v_mov_b32 v10, 0')
p('v_mov_b32 v11, 0')
p('v_lshlrev_b32 v12, 3, v1')
p('v_and_b32 v12, 63, v12')
p(f'ds_write_b64 v12, v[10:11] offset:{S_SYNC}')
R.stamp('start')
late = [w1_stage(n) for n in range(24)]
fill = {0: [lambda: common_setup(R)], 1: [publish_start, lambda: w1_dma_lanes(['v112', 'v113', 'v114'])],
        2: [hw_masks], 3: [lambda: w64_dma_lane('v115'), att_addrs, wq_lane]}
for ch in range(8):
    slot = RING + (ch % NSLOT) * SLOT
    p(f'v_add_u32 v14, {slot + 16384}, v19')
    p(f'v_add_u32 v108, {slot}, v9')
    for ks in range(1, 4):
        p(f'v_xor_b32 v{(108, 109, 116, 117)[ks]}, {32 * ks}, v108')
    if ch >= 4:
        R.dstamp('P1', f'iss{ch}')
    R.vm.wait([('ch', ch)])
    if ch == 0:
        p('s_waitcnt lgkmcnt(0)')
    if ch >= 4:
        R.dstamp('P1', f'vm{ch}')
    R.bar()
    R.dstamp('P1', f'bar{ch}')
    for ks in range(4):
        for rd in range(2):
            p(f'ds_read_b64_tr_b16 {vr(36 + 4 * ks + 2 * rd, 2)}, v14 offset:{ks * 2048 + rd * 512}')
    for ks in range(4):
        p(f'ds_read_b128 {vr(XQ[4 * ch + ks], 4)}, v{(108, 109, 116, 117)[ks]}')
    LA = OPT['la']
    if ch + LA < 8:
        extra = (chunk_t(R, 1) if OPT['early0'] and ch == 0 else []) + chunk_t(R, ch + LA)
    elif ch == 8 - LA:
        extra = [wq_piece(n) for n in range(8)]
    else:
        extra = []
    mf = [(lambda ks=ks: p(f'v_mfma_f32_32x32x16_bf16 {vr(CSA, 16)}, {vr(ONE, 4)}, {vr(36 + 4 * ks, 4)}, {"0" if ch == 0 and ks == 0 else vr(CSA, 16)}')) for ks in range(4)]
    other = [lambda: p('s_waitcnt lgkmcnt(0)')] + mf + fill.get(ch, [])
    for k, g in enumerate(extra):
        g()
        if k >= 1 and other:
            other.pop(0)()
            if k == 1:
                other.pop(0)()
    for g in other:
        g()
p('v_and_b32 v10, 31, v1')
p('v_lshlrev_b32 v10, 2, v10')
p(f's_and_b32 {T[0]}, {s_q}, 1')
p(f's_lshl_b32 {T[0]}, {T[0]}, 7')
p(f'v_add_u32 v11, {T[0]}, v10')
p(f'ds_write_b32 v11, v{CSA} offset:{S_CS + 128}')
p('s_waitcnt lgkmcnt(0)')
R.bar()
R.stamp('B1')
R.dstamp('P2', 'B1')
burst = [warm_wo(R), warm_mall(R, sW1), warm_mall(R, sW2), touch_fl, touch_st]
if OPT['mallat'] == 8:
    for g in burst:
        g()
p('v_min_u32 v15, 23, v1')
p('v_lshrrev_b32 v16, 3, v15')
p(f'v_add_u32 v16, {s_rb}, v16')
p('v_cmp_le_u32 vcc, 2, v16')
p('v_mov_b32 v13, 0')
p('v_cndmask_b32 v44, v13, v18, vcc')
p('v_mov_b32 v45, v44')
p('v_mov_b32 v46, v44')
p('v_mov_b32 v47, v44')
p(f'v_mul_u32_u24 v15, {VSTR}, v15')
p(f'v_add_u32 v15, {L_V + 1024}, v15')
p('ds_write_b128 v15, v[44:47]')
p('v_mov_b32 v118, 0')
p('v_mov_b32 v119, 1')
p(f's_lshl_b32 {T[0]}, {s_tt}, 7')
p(f'v_add_u32 v11, {T[0]}, v10')
p(f'ds_read_b32 v108, v11 offset:{S_R}')
p(f'ds_read_b32 v109, v11 offset:{S_M}')
R.vm.wait(['wq'])
p(f's_lshl_b32 {T[0]}, {s_q}, 13')
p(f'v_add_u32 v14, {T[0]}, v8')
signal(R, H_WQ, 'v118', 'v119')
R.lg.reset()
for k in range(8 + 3):
    if k < 8:
        for rd in range(2):
            dsr(R, 'ds_read_b64_tr_b16', vr(36 + 4 * (k % 4) + 2 * rd, 2), ['v14'], k * 1024 + rd * 256, ('c', k))
    if k >= 3:
        R.lg.wait([('c', k - 3)])
        p(f'v_mfma_f32_32x32x16_bf16 {vr(CSA, 16)}, {vr(ONE, 4)}, {vr(36 + 4 * ((k - 3) % 4), 4)}, {"0" if k == 3 else vr(CSA, 16)}')
lwait(R, H_WQ, 'v118', 'v12')
p(f's_lshl_b32 {T[0]}, {s_q}, 7')
p(f'v_add_u32 v11, {T[0]}, v10')
p('v_lshrrev_b32 v12, 5, v1')
p('v_lshlrev_b32 v12, 4, v12')
for k in range(32 + 3):
    if k < 32:
        for rd in range(2):
            dsr(R, 'ds_read_b64_tr_b16', vr(36 + 4 * (k % 4) + 2 * rd, 2), ['v8'], k * 1024 + rd * 256, ('q', k))
    if k >= 3:
        R.lg.wait([('q', k - 3)])
        p(f'v_mfma_f32_32x32x16_bf16 {vr(AQ, 16)}, {vr(36 + 4 * ((k - 3) % 4), 4)}, {vr(XQ[k - 3], 4)}, {"0" if k == 3 else vr(AQ, 16)}')
    if OPT['mallat'] == 9 and k in (8, 10, 12, 14, 16):
        burst[(k - 8) // 2]()
    if k == 4:
        p(f'ds_write_b32 v11, v{CSA} offset:{S_CSQ}')
        R.lg.issue('w')
        signal(R, H_CSQ, 'v118', 'v119')
    if k == 20:
        lwait(R, H_CSQ, 'v118', 'v13')
    if k in (21, 23, 25, 27):
        q = (k - 21) // 2
        R.lg.room(4)
        for g in range(4):
            p(f'ds_read_b128 {vr((CSA if q == 0 else 68 + 16 * ((q - 1) % 2)) + 4 * g, 4)}, v12 offset:{S_CSQ + 128 * q + 32 * g}')
            R.lg.issue(('p', q))
    if k in (25, 27, 29):
        q = (k - 23) // 2
        R.lg.wait([('p', q)])
        for i in range(16):
            p(f'v_add_f32 v{CSA + i}, v{CSA + i}, v{68 + 16 * ((q - 1) % 2) + i}')
c = 0.25 * LOG2E
p(f'v_mul_f32 v108, {fhex(c)}, v108')
p(f'v_mul_f32 v109, {fhex(c)}, v109')
for i in range(16):
    p(f'v_mul_f32 v{CSA + i}, v109, v{CSA + i}')
p(f's_lshl_b32 {T[0]}, {s_tt}, 10')
p(f's_add_u32 {T[0]}, {T[0]}, {L_QX}')
p(f'v_add_u32 v14, {T[0]}, v2')
for i in range(16):
    p(f'v_fma_f32 v{AQ + i}, v{AQ + i}, v108, -v{CSA + i}')
for r in range(4):
    p(f'v_cvt_pk_bf16_f32 v{40 + r}, v{AQ + 2 * r}, v{AQ + 2 * r + 1}')
p('ds_write_b128 v14, v[40:43]')
for r in range(4):
    p(f'v_cvt_pk_bf16_f32 v{VQ + r}, v{AQ + 8 + 2 * r}, v{AQ + 8 + 2 * r + 1}')
signal(R, H_Q, 'v118', 'v119')
R.dstamp('P2', 'epi')
lwait(R, C_KV, 'v118', 'v12')
R.stamp('B2')
R.dstamp('P2', 'B2')


def wo_piece(q):
    def f():
        p(f's_lshl_b32 {T[6]}, {s_q}, 14')
        p(f's_add_u32 m0, {T[6]}, {L_WO + q * 1024}')
        p(f's_lshl_b32 {T[6]}, {s_q}, 17')
        p(f's_add_u32 {T[6]}, {T[6]}, {q * 8192}')
        p(f'buffer_load_dwordx4 v115, {sWO}, {T[6]} offen lds')
        R.vm.issue('wo')
    return f


def wo_done():
    R.vm.wait(['wo'])
    signal(R, H_WO, 'v118', 'v119')


wo = [wo_piece(q) for q in range(16)]
if OPT['mallat'] == 11:
    lwait(R, C_FLAG, 'v118', 'v12')
    for g in [burst[1], burst[0], burst[3], burst[4]] + ([burst[2]] if OPT['m2early'] else []):
        g()
if OPT['wopos'] == 0:
    for g in wo:
        g()
    wo = []
att_2a(R)
if OPT['wopos'] == 1 or OPT['mallat'] == 10:
    lwait(R, C_HALO, 'v118', 'v12')
if OPT['mallat'] == 10:
    for g in [burst[1], burst[0], burst[3], burst[4]] + ([burst[2]] if OPT['m2early'] else []):
        g()
if not OPT['wolate']:
    for g in wo:
        g()
    wo = []
R.dstamp('P2', 'pref')
R.bar()
R.stamp('B3')
R.dstamp('P2', 'B3')
p(f'v_mov_b32 v10, {S_MODE}')
p('ds_read_b32 v10, v10')
p('s_waitcnt lgkmcnt(0)')
p(f'v_readfirstlane_b32 {s_mode}, v10')


def w2_groups(lst, regs=None):
    lst = list(lst)
    while len(lst) % 4:
        lst.append(lst[-1])
    gs = []
    for n in range(len(lst) // 4):
        ks = lst[4 * n:4 * n + 4]
        src = [k * 16 * 1024 for k in ks]
        dst = [w2_pos[k] for k in ks]

        def sel(reg, vals):
            d = vals[1] - vals[0]
            if all(vals[q] == vals[0] + q * d for q in range(4)):
                p(f's_mul_i32 {reg}, {s_q}, {d}')
                p(f's_add_u32 {reg}, {reg}, {vals[0]}')
            else:
                p(f's_mov_b32 {reg}, {vals[0]}')
                for q in range(1, 4):
                    p(f's_cmp_eq_u32 {s_q}, {q}')
                    p(f's_cselect_b32 {reg}, {vals[q]}, {reg}')

        def g0(src=src, dst=dst, n=n):
            sel(T[6], src)
            if regs is None:
                sel(T[7], dst)
                p(f's_mov_b32 m0, {T[7]}')
                p(f'buffer_load_dwordx4 v115, {sW2}, {T[6]} offen lds')
            else:
                p(f'buffer_load_dwordx4 {vr(regs[2 * n], 4)}, v115, {sW2}, {T[6]} offen')
            R.vm.issue(('w2', 2 * n))

        def g1(n=n):
            p(f's_add_u32 {T[6]}, {T[6]}, 8192')
            if regs is None:
                p(f's_add_u32 m0, {T[7]}, 1024')
                p(f'buffer_load_dwordx4 v115, {sW2}, {T[6]} offen lds')
            else:
                p(f'buffer_load_dwordx4 {vr(regs[2 * n + 1], 4)}, v115, {sW2}, {T[6]} offen')
            R.vm.issue(('w2', 2 * n + 1))
        gs += [g0, g1]
    return gs


p('s_setprio 1')
ex = wo + late[:8] + [wo_done] + late[8:] + ([burst[2]] if OPT['mallat'] >= 10 and not OPT['m2early'] else [])
sl = [lambda: None] * 44
for i, g in enumerate(ex):
    sl[i * 44 // len(ex)] = g
ex = sl
att_2b(R, ex, lambda: None)
p('s_setprio 0')
p('v_min_u32 v10, 47, v1')
p('v_lshlrev_b32 v11, 2, v10')
p(f's_mul_i32 {T[0]}, {s_c}, 192')
p(f'buffer_load_dword v12, v11, {sB1}, {T[0]} offen')
R.vm.issue('b1')
p(f's_mul_i32 {T[0]}, {s_q}, {8 * 3072}')
p(f's_add_u32 {T[0]}, {T[0]}, {BASE}')
p(f'v_add_u32 v3, {T[0]}, v2')
R.bar()
for n in range(24):
    p(f'ds_write_b128 v3, {vr(STG[n], 4)} offset:{n * 1024}')
    if n % 4 == 3:
        p('s_waitcnt lgkmcnt(4)')
LST = [120 + 4 * i for i in range(28)]
gl = w2_groups(late_order, LST)
NC = OPT['w2c']
R.vm.wait(['b1'])
if NC:
    p('v_mov_b32 v16, 0')
    p('s_waitcnt lgkmcnt(0)')
    lwait(R, C_OIS, 'v16', 'v17')
    for g in gl[:NC]:
        g()
p('v_lshlrev_b32 v14, 16, v12')
p('v_and_b32 v15, 0xffff0000, v12')
p('v_lshlrev_b32 v11, 3, v10')
p(f'ds_write_b64 v11, v[14:15] offset:{S_B1}')
tr96_lane('v3')
p(f's_min_u32 {T[0]}, {s_q}, 2')
p(f's_lshl_b32 {T[0]}, {T[0]}, 6')
p(f'v_add_u32 v3, {T[0]}, v3')
p('v_add_u32 v4, 0x10000, v3')
p('s_waitcnt lgkmcnt(0)')
R.dstamp('P3', 'w1wr')
R.bar()
p('v_mov_b32 v18, 0x3f803f80')
p('v_mov_b32 v100, 0')
p('v_mov_b32 v101, 0')
R.bar()
for g in w2_groups(W2_REG):
    g()
for s0 in range(0, 36, 4):
    if s0 < 32:
        for s in range(s0, s0 + 4):
            for rd in range(2):
                dsr(R, 'ds_read_b64_tr_b16', vr(20 + 16 * ((s0 // 4) % 2) + 4 * (s % 4) + 2 * rd, 2), ['v3', 'v4'], w1_addr(s) + rd * 1536, ('c', s0))
    if s0 >= 4:
        R.lg.wait([('c', s0 - 4)])
        for r in range(16):
            p(f'v_dot2c_f32_bf16 v{100 + (r & 1)}, v{20 + 16 * ((s0 // 4 - 1) % 2) + r}, v18')
p('v_add_f32 v100, v100, v101')
half_sum('v100', 'v101')
p('v_and_b32 v10, 31, v1')
p('v_lshlrev_b32 v10, 2, v10')
p(f's_lshl_b32 {T[0]}, {T[0]}, 1')
p(f'v_add_u32 v10, {T[0]}, v10')
p(f'ds_write_b32 v10, v100 offset:{S_CS1}')
p('v_mov_b32 v16, 0')
p('v_mov_b32 v17, 1')
R.vm.wait_all()
signal(R, H_TAB, 'v16', 'v17')
R.dstamp('P3', 'cs1')
R.dstamp('P4', 'cs1')
p(f's_lshl_b32 {T[0]}, {s_q}, 11')
p(f's_add_u32 {T[0]}, {T[0]}, {BASE}')
p(f'v_add_u32 v3, {T[0]}, v2')
p('v_add_u32 v4, 0x10000, v3')
lwait(R, C_ISS, 'v16', 'v10')
R.dstamp('P4', 'iss')
for g in w2_groups(W2_P1):
    g()
R.vm.q = ['w2p1' for _ in R.vm.q]
for g in gl[NC:NC + 8]:
    g()
R.vm.wait(['w2p1'])
signal(R, H_P1, 'v16', 'v17')
for g in gl[NC + 8:]:
    g()
R.dstamp('P4', 'late')
lwait(R, C_END, 'v16', 'v10')
for n in range(28):
    R.vm.wait([('w2', n)])
    off = (n // 2) * 8192 + (n % 2) * 1024
    p(f'ds_write_b128 v{3 + off // 65536}, {vr(LST[n], 4)} offset:{off % 65536}')
    if n % 4 == 3:
        p('s_waitcnt lgkmcnt(4)')
signal(R, H_LATE, 'v16', 'v17')
R.dstamp('P5', 'latedone')
L7 = p.newlabel('L_n7')
p('s_cmp_lg_u32 s2, 0')
p(f's_cbranch_scc1 {L7}')
p(f's_cmp_lg_u32 {s_w}, 7')
p(f's_cbranch_scc1 {L7}')
p('v_lshlrev_b32 v12, 3, v1')
for q in range(4):
    p(f'v_add_u32 v10, {ST + 512 * q}, v12')
    poll(R, 'v10', 'v11')
p('v_mov_b32 v10, 0')
p(f'v_mov_b32 v11, {s_tag}')
p('s_mov_b64 exec, 1')
p(f'buffer_store_dword v11, v10, {sWS}, 0 offen sc1')
p('s_mov_b64 exec, -1')
p.label(L7)
dump_stamps(R)
p.label('L_end')
p('s_endpgm')
while tail:
    tail.pop(0)()
tail = []

R = CW
p.label('L_CW')
if OPT['codewarm']:
    p('s_getpc_b64 s[56:57]')
    p.label('L_pc')
    p(f's_sub_u32 s56, s56, L_pc-{KNAME}')
    p('s_subb_u32 s57, s57, 0')
    p(f's_lshl_b32 {T[0]}, {s_j}, 2')
    p(f's_add_u32 {T[0]}, {T[0]}, {s_q}')
    p(f's_mul_i32 {T[0]}, {T[0]}, 384')
    p('v_min_u32 v10, 2, v1')
    p('v_lshlrev_b32 v10, 7, v10')
    p(f'v_add_u32 v10, {T[0]}, v10')
    p(f'v_min_u32 v10, L_codeend-{KNAME}-4, v10')
    p('global_load_dword v253, v10, s[56:57]')
    R.vm.issue('t')
srds_w()
common_setup(R)
if OPT['tlbwarm']:
    p('v_and_b32 v10, 7, v1')
    p('v_min_u32 v10, 5, v10')
    p('v_lshlrev_b32 v10, 21, v10')
    p('v_mov_b32 v11, 0')
    p(f'buffer_load_dword v252, v10, {sWS}, 0 offen offset:2048 sc1')
    for k, d in enumerate((sWO, sW1, sW2, sOUT, sB1, sB2)):
        p(f'buffer_load_dword v{254 + (k & 1)}, v11, {d}, 0 offen')
    for _ in range(7):
        R.vm.issue('t')
p(f's_mov_b32 s65, {T[5]}')
make_masks()
p(f's_and_b32 {s_q}, {s_w}, 3')
x_lane('v9')
p(f's_lshl_b32 {T[0]}, {s_rb}, 11')
p(f's_add_u32 {T[0]}, {T[0]}, {RST}')
p(f'v_lshlrev_b32 v8, 4, v10')
p(f'v_add_u32 v8, {T[0]}, v8')
p('v_and_b32 v7, 31, v1')
p('v_lshlrev_b32 v7, 3, v7')
p(f's_lshl_b32 {T[1]}, {s_team}, 8')
p(f's_add_u32 {T[1]}, {T[1]}, {ST}')
p(f'v_add_u32 v7, {T[1]}, v7')
tr_kv_lane('v19')
XF = [20, 36]
WF = [52, 100]
AK, AV = 212, 228
GR = 148


def p1_addrs(ch):
    slot = RING + (ch % NSLOT) * SLOT
    p(f'v_add_u32 v10, {slot}, v9')
    for ks in range(1, 4):
        p(f'v_xor_b32 v{10 + ks}, {32 * ks}, v10')
    p(f'v_add_u32 v14, {slot + 16384}, v19')
    p('v_xor_b32 v15, 64, v14')


def p1_reads(ch):
    b = ch & 1
    out = []
    for ks in range(4):
        out.append(f'ds_read_b128 {vr(XF[b] + 4 * ks, 4)}, v{10 + ks}')
        for sec in (0, 1):
            for rd in range(2):
                out.append(f'ds_read_b64_tr_b16 {vr(WF[b] + 16 * sec + 4 * ks + 2 * rd, 2)}, v{14 + sec} offset:{ks * 2048 + rd * 512}')
    return out


def p1_mfmas(ch):
    a = ch & 1
    out = []
    for ks in range(4):
        first = ch == 0 and ks == 0
        x = vr(XF[a] + 4 * ks, 4)
        c = lambda r: '0' if first else vr(r, 16)
        out.append(f'v_mfma_f32_32x32x16_bf16 {vr(AK, 16)}, {vr(WF[a] + 4 * ks, 4)}, {x}, {c(AK)}')
        out.append(f'v_mfma_f32_32x32x16_bf16 {vr(AV, 16)}, {x}, {vr(WF[a] + 16 + 4 * ks, 4)}, {c(AV)}')
    return out


def weave(R, mf, lds, extra=(), per=3):
    lds = list(lds)
    extra = list(extra)
    n = 0

    def emit_lds(k):
        nonlocal n
        for _ in range(k):
            if not lds:
                return
            if n and n % 7 == 0 and n >= 14:
                p('s_waitcnt lgkmcnt(7)')
            p(lds.pop(0))
            n += 1
    for i, m in enumerate(mf):
        p(m)
        emit_lds(per)
        if extra and i % 3 == 2:
            extra.pop(0)()
    emit_lds(99)
    for g in extra:
        g()


def kv_ids():
    p(f's_lshl_b32 {T[2]}, {s_rb}, 4')
    p(f's_add_u32 {T[2]}, {T[2]}, {s_c}')
    p(f's_lshl_b32 {T[4]}, {T[2]}, 5')
    p(f's_add_u32 {T[4]}, {T[4]}, {s_w}')
    p(f's_lshl_b32 {T[4]}, {T[4]}, 2')
    p(f's_add_u32 {T[4]}, {T[4]}, {FKV}')
    p(f's_lshl_b32 {T[5]}, {s_w}, 12')
    p(f's_add_u32 {T[5]}, {T[5]}, {s_area}')
    p(f's_add_u32 {T[2]}, {T[5]}, {32 * 16384}')


def kv_clear():
    for r in range(4):
        p(f'v_mov_b32 v{244 + r}, -1')
    for q in range(4):
        p(f'buffer_store_dwordx4 v[244:247], v2, {sWS}, {T[2]} offen offset:{q * 1024} sc1')
        R.vm.issue('st')


def kv_cleared():
    flag_store(R, T[4], 'v248', 'v249', moded=False)


kv_ids()
if OPT['kvtag'] and OPT['clrat'] == -1:
    kv_clear()
p(f's_cmp_ge_u32 {s_rb}, 1')
p(f's_cselect_b32 {T[0]}, {16 * 128}, 0')
p(f's_sub_u32 {T[0]}, {T[4]}, {T[0]}')
p(f's_cmp_ge_u32 {s_rb}, 2')
p(f's_cselect_b32 {T[1]}, {2 * 16 * 128}, 0')
p(f's_sub_u32 {T[1]}, {T[4]}, {T[1]}')
p(f'v_mov_b32 v6, {T[0]}')
p(f'v_mov_b32 v11, {T[1]}')
p('v_and_b32 v12, 1, v1')
p('v_cmp_eq_u32 vcc, 1, v12')
p('v_cndmask_b32 v6, v6, v11, vcc')
p1_addrs(0)
R.stamp('start')
CSQ, CSK, RR, MM, CSV = 52, 68, 20, 84, 152
for ch in range(8):
    p('s_waitcnt lgkmcnt(0)')
    if ch >= 4:
        R.dstamp('P1', f'pre{ch}')
    R.bar()
    R.dstamp('P1', f'bar{ch}')
    extra = []
    if ch == 5:
        def ld():
            p(f'buffer_load_dwordx4 {vr(GR, 4)}, v8, {sWS}, 0 offen sc1')
            p(f'buffer_load_dwordx2 v[156:157], v7, {sWS}, 0 offen sc1')
            R.vm.issue('gr')
            R.vm.issue('gr')
            if OPT['fkvt']:
                p(f'buffer_load_dword v253, v6, {sWS}, 0 offen sc1')
                R.vm.issue('t')

        extra = [ld]
    if ch == 0:
        extra = [lambda: row_stats(R)]
    if ch == OPT['clrat'] and OPT['kvtag']:
        extra = extra + [kv_clear]
    if ch == OPT['clrdone'] and OPT['kvtag']:
        extra = [kv_cleared]
    weave(R, p1_mfmas(ch - 1) if ch else [], p1_reads(ch), extra)
    if ch < 7:
        p1_addrs(ch + 1)
Lg = p.newlabel('L_gr')
Lgx = p.newlabel('L_grx')
R.vm.wait(['gr'])
p(f's_mov_b32 {T[0]}, 0')
p.label(Lg)
p(f'v_cmp_ne_u32 vcc, {s_tag}, v{GR + 1}')
p(f'v_cmp_ne_u32 s[90:91], {s_tag}, v{GR + 3}')
p('s_or_b64 vcc, vcc, s[90:91]')
p(f'v_cmp_ne_u32 s[90:91], {s_tag}, v156')
p('s_or_b64 vcc, vcc, s[90:91]')

p(f's_cbranch_vccnz {Lgx}')
Lgd = p.newlabel('L_grd')
p.label(Lgd)


def gr_retry():
    p.label(Lgx)
    p(f'buffer_load_dwordx4 {vr(GR, 4)}, v8, {sWS}, 0 offen sc1')
    p(f'buffer_load_dwordx2 v[156:157], v7, {sWS}, 0 offen sc1')
    p('s_waitcnt vmcnt(0)')
    p(f's_add_u32 {T[0]}, {T[0]}, 1')
    p(f's_cmp_lt_u32 {T[0]}, {OPT["spin"]}')
    p(f's_cbranch_scc1 {Lg}')
    p(f's_branch {Lgd}')


tail.append(gr_retry)
p(f'v_readfirstlane_b32 {T[1]}, v157')
p(f'v_cmp_ne_u32 vcc, {T[1]}, v157')
p('s_cmp_eq_u64 vcc, 0')
p(f's_cselect_b32 {s_mode}, 1, 0')
if OPT['force_safe']:
    p(f's_mov_b32 {s_mode}, 0')
p(f'v_mov_b32 v10, {S_MODE}')
p(f'v_mov_b32 v11, {s_mode}')
p('ds_write_b32 v10, v11')
p('v_and_b32 v10, 31, v1')
p('v_lshlrev_b32 v10, 2, v10')
p(f's_lshl_b32 {T[0]}, {s_tt}, 7')
p(f'v_add_u32 v11, {T[0]}, v10')
p(f'ds_write_b32 v11, v{GR} offset:{S_R}')
p(f'ds_write_b32 v11, v{GR + 2} offset:{S_M}')
p('v_lshrrev_b32 v12, 5, v1')
p('v_lshlrev_b32 v12, 4, v12')
p(f'v_add_u32 v13, {T[0]}, v12')
p('s_waitcnt lgkmcnt(0)')
R.bar()
R.stamp('B1')
R.dstamp('P2', 'B1')
lds = [f'ds_read_b128 {vr(CSK + 4 * g, 4)}, v12 offset:{S_CS + 128 + 32 * g}' for g in range(4)]
lds += [f'ds_read_b32 v{CSV}, v10 offset:{S_CS + 256}']
lds += [f'ds_read_b128 {vr(MM + 4 * g, 4)}, v13 offset:{S_M + 32 * g}' for g in range(4)]
lds += [f'ds_read_b128 {vr(RR + 4 * g, 4)}, v13 offset:{S_R + 32 * g}' for g in range(4)]


def pub_addrs():
    p(f's_lshl_b32 {T[0]}, {s_tt}, 11')
    p(f's_add_u32 {T[1]}, {T[0]}, {L_K + 8 * 2048}')
    p(f'v_add_u32 v15, {T[1]}, v2')
    p(f's_mul_i32 {T[0]}, {s_tt}, {2 * VSTR}')
    p(f's_add_u32 {T[0]}, {T[0]}, {L_V + 16 * VSTR}')
    p(f'v_add_u32 v16, {T[0]}, v2')


mf = p1_mfmas(7)
mf = mf[0::2] + mf[1::2]


def st_pair(reg, off):
    def f():
        if OPT['kvtag']:
            for r in range(0, 8, 2):
                p(f'v_min_u32 v{reg + r}, -2, v{reg + r}')
        for g in range(2):
            p(f'buffer_store_dwordx4 {vr(reg + 4 * g, 4)}, v2, {sWS}, {T[2]} offen offset:{off + g * 1024} sc1')
            R.vm.issue('st')
    return f


PKK, PKV = 244, 52
for x in lds[:9]:
    p(x)
p(mf[0])
for x in lds[9:13]:
    p(x)
p(mf[1])
pub_addrs()
p(mf[2])
p('s_waitcnt lgkmcnt(9)')
for i in range(8):
    p(f'v_mul_f32 v{CSK + i}, v{GR + 2}, v{CSK + i}')
p(mf[3])
for i in range(8, 16):
    p(f'v_mul_f32 v{CSK + i}, v{GR + 2}, v{CSK + i}')
p(mf[4])
p('s_waitcnt lgkmcnt(4)')
for i in range(8):
    p(f'v_mul_f32 v{MM + i}, v{CSV}, v{MM + i}')
p(mf[5])
for i in range(8, 16):
    p(f'v_mul_f32 v{MM + i}, v{CSV}, v{MM + i}')
kops = [f'v_fma_f32 v{AK + i}, v{AK + i}, v{GR}, -v{CSK + i}' for i in range(16)]
kops += [f'v_cvt_pk_bf16_f32 v{PKK + r}, v{AK + 2 * r}, v{AK + 2 * r + 1}' for r in range(8)]
for m in (6, 7):
    p(mf[m])
    for x in kops[8 * (m - 6):8 * (m - 5)]:
        p(x)
for x in kops[16:]:
    p(x)
st_pair(PKK, 0)()
p('s_waitcnt lgkmcnt(0)')
for i in range(16):
    p(f'v_fma_f32 v{AV + i}, v{AV + i}, v{RR + i}, -v{MM + i}')
for r in range(8):
    p(f'v_cvt_pk_bf16_f32 v{PKV + r}, v{AV + 2 * r}, v{AV + 2 * r + 1}')
st_pair(PKV, 2048)()
for g in range(2):
    p(f'ds_write_b128 v15, {vr(PKK + 4 * g, 4)} offset:{g * 1024}')
    p(f'ds_write_b128 v16, {vr(PKV + 4 * g, 4)} offset:{g * VSTR}')
p(f's_lshl_b32 {T[0]}, {s_tt}, 10')
p(f's_add_u32 {T[0]}, {T[0]}, {L_QX}')
p(f'v_add_u32 v12, {T[0]}, v2')
p('v_mov_b32 v102, 0')
p('v_mov_b32 v103, 1')
signal(R, C_KV, 'v102', 'v103')
att_addrs()
R.dstamp('P2', 'epi')
if not OPT['kvtag']:
    flag_store(R, T[4], 'v10', 'v11', moded=False)
signal(R, C_FLAG, 'v102', 'v103')
R.stamp('KVflag')
R.dstamp('P2', 'KVflag')
p('v_mov_b32 v13, v12')


def cw_2a():
    lwait(R, H_Q, 'v102', 'v10')
    lwait(R, C_KV, 'v102', 'v10')
    p(f'ds_read_b128 {vr(VQ, 4)}, v13')
    att_2a(R)


if OPT['a_first']:
    cw_2a()
p(f's_add_u32 {T[3]}, {T[5]}, {16 * 16384}')
p(f'v_subrev_u32 v15, {8 * 2048}, v15')
p(f'v_subrev_u32 v16, {16 * VSTR}, v16')


def halo_loads():
    for d in (1, 2):
        for q in range(4):
            p(f'buffer_load_dwordx4 {vr(HALO + 16 * (2 - d) + 4 * q, 4)}, v2, {sWS}, {T[3] if d == 1 else T[5]} offen offset:{q * 1024} sc1')


if not OPT['kvtag']:
    poll(R, 'v6', 'v11')
else:
    p(f's_add_u32 {T[0]}, {T[3]}, 4080')
    p(f's_add_u32 {T[1]}, {T[5]}, 4080')
    p(f'v_mov_b32 v10, {T[0]}')
    p(f'v_mov_b32 v11, {T[1]}')
    p('v_and_b32 v12, 1, v1')
    p('v_cmp_eq_u32 vcc, 1, v12')
    p('v_cndmask_b32 v10, v10, v11, vcc')
    p(f'v_add_u32 v12, 1, v12')
    p(f'v_cmp_ge_u32 s[90:91], {s_rb}, v12')
    p('v_cmp_le_u32 vcc, 32, v1')
    p('v_cndmask_b32 v10, v10, v6, vcc')
    p('s_mov_b32 s91, 0')
    Lk = p.newlabel('L_kv')
    Lkx = p.newlabel('L_kvx')
    Lkd = p.newlabel('L_kvd')
    p(f's_mov_b32 {T[0]}, 0')
    p.label(Lk)
    p(f'buffer_load_dword v11, v10, {sWS}, 0 offen sc1')
    p('s_waitcnt vmcnt(0)')
    p('v_cmp_eq_u32 vcc, -1, v11')
    p('s_and_b64 vcc, vcc, s[90:91]')
    p(f'v_cmp_ne_u32 s[92:93], {s_tag}, v11')
    p('s_or_b32 vcc_hi, vcc_hi, s93')
    p(f's_cbranch_vccnz {Lkx}')
    p.label(Lkd)
    R.vm.reset()

    def kvx():
        p.label(Lkx)
        p(f's_add_u32 {T[0]}, {T[0]}, 1')
        p(f's_cmp_lt_u32 {T[0]}, {OPT["spin"]}')
        p(f's_cbranch_scc1 {Lk}')
        p(f's_branch {Lkd}')
    tail.append(kvx)
R.dstamp('P2', 'kvpoll')
halo_loads()
signal(R, C_HALO, 'v102', 'v103')
if not OPT['a_first']:
    cw_2a()
XRES = 240
HRES = 248
p('v_and_b32 v10, 31, v1')
p(f's_lshl_b32 {T[0]}, {s_rs}, 1')
p(f's_add_u32 {s_tile}, {T[0]}, {s_t}')
p(f's_lshl_b32 {T[0]}, {s_tile}, 5')
p(f'v_add_u32 v10, {T[0]}, v10')
p('v_lshlrev_b32 v10, 10, v10')
p('v_lshrrev_b32 v11, 5, v1')
p('v_lshl_add_u32 v10, v11, 3, v10')
p(f's_lshl_b32 {T[0]}, {s_cb}, 7')
p(f's_lshl_b32 {T[1]}, {s_kh}, 6')
p(f's_add_u32 {T[0]}, {T[0]}, {T[1]}')
p(f'v_add_u32 v9, {T[0]}, v10')
Lz = p.newlabel('L_nohalo')
Lw = p.newlabel('L_halow')
Lzc = p.newlabel('L_zc')
p(f's_mov_b32 {T[0]}, 0')
p.label(Lzc)
p(f's_cmp_lt_u32 {s_rb}, 2')
p(f's_cbranch_scc1 {Lz}')
p.label(Lw)
if OPT['kvtag']:
    Lw2 = Lw


def zero_blk():
    L1 = p.newlabel('L_z1')
    p.label(Lz)
    p('s_waitcnt vmcnt(0)')
    for r in range(16):
        p(f'v_mov_b32 v{HALO + r}, 0')
    p(f's_cmp_eq_u32 {s_rb}, 1')
    p(f's_cbranch_scc1 {Lw}')
    for r in range(16):
        p(f'v_mov_b32 v{HALO + 16 + r}, 0')
    p(f's_branch {Lw}')


tail.append(zero_blk)
if OPT['kvtag']:
    Lv = p.newlabel('L_hv')
    Lvx = p.newlabel('L_hvx')
    Lvd = p.newlabel('L_hvd')
    p('s_waitcnt vmcnt(0)')
    p(f'v_max3_u32 v10, v{HALO}, v{HALO + 2}, v{HALO + 4}')
    p(f'v_max3_u32 v11, v{HALO + 6}, v{HALO + 8}, v{HALO + 10}')
    for k, r in enumerate(range(12, 32, 4)):
        p(f'v_max3_u32 v{10 + (k & 1)}, v{10 + (k & 1)}, v{HALO + r}, v{HALO + r + 2}')
    p('v_max_u32 v10, v10, v11')
    p('v_cmp_eq_u32 vcc, -1, v10')
    p(f's_cbranch_vccnz {Lvx}')
    p.label(Lvd)

    def hvx():
        p.label(Lvx)
        p(f's_add_u32 {T[0]}, {T[0]}, 1')
        p(f's_cmp_ge_u32 {T[0]}, {OPT["spin"]}')
        p(f's_cbranch_scc1 {Lvd}')
        halo_loads()
        p(f's_branch {Lzc}')
    tail.append(hvx)
for g in range(2):
    p(f's_waitcnt vmcnt({7 - g})')
    p(f'ds_write_b128 v15, {vr(HALO + 16 + 4 * g, 4)} offset:{4 * 2048 + g * 1024}')
for g in range(2):
    p(f's_waitcnt vmcnt({5 - g})')
    p(f'ds_write_b128 v16, {vr(HALO + 24 + 4 * g, 4)} offset:{(8 + g) * VSTR}')
R.vm.q = [('hb', g) for g in range(4)]


def halo2(g):
    def f():
        R.vm.wait([('hb', g)])
        R.lg.room(1)
        if g < 2:
            p(f'ds_write_b128 v15, {vr(HALO + 4 * g, 4)} offset:{g * 1024}')
        else:
            p(f'ds_write_b128 v16, {vr(HALO + 4 * g, 4)} offset:{(g - 2) * VSTR}')
        R.lg.issue('hw')
    return f


def halo_done():
    p(f's_add_u32 {T[4]}, {T[4]}, 16')
    flag_store(R, T[4], 'v10', 'v11', moded=False)
    for g in range(4):
        p(f'buffer_load_dwordx2 {vr(XRES + 2 * g, 2)}, v9, {sX}, 0 offen offset:{16 * g}')
        R.vm.issue('xres')


for g in range(4):
    halo2(g)()
halo_done()
tr64_lanes('v4', 'v5')
p(f's_lshl_b32 {T[0]}, {s_kh}, 6')
p(f'v_xor_b32 v4, {T[0]}, v4')
p(f'v_xor_b32 v5, {T[0]}, v5')
p(f's_lshl_b32 {T[0]}, {s_kh}, 15')
p(f's_add_u32 {T[0]}, {T[0]}, {L_WO}')
p(f'v_add_u32 v6, {T[0]}, v4')
p(f'v_add_u32 v7, {T[0]}, v5')
p('s_waitcnt lgkmcnt(0)')
R.dstamp('P2', 'halo')
R.bar()
R.stamp('B3')
R.dstamp('P2', 'B3')
WOF, OF, ACC3 = 16, 144, 208


def wo_reads(lo, hi):
    for s in range(lo, hi):
        for nt in range(2):
            for rd in range(2):
                p(f'ds_read_b64_tr_b16 {vr(WOF + 8 * s + 4 * nt + 2 * rd, 2)}, v{6 + nt} offset:{s * 2048 + rd * 1024}')
        if s % 2 == 1:
            p('s_waitcnt lgkmcnt(4)')


def cw_wo():
    p('v_mov_b32 v102, 0')
    lwait(R, H_WO, 'v102', 'v10')
    wo_reads(0, 8)


att_2b(R, [], cw_wo)
p('s_setprio 2')
wo_reads(8, 16)
p('v_and_b32 v8, 15, v1')
p('v_lshlrev_b32 v8, 2, v8')
p(f's_lshl_b32 {T[0]}, {s_tile}, 1')
p(f's_add_u32 {T[0]}, {T[0]}, {s_kh}')
p(f's_lshl_b32 {T[1]}, {s_rb}, 18')
p(f's_lshl_b32 {T[2]}, {s_kh}, 17')
p(f's_add_u32 {T[1]}, {T[1]}, {T[2]}')
p(f's_and_b32 {T[2]}, {s_tile}, 3')
p(f's_lshl_b32 {T[2]}, {T[2]}, 12')
p(f's_add_u32 {T[1]}, {T[1]}, {T[2]}')
p(f's_lshl_b32 {T[0]}, {T[0]}, 6')
p(f's_add_u32 {T[0]}, {T[0]}, {FO}')
p(f'v_add_u32 v10, {T[0]}, v8')
for g in range(4):
    for k in range(2):
        x = XRES + 2 * g + k
        p(f'v_lshlrev_b32 v{ACC3 + 4 * g + 2 * k}, 16, v{x}')
        p(f'v_and_b32 v{ACC3 + 4 * g + 2 * k + 1}, 0xffff0000, v{x}')
p('s_waitcnt lgkmcnt(0)')
R.bar()
R.dstamp('P3', 'B5')
poll(R, 'v10', 'v11')
R.stamp('Opoll')
R.dstamp('P3', 'Opoll')


def o_load(s):
    if s % 2 == 0:
        p(f's_add_u32 {T[2]}, {T[1]}, {AREA + (s // 2) * 16384}')
    p(f'buffer_load_dwordx4 {vr(OF + 4 * s, 4)}, v2, {sWS}, {T[2]} offen offset:{(s % 2) * 1024} sc1')
    R.vm.issue(('o', s))


def xchg_addrs(area):
    p(f's_lshl_b32 {T[0]}, {s_w}, 12')
    p(f's_add_u32 {T[0]}, {T[0]}, {area}')
    p(f'v_add_u32 v10, {T[0]}, v2')
    p(f's_xor_b32 {T[0]}, {s_w}, 2')
    p(f's_lshl_b32 {T[0]}, {T[0]}, 12')
    p(f's_add_u32 {T[0]}, {T[0]}, {area}')
    p(f'v_add_u32 v11, {T[0]}, v2')


def xchg_finish(R, acc, dst):
    p('s_waitcnt lgkmcnt(0)')
    R.bar()
    for g in range(4):
        p(f'ds_read_b128 {vr(dst + 4 * g, 4)}, v11 offset:{g * 1024}')
    for g in range(4):
        p(f's_waitcnt lgkmcnt({3 - g})')
        for i in range(4):
            p(f'v_add_f32 v{dst + 4 * g + i}, v{dst + 4 * g + i}, v{acc + 4 * g + i}')
    R.lg.reset()


TAILN = 5
AH = OPT['aho']
for s in range(AH):
    o_load(s)
xchg_addrs(L_X)
seq3 = [(s, nt) for s in range(16 - TAILN) for nt in (1, 0)] + [(s, 1) for s in range(16 - TAILN, 16)] + [(s, 0) for s in range(16 - TAILN, 16)]
no = AH
for k, (s, nt) in enumerate(seq3):
    R.vm.wait([('o', s)])
    p(f'v_mfma_f32_32x32x16_bf16 {vr(ACC3 + 16 * nt, 16)}, {vr(WOF + 8 * s + 4 * nt, 4)}, {vr(OF + 4 * s, 4)}, {"0" if s == 0 and nt == 1 else vr(ACC3 + 16 * nt, 16)}')
    if no < 16:
        o_load(no)
        no += 1
        if no == 16 and OPT['w2c']:
            p('v_mov_b32 v12, 0')
            p('v_mov_b32 v13, 1')
            signal(R, C_OIS, 'v12', 'v13')
    g = k - (len(seq3) - 4)
    if g >= 0:
        p(f'ds_write_b128 v10, {vr(ACC3 + 16 + 4 * g, 4)} offset:{g * 1024}')
R.dstamp('P3', 'loop')
xchg_finish(R, ACC3, 16)
R.dstamp('P3', 'xchg')
for r in range(8):
    p(f'v_cvt_pk_bf16_f32 v{HRES + r}, v{16 + 2 * r}, v{16 + 2 * r + 1}')
p(f's_lshl_b32 {T[0]}, {s_cb}, 1')
p(f's_add_u32 {T[0]}, {T[0]}, {s_kh}')
p(f's_lshl_b32 {T[3]}, {s_tile}, 4')
p(f's_add_u32 {T[3]}, {T[3]}, {T[0]}')
p(f's_add_u32 {T[1]}, {T[5]}, 2048')
moded_stores(R, [f'buffer_store_dwordx4 {vr(HRES, 4)}, v2, {sWS}, {T[1]} offen',
                 f'buffer_store_dwordx4 {vr(HRES + 4, 4)}, v2, {sWS}, {T[1]} offen offset:1024'], OPT['hsc1'])
p('v_mov_b32 v18, 0x3f803f80')
p('v_mov_b32 v12, 0')
p('v_mov_b32 v13, 0')
for r in range(8):
    p(f'v_dot2c_f32_bf16 v12, v{HRES + r}, v18')
    p(f'v_dot2c_f32_bf16 v13, v{HRES + r}, v{HRES + r}')
p(f's_lshl_b32 {T[2]}, {T[3]}, 8')
p(f's_add_u32 {T[2]}, {T[2]}, {STB}')
p(f's_lshl_b32 {T[3]}, {s_tile}, 5')
p(f's_add_u32 {T[3]}, {T[3]}, {T[0]}')
p(f's_lshl_b32 {T[3]}, {T[3]}, 2')
p(f's_add_u32 {T[3]}, {T[3]}, {FH}')
p('v_and_b32 v14, 31, v1')
p('v_lshlrev_b32 v14, 3, v14')
half_sum('v12', 'v10')
half_sum('v13', 'v10')
moded_stores(R, [f'buffer_store_dwordx2 v[12:13], v14, {sWS}, {T[2]} offen'], OPT['hsc1'])
R.bar()
HF, ACC4, W1B, STL = 16, 144, 192, 228
tr96_lane('v3')
p('v_add_u32 v6, 0x10000, v3')
W1A = ['v3', 'v6']


def w1_reads(s):
    b = W1B + 12 * (s % 3)
    for nt in range(3):
        for rd in range(2):
            dsr(R, 'ds_read_b64_tr_b16', vr(b + 4 * nt + 2 * rd, 2), W1A, w1_addr(s) + rd * 1536 + nt * 64, ('w1', s))


w1_reads(0)
w1_reads(1)
flag_store(R, T[3], 'v10', 'v11')
R.stamp('Hflag')
R.dstamp('P3', 'Hflag')
p(f's_lshl_b32 {T[0]}, {s_rb}, 2')
p(f's_add_u32 {T[7]}, {T[0]}, {s_w}')
p(f's_lshl_b32 {T[1]}, {s_rb}, 18')
p(f's_lshl_b32 {T[2]}, {s_kh}, 17')
p(f's_add_u32 {T[1]}, {T[1]}, {T[2]}')
p(f's_lshl_b32 {T[2]}, {s_t}, 12')
p(f's_add_u32 {T[1]}, {T[1]}, {T[2]}')
p(f's_lshl_b32 {T[3]}, {T[7]}, 12')
p(f's_add_u32 {T[3]}, {T[3]}, {STB}')
p('v_lshrrev_b32 v12, 5, v1')
p('v_lshlrev_b32 v12, 11, v12')
p('v_add_u32 v12, v12, v14')
p(f's_lshl_b32 {T[0]}, {T[7]}, 7')
p(f's_add_u32 {T[0]}, {T[0]}, {FH}')
p(f'v_add_u32 v10, {T[0]}, v8')
poll(R, 'v10', 'v11')
R.stamp('Hpoll')
R.dstamp('P4', 'Hpoll')


def h_load(s):
    if s % 2 == 0:
        p(f's_add_u32 {T[2]}, {T[1]}, {AREA + (s >> 2) * 16384 + ((s >> 1) & 1) * 8192}')
    p(f'buffer_load_dwordx4 {vr(HF + 4 * s, 4)}, v2, {sWS}, {T[2]} offen offset:{2048 + (s % 2) * 1024} sc1')
    R.vm.issue(('h', s))


p('v_mov_b32 v246, 0')
p('v_mov_b32 v247, 1')
S0 = OPT['s0']
nh = 0
for s in range(OPT['ahh']):
    h_load(nh)
    nh += 1
p('v_mov_b32 v13, v12')
p(f's_mov_b32 {T[6]}, {T[3]}')
p('v_lshrrev_b32 v12, 5, v1')
p('v_lshlrev_b32 v12, 4, v12')
p(f's_lshl_b32 {T[4]}, {T[7]}, 4')
p(f's_add_u32 {T[4]}, {T[4]}, {s_c}')
p(f's_lshl_b32 {T[4]}, {T[4]}, 12')
p(f's_add_u32 {T[4]}, {T[4]}, {H1B}')
p(f's_lshl_b32 {T[3]}, {T[7]}, 5')
p(f's_add_u32 {T[3]}, {T[3]}, {s_c}')
p(f's_lshl_b32 {T[3]}, {T[3]}, 2')
p(f's_add_u32 {T[3]}, {T[3]}, {FH1}')


seq = [(s, nt) for s in range(S0) for nt in range(3)] + [(s, nt) for nt in range(3) for s in range(S0, 32)]
EB = [48, 16, 48] if S0 >= 16 else None


def epi_ops(nt):
    e = EB[nt]
    pk = STL + 8 * (nt & 1)
    ops = []
    r = e + 16
    for i in range(16):
        ops.append(f'v_fmac_f32 v{r + i}, v{ACC4 + 16 * nt + i}, v244')
        if i >= 1:
            ops.append(f'v_max_f32 v{r + i - 1}, 0, v{r + i - 1}')
        if i >= 2:
            ops.append(f'v_mul_f32 v{r + i - 2}, v{r + i - 2}, v{r + i - 2}')
        if i >= 4 and i % 2 == 0:
            ops.append(f'v_cvt_pk_bf16_f32 v{pk + (i - 4) // 2}, v{r + i - 4}, v{r + i - 3}')
    ops += [f'v_max_f32 v{r + 15}, 0, v{r + 15}', f'v_mul_f32 v{r + 14}, v{r + 14}, v{r + 14}', f'v_mul_f32 v{r + 15}, v{r + 15}, v{r + 15}',
            f'v_cvt_pk_bf16_f32 v{pk + 6}, v{r + 12}, v{r + 13}', f'v_cvt_pk_bf16_f32 v{pk + 7}, v{r + 14}, v{r + 15}']
    st = []
    for g in range(2):
        f = 2 * nt + g
        st.append(f'buffer_store_dwordx4 {vr(pk + 4 * g, 4)}, v2, {sWS}, {T[4] if f < 4 else T[5]} offen offset:{(f % 4) * 1024}')
    ops.append(st if nt == 2 else tuple(st))
    return ops


def emit_op(x):
    if isinstance(x, (list, tuple)):
        moded_stores(R, x, isinstance(x, tuple))
    else:
        p(x)


def e_reads(nt):
    R.lg.room(8)
    for g in range(4):
        p(f'ds_read_b128 {vr(EB[nt] + 4 * g, 4)}, v12 offset:{S_CS1 + 128 * nt + 32 * g}')
        R.lg.issue(('e', nt))
    for g in range(4):
        p(f'ds_read_b128 {vr(EB[nt] + 16 + 4 * g, 4)}, v12 offset:{S_B1 + 128 * nt + 32 * g}')
        R.lg.issue(('e', nt))


def e_comb(nt):
    return [f'v_fmac_f32 v{EB[nt] + 16 + i}, v245, v{EB[nt] + i}' for i in range(16)]


W2R = 16
PRE = 6
bufs = {}
for k in range(PRE):
    s, nt = seq[k]
    bufs[k] = W1B + 4 * k
valu = []
issued_all = False
for k, (s, nt) in enumerate(seq):
    if s < S0 and nt == 0 or s >= S0 and nt == 0:
        R.vm.wait([('h', s)])
    if k in (0, 12, 24, 36, 48, 64, 80):
        R.dstamp('P4', f'k{k}')
    R.lg.wait([('w1', s) if k < PRE else ('w1', s, nt)])
    p(f'v_mfma_f32_32x32x16_bf16 {vr(ACC4 + 16 * nt, 16)}, {vr(bufs[k], 4)}, {vr(HF + 4 * s, 4)}, {"0" if s == 0 else vr(ACC4 + 16 * nt, 16)}')
    if k + PRE < len(seq):
        s2, nt2 = seq[k + PRE]
        b = W1B + 4 * ((k + PRE) % 9)
        bufs[k + PRE] = b
        for rd in range(2):
            dsr(R, 'ds_read_b64_tr_b16', vr(b + 2 * rd, 2), W1A, w1_addr(s2) + rd * 1536 + nt2 * 64, ('w1', s2, nt2))
    if nh < 32 and k % OPT['hrate'] == 1:
        h_load(nh)
        nh += 1
        if nh == 32:
            signal(R, C_ISS, 'v246', 'v247')
    if k % 2 == 0 and 4 <= k < 20:
        q = (k - 4) // 2
        p(f'buffer_load_dwordx2 {vr(STL + 2 * q, 2)}, v13, {sWS}, {T[6]} offen offset:{q * 256} sc1')
        R.vm.issue('stl')
    if k == 30:
        R.vm.wait(['stl'])
        for q in range(1, 8):
            valu += [f'v_add_f32 v{STL}, v{STL}, v{STL + 2 * q}', f'v_add_f32 v{STL + 1}, v{STL + 1}, v{STL + 2 * q + 1}']
    if k == 36:
        assert not valu
        half_sum(f'v{STL}', 'v10')
        half_sum(f'v{STL + 1}', 'v10')
        ln_finish(f'v{STL}', f'v{STL + 1}', 'v244', 'v245')
        p('v_sub_f32 v245, 0, v245')
    if k == 3 * S0 - 6:
        p(f'ds_read_b32 v10, v246 offset:{H_TAB}')
        R.lg.issue(H_TAB)
    seg = (k - 3 * S0) // (32 - S0) if k >= 3 * S0 else -1
    pos = (k - 3 * S0) % (32 - S0)
    if k == 3 * S0:
        lwait(R, H_TAB, 'v246', 'v10', early=True)
        R.dstamp('P4', 'tab')
    if seg >= 0 and pos == (1 if seg == 0 else 32 - S0 - 5):
        e_reads(seg)
    if seg >= 0 and pos == (5 if seg == 0 else 32 - S0 - 3):
        R.lg.wait([('e', seg)])
        valu += e_comb(seg)
    if seg >= 1 and pos == 1:
        valu += epi_ops(seg - 1)
    n = -(-76 // (32 - S0 - 1)) if seg >= 1 else 4
    for _ in range(n):
        if valu:
            emit_op(valu.pop(0))
for x in valu:
    emit_op(x)
R.dstamp('P4', 'loop')
p('v_lshrrev_b32 v10, 5, v1')
p('v_lshlrev_b32 v10, 3, v10')
p(f's_lshl_b32 {T[0]}, {s_cb}, 7')
p(f's_lshl_b32 {T[1]}, {s_kh}, 6')
p(f's_add_u32 {T[0]}, {T[0]}, {T[1]}')
for g in range(4):
    p(f'buffer_load_dwordx2 {vr(200 + 2 * g, 2)}, v10, {sB2}, {T[0]} offen offset:{16 * g}')
    R.vm.issue('b2')
for x in epi_ops(2):
    emit_op(x)
p(f's_lshl_b32 {T[0]}, {s_kh}, 13')
p(f's_add_u32 {T[0]}, {T[0]}, {L_X}')
p(f'v_add_u32 v6, {T[0]}, v4')
p(f'v_add_u32 v7, {T[0]}, v5')
for s in range(4):
    for nt in range(2):
        for rd in range(2):
            p(f'ds_read_b64_tr_b16 {vr(W2R + 8 * s + 4 * nt + 2 * rd, 2)}, v{6 + nt} offset:{s * 2048 + rd * 1024}')
    if s == 1:
        p('s_waitcnt lgkmcnt(4)')
R.lg.reset()
signal(R, C_END, 'v246', 'v247')
R.stamp('P4end')
R.dstamp('P4', 'epi')
ACC5, W2B, H1F, B2R = 48, 80, 136, 200
NWB = 7
NRING = 16
p(f's_mul_i32 {T[0]}, {s_kh}, {11 * 2048}')
p(f'v_add_u32 v6, {T[0]}, v4')
p(f'v_add_u32 v7, {T[0]}, v5')
p('v_add_u32 v6, 0x10000, v6')
p('v_add_u32 v7, 0x10000, v7')
p('v_add_u32 v12, 0x10000, v6')
p('v_add_u32 v13, 0x10000, v7')
p(f's_lshl_b32 {T[0]}, {s_kh}, 11')
p(f'v_add_u32 v4, {T[0]}, v4')
p(f'v_add_u32 v5, {T[0]}, v5')
p('v_add_u32 v14, 0x10000, v4')
p('v_add_u32 v15, 0x10000, v5')
for i in range(4, 15):
    assert w2_pos[42 + KORD[i]] - w2_rd_pos(i) == 11 * 2048
for i in range(15, 44):
    assert w2_pos[42 + KORD[i]] - w2_rd_pos(i) == 2048


def w2_reads(i):
    b = W2B + 8 * (i % NWB)
    for nt in (1, 0):
        if i < 15:
            bases = [None, 'v6' if nt == 0 else 'v7', 'v12' if nt == 0 else 'v13']
        else:
            bases = ['v4' if nt == 0 else 'v5', 'v14' if nt == 0 else 'v15']
        for rd in range(2):
            dsr(R, 'ds_read_b64_tr_b16', vr(b + 4 * nt + 2 * rd, 2), bases, w2_rd_pos(i) + rd * 1024, ('w2', i))


p('s_waitcnt lgkmcnt(0)')
R.lg.reset()
flag_store(R, T[3], 'v10', 'v11')
R.stamp('H1flag')
R.dstamp('P4', 'H1flag')
R.dstamp('P5', 'H1flag')
p('v_and_b32 v10, 7, v1')
p(f's_add_u32 {T[0]}, {s_kh}, 6')
p(f'v_min_u32 v10, {T[0]}, v10')
p('v_lshlrev_b32 v10, 2, v10')
p(f's_lshl_b32 {T[1]}, {s_tile}, 7')
p(f's_mul_i32 {T[0]}, {s_kh}, 28')
p(f's_add_u32 {T[1]}, {T[1]}, {T[0]}')
p(f's_add_u32 {T[1]}, {T[1]}, {FH1}')
p(f'v_add_u32 v10, {T[1]}, v10')
p(f's_lshl_b32 {T[1]}, {s_rb}, 18')
p(f's_mul_i32 {T[2]}, {s_kh}, {7 * 16384}')
p(f's_add_u32 {T[1]}, {T[1]}, {T[2]}')
p(f's_and_b32 {T[2]}, {s_tile}, 3')
p(f's_lshl_b32 {T[2]}, {T[2]}, 12')
p(f's_add_u32 {T[1]}, {T[1]}, {T[2]}')
p(f's_lshl_b32 {T[3]}, {s_tile}, 16')
p(f's_mul_i32 {T[2]}, {s_kh}, {7 * 4096}')
p(f's_add_u32 {T[3]}, {T[3]}, {T[2]}')
for g in range(4):
    for k in range(2):
        a = ACC5 + 4 * g + 2 * k
        p(f'v_lshlrev_b32 v{a}, 16, v{HRES + 2 * g + k}')
        p(f'v_and_b32 v{a + 1}, 0xffff0000, v{HRES + 2 * g + k}')
        p(f'v_lshlrev_b32 v{ACC5 + 16}, 16, v{B2R + 2 * g + k}')
        p(f'v_and_b32 v{ACC5 + 17}, 0xffff0000, v{B2R + 2 * g + k}')
        p(f'v_add_f32 v{a}, v{a}, v{ACC5 + 16}')
        p(f'v_add_f32 v{a + 1}, v{a + 1}, v{ACC5 + 17}')
poll(R, 'v10', 'v11')
R.stamp('H1poll')
R.dstamp('P5', 'H1poll')


def h1_load(i):
    c, f = divmod(KORD[i], 6)
    if f == 4:
        p(f's_add_u32 {T[2]}, {T[1]}, {AREA + c * 16384}')
    if f == 0:
        p(f's_add_u32 {T[2]}, {T[3]}, {H1B + c * 4096}')
    if i == 42:
        p(f's_cmp_eq_u32 {s_kh}, 0')
        p(f's_cselect_b32 {T[2]}, {0x7ff00000}, {T[2]}')
    p(f'buffer_load_dwordx4 {vr(H1F + 4 * (i % NRING), 4)}, v2, {sWS}, {T[2]} offen offset:{(f % 4) * 1024} sc1')
    R.vm.issue(('h1', i))


AH = OPT['ah1']
NS = 44
for i in range(AH):
    h1_load(i)
lwait(R, H_P1, 'v246', 'v10')
w2_reads(4)
w2_reads(5)
seq5 = [(i, nt) for i in range(NS - TAILN) for nt in (1, 0)] + [(i, 1) for i in range(NS - TAILN, NS)] + [(i, 0) for i in range(NS - TAILN, NS)]
nw, nl = 6, AH
last_use = {i: k for k, (i, nt) in enumerate(seq5)}
first_use = {i: k for k, (i, nt) in reversed(list(enumerate(seq5)))}
for k, (i, nt) in enumerate(seq5):
    if k == 20:
        p(f'ds_read_b32 v10, v246 offset:{H_LATE}')
        R.lg.issue(H_LATE)
    if k == 25:
        R.dstamp('P5', 'preL')
        lwait(R, H_LATE, 'v246', 'v10', early=True)
        R.dstamp('P5', 'late')
    if k == 44:
        R.bar()
        xchg_addrs(L_HI)
    R.vm.wait([('h1', i)])
    if k in (0, 56):
        R.dstamp('P5', f'h1_{i}')
    if i >= 4:
        R.lg.wait([('w2', i)])
    b = W2R + 8 * i if i < 4 else W2B + 8 * (i % NWB)
    p(f'v_mfma_f32_32x32x16_bf16 {vr(ACC5 + 16 * nt, 16)}, {vr(b + 4 * nt, 4)}, {vr(H1F + 4 * (i % NRING), 4)}, {"0" if i == 0 and nt == 1 else vr(ACC5 + 16 * nt, 16)}')
    if k >= 8 and nw < NS and (k % 2 == 0 or k >= 2 * (NS - TAILN) - 6) and (nw < 15 or k >= 25):
        assert last_use.get(nw - NWB, -1) <= k and first_use[nw] > k + 1, (nw, k)
        w2_reads(nw)
        nw += 1
    if k % 2 == 1 and nl < NS:
        assert last_use.get(nl - NRING, -1) <= k
        h1_load(nl)
        nl += 1
    g = k - (len(seq5) - 4)
    if g >= 0:
        R.lg.room(1)
        p(f'ds_write_b128 v10, {vr(ACC5 + 16 + 4 * g, 4)} offset:{g * 1024}')
assert nw == NS and nl == NS
R.dstamp('P5', 'loop')
xchg_finish(R, ACC5, 16)
R.stamp('B13')
R.dstamp('P5', 'B13')
for r in range(8):
    p(f'v_cvt_pk_bf16_f32 v{32 + r}, v{16 + 2 * r}, v{16 + 2 * r + 1}')
p('v_lshrrev_b32 v10, 5, v1')
p('v_lshl_add_u32 v9, v10, 3, v9')
for q in range(2):
    p(f'v_permlane32_swap_b32 v{32 + 4 * q}, v{32 + 4 * q + 2}')
    p(f'v_permlane32_swap_b32 v{32 + 4 * q + 1}, v{32 + 4 * q + 3}')
    p(f'buffer_store_dwordx4 {vr(32 + 4 * q, 4)}, v9, {sOUT}, 0 offen offset:{32 * q}')
dump_stamps(R)
p('s_endpgm')
while tail:
    tail.pop(0)()
tail = []

assert CW.nbar == HW.nbar + 2, (CW.nbar, HW.nbar)
p.label('L_codeend')

p.fix_hazards()

hdr = open(os.path.join(os.path.dirname(os.path.abspath(__file__)), '..', 'cdna_kernels', NAME + '.s.ref')).read().split('\n')
top = [l for l in hdr if l.startswith(';') and '@launch' not in l and 'Override' not in l and 'grid=ceil' not in l]
out = '\n'.join(top) + '\n'
out += f'; @launch grid=(256,1,1) block=(512,1,1) lds={LDS_BYTES}\n'
out += f'''.amdgcn_target "amdgcn-amd-amdhsa--gfx950"
.text
.globl {KNAME}
.p2align 8
.type {KNAME},@function
'''
out += p.text()
out += f'''.section .rodata,"a"
.p2align 6
.amdhsa_kernel {KNAME}
  .amdhsa_next_free_vgpr 256
  .amdhsa_next_free_sgpr 102
  .amdhsa_accum_offset 256
  .amdhsa_group_segment_fixed_size 0
  .amdhsa_kernarg_size 88
  .amdhsa_user_sgpr_count 2
  .amdhsa_user_sgpr_kernarg_segment_ptr 1
  .amdhsa_system_sgpr_workgroup_id_x 1
.end_amdhsa_kernel
'''
open(sys.argv[1], 'w').write(out)
if OPT['stamps']:
    import json
    json.dump(STAMPS, open(sys.argv[1] + '.stamps.json', 'w'))
print('instructions:', sum(1 for x in p.ins if x.kind not in ('label', 'dir')), 'maxv', p.maxreg('v'), 'maxs', p.maxreg('s'), 'barriers', CW.nbar)
```

```python
import sys
import os
sys.path.insert(0, os.path.dirname(os.path.abspath(__file__)))
from asmlib import Prog, Cnt

NAME = 'sequential_preLN__sliding_block__dense_activation_squared_relu__prompt'
KNAME = NAME + '_kernel'

OPT = dict(stamps=False, force_safe=False, force_fallback=False, spin=200000, h1sc1=0, osc1=0, hsc1=0, mallwarm=1, p1touch=1, la=2, t0=2, tmode=4, codewarm=1, tlbwarm=0, aho=8, ahh=6, ah1=10, mallat=27, m2at=0, m2early=1, a_first=1, wopos=0, fkvt=1, qat=2, slp=2, hprio=1, small=0, s0=16, wolate=0, kvtag=0, flagearly=1, w2c=8, clrat=-1, clrdone=4, hrate=2, early0=0)
for a in sys.argv[2:]:
    k, _, v = a.partition('=')
    OPT[k] = int(v) if v else True

EPOCH = 0x0
ST = 0x1000
FKV = 0x2000
FO = 0xA000
FH = 0xC000
FH1 = 0xE000
RST = 0x10000
AREA = 0x100000
H1B = 0x600000
STB = 0xA00000
WS_END = 0xB00000
STAMP = 0x1000000
WS_SIZE = 0x1100000

S_R = 0
S_M = 512
S_CS = 1024
S_CS1 = 1536
S_B1 = 2048
S_TAG = 2560
S_MODE = 2564
S_SYNC = 2816
C_ISS, C_END, H_TAB, H_P1, H_LATE, H_WO, C_OIS, H_WQ, H_CSQ, H_Q, C_KV, C_HALO, C_FLAG, H_W1, X_P0, X_P1 = [S_SYNC + 4 * i for i in range(16)]
BASE = 3072
RING = BASE
SLOT = 24576
NSLOT = 4
L_WO = BASE
L_K = BASE + 64 * 1024
L_V = L_K + 24 * 1024
VSTR = 1040
L_HI = 116 * 1024
assert L_V + 24 * VSTR <= L_HI and RING + NSLOT * SLOT <= L_HI
L_WQ = L_HI
L_QX = L_HI + 32 * 1024
S_CSQ = S_CS1
L_X = BASE + 96 * 1024
LDS_BYTES = 160 * 1024


def w1_addr(s):
    return BASE + s * 3072


KORD = [6 * c + f for c in range(7) for f in (4, 5)] + [6 * c + f for c in range(7) for f in range(4)] + [42, 43]
W2_REG = KORD[:4] + [42 + k for k in KORD[:4]]
W2_P1 = KORD[4:15] + [42 + k for k in KORD[4:15]]
w2_pos = {}
for i, s in enumerate(W2_REG):
    w2_pos[s] = L_X + i * 2048
for i, s in enumerate(W2_P1):
    w2_pos[s] = L_HI + i * 2048
late_order = []
for i in range(15, 42):
    late_order += [KORD[i], 42 + KORD[i]]
late_order += [84, 85]
assert len(late_order) == 56
for i, s in enumerate(late_order):
    w2_pos[s] = BASE + i * 2048
assert BASE + 56 * 2048 <= L_HI


def w2_rd_pos(i):
    return w2_pos[KORD[i]] if i < 42 else w2_pos[42 + KORD[i]] - 2048


sX, sWQKV, sWO, sW1, sW2, sOUT, sWS, sB1, sB2, sDBG = [f's[{i}:{i + 3}]' for i in range(4, 44, 4)]
s_team, s_j, s_rb, s_c, s_rs, s_cb, s_w, s_tt, s_tag, s_mode, s_hd = [f's{i}' for i in range(44, 55)]
T = [f's{i}' for i in range(55, 64)]
s_xr = [f's{i}' for i in range(86, 90)]
s_wr = [f's{i}' for i in range(90, 94)]
s_t, s_kh = 's94', 's95'
s_tile = 's64'
s_area = 's88'
s_last = 's96'
s_stamp = 's[98:99]'

LOG2E = 1.4426950408889634
BIG = 0xf149f2ca


def fhex(x):
    import struct
    return '0x%08x' % struct.unpack('<I', struct.pack('<f', x))[0]


def vr(a, n=1):
    return f'v{a}' if n == 1 else f'v[{a}:{a + n - 1}]'


p = Prog()
tail = []


class Role:
    def __init__(self, name):
        self.name = name
        self.vm = Cnt(p, 'vmcnt', 63)
        self.lg = Cnt(p, 'lgkmcnt', 15)
        self.nbar = 0
        self.nstamp = 0

    def bar(self):
        p('s_barrier')
        self.nbar += 1

    def dstamp(self, grp, label):
        if OPT.get('d' + grp):
            self.stamp(label, True)

    def stamp(self, label='', force=False):
        if not OPT['stamps']:
            return
        if not force and label not in ('start', 'end') and any(k.startswith('dP') for k in OPT):
            return
        k = self.nstamp
        self.nstamp += 1
        STAMPS.setdefault(self.name, []).append(label)
        assert k < 20
        p(f's_memtime {s_stamp}')
        p('s_waitcnt lgkmcnt(0)')
        self.lg.reset()
        p(f's_mov_b32 s{66 + k}, s98')


STAMPS = {}


def dsr(R, op, dst, bases, off, tag=None):
    k = off // 65536
    R.lg.room(1)
    p(f'{op} {dst}, {bases[k]} offset:{off % 65536}')
    R.lg.issue(tag)


def dma(R, vaddr, srd, soff, ldsaddr, tag=None):
    p(f's_mov_b32 m0, {ldsaddr}')
    p(f'buffer_load_dwordx4 {vaddr}, {srd}, {soff} offen lds')
    R.vm.issue(tag)


def poll(R, vaddr, vtmp, wide=False, slow=False):
    L = p.newlabel('L_poll')
    D = p.newlabel('L_polld')
    X = p.newlabel('L_pollx')
    p(f's_mov_b32 {T[0]}, 0')
    p.label(L)
    first = vtmp if not wide else 'v' + vtmp[2:vtmp.index(':')]
    p(f'buffer_load_dword{"x2" if wide else ""} {vtmp}, {vaddr}, {sWS}, 0 offen sc1')
    p('s_waitcnt vmcnt(0)')
    p(f'v_cmp_ne_u32 vcc, {s_tag}, {first}')
    p(f's_cbranch_vccnz {X}')
    p.label(D)
    R.vm.reset()

    def blk():
        p.label(X)
        if slow:
            p('s_sleep 4')
        p(f's_add_u32 {T[0]}, {T[0]}, 1')
        p(f's_cmp_lt_u32 {T[0]}, {OPT["spin"]}')
        p(f's_cbranch_scc1 {L}')
        p(f's_branch {D}')
    tail.append(blk)


def moded_stores(R, stores, wt=False):
    if wt:
        for s in stores:
            p(s + ' sc1')
            R.vm.issue('st')
        return
    Ls = p.newlabel('L_safe')
    Lb = p.newlabel('L_back')
    p(f's_cmp_eq_u32 {s_mode}, 1')
    p(f's_cbranch_scc0 {Ls}')
    for s in stores:
        p(s)
    p.label(Lb)
    for s in stores:
        if s.startswith('buffer_'):
            R.vm.issue('st')

    def blk():
        p.label(Ls)
        for s in stores:
            p(s + ' sc1' if s.startswith('buffer_') else s)
        p(f's_branch {Lb}')
    tail.append(blk)


def signal(R, word, vz, vone):
    p('s_mov_b64 exec, 1')
    p(f'ds_add_u32 {vz}, {vone} offset:{word}')
    p('s_mov_b64 exec, -1')
    R.lg.issue('sig')


def lwait(R, word, vz, vt, early=False, n=4):
    L = p.newlabel('L_lw')
    X = p.newlabel('L_lwx')
    if early:
        R.lg.wait([word])
    else:
        p(f'ds_read_b32 {vt}, {vz} offset:{word}')
        p('s_waitcnt lgkmcnt(0)')
        R.lg.reset()
    p(f'v_cmp_gt_u32 vcc, {n}, {vt}')
    p(f's_cbranch_vccnz {X}')
    p.label(L)

    def blk():
        Y = p.newlabel('L_lwy')
        p.label(X)
        p(f's_mov_b32 {T[0]}, 0')
        p.label(Y)
        if R.name == 'HW' and OPT['slp']:
            p(f's_sleep {OPT["slp"]}')
        p(f'ds_read_b32 {vt}, {vz} offset:{word}')
        p('s_waitcnt lgkmcnt(0)')
        p(f'v_cmp_gt_u32 vcc, {n}, {vt}')
        p(f's_cbranch_vccz {L}')
        p(f's_add_u32 {T[0]}, {T[0]}, 1')
        p(f's_cmp_lt_u32 {T[0]}, {OPT["spin"] * 8}')
        p(f's_cbranch_scc1 {Y}')
        p(f's_branch {L}')
    tail.append(blk)


def flag_store(R, saddr, vt0, vt1, moded=True):
    p(f'v_mov_b32 {vt0}, {saddr}')
    p(f'v_mov_b32 {vt1}, {s_tag}')
    R.vm.wait_all()
    p('s_mov_b64 exec, 1')
    if moded:
        moded_stores(R, [f'buffer_store_dword {vt1}, {vt0}, {sWS}, 0 offen'])
    else:
        p(f'buffer_store_dword {vt1}, {vt0}, {sWS}, 0 offen sc1')
        R.vm.issue('st')
    p('s_mov_b64 exec, -1')


CW = Role('CW')
HW = Role('HW')
s_q = T[8]
s_mx, s_mw, s_tw = 's96', 's97', 's3'


def srd(dst, lo, size):
    b = int(dst[2:dst.index(':')])
    p(f's_mov_b32 s{b}, s{lo}')
    p(f's_and_b32 s{b + 1}, s{lo + 1}, 0xffff')
    p(f's_mov_b32 s{b + 2}, {size}')
    p(f's_mov_b32 s{b + 3}, 0x20000')


p.label(KNAME)
p('s_cmp_ge_u32 s2, 256')
p('s_cbranch_scc1 L_end')
if OPT['stamps']:
    p('s_memtime s[100:101]')
if OPT.get('dbgout'):
    p('s_memrealtime s[86:87]')
p('s_load_dwordx16 s[64:79], s[0:1], 0')
p('s_load_dwordx4 s[80:83], s[0:1], 64')
p('s_load_dwordx2 s[84:85], s[0:1], 80')
if OPT['codewarm']:
    p('s_getpc_b64 s[56:57]')
    p.label('L_pc')
    p(f's_sub_u32 s56, s56, L_pc-{KNAME}')
    p('s_subb_u32 s57, s57, 0')
    p(f's_lshr_b32 {T[0]}, s2, 3')
    p(f's_lshl_b32 {T[0]}, {T[0]}, 11')
    p('v_lshrrev_b32 v10, 5, v0')
    p('v_lshlrev_b32 v10, 7, v10')
    p(f'v_add_u32 v10, {T[0]}, v10')
    p(f'v_min_u32 v10, L_codeend-{KNAME}-4, v10')
    p('global_load_dword v253, v10, s[56:57]')
    CW.vm.issue('t')
    HW.vm.issue('t')
p('v_and_b32 v1, 63, v0')
p('v_lshrrev_b32 v2, 6, v0')
p(f'v_readfirstlane_b32 {s_w}, v2')
p(f's_and_b32 {s_team}, s2, 7')
p(f's_lshr_b32 {s_j}, s2, 3')
p(f's_and_b32 {s_c}, {s_j}, 15')
p(f's_lshr_b32 {T[0]}, {s_j}, 4')
p(f's_lshl_b32 {s_rb}, {s_team}, 1')
p(f's_add_u32 {s_rb}, {s_rb}, {T[0]}')
p('v_lshlrev_b32 v2, 4, v1')
p(f's_and_b32 {s_q}, {s_w}, 3')
p('v_lshrrev_b32 v3, 3, v1')
p(f's_lshl_b32 {T[0]}, {s_q}, 5')
p(f'v_add_u32 v3, {T[0]}, v3')
p('v_and_b32 v10, 7, v1')
p(f's_lshl_b32 {T[1]}, {s_rb}, 17')
p('v_bfe_u32 v11, v3, 1, 3')
p('v_xor_b32 v11, v10, v11')
p('v_lshlrev_b32 v11, 4, v11')
p('v_lshl_add_u32 v4, v3, 10, v11')
p(f'v_add_u32 v4, {T[1]}, v4')
p('v_xor_b32 v5, 64, v4')
p('v_add_u32 v5, 8192, v5')
p('v_lshrrev_b32 v10, 3, v1')
p(f's_lshl_b32 {T[0]}, {s_q}, 4')
p(f'v_add_u32 v10, {T[0]}, v10')
p(f's_movk_i32 {T[4]}, 3072')
p(f'v_mul_lo_u32 v10, v10, {T[4]}')
p('v_bfe_u32 v11, v1, 2, 1')
p('v_bfe_u32 v12, v1, 4, 1')
p('v_xor_b32 v11, v11, v12')
p('v_lshl_add_u32 v10, v11, 10, v10')
p('v_and_b32 v11, 3, v1')
p('v_lshl_add_u32 v10, v11, 4, v10')
p(f's_lshl_b32 {T[1]}, {s_c}, 6')
p(f's_add_u32 {T[1]}, {T[1]}, 1024')
p(f'v_add_u32 v6, {T[1]}, v10')
p(f's_lshl_b32 {s_mx}, {s_q}, 12')
p(f's_lshl_b32 {s_mw}, {s_q}, 11')
p(f's_lshl_b32 {s_tw}, {s_j}, 2')
p(f's_add_u32 {s_tw}, {s_tw}, {s_q}')
p(f's_lshr_b32 {T[0]}, {s_tw}, 1')
p(f's_mul_i32 {T[0]}, {T[0]}, 3072')
p(f's_and_b32 {s_tw}, {s_tw}, 1')
p(f's_lshl_b32 {s_tw}, {s_tw}, 10')
p(f's_add_u32 {s_tw}, {s_tw}, {T[0]}')
p(f's_add_u32 {s_tw}, {s_tw}, 1024')
p('v_bfe_u32 v16, v1, 3, 1')
p(f'v_mul_u32_u24 v16, {64 * 3072}, v16')
p('v_and_b32 v15, 7, v1')
p('v_lshl_add_u32 v16, v15, 7, v16')
p('v_min_u32 v17, 11, v1')
p('v_lshlrev_b32 v17, 7, v17')
p(f's_lshl_b32 {T[5]}, {s_rb}, 4')
p(f's_add_u32 {T[5]}, {T[5]}, {s_c}')
p(f's_lshl_b32 {T[5]}, {T[5]}, 3')
p(f's_add_u32 {T[5]}, {T[5]}, {s_q}')
p('s_waitcnt lgkmcnt(0)')
srd(sX, 64, 2048 * 512 * 2)
p(f's_cmp_ge_u32 {s_w}, 4')
p('s_cbranch_scc1 L_norow')
p(f's_load_dword {s_tag}, s[84:85], {EPOCH}')
if OPT['kvtag'] and OPT['clrat'] == -2:
    srd(sWS, 84, WS_SIZE if OPT['stamps'] else WS_END)
    p(f's_lshr_b32 {T[0]}, {T[5]}, 3')
    p(f's_lshl_b32 {T[0]}, {T[0]}, 2')
    p(f's_add_u32 {T[0]}, {T[0]}, {s_q}')
    p(f's_lshl_b32 {T[0]}, {T[0]}, 12')
    p(f's_add_u32 {T[0]}, {T[0]}, {AREA + 32 * 16384}')
    for r in range(4):
        p(f'v_mov_b32 v{244 + r}, -1')
    for q in range(4):
        p(f'buffer_store_dwordx4 v[244:247], v2, {sWS}, {T[0]} offen offset:{q * 1024} sc1')
        CW.vm.issue('st')
p(f's_lshl_b32 {T[0]}, {T[5]}, 10')
p(f's_add_u32 {T[1]}, {T[0]}, 4096')
p(f'buffer_load_dwordx4 v[196:199], v2, {sX}, {T[0]} offen')
p(f'buffer_load_dwordx4 v[208:211], v2, {sX}, {T[1]} offen')
CW.vm.issue('row')
CW.vm.issue('row')
p.label('L_norow')
srd(sWQKV, 66, 512 * 1536 * 2)
if OPT['stamps']:
    p('s_memtime s[98:99]')
    p('s_waitcnt lgkmcnt(0)')
    p('s_mov_b32 s101, s98')
p(f's_cmp_lt_u32 {s_w}, 4')
p('s_cbranch_scc1 L_CW')


def chunk_groups(R, ch):
    slot = RING + (ch % NSLOT) * SLOT

    def xg(q):
        def f():
            p(f's_mov_b32 {T[7]}, {ch * 128 + (q >> 1) * 16384}')
            p(f's_add_u32 m0, {s_mx}, {slot + q * 1024}')
            p(f'buffer_load_dwordx4 v{4 + (q & 1)}, {sX}, {T[7]} offen' + (' nt' if OPT.get('nt_x') else '') + ' lds')
            R.vm.issue(('ch', ch))
        return f

    def wg(q):
        def f():
            p(f's_mov_b32 {T[7]}, {(ch * 64 + q * 8) * 3072}')
            p(f's_add_u32 m0, {s_mw}, {slot + 16384 + q * 1024}')
            p(f'buffer_load_dwordx4 v6, {sWQKV}, {T[7]} offen lds')
            R.vm.issue(('ch', ch))
        return f
    return [wg(0), xg(0), xg(1), wg(1), xg(2), xg(3)]


def wtouch(R, i):
    def f():
        p(f's_add_u32 {T[7]}, {s_tw}, {i * 64 * 3072}')
        p(f'buffer_load_dword v252, v16, {sWQKV}, {T[7]} offen' + (' nt' if OPT.get('nt_t') else ''))
        R.vm.issue('t')
    return f


def qtouch(R):
    def f():
        p(f's_lshl_b32 {T[7]}, {s_j}, 2')
        p(f's_add_u32 {T[7]}, {T[7]}, {s_q}')
        p(f's_mul_i32 {T[7]}, {T[7]}, {4 * 3072}')
        p('v_bfe_u32 v3, v1, 3, 2')
        p('v_mul_u32_u24 v3, 3072, v3')
        p('v_and_b32 v110, 7, v1')
        p('v_lshl_add_u32 v3, v110, 7, v3')
        p(f'buffer_load_dword v252, v3, {sWQKV}, {T[7]} offen')
        R.vm.issue('t')
    return f


def warm_wo(R):
    def f():
        p(f's_lshl_b32 {T[7]}, {s_j}, 2')
        p(f's_add_u32 {T[7]}, {T[7]}, {s_q}')
        p(f's_lshl_b32 {T[7]}, {T[7]}, 12')
        p('v_and_b32 v3, 31, v1')
        p('v_lshlrev_b32 v3, 7, v3')
        p(f'buffer_load_dword v255, v3, {sWO}, {T[7]} offen')
        R.vm.issue('t')
    return f


def warm_mall(R, srd_):
    def f():
        p(f's_lshl_b32 {T[7]}, s2, 2')
        p(f's_add_u32 {T[7]}, {T[7]}, {s_q}')
        p(f's_mul_i32 {T[7]}, {T[7]}, 1536')
        p(f'buffer_load_dword v254, v17, {srd_}, {T[7]} offen')
        R.vm.issue('t')
    return f


def srds_w():
    srd(sWO, 68, 512 * 512 * 2)
    srd(sW1, 72, 512 * 1376 * 2)
    srd(sW2, 76, 1376 * 512 * 2)


def common_setup(R):
    srd(sWS, 84, WS_SIZE if OPT['stamps'] else WS_END)
    srd(sB1, 74, 1376 * 2)
    srd(sB2, 78, 512 * 2)
    srd(sOUT, 80, 2048 * 512 * 2)
    p(f's_lshr_b32 {T[0]}, {s_j}, 3')
    p(f's_lshl_b32 {s_rs}, {s_team}, 2')
    p(f's_add_u32 {s_rs}, {s_rs}, {T[0]}')
    p(f's_and_b32 {s_cb}, {s_j}, 7')
    p(f's_lshr_b32 {s_hd}, {s_w}, 2')
    p(f's_lshl_b32 {s_area}, {s_rb}, 4')
    p(f's_add_u32 {s_area}, {s_area}, {s_c}')
    p(f's_lshl_b32 {s_area}, {s_area}, 14')
    p(f's_add_u32 {s_area}, {s_area}, {AREA}')
    if R is CW:
        p(f's_mov_b32 {s_tt}, {s_w}')
        p(f's_and_b32 {s_t}, {s_w}, 1')
        p(f's_lshr_b32 {s_kh}, {s_w}, 1')
    else:
        p(f's_sub_u32 {s_tt}, 7, {s_w}')
    p('v_mov_b32 v18, 0x3f803f80')
    if R is CW:
        if not OPT['small']:
            p('s_waitcnt lgkmcnt(0)')
        p(f's_add_u32 {s_tag}, {s_tag}, 1')
        p(f'v_mov_b32 v10, {S_TAG}')
        p(f'v_mov_b32 v11, {s_tag}')
        p('ds_write_b32 v10, v11')


def row_stats(R):
    p(f's_lshl_b32 s65, s65, 4')
    p(f's_add_u32 s65, s65, {RST}')
    p(f'v_mov_b32 v3, s65')
    for k in (200, 202, 212, 214):
        p(f'v_mov_b32 v{k}, 0')
    p(f's_getreg_b32 {T[1]}, hwreg(HW_REG_XCC_ID)')
    p(f's_and_b32 {T[1]}, {T[1]}, 15')
    p(f'v_mov_b32 v221, {T[1]}')
    p(f'v_mov_b32 v220, {s_tag}')
    p(f's_lshl_b32 {T[1]}, {s_team}, 5')
    p(f's_add_u32 {T[1]}, {T[1]}, {s_j}')
    p(f's_lshl_b32 {T[1]}, {T[1]}, 3')
    p(f's_add_u32 {T[1]}, {T[1]}, {ST}')
    p(f's_cmp_eq_u32 {s_w}, 0')
    p(f's_cselect_b32 {T[1]}, {T[1]}, {0x7ff00000}')
    p(f'v_mov_b32 v222, {T[1]}')
    R.vm.wait(['row'])
    for r in range(4):
        for o in (0, 12):
            p(f'v_dot2c_f32_bf16 v{200 + o}, v{196 + o + r}, v18')
            p(f'v_dot2c_f32_bf16 v{202 + o}, v{196 + o + r}, v{196 + o + r}')
    for sh in (8, 4, 2, 1):
        for k in (200, 202, 212, 214):
            p(f'v_add_f32_dpp v{k}, v{k}, v{k} row_ror:{sh} row_mask:0xf bank_mask:0xf')
    for op in ('v_permlane16_swap_b32', 'v_permlane32_swap_b32'):
        for k in (200, 202, 212, 214):
            p(f'v_mov_b32 v{k + 1}, v{k}')
        for k in (200, 202, 212, 214):
            p(f'{op} v{k}, v{k + 1}')
        for k in (200, 202, 212, 214):
            p(f'v_add_f32 v{k}, v{k}, v{k + 1}')
    for o in (0, 12):
        ln_finish(f'v{200 + o}', f'v{202 + o}', f'v{204 + o}', f'v{206 + o}')
        p(f'v_mov_b32 v{205 + o}, {s_tag}')
        p(f'v_mov_b32 v{207 + o}, {s_tag}')
    p('s_mov_b64 exec, 1')
    p(f'buffer_store_dwordx4 v[204:207], v3, {sWS}, 0 offen sc1')
    p(f'buffer_store_dwordx4 v[216:219], v3, {sWS}, 0 offen offset:64 sc1')
    p(f'buffer_store_dwordx2 v[220:221], v222, {sWS}, 0 offen sc1')
    p('s_mov_b64 exec, -1')
    for _ in range(3):
        R.vm.issue('st')


VQ, MD, MF = 160, 164, 180
SB = [20, 36]
VP = 52
KF = [60, 64]
VF = [68, 76]
VO = 84
VKA, VVA = 'v100', 'v101'
HALO = 120


def make_masks():
    p('v_and_b32 v10, 31, v1')
    p('v_lshrrev_b32 v11, 5, v1')
    p('v_lshlrev_b32 v11, 2, v11')
    p('v_sub_u32 v10, v10, v11')
    p(f'v_mov_b32 v12, {BIG:#x}')
    p('v_mov_b32 v13, 0')
    for i0 in range(0, 16, 4):
        for i in range(i0, i0 + 4):
            key = 8 * (i >> 2) + (i & 3)
            p(f'v_cmp_le_i32 s[{56 + 2 * (i & 3)}:{57 + 2 * (i & 3)}], {key}, v10')
        for i in range(i0, i0 + 4):
            m = f's[{56 + 2 * (i & 3)}:{57 + 2 * (i & 3)}]'
            p(f'v_cndmask_b32 v{MD + i}, v12, v13, {m}')
            p(f'v_cndmask_b32 v{MF + i}, v13, v12, {m}')


def att_addrs():
    p(f's_lshl_b32 {T[0]}, {s_tt}, 11')
    p(f's_lshl_b32 {T[1]}, {s_hd}, 10')
    p(f's_add_u32 {T[0]}, {T[0]}, {T[1]}')
    p(f's_add_u32 {T[0]}, {T[0]}, {L_K}')
    p(f'v_add_u32 {VKA}, {T[0]}, v2')
    p('v_and_b32 v10, 47, v1')
    p(f's_lshl_b32 {T[1]}, {s_hd}, 4')
    p(f'v_add_u32 v10, {T[1]}, v10')
    p('v_lshlrev_b32 v10, 4, v10')
    p('v_and_b32 v11, 16, v1')
    p('v_cmp_ne_u32 vcc, 0, v11')
    p('v_mov_b32 v11, 1024')
    p('v_cndmask_b32 v10, v10, v11, vcc')
    p(f's_mul_i32 {T[0]}, {s_tt}, {2 * VSTR}')
    p(f's_add_u32 {T[0]}, {T[0]}, {L_V}')
    p(f'v_add_u32 {VVA}, {T[0]}, v10')


def half_sum(a, t):
    p(f'v_mov_b32 {t}, {a}')
    p(f'v_permlane32_swap_b32 {a}, {t}')
    p(f'v_add_f32 {a}, {a}, {t}')


def ln_finish(s1, s2, rstd, mrs):
    p(f'v_mul_f32 {s1}, {fhex(1.0 / 512)}, {s1}')
    p(f'v_mul_f32 {s2}, {fhex(1.0 / 512)}, {s2}')
    p(f'v_fma_f32 {s2}, -{s1}, {s1}, {s2}')
    p(f'v_max_f32 {s2}, 0, {s2}')
    p(f'v_add_f32 {s2}, {fhex(1e-5)}, {s2}')
    p(f'v_rsq_f32 {rstd}, {s2}')
    p(f'v_mul_f32 {mrs}, {s1}, {rstd}')


def att_load(R, u, b, base):
    p(f'ds_read_b128 {vr(KF[b], 4)}, {base[0]} offset:{u * 2048}')
    R.lg.issue(('K', u))
    for g in range(2):
        p(f'ds_read_b128 {vr(VF[b] + 4 * g, 4)}, {base[1]} offset:{(2 * u + g) * VSTR}')
        R.lg.issue(('V', u))


def att_qk(R, u, b, c):
    R.lg.wait([('K', u)])
    p(f'v_mfma_f32_32x32x16_bf16 {vr(SB[b], 16)}, {vr(KF[b], 4)}, {vr(VQ, 4)}, {c}')


def att_body(R, u, b, nxt, first, extra=()):
    S = SB[b]
    if nxt is not None:
        att_load(R, nxt[0], 1 - b, nxt[1])
    extra = list(extra)
    for g in range(2):
        for i in range(8):
            p(f'v_exp_f32 v{S + 8 * g + i}, v{S + 8 * g + i}')
            if i in (0, 2, 3, 5, 7) and extra:
                extra.pop(0)()
        if g == 0 and nxt is not None:
            att_qk(R, nxt[0], 1 - b, nxt[2])
        for r in range(4):
            p(f'v_cvt_pk_bf16_f32 v{VP + 4 * g + r}, v{S + 8 * g + 2 * r}, v{S + 8 * g + 2 * r + 1}')
        R.lg.wait([('V', u)])
        c = '0' if (first and g == 0) else vr(VO, 16)
        p(f'v_mfma_f32_32x32x16_bf16 {vr(VO, 16)}, {vr(VF[b] + 4 * g, 4)}, {vr(VP + 4 * g, 4)}, {c}')
    assert not extra


REL = (VKA, VVA)
ABS = ('v116', 'v117')


def att_2a(R, after_first=None):
    Lx = p.newlabel('L_2a_done')
    att_load(R, 8, 0, REL)
    att_qk(R, 8, 0, vr(MD, 16))
    for n, j in enumerate((8, 7, 6, 5)):
        att_body(R, j, n & 1, (j - 1, REL, '0') if j > 5 else None, n == 0)
        if n == 0 and after_first:
            after_first()
        if j > 5:
            p(f's_cmp_eq_u32 {s_tt}, {n}')
            p(f's_cbranch_scc1 {Lx}')
    p.label(Lx)
    p('s_waitcnt lgkmcnt(0)')
    R.lg.reset()
    R.stamp('2a')
    R.dstamp('P2', '2a')


def att_2b(R, extra, after_store):
    p(f's_max_i32 {T[0]}, {s_rb}, 1')
    p(f's_sub_u32 {T[0]}, {T[0]}, 1')
    p(f's_lshl_b32 {T[0]}, {T[0]}, 4')
    p(f's_add_u32 {T[0]}, {T[0]}, {s_c}')
    p(f's_lshl_b32 {T[0]}, {T[0]}, 7')
    p(f's_add_u32 {T[0]}, {T[0]}, {FKV + 16}')
    p('v_and_b32 v102, 3, v1')
    p('v_lshlrev_b32 v102, 2, v102')
    p(f'v_add_u32 v102, {T[0]}, v102')

    def rd_check():
        p(f'buffer_load_dword v103, v102, {sWS}, 0 offen sc1')
        R.vm.issue('rd')
    Lx = p.newlabel('L_2b_done')
    att_load(R, 0, 0, REL)
    att_qk(R, 0, 0, vr(MF, 16))
    extra = list(extra)
    extra += [lambda: None] * (44 - len(extra)) + [rd_check]
    assert len(extra) <= 50
    for j in range(8):
        att_body(R, j, j & 1, (j + 1, REL, '0') if j < 7 else None, False, extra[10 * j:10 * j + 10])
        if 4 <= j < 7:
            p(f's_cmp_eq_u32 {s_tt}, {7 - j}')
            p(f's_cbranch_scc1 {Lx}')
    p.label(Lx)
    p('s_waitcnt lgkmcnt(0)')
    R.lg.reset()
    Lf = p.newlabel('L_fb')
    Lr = p.newlabel('L_fbret')
    p(f'v_mov_b32 v10, {fhex(2.0 ** -60)}')
    p(f'v_mov_b32 v11, {fhex(2.0 ** 60)}')
    p(f's_lshl_b32 {T[0]}, {s_rb}, 2')
    p(f's_add_u32 {T[0]}, {T[0]}, {s_tt}')
    p(f's_lshl_b32 {T[0]}, {T[0]}, 5')
    p(f's_lshl_b32 {T[6]}, {s_c}, 1')
    p(f's_add_u32 {T[0]}, {T[0]}, {T[6]}')
    p(f's_add_u32 {T[0]}, {T[0]}, {s_hd}')
    p(f's_lshl_b32 {T[7]}, {T[0]}, 2')
    p(f's_add_u32 {T[7]}, {T[7]}, {FO}')
    p(f's_lshl_b32 {T[0]}, {s_tt}, 2')
    p(f's_add_u32 {T[0]}, {T[0]}, {s_hd}')
    p(f's_lshl_b32 {T[0]}, {T[0]}, 10')
    p(f's_add_u32 {T[6]}, {T[0]}, {s_area}')
    p(f'v_cmp_nlt_f32 vcc, v10, v{VO + 8}')
    p(f'v_cmp_nlt_f32 s[56:57], v{VO + 8}, v11')
    p('s_or_b64 vcc, vcc, s[56:57]')
    if OPT['force_fallback']:
        p(f's_branch {Lf}')
    else:
        p(f's_cbranch_vccnz {Lf}')
    p.label(Lr)
    tail.append(lambda: fallback(Lf, Lr))
    p(f'v_rcp_f32 v10, v{VO + 8}')
    for i in range(8):
        p(f'v_mul_f32 v{VO + i}, v{VO + i}, v10')
    for r in range(4):
        p(f'v_cvt_pk_bf16_f32 v{12 + r}, v{VO + 2 * r}, v{VO + 2 * r + 1}')
    R.dstamp('P2', '2b')
    Lc = p.newlabel('L_rdc')
    Lcx = p.newlabel('L_rdx')
    R.vm.wait(['rd'])
    p(f'v_cmp_ne_u32 vcc, {s_tag}, v103')
    p(f's_cbranch_vccnz {Lcx}')
    p.label(Lc)

    def rd_slow():
        p.label(Lcx)
        poll(R2, 'v102', 'v103')
        p(f's_branch {Lc}')
    R2 = Role('tmp')
    tail.append(rd_slow)
    moded_stores(R, [f'buffer_store_dwordx4 v[12:15], v2, {sWS}, {T[6]} offen'], OPT['osc1'])
    after_store()
    flag_store(R, T[7], 'v10', 'v11')
    R.stamp('Oflag')
    R.dstamp('P2', 'Oflag')


def fallback(Lf, Lr):
    S = SB[0]
    p.label(Lf)
    p(f's_lshl_b32 {T[0]}, {s_rb}, 2')
    p(f's_add_u32 {T[0]}, {T[0]}, {s_tt}')
    p(f's_sub_i32 {T[0]}, 8, {T[0]}')
    p(f's_max_i32 s89, {T[0]}, 0')
    p(f'v_mov_b32 v14, {BIG:#x}')
    for pas in range(2):
        L = p.newlabel('L_fbl')
        Lm = p.newlabel('L_fbm')
        Ln = p.newlabel('L_fbn')
        Lc = p.newlabel('L_fbc')
        p(f's_mov_b32 s90, s89')
        if pas == 1:
            for i in range(16):
                p(f'v_mov_b32 v{VO + i}, 0')
        p.label(L)
        p(f's_lshl_b32 {T[0]}, s90, 11')
        p(f'v_add_u32 v10, {T[0]}, {VKA}')
        p(f's_mul_i32 {T[0]}, s90, {2 * VSTR}')
        p(f'v_add_u32 v11, {T[0]}, {VVA}')
        p(f'ds_read_b128 {vr(KF[0], 4)}, v10')
        p(f'ds_read_b128 {vr(VF[0], 4)}, v11')
        p(f'ds_read_b128 {vr(VF[0] + 4, 4)}, v11 offset:{VSTR}')
        p('s_waitcnt lgkmcnt(0)')
        p(f's_cmp_eq_u32 s90, 8')
        p(f's_cbranch_scc1 {Lm}')
        p(f's_cmp_eq_u32 s90, 0')
        p(f's_cbranch_scc1 {Ln}')
        p(f'v_mfma_f32_32x32x16_bf16 {vr(S, 16)}, {vr(KF[0], 4)}, {vr(VQ, 4)}, 0')
        p(f's_branch {Lc}')
        p.label(Lm)
        p(f'v_mfma_f32_32x32x16_bf16 {vr(S, 16)}, {vr(KF[0], 4)}, {vr(VQ, 4)}, {vr(MD, 16)}')
        p(f's_branch {Lc}')
        p.label(Ln)
        p(f'v_mfma_f32_32x32x16_bf16 {vr(S, 16)}, {vr(KF[0], 4)}, {vr(VQ, 4)}, {vr(MF, 16)}')
        p.label(Lc)
        if pas == 0:
            for i in range(16):
                p(f'v_max_f32 v14, v14, v{S + i}')
        else:
            for i in range(16):
                p(f'v_sub_f32 v{S + i}, v{S + i}, v14')
                p(f'v_exp_f32 v{S + i}, v{S + i}')
            for r in range(8):
                p(f'v_cvt_pk_bf16_f32 v{VP + r}, v{S + 2 * r}, v{S + 2 * r + 1}')
            for g in range(2):
                p(f'v_mfma_f32_32x32x16_bf16 {vr(VO, 16)}, {vr(VF[0] + 4 * g, 4)}, {vr(VP + 4 * g, 4)}, {vr(VO, 16)}')
        p(f's_add_u32 s90, s90, 1')
        p(f's_cmp_le_u32 s90, 8')
        p(f's_cbranch_scc1 {L}')
        if pas == 0:
            p('v_mov_b32 v15, v14')
            p('v_permlane32_swap_b32 v14, v15')
            p('v_max_f32 v14, v14, v15')
    p(f's_branch {Lr}')


def w64_dma_lane(dst):
    p('v_lshrrev_b32 v10, 3, v1')
    p('v_lshlrev_b32 v10, 10, v10')
    p('v_and_b32 v11, 7, v1')
    p('v_bfe_u32 v12, v1, 4, 1')
    p('v_lshlrev_b32 v12, 2, v12')
    p('v_xor_b32 v11, v11, v12')
    p('v_lshl_add_u32 v10, v11, 4, v10')
    p(f's_lshl_b32 {T[0]}, {s_cb}, 7')
    p(f'v_add_u32 {dst}, {T[0]}, v10')


def w1_dma_lanes(dsts):
    p(f's_movk_i32 {T[3]}, 5462')
    p(f's_movk_i32 {T[4]}, 2752')
    p(f's_mul_i32 {T[1]}, {s_c}, 192')
    for q, dst in enumerate(dsts):
        p(f'v_add_u32 v10, {64 * q}, v1')
        p(f'v_mul_lo_u32 v11, v10, {T[3]}')
        p('v_lshrrev_b32 v11, 16, v11')
        p('v_mul_u32_u24 v12, 12, v11')
        p('v_sub_u32 v12, v10, v12')
        p('v_lshlrev_b32 v12, 4, v12')
        p(f'v_mul_lo_u32 v11, v11, {T[4]}')
        p(f'v_add3_u32 {dst}, v11, v12, {T[1]}')


def tr64_lanes(a0, a1):
    p('v_bfe_u32 v10, v1, 2, 2')
    p('v_lshrrev_b32 v11, 5, v1')
    p('v_lshl_add_u32 v10, v11, 2, v10')
    p('v_lshlrev_b32 v10, 7, v10')
    p('v_bfe_u32 v11, v1, 4, 1')
    p('v_lshl_add_u32 v10, v11, 5, v10')
    p('v_and_b32 v11, 3, v1')
    p('v_lshl_add_u32 v10, v11, 3, v10')
    p('v_bfe_u32 v11, v1, 3, 1')
    p(f'v_lshl_add_u32 {a0}, v11, 6, v10')
    p(f'v_xor_b32 {a1}, 64, {a0}')


def tr_kv_lane(a):
    p('v_bfe_u32 v10, v1, 2, 2')
    p('v_lshrrev_b32 v11, 5, v1')
    p('v_lshl_add_u32 v10, v11, 3, v10')
    p('v_lshlrev_b32 v10, 7, v10')
    p('v_bfe_u32 v11, v1, 4, 1')
    p('v_lshl_add_u32 v10, v11, 5, v10')
    p('v_and_b32 v11, 3, v1')
    p('v_lshl_add_u32 v10, v11, 3, v10')
    p('v_bfe_u32 v11, v1, 3, 1')
    p(f'v_lshl_add_u32 {a}, v11, 6, v10')


def x_lane(a):
    p('v_and_b32 v10, 31, v1')
    p(f's_lshl_b32 {T[0]}, {s_tt}, 5')
    p(f'v_add_u32 v10, {T[0]}, v10')
    p('v_bfe_u32 v11, v10, 1, 3')
    p('v_lshrrev_b32 v12, 5, v1')
    p('v_xor_b32 v11, v11, v12')
    p('v_lshlrev_b32 v11, 4, v11')
    p(f'v_lshl_add_u32 {a}, v10, 7, v11')


def tr96_lane(a):
    p('v_bfe_u32 v10, v1, 2, 2')
    p('v_lshrrev_b32 v11, 5, v1')
    p('v_lshl_add_u32 v10, v11, 2, v10')
    p('v_mul_u32_u24 v10, 192, v10')
    p('v_bfe_u32 v11, v1, 4, 1')
    p('v_lshl_add_u32 v10, v11, 5, v10')
    p('v_and_b32 v11, 3, v1')
    p(f'v_lshl_add_u32 {a}, v11, 3, v10')


def dump_stamps(R):
    if not OPT['stamps']:
        return
    R.stamp('end')
    p(f's_lshl_b32 {T[0]}, s2, 3')
    p(f's_add_u32 {T[0]}, {T[0]}, {s_w}')
    p(f's_lshl_b32 {T[0]}, {T[0]}, 8')
    p(f's_add_u32 {T[0]}, {T[0]}, {STAMP}')
    p('v_lshlrev_b32 v10, 2, v1')
    p('v_mov_b32 v11, 0')
    for k in range(R.nstamp):
        p(f'v_writelane_b32 v11, s{66 + k}, {k}')
    p(f'v_writelane_b32 v11, {s_mode}, 63')
    p(f'v_writelane_b32 v11, s100, 62')
    p(f'v_writelane_b32 v11, s101, 61')
    p(f'buffer_store_dword v11, v10, {sWS}, {T[0]} offen')
    if OPT.get('dbgout') and R is CW:
        L = p.newlabel('L_dbg')
        p(f's_cmp_lg_u32 s2, {OPT["dbgout"]}')
        p(f's_cbranch_scc1 {L}')
        p(f's_cmp_lg_u32 {s_w}, 0')
        p(f's_cbranch_scc1 {L}')
        p('s_load_dwordx2 s[40:41], s[0:1], 72')
        p('s_memrealtime s[98:99]')
        p('s_waitcnt lgkmcnt(0)')
        p('s_and_b32 s41, s41, 0xffff')
        p('s_mov_b32 s42, 256')
        p('s_mov_b32 s43, 0x20000')
        p('v_subrev_u32 v11, s100, v11')
        p('s_sub_u32 s98, s98, s86')
        p('v_writelane_b32 v11, s98, 15')
        p('buffer_store_dword v11, v10, s[40:43], 0 offen')
        p.label(L)


R = HW
def touch_st():
    p('v_bfe_u32 v250, v1, 2, 1')
    p('v_lshlrev_b32 v250, 12, v250')
    p('v_and_b32 v251, 3, v1')
    p('v_lshl_add_u32 v250, v251, 7, v250')
    p(f's_lshl_b32 {T[6]}, {s_rs}, 13')
    p(f's_lshl_b32 {T[7]}, {s_cb}, 9')
    p(f's_add_u32 {T[6]}, {T[6]}, {T[7]}')
    p(f's_add_u32 {T[6]}, {T[6]}, {STB}')
    p(f'buffer_load_dword v253, v250, {sWS}, {T[6]} offen sc1')
    R.vm.issue('t')


def touch_fl():
    p('v_bfe_u32 v250, v1, 2, 2')
    p('v_min_u32 v250, 2, v250')
    p('v_lshlrev_b32 v250, 13, v250')
    p('v_and_b32 v251, 3, v1')
    p('v_lshl_add_u32 v250, v251, 7, v250')
    p(f's_lshl_b32 {T[6]}, {s_rb}, 9')
    p(f's_add_u32 {T[6]}, {T[6]}, {FO}')
    p(f'buffer_load_dword v254, v250, {sWS}, {T[6]} offen sc1')
    R.vm.issue('t')


TM = OPT['tmode']
after = {1: {0: [2], 1: [4], 2: [6]}, 2: {0: [2, 4], 1: [6]}, 3: {0: [2], 1: [4], 3: [6]}, 4: {0: [2, 4, 6]}}[TM]


def chunk_t(R, ch):
    gs = chunk_groups(R, ch) + [wtouch(R, i) for i in after.get(ch, [])]
    if ch == OPT['qat']:
        gs.append(qtouch(R))
    if OPT['mallat'] < 8:
        m = OPT['mallat']
        gs += {m: [warm_mall(R, sW1)], m + 1: [warm_mall(R, sW2)], m + 2: [warm_wo(R), touch_fl, touch_st]}.get(ch, [])
    return gs


for g in [wtouch(R, 0)] + chunk_t(R, 0) + [srds_w]:
    g()
tr_kv_lane('v19')
p(f's_and_b32 {T[0]}, {s_q}, 1')
p(f's_lshl_b32 {T[0]}, {T[0]}, 6')
p(f'v_xor_b32 v19, {T[0]}, v19')
p(f's_sub_u32 {s_tt}, 7, {s_w}')
x_lane('v9')
XQ = [20 + 4 * i for i in range(4)] + [68 + 4 * i for i in range(8)] + [120 + 4 * i for i in range(10)] + [196 + 4 * i for i in range(10)]
AQ = 236


def wq_lane():
    p('v_lshrrev_b32 v10, 2, v1')
    p(f's_lshl_b32 {T[0]}, {s_q}, 7')
    p(f'v_add_u32 v10, {T[0]}, v10')
    p(f's_movk_i32 {T[1]}, 3072')
    p(f'v_mul_lo_u32 v10, v10, {T[1]}')
    p('v_and_b32 v11, 3, v1')
    p('v_lshl_add_u32 v10, v11, 4, v10')
    p(f's_lshl_b32 {T[1]}, {s_c}, 6')
    p(f'v_add_u32 v7, {T[1]}, v10')
    p('v_bfe_u32 v10, v1, 2, 2')
    p('v_lshrrev_b32 v11, 5, v1')
    p('v_lshl_add_u32 v10, v11, 3, v10')
    p('v_lshlrev_b32 v10, 6, v10')
    p('v_bfe_u32 v11, v1, 4, 1')
    p('v_lshl_add_u32 v10, v11, 5, v10')
    p('v_and_b32 v11, 3, v1')
    p('v_lshl_add_u32 v10, v11, 3, v10')
    p(f'v_add_u32 v8, {L_WQ}, v10')


def wq_piece(n):
    def f():
        p(f's_lshl_b32 {T[7]}, {s_q}, 13')
        p(f's_add_u32 m0, {T[7]}, {L_WQ + n * 1024}')
        p(f's_mov_b32 {T[7]}, {n * 16 * 3072}')
        p(f'buffer_load_dwordx4 v7, {sWQKV}, {T[7]} offen lds')
        R.vm.issue('wq')
    return f

STG = [120 + 4 * i for i in range(10)] + [196 + 4 * i for i in range(14)]
ONE, CSA = 104, 52
for r in range(4):
    p(f'v_mov_b32 v{ONE + r}, 0x3f803f80')


def w1_stage(n):
    def f():
        if n % 3 == 0:
            p(f's_mul_i32 {T[6]}, {s_q}, {8 * 16 * 2752}')
            p(f's_add_u32 {T[6]}, {T[6]}, {(n // 3) * 16 * 2752}')
        p(f'buffer_load_dwordx4 {vr(STG[n], 4)}, v{112 + n % 3}, {sW1}, {T[6]} offen' + (' nt' if OPT.get('nt_w1') else ''))
        R.vm.issue('w1')
    return f


def get_tag():
    p(f'v_mov_b32 v10, {S_TAG}')
    p('ds_read_b32 v10, v10')
    p('s_waitcnt lgkmcnt(0)')
    p(f'v_readfirstlane_b32 {s_tag}, v10')


def hw_masks():
    make_masks()
    p(f's_and_b32 {s_q}, {s_w}, 3')


p('v_mov_b32 v10, 0')
p('v_mov_b32 v11, 0')
p('v_lshlrev_b32 v12, 3, v1')
p('v_and_b32 v12, 63, v12')
p(f'ds_write_b64 v12, v[10:11] offset:{S_SYNC}')
common_setup(R)
w1_dma_lanes(['v112', 'v113', 'v114'])
hw_masks()
w64_dma_lane('v115')
att_addrs()
wq_lane()
R.dstamp('P1', 'setup')
for g in chunk_t(R, 1) + (chunk_t(R, 2) if OPT['la'] == 3 else []):
    g()
R.stamp('start')
late = [w1_stage(n) for n in range(24)]
fill = {1: [get_tag]}
for ch in range(8):
    slot = RING + (ch % NSLOT) * SLOT
    p(f'v_add_u32 v14, {slot + 16384}, v19')
    p(f'v_add_u32 v108, {slot}, v9')
    for ks in range(1, 4):
        p(f'v_xor_b32 v{(108, 109, 116, 117)[ks]}, {32 * ks}, v108')
    if ch >= 4:
        R.dstamp('P1', f'iss{ch}')
    R.vm.wait([('ch', ch)])
    if ch == 0:
        p('s_waitcnt lgkmcnt(0)')
    if ch >= 4:
        R.dstamp('P1', f'vm{ch}')
    R.bar()
    R.dstamp('P1', f'bar{ch}')
    for ks in range(4):
        for rd in range(2):
            p(f'ds_read_b64_tr_b16 {vr(36 + 4 * ks + 2 * rd, 2)}, v14 offset:{ks * 2048 + rd * 512}')
    for ks in range(4):
        p(f'ds_read_b128 {vr(XQ[4 * ch + ks], 4)}, v{(108, 109, 116, 117)[ks]}')
    LA = OPT['la']
    if ch + LA < 8:
        extra = chunk_t(R, ch + LA)
    elif ch == 8 - LA:
        extra = [wq_piece(n) for n in range(8)]
    else:
        extra = []
    mf = [(lambda ks=ks: p(f'v_mfma_f32_32x32x16_bf16 {vr(CSA, 16)}, {vr(ONE, 4)}, {vr(36 + 4 * ks, 4)}, {"0" if ch == 0 and ks == 0 else vr(CSA, 16)}')) for ks in range(4)]
    other = [lambda: p('s_waitcnt lgkmcnt(0)')] + mf + fill.get(ch, [])
    for k, g in enumerate(extra):
        g()
        if k >= 1 and other:
            other.pop(0)()
            if k == 1:
                other.pop(0)()
    for g in other:
        g()
p('v_and_b32 v10, 31, v1')
p('v_lshlrev_b32 v10, 2, v10')
p(f's_and_b32 {T[0]}, {s_q}, 1')
p(f's_lshl_b32 {T[0]}, {T[0]}, 7')
p(f'v_add_u32 v11, {T[0]}, v10')
p(f'ds_write_b32 v11, v{CSA} offset:{S_CS + 128}')
p('s_waitcnt lgkmcnt(0)')
R.bar()
R.stamp('B1')
R.dstamp('P2', 'B1')
burst = [warm_wo(R), warm_mall(R, sW1), warm_mall(R, sW2), touch_fl, touch_st]
if OPT['small']:
    burst[1] = burst[2] = lambda: None
if OPT['mallat'] == 8:
    for g in burst:
        g()
p('v_min_u32 v15, 23, v1')
p('v_lshrrev_b32 v16, 3, v15')
p(f'v_add_u32 v16, {s_rb}, v16')
p('v_cmp_le_u32 vcc, 2, v16')
p('v_mov_b32 v13, 0')
p('v_cndmask_b32 v44, v13, v18, vcc')
p('v_mov_b32 v45, v44')
p('v_mov_b32 v46, v44')
p('v_mov_b32 v47, v44')
p(f'v_mul_u32_u24 v15, {VSTR}, v15')
p(f'v_add_u32 v15, {L_V + 1024}, v15')
p('ds_write_b128 v15, v[44:47]')
p('v_mov_b32 v118, 0')
p('v_mov_b32 v119, 1')
p(f's_lshl_b32 {T[0]}, {s_tt}, 7')
p(f'v_add_u32 v11, {T[0]}, v10')
p(f'ds_read_b32 v108, v11 offset:{S_R}')
p(f'ds_read_b32 v109, v11 offset:{S_M}')
R.vm.wait(['wq'])
p(f's_lshl_b32 {T[0]}, {s_q}, 13')
p(f'v_add_u32 v14, {T[0]}, v8')
signal(R, H_WQ, 'v118', 'v119')
R.lg.reset()
for k in range(8 + 3):
    if k < 8:
        for rd in range(2):
            dsr(R, 'ds_read_b64_tr_b16', vr(36 + 4 * (k % 4) + 2 * rd, 2), ['v14'], k * 1024 + rd * 256, ('c', k))
    if k >= 3:
        R.lg.wait([('c', k - 3)])
        p(f'v_mfma_f32_32x32x16_bf16 {vr(CSA, 16)}, {vr(ONE, 4)}, {vr(36 + 4 * ((k - 3) % 4), 4)}, {"0" if k == 3 else vr(CSA, 16)}')
lwait(R, H_WQ, 'v118', 'v12')
p(f's_lshl_b32 {T[0]}, {s_q}, 7')
p(f'v_add_u32 v11, {T[0]}, v10')
p('v_lshrrev_b32 v12, 5, v1')
p('v_lshlrev_b32 v12, 4, v12')
for k in range(32 + 3):
    if k < 32:
        for rd in range(2):
            dsr(R, 'ds_read_b64_tr_b16', vr(36 + 4 * (k % 4) + 2 * rd, 2), ['v8'], k * 1024 + rd * 256, ('q', k))
    if k >= 3:
        R.lg.wait([('q', k - 3)])
        p(f'v_mfma_f32_32x32x16_bf16 {vr(AQ, 16)}, {vr(36 + 4 * ((k - 3) % 4), 4)}, {vr(XQ[k - 3], 4)}, {"0" if k == 3 else vr(AQ, 16)}')
    if OPT['mallat'] == 9 and k in (8, 10, 12, 14, 16):
        burst[(k - 8) // 2]()
    if k == 4:
        p(f'ds_write_b32 v11, v{CSA} offset:{S_CSQ}')
        R.lg.issue('w')
        signal(R, H_CSQ, 'v118', 'v119')
    if k == 20:
        lwait(R, H_CSQ, 'v118', 'v13')
    if k in (21, 23, 25, 27):
        q = (k - 21) // 2
        R.lg.room(4)
        for g in range(4):
            p(f'ds_read_b128 {vr((CSA if q == 0 else 68 + 16 * ((q - 1) % 2)) + 4 * g, 4)}, v12 offset:{S_CSQ + 128 * q + 32 * g}')
            R.lg.issue(('p', q))
    if k in (25, 27, 29):
        q = (k - 23) // 2
        R.lg.wait([('p', q)])
        for i in range(16):
            p(f'v_add_f32 v{CSA + i}, v{CSA + i}, v{68 + 16 * ((q - 1) % 2) + i}')
c = 0.25 * LOG2E
p(f'v_mul_f32 v108, {fhex(c)}, v108')
p(f'v_mul_f32 v109, {fhex(c)}, v109')
for i in range(16):
    p(f'v_mul_f32 v{CSA + i}, v109, v{CSA + i}')
p(f's_lshl_b32 {T[0]}, {s_tt}, 10')
p(f's_add_u32 {T[0]}, {T[0]}, {L_QX}')
p(f'v_add_u32 v14, {T[0]}, v2')
for i in range(16):
    p(f'v_fma_f32 v{AQ + i}, v{AQ + i}, v108, -v{CSA + i}')
for r in range(4):
    p(f'v_cvt_pk_bf16_f32 v{40 + r}, v{AQ + 2 * r}, v{AQ + 2 * r + 1}')
p('ds_write_b128 v14, v[40:43]')
for r in range(4):
    p(f'v_cvt_pk_bf16_f32 v{VQ + r}, v{AQ + 8 + 2 * r}, v{AQ + 8 + 2 * r + 1}')
signal(R, H_Q, 'v118', 'v119')
R.dstamp('P2', 'epi')
lwait(R, C_KV, 'v118', 'v12')
R.stamp('B2')
R.dstamp('P2', 'B2')


def wo_piece(q):
    def f():
        p(f's_lshl_b32 {T[6]}, {s_q}, 14')
        p(f's_add_u32 m0, {T[6]}, {L_WO + q * 1024}')
        p(f's_lshl_b32 {T[6]}, {s_q}, 17')
        p(f's_add_u32 {T[6]}, {T[6]}, {q * 8192}')
        p(f'buffer_load_dwordx4 v115, {sWO}, {T[6]} offen lds')
        R.vm.issue('wo')
    return f


def wo_done():
    R.vm.wait(['wo'])
    signal(R, H_WO, 'v118', 'v119')


wo = [wo_piece(q) for q in range(16)]
if OPT['mallat'] == 11:
    lwait(R, C_FLAG, 'v118', 'v12')
    for g in [burst[1], burst[0], burst[3], burst[4]] + ([burst[2]] if OPT['m2early'] else []):
        g()
if OPT['wopos'] == 0:
    for g in wo:
        g()
    wo = []
att_2a(R)
if OPT['wopos'] == 1 or OPT['mallat'] == 10:
    lwait(R, C_HALO, 'v118', 'v12')
if OPT['mallat'] == 10:
    for g in [burst[1], burst[0], burst[3], burst[4]] + ([burst[2]] if OPT['m2early'] else []):
        g()
if not OPT['wolate']:
    for g in wo:
        g()
    wo = []
R.dstamp('P2', 'pref')
R.bar()
R.stamp('B3')
R.dstamp('P2', 'B3')
p(f'v_mov_b32 v10, {S_MODE}')
p('ds_read_b32 v10, v10')
p('s_waitcnt lgkmcnt(0)')
p(f'v_readfirstlane_b32 {s_mode}, v10')


def w2_groups(lst, regs=None):
    lst = list(lst)
    while len(lst) % 4:
        lst.append(lst[-1])
    gs = []
    if OPT.get('x_now2'):
        return [lambda: None] * (len(lst) // 2)
    for n in range(len(lst) // 4):
        ks = lst[4 * n:4 * n + 4]
        src = [k * 16 * 1024 for k in ks]
        dst = [w2_pos[k] for k in ks]

        def sel(reg, vals):
            d = vals[1] - vals[0]
            if all(vals[q] == vals[0] + q * d for q in range(4)):
                p(f's_mul_i32 {reg}, {s_q}, {d}')
                p(f's_add_u32 {reg}, {reg}, {vals[0]}')
            else:
                p(f's_mov_b32 {reg}, {vals[0]}')
                for q in range(1, 4):
                    p(f's_cmp_eq_u32 {s_q}, {q}')
                    p(f's_cselect_b32 {reg}, {vals[q]}, {reg}')

        def g0(src=src, dst=dst, n=n):
            sel(T[6], src)
            if regs is None:
                sel(T[7], dst)
                p(f's_mov_b32 m0, {T[7]}')
                p(f'buffer_load_dwordx4 v115, {sW2}, {T[6]} offen lds')
            else:
                p(f'buffer_load_dwordx4 {vr(regs[2 * n], 4)}, v115, {sW2}, {T[6]} offen')
            R.vm.issue(('w2', 2 * n))

        def g1(n=n):
            p(f's_add_u32 {T[6]}, {T[6]}, 8192')
            if regs is None:
                p(f's_add_u32 m0, {T[7]}, 1024')
                p(f'buffer_load_dwordx4 v115, {sW2}, {T[6]} offen lds')
            else:
                p(f'buffer_load_dwordx4 {vr(regs[2 * n + 1], 4)}, v115, {sW2}, {T[6]} offen')
            R.vm.issue(('w2', 2 * n + 1))
        gs += [g0, g1]
    return gs


p(f's_setprio {OPT["hprio"]}')
ex = ([touch_st] if OPT['m2at'] >= 2 else []) + ([burst[2]] if OPT['m2at'] == 3 else []) + wo + late[:8] + [wo_done] + late[8:] + ([burst[2]] if OPT['mallat'] >= 10 and not OPT['m2early'] else [])
sl = [lambda: None] * 44
for i, g in enumerate(ex):
    sl[i * 44 // len(ex)] = g
ex = sl
att_2b(R, ex, lambda: None)
p('s_setprio 0')
p('v_min_u32 v10, 47, v1')
p('v_lshlrev_b32 v11, 2, v10')
p(f's_mul_i32 {T[0]}, {s_c}, 192')
p(f'buffer_load_dword v12, v11, {sB1}, {T[0]} offen')
R.vm.issue('b1')
p(f's_mul_i32 {T[0]}, {s_q}, {8 * 3072}')
p(f's_add_u32 {T[0]}, {T[0]}, {BASE}')
p(f'v_add_u32 v3, {T[0]}, v2')
R.bar()
for n in range(24):
    p(f'ds_write_b128 v3, {vr(STG[n], 4)} offset:{n * 1024}')
    if n % 4 == 3:
        p('s_waitcnt lgkmcnt(4)')
LST = [120 + 4 * i for i in range(28)]
gl = w2_groups(late_order, LST)
NC = OPT['w2c']
R.vm.wait(['b1'])
p('v_lshlrev_b32 v14, 16, v12')
p('v_and_b32 v15, 0xffff0000, v12')
p('v_lshlrev_b32 v11, 3, v10')
p(f'ds_write_b64 v11, v[14:15] offset:{S_B1}')
p('v_mov_b32 v16, 0')
p('v_mov_b32 v17, 1')
signal(R, H_W1, 'v16', 'v17')
R.dstamp('P3', 'w1wr')
tr96_lane('v3')
p(f's_min_u32 {T[1]}, {s_q}, 2')
p(f's_lshl_b32 {T[1]}, {T[1]}, 6')
p(f'v_add_u32 v3, {T[1]}, v3')
p('v_add_u32 v4, 0x10000, v3')
p('v_mov_b32 v18, 0x3f803f80')
p('v_mov_b32 v100, 0')
p('v_mov_b32 v101, 0')
lwait(R, C_OIS, 'v16', 'v10')
if OPT['m2at'] == 2:
    p('v_min_u32 v19, 11, v1')
    p('v_lshlrev_b32 v19, 7, v19')
    p(f's_lshl_b32 {T[7]}, s2, 2')
    p(f's_add_u32 {T[7]}, {T[7]}, {s_q}')
    p(f's_mul_i32 {T[7]}, {T[7]}, 1536')
    p(f'buffer_load_dword v254, v19, {sW2}, {T[7]} offen')
for g in w2_groups(W2_REG) + gl[:NC]:
    g()
lwait(R, H_W1, 'v16', 'v10')
for s0 in range(0, 0 if OPT.get('x_nocs') else 36, 4):
    if s0 < 32:
        for s in range(s0, s0 + 4):
            for rd in range(2):
                dsr(R, 'ds_read_b64_tr_b16', vr(20 + 16 * ((s0 // 4) % 2) + 4 * (s % 4) + 2 * rd, 2), ['v3', 'v4'], w1_addr(s) + rd * 1536, ('c', s0))
    if s0 >= 4:
        R.lg.wait([('c', s0 - 4)])
        for r in range(16):
            p(f'v_dot2c_f32_bf16 v{100 + (r & 1)}, v{20 + 16 * ((s0 // 4 - 1) % 2) + r}, v18')
p('v_add_f32 v100, v100, v101')
half_sum('v100', 'v101')
p('v_and_b32 v10, 31, v1')
p('v_lshlrev_b32 v10, 2, v10')
p(f's_lshl_b32 {T[1]}, {T[1]}, 1')
p(f'v_add_u32 v11, {T[1]}, v10')
p(f'ds_write_b32 v11, v100 offset:{S_CS1}')
p(f's_lshl_b32 {T[1]}, {s_rb}, 2')
p(f's_add_u32 {T[1]}, {T[1]}, {s_q}')
p(f's_lshl_b32 {T[2]}, {T[1]}, 7')
p(f's_add_u32 {T[2]}, {T[2]}, {FH}')
p('v_and_b32 v12, 15, v1')
p('v_lshlrev_b32 v12, 2, v12')
p(f'v_add_u32 v12, {T[2]}, v12')
p(f's_lshl_b32 {T[1]}, {T[1]}, 12')
p(f's_add_u32 {T[1]}, {T[1]}, {STB}')
p('v_lshrrev_b32 v13, 5, v1')
p('v_lshlrev_b32 v13, 11, v13')
p('v_lshl_add_u32 v13, v10, 1, v13')
poll(R, 'v12', 'v11', slow=True)
for q in range(8):
    p(f'buffer_load_dwordx2 {vr(20 + 2 * q, 2)}, v13, {sWS}, {T[1]} offen offset:{q * 256} sc1')
p(f's_lshl_b32 {T[0]}, {s_q}, 7')
p(f'v_add_u32 v10, {T[0]}, v10')
p('s_waitcnt vmcnt(0)')
for q in range(1, 8):
    p(f'v_add_f32 v20, v20, v{20 + 2 * q}')
    p(f'v_add_f32 v21, v21, v{21 + 2 * q}')
half_sum('v20', 'v11')
half_sum('v21', 'v11')
ln_finish('v20', 'v21', 'v22', 'v23')
p('v_sub_f32 v23, 0, v23')
p(f'ds_write_b32 v10, v22 offset:{S_R}')
p(f'ds_write_b32 v10, v23 offset:{S_M}')
signal(R, H_TAB, 'v16', 'v17')
R.dstamp('P3', 'cs1')
R.dstamp('P4', 'cs1')
p(f's_lshl_b32 {T[0]}, {s_q}, 11')
p(f's_add_u32 {T[0]}, {T[0]}, {BASE}')
p(f'v_add_u32 v3, {T[0]}, v2')
p('v_add_u32 v4, 0x10000, v3')
lwait(R, C_ISS, 'v16', 'v10')
R.dstamp('P4', 'iss')
for g in w2_groups(W2_P1):
    g()
R.vm.q = ['w2p1' for _ in R.vm.q]
for g in gl[NC:NC + 8]:
    g()
R.vm.wait(['w2p1'])
signal(R, H_P1, 'v16', 'v17')
for g in gl[NC + 8:]:
    g()
R.dstamp('P4', 'late')
lwait(R, C_END, 'v16', 'v10')
for n in range(28):
    R.vm.wait([('w2', n)])
    off = (n // 2) * 8192 + (n % 2) * 1024
    p(f'ds_write_b128 v{3 + off // 65536}, {vr(LST[n], 4)} offset:{off % 65536}')
    if n % 4 == 3:
        p('s_waitcnt lgkmcnt(4)')
signal(R, H_LATE, 'v16', 'v17')
R.dstamp('P5', 'latedone')
L7 = p.newlabel('L_n7')
Le = p.newlabel('L_ep')
Led = p.newlabel('L_epd')
p('s_cmp_lg_u32 s2, 0')
p(f's_cbranch_scc1 {L7}')
p(f's_cmp_lg_u32 {s_w}, 7')
p(f's_cbranch_scc1 {L7}')
p('v_lshrrev_b32 v12, 2, v1')
p('v_lshlrev_b32 v12, 7, v12')
p('v_and_b32 v13, 3, v1')
p('v_lshl_add_u32 v12, v13, 4, v12')
p(f's_mov_b32 {T[0]}, 0')
p.label(Le)
for q in range(16):
    p(f's_mov_b32 {T[1]}, {RST + 2048 * q}')
    p(f'buffer_load_dword v{20 + q}, v12, {sWS}, {T[1]} offen offset:4 sc1')
p('s_waitcnt vmcnt(0)')
p('s_mov_b64 vcc, 0')
for q in range(16):
    p(f'v_cmp_ne_u32 s[90:91], {s_tag}, v{20 + q}')
    p('s_or_b64 vcc, vcc, s[90:91]')
p(f's_cbranch_vccz {Led}')
p(f's_add_u32 {T[0]}, {T[0]}, 1')
p(f's_cmp_lt_u32 {T[0]}, {OPT["spin"]}')
p(f's_cbranch_scc1 {Le}')
p.label(Led)
p('v_mov_b32 v10, 0')
p(f'v_mov_b32 v11, {s_tag}')
p('s_mov_b64 exec, 1')
p(f'buffer_store_dword v11, v10, {sWS}, 0 offen sc1')
p('s_mov_b64 exec, -1')
p.label(L7)
dump_stamps(R)
p.label('L_end')
p('s_endpgm')
while tail:
    tail.pop(0)()
tail = []

R = CW
p.label('L_CW')
if OPT['small']:
    st = OPT['small']
    p('s_waitcnt lgkmcnt(0)')
    p(f's_lshl_b32 {T[0]}, s2, 2')
    p(f's_add_u32 {T[0]}, {T[0]}, {s_q}')
    p(f's_mul_i32 {T[0]}, {T[0]}, 1376')
    for lo in (72, 76):
        p(f's_add_u32 s90, s{lo}, {T[0]}')
        p(f's_addc_u32 s91, s{lo + 1}, 0')
        for o in sorted(set(list(range(0, 1376, st)) + [1372])):
            p(f's_load_dword s92, s[90:91], {o}')
srds_w()
common_setup(R)


def tlbwarm():
    if not OPT['tlbwarm']:
        return
    p('v_and_b32 v250, 7, v1')
    p('v_min_u32 v250, 5, v250')
    p('v_lshlrev_b32 v250, 21, v250')
    p('v_mov_b32 v251, 0')
    p(f'buffer_load_dword v252, v250, {sWS}, 0 offen offset:2048 sc1')
    for k, d in enumerate((sWO, sW1, sW2, sOUT, sB1, sB2)):
        p(f'buffer_load_dword v{254 + (k & 1)}, v251, {d}, 0 offen')
    for _ in range(7):
        R.vm.issue('t')


p(f's_mov_b32 s65, {T[5]}')
make_masks()
p(f's_and_b32 {s_q}, {s_w}, 3')
x_lane('v9')
p(f's_lshl_b32 {T[0]}, {s_rb}, 11')
p(f's_add_u32 {T[0]}, {T[0]}, {RST}')
p(f'v_lshlrev_b32 v8, 4, v10')
p(f'v_add_u32 v8, {T[0]}, v8')
p('v_and_b32 v7, 31, v1')
p('v_lshlrev_b32 v7, 3, v7')
p(f's_lshl_b32 {T[1]}, {s_team}, 8')
p(f's_add_u32 {T[1]}, {T[1]}, {ST}')
p(f'v_add_u32 v7, {T[1]}, v7')
tr_kv_lane('v19')
XF = [20, 36]
WF = [52, 100]
AK, AV = 212, 228
GR = 148


def p1_addrs(ch):
    slot = RING + (ch % NSLOT) * SLOT
    p(f'v_add_u32 v10, {slot}, v9')
    for ks in range(1, 4):
        p(f'v_xor_b32 v{10 + ks}, {32 * ks}, v10')
    p(f'v_add_u32 v14, {slot + 16384}, v19')
    p('v_xor_b32 v15, 64, v14')


def p1_reads(ch):
    b = ch & 1
    out = []
    for ks in range(4):
        out.append(f'ds_read_b128 {vr(XF[b] + 4 * ks, 4)}, v{10 + ks}')
        for sec in (0, 1):
            for rd in range(2):
                out.append(f'ds_read_b64_tr_b16 {vr(WF[b] + 16 * sec + 4 * ks + 2 * rd, 2)}, v{14 + sec} offset:{ks * 2048 + rd * 512}')
    return out


def p1_mfmas(ch):
    a = ch & 1
    out = []
    for ks in range(4):
        first = ch == 0 and ks == 0
        x = vr(XF[a] + 4 * ks, 4)
        c = lambda r: '0' if first else vr(r, 16)
        out.append(f'v_mfma_f32_32x32x16_bf16 {vr(AK, 16)}, {vr(WF[a] + 4 * ks, 4)}, {x}, {c(AK)}')
        out.append(f'v_mfma_f32_32x32x16_bf16 {vr(AV, 16)}, {x}, {vr(WF[a] + 16 + 4 * ks, 4)}, {c(AV)}')
    return out


def weave(R, mf, lds, extra=(), per=3):
    lds = list(lds)
    extra = list(extra)
    n = 0

    def emit_lds(k):
        nonlocal n
        for _ in range(k):
            if not lds:
                return
            if n and n % 7 == 0 and n >= 14:
                p('s_waitcnt lgkmcnt(7)')
            p(lds.pop(0))
            n += 1
    for i, m in enumerate(mf):
        p(m)
        emit_lds(per)
        if extra and i % 3 == 2:
            extra.pop(0)()
    emit_lds(99)
    for g in extra:
        g()


def kv_ids():
    p(f's_lshl_b32 {T[2]}, {s_rb}, 4')
    p(f's_add_u32 {T[2]}, {T[2]}, {s_c}')
    p(f's_lshl_b32 {T[4]}, {T[2]}, 5')
    p(f's_add_u32 {T[4]}, {T[4]}, {s_w}')
    p(f's_lshl_b32 {T[4]}, {T[4]}, 2')
    p(f's_add_u32 {T[4]}, {T[4]}, {FKV}')
    p(f's_lshl_b32 {T[5]}, {s_w}, 12')
    p(f's_add_u32 {T[5]}, {T[5]}, {s_area}')
    p(f's_add_u32 {T[2]}, {T[5]}, {32 * 16384}')


def kv_clear():
    for r in range(4):
        p(f'v_mov_b32 v{244 + r}, -1')
    for q in range(4):
        p(f'buffer_store_dwordx4 v[244:247], v2, {sWS}, {T[2]} offen offset:{q * 1024} sc1')
        R.vm.issue('st')


def kv_cleared():
    flag_store(R, T[4], 'v248', 'v249', moded=False)


kv_ids()
if OPT['kvtag'] and OPT['clrat'] == -1:
    kv_clear()
p(f's_cmp_ge_u32 {s_rb}, 1')
p(f's_cselect_b32 {T[0]}, {16 * 128}, 0')
p(f's_sub_u32 {T[0]}, {T[4]}, {T[0]}')
p(f's_cmp_ge_u32 {s_rb}, 2')
p(f's_cselect_b32 {T[1]}, {2 * 16 * 128}, 0')
p(f's_sub_u32 {T[1]}, {T[4]}, {T[1]}')
p(f'v_mov_b32 v6, {T[0]}')
p(f'v_mov_b32 v11, {T[1]}')
p('v_and_b32 v12, 1, v1')
p('v_cmp_eq_u32 vcc, 1, v12')
p('v_cndmask_b32 v6, v6, v11, vcc')
row_stats(R)
p1_addrs(0)
R.stamp('start')
CSQ, CSK, RR, MM, CSV = 52, 68, 20, 84, 152
for ch in range(8):
    p('s_waitcnt lgkmcnt(0)')
    if ch >= 4:
        R.dstamp('P1', f'pre{ch}')
    R.bar()
    R.dstamp('P1', f'bar{ch}')
    extra = []
    if ch == 5:
        def ld():
            p(f'buffer_load_dwordx4 {vr(GR, 4)}, v8, {sWS}, 0 offen sc1')
            p(f'buffer_load_dwordx2 v[156:157], v7, {sWS}, 0 offen sc1')
            R.vm.issue('gr')
            R.vm.issue('gr')
            if OPT['fkvt']:
                p(f'buffer_load_dword v253, v6, {sWS}, 0 offen sc1')
                R.vm.issue('t')

        extra = [ld]
    if ch == 0:
        extra = [tlbwarm]
    if OPT['mallat'] == 20 + ch:
        def cw_burst():
            p('v_min_u32 v17, 11, v1')
            p('v_lshlrev_b32 v17, 7, v17')
            for g in (warm_mall(R, sW1), warm_wo(R), touch_fl) + ((warm_mall(R, sW2), touch_st) if OPT['m2at'] == 0 else ()):
                g()
        extra = extra + [cw_burst]
    if ch == OPT['clrat'] and OPT['kvtag']:
        extra = extra + [kv_clear]
    if ch == OPT['clrdone'] and OPT['kvtag']:
        extra = [kv_cleared]
    weave(R, p1_mfmas(ch - 1) if ch else [], p1_reads(ch), extra)
    if ch < 7:
        p1_addrs(ch + 1)
Lg = p.newlabel('L_gr')
Lgx = p.newlabel('L_grx')
R.vm.wait(['gr'])
p(f's_mov_b32 {T[0]}, 0')
p.label(Lg)
p(f'v_cmp_ne_u32 vcc, {s_tag}, v{GR + 1}')
p(f'v_cmp_ne_u32 s[90:91], {s_tag}, v{GR + 3}')
p('s_or_b64 vcc, vcc, s[90:91]')
p(f'v_cmp_ne_u32 s[90:91], {s_tag}, v156')
p('s_or_b64 vcc, vcc, s[90:91]')

p(f's_cbranch_vccnz {Lgx}')
Lgd = p.newlabel('L_grd')
p.label(Lgd)


def gr_retry():
    p.label(Lgx)
    p(f'buffer_load_dwordx4 {vr(GR, 4)}, v8, {sWS}, 0 offen sc1')
    p(f'buffer_load_dwordx2 v[156:157], v7, {sWS}, 0 offen sc1')
    p('s_waitcnt vmcnt(0)')
    p(f's_add_u32 {T[0]}, {T[0]}, 1')
    p(f's_cmp_lt_u32 {T[0]}, {OPT["spin"]}')
    p(f's_cbranch_scc1 {Lg}')
    p(f's_branch {Lgd}')


tail.append(gr_retry)
p(f'v_readfirstlane_b32 {T[1]}, v157')
p(f'v_cmp_ne_u32 vcc, {T[1]}, v157')
p('s_cmp_eq_u64 vcc, 0')
p(f's_cselect_b32 {s_mode}, 1, 0')
if OPT['force_safe']:
    p(f's_mov_b32 {s_mode}, 0')
p(f'v_mov_b32 v10, {S_MODE}')
p(f'v_mov_b32 v11, {s_mode}')
p('ds_write_b32 v10, v11')
p('v_and_b32 v10, 31, v1')
p('v_lshlrev_b32 v10, 2, v10')
p(f's_lshl_b32 {T[0]}, {s_tt}, 7')
p(f'v_add_u32 v11, {T[0]}, v10')
p(f'ds_write_b32 v11, v{GR} offset:{S_R}')
p(f'ds_write_b32 v11, v{GR + 2} offset:{S_M}')
p('v_lshrrev_b32 v12, 5, v1')
p('v_lshlrev_b32 v12, 4, v12')
p(f'v_add_u32 v13, {T[0]}, v12')
p('s_waitcnt lgkmcnt(0)')
R.bar()
R.stamp('B1')
R.dstamp('P2', 'B1')
lds = [f'ds_read_b128 {vr(CSK + 4 * g, 4)}, v12 offset:{S_CS + 128 + 32 * g}' for g in range(4)]
lds += [f'ds_read_b32 v{CSV}, v10 offset:{S_CS + 256}']
lds += [f'ds_read_b128 {vr(MM + 4 * g, 4)}, v13 offset:{S_M + 32 * g}' for g in range(4)]
lds += [f'ds_read_b128 {vr(RR + 4 * g, 4)}, v13 offset:{S_R + 32 * g}' for g in range(4)]


def pub_addrs():
    p(f's_lshl_b32 {T[0]}, {s_tt}, 11')
    p(f's_add_u32 {T[1]}, {T[0]}, {L_K + 8 * 2048}')
    p(f'v_add_u32 v15, {T[1]}, v2')
    p(f's_mul_i32 {T[0]}, {s_tt}, {2 * VSTR}')
    p(f's_add_u32 {T[0]}, {T[0]}, {L_V + 16 * VSTR}')
    p(f'v_add_u32 v16, {T[0]}, v2')


mf = p1_mfmas(7)
mf = mf[0::2] + mf[1::2]


def st_pair(reg, off):
    def f():
        if OPT['kvtag']:
            for r in range(0, 8, 2):
                p(f'v_min_u32 v{reg + r}, -2, v{reg + r}')
        for g in range(2):
            p(f'buffer_store_dwordx4 {vr(reg + 4 * g, 4)}, v2, {sWS}, {T[2]} offen offset:{off + g * 1024} sc1')
            R.vm.issue('st')
    return f


PKK, PKV = 244, 52
for x in lds[:9]:
    p(x)
p(mf[0])
for x in lds[9:13]:
    p(x)
p(mf[1])
pub_addrs()
p(mf[2])
p('s_waitcnt lgkmcnt(9)')
for i in range(8):
    p(f'v_mul_f32 v{CSK + i}, v{GR + 2}, v{CSK + i}')
p(mf[3])
for i in range(8, 16):
    p(f'v_mul_f32 v{CSK + i}, v{GR + 2}, v{CSK + i}')
p(mf[4])
p('s_waitcnt lgkmcnt(4)')
for i in range(8):
    p(f'v_mul_f32 v{MM + i}, v{CSV}, v{MM + i}')
p(mf[5])
for i in range(8, 16):
    p(f'v_mul_f32 v{MM + i}, v{CSV}, v{MM + i}')
kops = [f'v_fma_f32 v{AK + i}, v{AK + i}, v{GR}, -v{CSK + i}' for i in range(16)]
kops += [f'v_cvt_pk_bf16_f32 v{PKK + r}, v{AK + 2 * r}, v{AK + 2 * r + 1}' for r in range(8)]
for m in (6, 7):
    p(mf[m])
    for x in kops[8 * (m - 6):8 * (m - 5)]:
        p(x)
for x in kops[16:]:
    p(x)
st_pair(PKK, 0)()
p('s_waitcnt lgkmcnt(0)')
for i in range(16):
    p(f'v_fma_f32 v{AV + i}, v{AV + i}, v{RR + i}, -v{MM + i}')
for r in range(8):
    p(f'v_cvt_pk_bf16_f32 v{PKV + r}, v{AV + 2 * r}, v{AV + 2 * r + 1}')
st_pair(PKV, 2048)()
for g in range(2):
    p(f'ds_write_b128 v15, {vr(PKK + 4 * g, 4)} offset:{g * 1024}')
    p(f'ds_write_b128 v16, {vr(PKV + 4 * g, 4)} offset:{g * VSTR}')
p(f's_lshl_b32 {T[0]}, {s_tt}, 10')
p(f's_add_u32 {T[0]}, {T[0]}, {L_QX}')
p(f'v_add_u32 v12, {T[0]}, v2')
p('v_mov_b32 v102, 0')
p('v_mov_b32 v103, 1')
signal(R, C_KV, 'v102', 'v103')
att_addrs()
R.dstamp('P2', 'epi')
if not OPT['kvtag']:
    flag_store(R, T[4], 'v10', 'v11', moded=False)
signal(R, C_FLAG, 'v102', 'v103')
R.stamp('KVflag')
R.dstamp('P2', 'KVflag')
p('v_mov_b32 v13, v12')


def cw_2a():
    lwait(R, H_Q, 'v102', 'v10')
    lwait(R, C_KV, 'v102', 'v10')
    p(f'ds_read_b128 {vr(VQ, 4)}, v13')
    att_2a(R)


if OPT['a_first']:
    cw_2a()
p(f's_add_u32 {T[3]}, {T[5]}, {16 * 16384}')
p(f'v_subrev_u32 v15, {8 * 2048}, v15')
p(f'v_subrev_u32 v16, {16 * VSTR}, v16')


def halo_loads():
    for d in (1, 2):
        for q in range(4):
            p(f'buffer_load_dwordx4 {vr(HALO + 16 * (2 - d) + 4 * q, 4)}, v2, {sWS}, {T[3] if d == 1 else T[5]} offen offset:{q * 1024} sc1')


if not OPT['kvtag']:
    poll(R, 'v6', 'v11')
else:
    p(f's_add_u32 {T[0]}, {T[3]}, 4080')
    p(f's_add_u32 {T[1]}, {T[5]}, 4080')
    p(f'v_mov_b32 v10, {T[0]}')
    p(f'v_mov_b32 v11, {T[1]}')
    p('v_and_b32 v12, 1, v1')
    p('v_cmp_eq_u32 vcc, 1, v12')
    p('v_cndmask_b32 v10, v10, v11, vcc')
    p(f'v_add_u32 v12, 1, v12')
    p(f'v_cmp_ge_u32 s[90:91], {s_rb}, v12')
    p('v_cmp_le_u32 vcc, 32, v1')
    p('v_cndmask_b32 v10, v10, v6, vcc')
    p('s_mov_b32 s91, 0')
    Lk = p.newlabel('L_kv')
    Lkx = p.newlabel('L_kvx')
    Lkd = p.newlabel('L_kvd')
    p(f's_mov_b32 {T[0]}, 0')
    p.label(Lk)
    p(f'buffer_load_dword v11, v10, {sWS}, 0 offen sc1')
    p('s_waitcnt vmcnt(0)')
    p('v_cmp_eq_u32 vcc, -1, v11')
    p('s_and_b64 vcc, vcc, s[90:91]')
    p(f'v_cmp_ne_u32 s[92:93], {s_tag}, v11')
    p('s_or_b32 vcc_hi, vcc_hi, s93')
    p(f's_cbranch_vccnz {Lkx}')
    p.label(Lkd)
    R.vm.reset()

    def kvx():
        p.label(Lkx)
        p(f's_add_u32 {T[0]}, {T[0]}, 1')
        p(f's_cmp_lt_u32 {T[0]}, {OPT["spin"]}')
        p(f's_cbranch_scc1 {Lk}')
        p(f's_branch {Lkd}')
    tail.append(kvx)
R.dstamp('P2', 'kvpoll')
halo_loads()
signal(R, C_HALO, 'v102', 'v103')
if OPT['m2at'] == 1:
    warm_mall(R, sW2)()
    touch_st()
NX = 2 if OPT['m2at'] == 1 else 0
if not OPT['a_first']:
    cw_2a()
XRES = 240
HRES = 248
p('v_and_b32 v10, 31, v1')
p(f's_lshl_b32 {T[0]}, {s_rs}, 1')
p(f's_add_u32 {s_tile}, {T[0]}, {s_t}')
p(f's_lshl_b32 {T[0]}, {s_tile}, 5')
p(f'v_add_u32 v10, {T[0]}, v10')
p('v_lshlrev_b32 v10, 10, v10')
p('v_lshrrev_b32 v11, 5, v1')
p('v_lshl_add_u32 v10, v11, 3, v10')
p(f's_lshl_b32 {T[0]}, {s_cb}, 7')
p(f's_lshl_b32 {T[1]}, {s_kh}, 6')
p(f's_add_u32 {T[0]}, {T[0]}, {T[1]}')
p(f'v_add_u32 v9, {T[0]}, v10')
Lz = p.newlabel('L_nohalo')
Lw = p.newlabel('L_halow')
Lzc = p.newlabel('L_zc')
p(f's_mov_b32 {T[0]}, 0')
p.label(Lzc)
p(f's_cmp_lt_u32 {s_rb}, 2')
p(f's_cbranch_scc1 {Lz}')
p.label(Lw)
if OPT['kvtag']:
    Lw2 = Lw


def zero_blk():
    L1 = p.newlabel('L_z1')
    p.label(Lz)
    p('s_waitcnt vmcnt(0)')
    for r in range(16):
        p(f'v_mov_b32 v{HALO + r}, 0')
    p(f's_cmp_eq_u32 {s_rb}, 1')
    p(f's_cbranch_scc1 {Lw}')
    for r in range(16):
        p(f'v_mov_b32 v{HALO + 16 + r}, 0')
    p(f's_branch {Lw}')


tail.append(zero_blk)
if OPT['kvtag']:
    Lv = p.newlabel('L_hv')
    Lvx = p.newlabel('L_hvx')
    Lvd = p.newlabel('L_hvd')
    p('s_waitcnt vmcnt(0)')
    p(f'v_max3_u32 v10, v{HALO}, v{HALO + 2}, v{HALO + 4}')
    p(f'v_max3_u32 v11, v{HALO + 6}, v{HALO + 8}, v{HALO + 10}')
    for k, r in enumerate(range(12, 32, 4)):
        p(f'v_max3_u32 v{10 + (k & 1)}, v{10 + (k & 1)}, v{HALO + r}, v{HALO + r + 2}')
    p('v_max_u32 v10, v10, v11')
    p('v_cmp_eq_u32 vcc, -1, v10')
    p(f's_cbranch_vccnz {Lvx}')
    p.label(Lvd)

    def hvx():
        p.label(Lvx)
        p(f's_add_u32 {T[0]}, {T[0]}, 1')
        p(f's_cmp_ge_u32 {T[0]}, {OPT["spin"]}')
        p(f's_cbranch_scc1 {Lvd}')
        halo_loads()
        p(f's_branch {Lzc}')
    tail.append(hvx)
for g in range(2):
    p(f's_waitcnt vmcnt({7 - g + NX})')
    p(f'ds_write_b128 v15, {vr(HALO + 16 + 4 * g, 4)} offset:{4 * 2048 + g * 1024}')
for g in range(2):
    p(f's_waitcnt vmcnt({5 - g + NX})')
    p(f'ds_write_b128 v16, {vr(HALO + 24 + 4 * g, 4)} offset:{(8 + g) * VSTR}')
R.vm.q = [('hb', g) for g in range(4)] + ['t'] * NX


def halo2(g):
    def f():
        R.vm.wait([('hb', g)])
        R.lg.room(1)
        if g < 2:
            p(f'ds_write_b128 v15, {vr(HALO + 4 * g, 4)} offset:{g * 1024}')
        else:
            p(f'ds_write_b128 v16, {vr(HALO + 4 * g, 4)} offset:{(g - 2) * VSTR}')
        R.lg.issue('hw')
    return f


def halo_done():
    p(f's_add_u32 {T[4]}, {T[4]}, 16')
    R.vm.q = []
    p(f'v_mov_b32 v10, {T[4]}')
    p(f'v_mov_b32 v11, {s_tag}')
    p('s_mov_b64 exec, 1')
    p(f'buffer_store_dword v11, v10, {sWS}, 0 offen sc1')
    p('s_mov_b64 exec, -1')
    for g in range(4):
        p(f'buffer_load_dwordx2 {vr(XRES + 2 * g, 2)}, v9, {sX}, 0 offen offset:{16 * g}')
        R.vm.issue('xres')


for g in range(4):
    halo2(g)()
halo_done()
tr64_lanes('v4', 'v5')
p(f's_lshl_b32 {T[0]}, {s_kh}, 6')
p(f'v_xor_b32 v4, {T[0]}, v4')
p(f'v_xor_b32 v5, {T[0]}, v5')
p(f's_lshl_b32 {T[0]}, {s_kh}, 15')
p(f's_add_u32 {T[0]}, {T[0]}, {L_WO}')
p(f'v_add_u32 v6, {T[0]}, v4')
p(f'v_add_u32 v7, {T[0]}, v5')
p('s_waitcnt lgkmcnt(0)')
R.dstamp('P2', 'halo')
R.bar()
R.stamp('B3')
R.dstamp('P2', 'B3')
WOF, OF, ACC3 = 16, 144, 208


def wo_reads(lo, hi):
    for s in range(lo, hi):
        for nt in range(2):
            for rd in range(2):
                p(f'ds_read_b64_tr_b16 {vr(WOF + 8 * s + 4 * nt + 2 * rd, 2)}, v{6 + nt} offset:{s * 2048 + rd * 1024}')
        if s % 2 == 1:
            p('s_waitcnt lgkmcnt(4)')


def cw_wo():
    p('v_mov_b32 v102, 0')
    lwait(R, H_WO, 'v102', 'v10')
    wo_reads(0, 8)


att_2b(R, [], cw_wo)
p('s_setprio 2')
wo_reads(8, 16)
p('v_and_b32 v8, 15, v1')
p('v_lshlrev_b32 v8, 2, v8')
p(f's_lshl_b32 {T[0]}, {s_tile}, 1')
p(f's_add_u32 {T[0]}, {T[0]}, {s_kh}')
p(f's_lshl_b32 {T[1]}, {s_rb}, 18')
p(f's_lshl_b32 {T[2]}, {s_kh}, 17')
p(f's_add_u32 {T[1]}, {T[1]}, {T[2]}')
p(f's_and_b32 {T[2]}, {s_tile}, 3')
p(f's_lshl_b32 {T[2]}, {T[2]}, 12')
p(f's_add_u32 {T[1]}, {T[1]}, {T[2]}')
p(f's_lshl_b32 {T[0]}, {T[0]}, 6')
p(f's_add_u32 {T[0]}, {T[0]}, {FO}')
p(f'v_add_u32 v10, {T[0]}, v8')
for g in range(4):
    for k in range(2):
        x = XRES + 2 * g + k
        p(f'v_lshlrev_b32 v{ACC3 + 4 * g + 2 * k}, 16, v{x}')
        p(f'v_and_b32 v{ACC3 + 4 * g + 2 * k + 1}, 0xffff0000, v{x}')
p('s_waitcnt lgkmcnt(0)')
R.bar()
R.dstamp('P3', 'B5')
poll(R, 'v10', 'v11')
R.stamp('Opoll')
R.dstamp('P3', 'Opoll')


def o_load(s):
    if s % 2 == 0:
        p(f's_add_u32 {T[2]}, {T[1]}, {AREA + (s // 2) * 16384}')
    p(f'buffer_load_dwordx4 {vr(OF + 4 * s, 4)}, v2, {sWS}, {T[2]} offen offset:{(s % 2) * 1024} sc1')
    R.vm.issue(('o', s))


def xchg_addrs(area):
    p(f's_lshl_b32 {T[0]}, {s_w}, 12')
    p(f's_add_u32 {T[0]}, {T[0]}, {area}')
    p(f'v_add_u32 v10, {T[0]}, v2')
    p(f's_xor_b32 {T[0]}, {s_w}, 2')
    p(f's_lshl_b32 {T[0]}, {T[0]}, 12')
    p(f's_add_u32 {T[0]}, {T[0]}, {area}')
    p(f'v_add_u32 v11, {T[0]}, v2')


def xchg_finish(R, acc, dst, pair=False):
    if pair:
        signal(R, X_P0, 'v14', 'v13')
        lwait(R, X_P0, 'v14', 'v15', n=2)
    else:
        p('s_waitcnt lgkmcnt(0)')
        R.bar()
    for g in range(4):
        p(f'ds_read_b128 {vr(dst + 4 * g, 4)}, v11 offset:{g * 1024}')
    for g in range(4):
        p(f's_waitcnt lgkmcnt({3 - g})')
        for i in range(4):
            p(f'v_add_f32 v{dst + 4 * g + i}, v{dst + 4 * g + i}, v{acc + 4 * g + i}')
    R.lg.reset()


TAILN = 5
AH = OPT['aho']
for s in range(AH):
    o_load(s)
xchg_addrs(L_HI)
p('v_mov_b32 v12, 0')
p('v_mov_b32 v13, 1')
p(f's_lshl_b32 {T[0]}, {s_t}, 2')
p(f'v_mov_b32 v14, {T[0]}')
seq3 = [(s, nt) for s in range(16 - TAILN) for nt in (1, 0)] + [(s, 1) for s in range(16 - TAILN, 16)] + [(s, 0) for s in range(16 - TAILN, 16)]
no = AH
for k, (s, nt) in enumerate(seq3):
    R.vm.wait([('o', s)])
    p(f'v_mfma_f32_32x32x16_bf16 {vr(ACC3 + 16 * nt, 16)}, {vr(WOF + 8 * s + 4 * nt, 4)}, {vr(OF + 4 * s, 4)}, {"0" if s == 0 and nt == 1 else vr(ACC3 + 16 * nt, 16)}')
    if no < 16:
        o_load(no)
        no += 1
        if no == 16:
            signal(R, C_OIS, 'v12', 'v13')
    g = k - (len(seq3) - 4)
    if g >= 0:
        p(f'ds_write_b128 v10, {vr(ACC3 + 16 + 4 * g, 4)} offset:{g * 1024}')
R.dstamp('P3', 'loop')
xchg_finish(R, ACC3, 16, pair=True)
R.dstamp('P3', 'xchg')
for r in range(8):
    p(f'v_cvt_pk_bf16_f32 v{HRES + r}, v{16 + 2 * r}, v{16 + 2 * r + 1}')
p(f's_lshl_b32 {T[0]}, {s_cb}, 1')
p(f's_add_u32 {T[0]}, {T[0]}, {s_kh}')
p(f's_lshl_b32 {T[3]}, {s_tile}, 4')
p(f's_add_u32 {T[3]}, {T[3]}, {T[0]}')
p(f's_add_u32 {T[1]}, {T[5]}, 2048')
moded_stores(R, [f'buffer_store_dwordx4 {vr(HRES, 4)}, v2, {sWS}, {T[1]} offen',
                 f'buffer_store_dwordx4 {vr(HRES + 4, 4)}, v2, {sWS}, {T[1]} offen offset:1024'], OPT['hsc1'])
p('v_mov_b32 v18, 0x3f803f80')
p('v_mov_b32 v12, 0')
p('v_mov_b32 v13, 0')
for r in range(8):
    p(f'v_dot2c_f32_bf16 v12, v{HRES + r}, v18')
    p(f'v_dot2c_f32_bf16 v13, v{HRES + r}, v{HRES + r}')
p(f's_lshl_b32 {T[2]}, {T[3]}, 8')
p(f's_add_u32 {T[2]}, {T[2]}, {STB}')
p(f's_lshl_b32 {T[3]}, {s_tile}, 5')
p(f's_add_u32 {T[3]}, {T[3]}, {T[0]}')
p(f's_lshl_b32 {T[3]}, {T[3]}, 2')
p(f's_add_u32 {T[3]}, {T[3]}, {FH}')
p('v_and_b32 v14, 31, v1')
p('v_lshlrev_b32 v14, 3, v14')
half_sum('v12', 'v10')
half_sum('v13', 'v10')
moded_stores(R, [f'buffer_store_dwordx2 v[12:13], v14, {sWS}, {T[2]} offen'], OPT['hsc1'])
p('v_mov_b32 v246, 0')
p('v_mov_b32 v247, 1')
lwait(R, H_W1, 'v246', 'v10')
HF, ACC4, W1B, STL = 16, 144, 192, 228
tr96_lane('v3')
p('v_add_u32 v6, 0x10000, v3')
W1A = ['v3', 'v6']


def w1_reads(s):
    b = W1B + 12 * (s % 3)
    for nt in range(3):
        for rd in range(2):
            dsr(R, 'ds_read_b64_tr_b16', vr(b + 4 * nt + 2 * rd, 2), W1A, w1_addr(s) + rd * 1536 + nt * 64, ('w1', s))


w1_reads(0)
w1_reads(1)
flag_store(R, T[3], 'v10', 'v11')
R.stamp('Hflag')
R.dstamp('P3', 'Hflag')
p(f's_lshl_b32 {T[0]}, {s_rb}, 2')
p(f's_add_u32 {T[7]}, {T[0]}, {s_w}')
p(f's_lshl_b32 {T[1]}, {s_rb}, 18')
p(f's_lshl_b32 {T[2]}, {s_kh}, 17')
p(f's_add_u32 {T[1]}, {T[1]}, {T[2]}')
p(f's_lshl_b32 {T[2]}, {s_t}, 12')
p(f's_add_u32 {T[1]}, {T[1]}, {T[2]}')
p(f's_lshl_b32 {T[0]}, {T[7]}, 7')
p(f's_add_u32 {T[0]}, {T[0]}, {FH}')
p(f'v_add_u32 v10, {T[0]}, v8')
poll(R, 'v10', 'v11')
R.stamp('Hpoll')
R.dstamp('P4', 'Hpoll')


def h_load(s):
    if s % 2 == 0:
        p(f's_add_u32 {T[2]}, {T[1]}, {AREA + (s >> 2) * 16384 + ((s >> 1) & 1) * 8192}')
    p(f'buffer_load_dwordx4 {vr(HF + 4 * s, 4)}, v2, {sWS}, {T[2]} offen offset:{2048 + (s % 2) * 1024} sc1')
    R.vm.issue(('h', s))


S0 = OPT['s0']
nh = 0
for s in range(OPT['ahh']):
    h_load(nh)
    nh += 1
p('v_lshrrev_b32 v13, 1, v14')
p(f's_lshl_b32 {T[0]}, {s_w}, 7')
p(f'v_add_u32 v13, {T[0]}, v13')
p('v_lshrrev_b32 v12, 5, v1')
p('v_lshlrev_b32 v12, 4, v12')
p(f's_lshl_b32 {T[4]}, {T[7]}, 4')
p(f's_add_u32 {T[4]}, {T[4]}, {s_c}')
p(f's_lshl_b32 {T[4]}, {T[4]}, 12')
p(f's_add_u32 {T[4]}, {T[4]}, {H1B}')
p(f's_lshl_b32 {T[3]}, {T[7]}, 5')
p(f's_add_u32 {T[3]}, {T[3]}, {s_c}')
p(f's_lshl_b32 {T[3]}, {T[3]}, 2')
p(f's_add_u32 {T[3]}, {T[3]}, {FH1}')


seq = [(s, nt) for s in range(S0) for nt in range(3)] + [(s, nt) for nt in range(3) for s in range(S0, 32)]
EB = [48, 16, 48] if S0 >= 16 else None


def epi_ops(nt):
    e = EB[nt]
    pk = STL + 8 * (nt & 1)
    ops = []
    r = e + 16
    for i in range(16):
        ops.append(f'v_fmac_f32 v{r + i}, v{ACC4 + 16 * nt + i}, v244')
        if i >= 1:
            ops.append(f'v_max_f32 v{r + i - 1}, 0, v{r + i - 1}')
        if i >= 2:
            ops.append(f'v_mul_f32 v{r + i - 2}, v{r + i - 2}, v{r + i - 2}')
        if i >= 4 and i % 2 == 0:
            ops.append(f'v_cvt_pk_bf16_f32 v{pk + (i - 4) // 2}, v{r + i - 4}, v{r + i - 3}')
    ops += [f'v_max_f32 v{r + 15}, 0, v{r + 15}', f'v_mul_f32 v{r + 14}, v{r + 14}, v{r + 14}', f'v_mul_f32 v{r + 15}, v{r + 15}, v{r + 15}',
            f'v_cvt_pk_bf16_f32 v{pk + 6}, v{r + 12}, v{r + 13}', f'v_cvt_pk_bf16_f32 v{pk + 7}, v{r + 14}, v{r + 15}']
    st = []
    for g in range(2):
        f = 2 * nt + g
        st.append(f'buffer_store_dwordx4 {vr(pk + 4 * g, 4)}, v2, {sWS}, {T[4] if f < 4 else T[5]} offen offset:{(f % 4) * 1024}')
    ops.append(st if nt == 2 else tuple(st))
    return ops


def emit_op(x):
    if isinstance(x, (list, tuple)):
        moded_stores(R, x, isinstance(x, tuple))
    else:
        p(x)


def e_reads(nt):
    R.lg.room(8)
    for g in range(4):
        p(f'ds_read_b128 {vr(EB[nt] + 4 * g, 4)}, v12 offset:{S_CS1 + 128 * nt + 32 * g}')
        R.lg.issue(('e', nt))
    for g in range(4):
        p(f'ds_read_b128 {vr(EB[nt] + 16 + 4 * g, 4)}, v12 offset:{S_B1 + 128 * nt + 32 * g}')
        R.lg.issue(('e', nt))


def e_comb(nt):
    return [f'v_fmac_f32 v{EB[nt] + 16 + i}, v245, v{EB[nt] + i}' for i in range(16)]


W2R = 16
PRE = 6
bufs = {}
for k in range(PRE):
    s, nt = seq[k]
    bufs[k] = W1B + 4 * k
valu = []
OPT_K = {0: (0,), 1: (0, 48), 2: (0, 24, 48, 72)}[OPT.get('pk', 0)]
for k, (s, nt) in enumerate(seq):
    if s < S0 and nt == 0 or s >= S0 and nt == 0:
        R.vm.wait([('h', s)])
    if k in OPT_K:
        R.dstamp('P4', f'k{k}')
    R.lg.wait([('w1', s) if k < PRE else ('w1', s, nt)])
    p(f'v_mfma_f32_32x32x16_bf16 {vr(ACC4 + 16 * nt, 16)}, {vr(bufs[k], 4)}, {vr(HF + 4 * s, 4)}, {"0" if s == 0 else vr(ACC4 + 16 * nt, 16)}')
    if k + PRE < len(seq):
        s2, nt2 = seq[k + PRE]
        b = W1B + 4 * ((k + PRE) % 9)
        bufs[k + PRE] = b
        for rd in range(2):
            dsr(R, 'ds_read_b64_tr_b16', vr(b + 2 * rd, 2), W1A, w1_addr(s2) + rd * 1536 + nt2 * 64, ('w1', s2, nt2))
    if nh < 32 and k % OPT['hrate'] == 1:
        h_load(nh)
        nh += 1
        if nh == 32:
            signal(R, C_ISS, 'v246', 'v247')
    if k == 3 * S0 - 6:
        p(f'ds_read_b32 v10, v246 offset:{H_TAB}')
        R.lg.issue(H_TAB)
    seg = (k - 3 * S0) // (32 - S0) if k >= 3 * S0 else -1
    pos = (k - 3 * S0) % (32 - S0)
    if k == 3 * S0:
        lwait(R, H_TAB, 'v246', 'v10', early=True)
        R.lg.room(2)
        p(f'ds_read_b32 v244, v13 offset:{S_R}')
        p(f'ds_read_b32 v245, v13 offset:{S_M}')
        R.lg.issue('rm')
        R.lg.issue('rm')
    if seg >= 0 and pos == (1 if seg == 0 else 32 - S0 - 5):
        e_reads(seg)
    if seg >= 0 and pos == (5 if seg == 0 else 32 - S0 - 3):
        R.lg.wait([('e', seg)])
        valu += e_comb(seg)
    if seg >= 1 and pos == 1:
        valu += epi_ops(seg - 1)
    n = -(-76 // (32 - S0 - 1)) if seg >= 1 else 4
    if OPT.get('x_noepi') and seg >= 0:
        valu = [x for x in valu if isinstance(x, (list, tuple))]
    for _ in range(n):
        if valu:
            emit_op(valu.pop(0))
for x in valu:
    emit_op(x)
R.dstamp('P4', 'loop')
p('v_lshrrev_b32 v10, 5, v1')
p('v_lshlrev_b32 v10, 3, v10')
p(f's_lshl_b32 {T[0]}, {s_cb}, 7')
p(f's_lshl_b32 {T[1]}, {s_kh}, 6')
p(f's_add_u32 {T[0]}, {T[0]}, {T[1]}')
for g in range(4):
    p(f'buffer_load_dwordx2 {vr(200 + 2 * g, 2)}, v10, {sB2}, {T[0]} offen offset:{16 * g}')
    R.vm.issue('b2')
for x in epi_ops(2):
    emit_op(x)
p(f's_lshl_b32 {T[0]}, {s_kh}, 13')
p(f's_add_u32 {T[0]}, {T[0]}, {L_X}')
p(f'v_add_u32 v6, {T[0]}, v4')
p(f'v_add_u32 v7, {T[0]}, v5')
for s in range(4):
    for nt in range(2):
        for rd in range(2):
            p(f'ds_read_b64_tr_b16 {vr(W2R + 8 * s + 4 * nt + 2 * rd, 2)}, v{6 + nt} offset:{s * 2048 + rd * 1024}')
    if s == 1:
        p('s_waitcnt lgkmcnt(4)')
R.lg.reset()
signal(R, C_END, 'v246', 'v247')
R.stamp('P4end')
R.dstamp('P4', 'epi')
ACC5, W2B, H1F, B2R = 48, 80, 136, 200
NWB = 7
NRING = 16
p(f's_mul_i32 {T[0]}, {s_kh}, {11 * 2048}')
p(f'v_add_u32 v6, {T[0]}, v4')
p(f'v_add_u32 v7, {T[0]}, v5')
p('v_add_u32 v6, 0x10000, v6')
p('v_add_u32 v7, 0x10000, v7')
p('v_add_u32 v12, 0x10000, v6')
p('v_add_u32 v13, 0x10000, v7')
p(f's_lshl_b32 {T[0]}, {s_kh}, 11')
p(f'v_add_u32 v4, {T[0]}, v4')
p(f'v_add_u32 v5, {T[0]}, v5')
p('v_add_u32 v14, 0x10000, v4')
p('v_add_u32 v15, 0x10000, v5')
for i in range(4, 15):
    assert w2_pos[42 + KORD[i]] - w2_rd_pos(i) == 11 * 2048
for i in range(15, 44):
    assert w2_pos[42 + KORD[i]] - w2_rd_pos(i) == 2048


def w2_reads(i):
    b = W2B + 8 * (i % NWB)
    for nt in (1, 0):
        if i < 15:
            bases = [None, 'v6' if nt == 0 else 'v7', 'v12' if nt == 0 else 'v13']
        else:
            bases = ['v4' if nt == 0 else 'v5', 'v14' if nt == 0 else 'v15']
        for rd in range(2):
            dsr(R, 'ds_read_b64_tr_b16', vr(b + 4 * nt + 2 * rd, 2), bases, w2_rd_pos(i) + rd * 1024, ('w2', i))


p('s_waitcnt lgkmcnt(0)')
R.lg.reset()
flag_store(R, T[3], 'v10', 'v11')
R.stamp('H1flag')
R.dstamp('P4', 'H1flag')
R.dstamp('P5', 'H1flag')
p('v_and_b32 v10, 7, v1')
p(f's_add_u32 {T[0]}, {s_kh}, 6')
p(f'v_min_u32 v10, {T[0]}, v10')
p('v_lshlrev_b32 v10, 2, v10')
p(f's_lshl_b32 {T[1]}, {s_tile}, 7')
p(f's_mul_i32 {T[0]}, {s_kh}, 28')
p(f's_add_u32 {T[1]}, {T[1]}, {T[0]}')
p(f's_add_u32 {T[1]}, {T[1]}, {FH1}')
p(f'v_add_u32 v10, {T[1]}, v10')
p(f's_lshl_b32 {T[1]}, {s_rb}, 18')
p(f's_mul_i32 {T[2]}, {s_kh}, {7 * 16384}')
p(f's_add_u32 {T[1]}, {T[1]}, {T[2]}')
p(f's_and_b32 {T[2]}, {s_tile}, 3')
p(f's_lshl_b32 {T[2]}, {T[2]}, 12')
p(f's_add_u32 {T[1]}, {T[1]}, {T[2]}')
p(f's_lshl_b32 {T[3]}, {s_tile}, 16')
p(f's_mul_i32 {T[2]}, {s_kh}, {7 * 4096}')
p(f's_add_u32 {T[3]}, {T[3]}, {T[2]}')
for g in range(4):
    for k in range(2):
        a = ACC5 + 4 * g + 2 * k
        p(f'v_lshlrev_b32 v{a}, 16, v{HRES + 2 * g + k}')
        p(f'v_and_b32 v{a + 1}, 0xffff0000, v{HRES + 2 * g + k}')
        p(f'v_lshlrev_b32 v{ACC5 + 16}, 16, v{B2R + 2 * g + k}')
        p(f'v_and_b32 v{ACC5 + 17}, 0xffff0000, v{B2R + 2 * g + k}')
        p(f'v_add_f32 v{a}, v{a}, v{ACC5 + 16}')
        p(f'v_add_f32 v{a + 1}, v{a + 1}, v{ACC5 + 17}')
poll(R, 'v10', 'v11')
R.stamp('H1poll')
R.dstamp('P5', 'H1poll')


def h1_load(i):
    c, f = divmod(KORD[i], 6)
    if f == 4:
        p(f's_add_u32 {T[2]}, {T[1]}, {AREA + c * 16384}')
    if f == 0:
        p(f's_add_u32 {T[2]}, {T[3]}, {H1B + c * 4096}')
    if i == 42:
        p(f's_cmp_eq_u32 {s_kh}, 0')
        p(f's_cselect_b32 {T[2]}, {0x7ff00000}, {T[2]}')
    p(f'buffer_load_dwordx4 {vr(H1F + 4 * (i % NRING), 4)}, v2, {sWS}, {T[2]} offen offset:{(f % 4) * 1024} sc1')
    R.vm.issue(('h1', i))


AH = OPT['ah1']
NS = 44
for i in range(AH):
    h1_load(i)
lwait(R, H_P1, 'v246', 'v10')
w2_reads(4)
w2_reads(5)
seq5 = [(i, nt) for i in range(NS - TAILN) for nt in (1, 0)] + [(i, 1) for i in range(NS - TAILN, NS)] + [(i, 0) for i in range(NS - TAILN, NS)]
nw, nl = 6, AH
last_use = {i: k for k, (i, nt) in enumerate(seq5)}
first_use = {i: k for k, (i, nt) in reversed(list(enumerate(seq5)))}
for k, (i, nt) in enumerate(seq5):
    if k == 20:
        p(f'ds_read_b32 v10, v246 offset:{H_LATE}')
        R.lg.issue(H_LATE)
    if k == 25:
        R.dstamp('P5', 'preL')
        lwait(R, H_LATE, 'v246', 'v10', early=True)
        R.dstamp('P5', 'late')
    if k == 44:
        R.bar()
        xchg_addrs(L_HI)
    R.vm.wait([('h1', i)])
    if k in (0, 56):
        R.dstamp('P5', f'h1_{i}')
    if i >= 4:
        R.lg.wait([('w2', i)])
    b = W2R + 8 * i if i < 4 else W2B + 8 * (i % NWB)
    p(f'v_mfma_f32_32x32x16_bf16 {vr(ACC5 + 16 * nt, 16)}, {vr(b + 4 * nt, 4)}, {vr(H1F + 4 * (i % NRING), 4)}, {"0" if i == 0 and nt == 1 else vr(ACC5 + 16 * nt, 16)}')
    if k >= 8 and nw < NS and (k % 2 == 0 or k >= 2 * (NS - TAILN) - 6) and (nw < 15 or k >= 25):
        assert last_use.get(nw - NWB, -1) <= k and first_use[nw] > k + 1, (nw, k)
        w2_reads(nw)
        nw += 1
    if k % 2 == 1 and nl < NS:
        assert last_use.get(nl - NRING, -1) <= k
        h1_load(nl)
        nl += 1
    g = k - (len(seq5) - 4)
    if g >= 0:
        R.lg.room(1)
        p(f'ds_write_b128 v10, {vr(ACC5 + 16 + 4 * g, 4)} offset:{g * 1024}')
assert nw == NS and nl == NS
R.dstamp('P5', 'loop')
xchg_finish(R, ACC5, 16)
R.stamp('B13')
R.dstamp('P5', 'B13')
for r in range(8):
    p(f'v_cvt_pk_bf16_f32 v{32 + r}, v{16 + 2 * r}, v{16 + 2 * r + 1}')
p('v_lshrrev_b32 v10, 5, v1')
p('v_lshl_add_u32 v9, v10, 3, v9')
for q in range(2):
    p(f'v_permlane32_swap_b32 v{32 + 4 * q}, v{32 + 4 * q + 2}')
    p(f'v_permlane32_swap_b32 v{32 + 4 * q + 1}, v{32 + 4 * q + 3}')
    p(f'buffer_store_dwordx4 {vr(32 + 4 * q, 4)}, v9, {sOUT}, 0 offen offset:{32 * q}' + {0: '', 1: ' nt', 2: ' sc1'}[OPT.get('osm', 0)])
dump_stamps(R)
p('s_endpgm')
while tail:
    tail.pop(0)()
tail = []

assert CW.nbar == HW.nbar + 2, (CW.nbar, HW.nbar)
p.label('L_codeend')

p.fix_hazards()

hdr = open(os.path.join(os.path.dirname(os.path.abspath(__file__)), '..', 'cdna_kernels', NAME + '.s.ref')).read().split('\n')
top = [l for l in hdr if l.startswith(';') and '@launch' not in l and 'Override' not in l and 'grid=ceil' not in l]
out = '\n'.join(top) + '\n'
out += f'; @launch grid=(256,1,1) block=(512,1,1) lds={LDS_BYTES}\n'
out += f'''.amdgcn_target "amdgcn-amd-amdhsa--gfx950"
.text
.globl {KNAME}
.p2align 8
.type {KNAME},@function
'''
out += p.text()
out += f'''.section .rodata,"a"
.p2align 6
.amdhsa_kernel {KNAME}
  .amdhsa_next_free_vgpr 256
  .amdhsa_next_free_sgpr 102
  .amdhsa_accum_offset 256
  .amdhsa_group_segment_fixed_size 0
  .amdhsa_kernarg_size 88
  .amdhsa_user_sgpr_count 2
  .amdhsa_user_sgpr_kernarg_segment_ptr 1
  .amdhsa_system_sgpr_workgroup_id_x 1
.end_amdhsa_kernel
'''
open(sys.argv[1], 'w').write(out)
if OPT['stamps']:
    import json
    json.dump(STAMPS, open(sys.argv[1] + '.stamps.json', 'w'))
print('instructions:', sum(1 for x in p.ins if x.kind not in ('label', 'dir')), 'maxv', p.maxreg('v'), 'maxs', p.maxreg('s'), 'barriers', CW.nbar)
```

```python
import sys
import os
sys.path.insert(0, os.path.dirname(os.path.abspath(__file__)))
from asmlib import Prog, Cnt

NAME = 'sequential_preLN__sliding_block__dense_activation_squared_relu__prompt'
KNAME = NAME + '_kernel'

OPT = dict(stamps=False, force_safe=False, force_fallback=False, spin=200000, h1sc1=0, osc1=0, hsc1=0, mallwarm=1, p1touch=1, la=2, t0=2, tmode=4, codewarm=1, tlbwarm=0, aho=8, ahh=6, ah1=10, mallat=27, m2at=0, m2early=1, a_first=1, wopos=0, fkvt=1, qat=2, slp=2, hprio=1, small=0, s0=16, wolate=0, kvtag=0, flagearly=1, w2c=8, clrat=-1, clrdone=4, hrate=2, early0=0)
for a in sys.argv[2:]:
    k, _, v = a.partition('=')
    OPT[k] = int(v) if v else True

EPOCH = 0x0
ST = 0x1000
FKV = 0x2000
FO = 0xA000
FH = 0xC000
FH1 = 0xE000
RST = 0x10000
AREA = 0x100000
H1B = 0x600000
STB = 0xA00000
WS_END = 0xB00000 if not OPT.get('probe') else 0x8000000
STAMP = 0x1000000
WS_SIZE = 0x1100000

S_R = 0
S_M = 512
S_CS = 1024
S_CS1 = 1536
S_B1 = 2048
S_TAG = 2560
S_MODE = 2564
S_SYNC = 2816
C_ISS, C_END, H_TAB, H_P1, H_LATE, H_WO, C_OIS, H_WQ, H_CSQ, H_Q, C_KV, C_HALO, C_FLAG, H_W1, X_P0, X_P1 = [S_SYNC + 4 * i for i in range(16)]
BASE = 3072
RING = BASE
SLOT = 24576
NSLOT = 4
L_WO = BASE
L_K = BASE + 64 * 1024
L_V = L_K + 24 * 1024
VSTR = 1040
L_HI = 116 * 1024
assert L_V + 24 * VSTR <= L_HI and RING + NSLOT * SLOT <= L_HI
L_WQ = L_HI
L_QX = L_HI + 32 * 1024
S_CSQ = S_CS1
L_X = BASE + 96 * 1024
LDS_BYTES = 160 * 1024


def w1_addr(s):
    return BASE + s * 3072


KORD = [6 * c + f for c in range(7) for f in (4, 5)] + [6 * c + f for c in range(7) for f in range(4)] + [42, 43]
W2_REG = KORD[:4] + [42 + k for k in KORD[:4]]
W2_P1 = KORD[4:15] + [42 + k for k in KORD[4:15]]
w2_pos = {}
for i, s in enumerate(W2_REG):
    w2_pos[s] = L_X + i * 2048
for i, s in enumerate(W2_P1):
    w2_pos[s] = L_HI + i * 2048
late_order = []
for i in range(15, 42):
    late_order += [KORD[i], 42 + KORD[i]]
late_order += [84, 85]
assert len(late_order) == 56
for i, s in enumerate(late_order):
    w2_pos[s] = BASE + i * 2048
assert BASE + 56 * 2048 <= L_HI


def w2_rd_pos(i):
    return w2_pos[KORD[i]] if i < 42 else w2_pos[42 + KORD[i]] - 2048


sX, sWQKV, sWO, sW1, sW2, sOUT, sWS, sB1, sB2, sDBG = [f's[{i}:{i + 3}]' for i in range(4, 44, 4)]
s_team, s_j, s_rb, s_c, s_rs, s_cb, s_w, s_tt, s_tag, s_mode, s_hd = [f's{i}' for i in range(44, 55)]
T = [f's{i}' for i in range(55, 64)]
s_xr = [f's{i}' for i in range(86, 90)]
s_wr = [f's{i}' for i in range(90, 94)]
s_t, s_kh = 's94', 's95'
s_tile = 's64'
s_area = 's88'
s_last = 's96'
s_stamp = 's[98:99]'

LOG2E = 1.4426950408889634
BIG = 0xf149f2ca


def fhex(x):
    import struct
    return '0x%08x' % struct.unpack('<I', struct.pack('<f', x))[0]


def vr(a, n=1):
    return f'v{a}' if n == 1 else f'v[{a}:{a + n - 1}]'


p = Prog()
tail = []


class Role:
    def __init__(self, name):
        self.name = name
        self.vm = Cnt(p, 'vmcnt', 63)
        self.lg = Cnt(p, 'lgkmcnt', 15)
        self.nbar = 0
        self.nstamp = 0

    def bar(self):
        p('s_barrier')
        self.nbar += 1

    def dstamp(self, grp, label):
        if OPT.get('d' + grp):
            self.stamp(label, True)

    def stamp(self, label='', force=False):
        if not OPT['stamps']:
            return
        if not force and label not in ('start', 'end') and any(k.startswith('dP') for k in OPT):
            return
        k = self.nstamp
        self.nstamp += 1
        STAMPS.setdefault(self.name, []).append(label)
        assert k < 20
        p(f's_memtime {s_stamp}')
        p('s_waitcnt lgkmcnt(0)')
        self.lg.reset()
        p(f's_mov_b32 s{66 + k}, s98')


STAMPS = {}


def dsr(R, op, dst, bases, off, tag=None):
    k = off // 65536
    R.lg.room(1)
    p(f'{op} {dst}, {bases[k]} offset:{off % 65536}')
    R.lg.issue(tag)


def dma(R, vaddr, srd, soff, ldsaddr, tag=None):
    p(f's_mov_b32 m0, {ldsaddr}')
    p(f'buffer_load_dwordx4 {vaddr}, {srd}, {soff} offen lds')
    R.vm.issue(tag)


def poll(R, vaddr, vtmp, wide=False, slow=False):
    L = p.newlabel('L_poll')
    D = p.newlabel('L_polld')
    X = p.newlabel('L_pollx')
    p(f's_mov_b32 {T[0]}, 0')
    p.label(L)
    first = vtmp if not wide else 'v' + vtmp[2:vtmp.index(':')]
    p(f'buffer_load_dword{"x2" if wide else ""} {vtmp}, {vaddr}, {sWS}, 0 offen sc1')
    p('s_waitcnt vmcnt(0)')
    p(f'v_cmp_ne_u32 vcc, {s_tag}, {first}')
    p(f's_cbranch_vccnz {X}')
    p.label(D)
    R.vm.reset()

    def blk():
        p.label(X)
        if slow:
            p('s_sleep 4')
        p(f's_add_u32 {T[0]}, {T[0]}, 1')
        p(f's_cmp_lt_u32 {T[0]}, {OPT["spin"]}')
        p(f's_cbranch_scc1 {L}')
        p(f's_branch {D}')
    tail.append(blk)


def moded_stores(R, stores, wt=False):
    if wt:
        for s in stores:
            p(s + ' sc1')
            R.vm.issue('st')
        return
    Ls = p.newlabel('L_safe')
    Lb = p.newlabel('L_back')
    p(f's_cmp_eq_u32 {s_mode}, 1')
    p(f's_cbranch_scc0 {Ls}')
    for s in stores:
        p(s)
    p.label(Lb)
    for s in stores:
        if s.startswith('buffer_'):
            R.vm.issue('st')

    def blk():
        p.label(Ls)
        for s in stores:
            p(s + ' sc1' if s.startswith('buffer_') else s)
        p(f's_branch {Lb}')
    tail.append(blk)


def signal(R, word, vz, vone):
    p('s_mov_b64 exec, 1')
    p(f'ds_add_u32 {vz}, {vone} offset:{word}')
    p('s_mov_b64 exec, -1')
    R.lg.issue('sig')


def lwait(R, word, vz, vt, early=False, n=4):
    L = p.newlabel('L_lw')
    X = p.newlabel('L_lwx')
    if early:
        R.lg.wait([word])
    else:
        p(f'ds_read_b32 {vt}, {vz} offset:{word}')
        p('s_waitcnt lgkmcnt(0)')
        R.lg.reset()
    p(f'v_cmp_gt_u32 vcc, {n}, {vt}')
    p(f's_cbranch_vccnz {X}')
    p.label(L)

    def blk():
        Y = p.newlabel('L_lwy')
        p.label(X)
        p(f's_mov_b32 {T[0]}, 0')
        p.label(Y)
        if R.name == 'HW' and OPT['slp']:
            p(f's_sleep {OPT["slp"]}')
        p(f'ds_read_b32 {vt}, {vz} offset:{word}')
        p('s_waitcnt lgkmcnt(0)')
        p(f'v_cmp_gt_u32 vcc, {n}, {vt}')
        p(f's_cbranch_vccz {L}')
        p(f's_add_u32 {T[0]}, {T[0]}, 1')
        p(f's_cmp_lt_u32 {T[0]}, {OPT["spin"] * 8}')
        p(f's_cbranch_scc1 {Y}')
        p(f's_branch {L}')
    tail.append(blk)


def flag_store(R, saddr, vt0, vt1, moded=True):
    p(f'v_mov_b32 {vt0}, {saddr}')
    p(f'v_mov_b32 {vt1}, {s_tag}')
    R.vm.wait_all()
    p('s_mov_b64 exec, 1')
    if moded:
        moded_stores(R, [f'buffer_store_dword {vt1}, {vt0}, {sWS}, 0 offen'])
    else:
        p(f'buffer_store_dword {vt1}, {vt0}, {sWS}, 0 offen sc1')
        R.vm.issue('st')
    p('s_mov_b64 exec, -1')


CW = Role('CW')
HW = Role('HW')
s_q = T[8]
s_mx, s_mw, s_tw = 's96', 's97', 's3'


def srd(dst, lo, size):
    b = int(dst[2:dst.index(':')])
    p(f's_mov_b32 s{b}, s{lo}')
    p(f's_and_b32 s{b + 1}, s{lo + 1}, 0xffff')
    p(f's_mov_b32 s{b + 2}, {size}')
    p(f's_mov_b32 s{b + 3}, 0x20000')


p.label(KNAME)
p('s_cmp_ge_u32 s2, 256')
p('s_cbranch_scc1 L_end')
if OPT['stamps']:
    p('s_memtime s[100:101]')
if OPT.get('dbgout'):
    p('s_memrealtime s[86:87]')
p('s_load_dwordx16 s[64:79], s[0:1], 0')
p('s_load_dwordx4 s[80:83], s[0:1], 64')
p('s_load_dwordx2 s[84:85], s[0:1], 80')
if OPT['codewarm']:
    p('s_getpc_b64 s[56:57]')
    p.label('L_pc')
    p(f's_sub_u32 s56, s56, L_pc-{KNAME}')
    p('s_subb_u32 s57, s57, 0')
    p(f's_lshr_b32 {T[0]}, s2, 3')
    p(f's_lshl_b32 {T[0]}, {T[0]}, 11')
    p('v_lshrrev_b32 v10, 5, v0')
    p('v_lshlrev_b32 v10, 7, v10')
    p(f'v_add_u32 v10, {T[0]}, v10')
    p(f'v_min_u32 v10, L_codeend-{KNAME}-4, v10')
    p('global_load_dword v253, v10, s[56:57]')
    CW.vm.issue('t')
    HW.vm.issue('t')
p('v_and_b32 v1, 63, v0')
p('v_lshrrev_b32 v2, 6, v0')
p(f'v_readfirstlane_b32 {s_w}, v2')
p(f's_and_b32 {s_team}, s2, 7')
p(f's_lshr_b32 {s_j}, s2, 3')
p(f's_and_b32 {s_c}, {s_j}, 15')
p(f's_lshr_b32 {T[0]}, {s_j}, 4')
p(f's_lshl_b32 {s_rb}, {s_team}, 1')
p(f's_add_u32 {s_rb}, {s_rb}, {T[0]}')
p('v_lshlrev_b32 v2, 4, v1')
p(f's_and_b32 {s_q}, {s_w}, 3')
p('v_lshrrev_b32 v3, 3, v1')
p(f's_lshl_b32 {T[0]}, {s_q}, 5')
p(f'v_add_u32 v3, {T[0]}, v3')
p('v_and_b32 v10, 7, v1')
p(f's_lshl_b32 {T[1]}, {s_rb}, 17')
p('v_bfe_u32 v11, v3, 1, 3')
p('v_xor_b32 v11, v10, v11')
p('v_lshlrev_b32 v11, 4, v11')
p('v_lshl_add_u32 v4, v3, 10, v11')
p(f'v_add_u32 v4, {T[1]}, v4')
p('v_xor_b32 v5, 64, v4')
p('v_add_u32 v5, 8192, v5')
p('v_lshrrev_b32 v10, 3, v1')
p(f's_lshl_b32 {T[0]}, {s_q}, 4')
p(f'v_add_u32 v10, {T[0]}, v10')
p(f's_movk_i32 {T[4]}, 3072')
p(f'v_mul_lo_u32 v10, v10, {T[4]}')
p('v_bfe_u32 v11, v1, 2, 1')
p('v_bfe_u32 v12, v1, 4, 1')
p('v_xor_b32 v11, v11, v12')
p('v_lshl_add_u32 v10, v11, 10, v10')
p('v_and_b32 v11, 3, v1')
p('v_lshl_add_u32 v10, v11, 4, v10')
p(f's_lshl_b32 {T[1]}, {s_c}, 6')
p(f's_add_u32 {T[1]}, {T[1]}, 1024')
p(f'v_add_u32 v6, {T[1]}, v10')
p(f's_lshl_b32 {s_mx}, {s_q}, 12')
p(f's_lshl_b32 {s_mw}, {s_q}, 11')
p(f's_lshl_b32 {s_tw}, {s_j}, 2')
p(f's_add_u32 {s_tw}, {s_tw}, {s_q}')
p(f's_lshr_b32 {T[0]}, {s_tw}, 1')
p(f's_mul_i32 {T[0]}, {T[0]}, 3072')
p(f's_and_b32 {s_tw}, {s_tw}, 1')
p(f's_lshl_b32 {s_tw}, {s_tw}, 10')
p(f's_add_u32 {s_tw}, {s_tw}, {T[0]}')
p(f's_add_u32 {s_tw}, {s_tw}, 1024')
p('v_bfe_u32 v16, v1, 3, 1')
p(f'v_mul_u32_u24 v16, {64 * 3072}, v16')
p('v_and_b32 v15, 7, v1')
p('v_lshl_add_u32 v16, v15, 7, v16')
p('v_min_u32 v17, 11, v1')
p('v_lshlrev_b32 v17, 7, v17')
p(f's_lshl_b32 {T[5]}, {s_rb}, 4')
p(f's_add_u32 {T[5]}, {T[5]}, {s_c}')
p(f's_lshl_b32 {T[5]}, {T[5]}, 3')
p(f's_add_u32 {T[5]}, {T[5]}, {s_q}')
p('s_waitcnt lgkmcnt(0)')
srd(sX, 64, 2048 * 512 * 2)
p(f's_cmp_ge_u32 {s_w}, 4')
p('s_cbranch_scc1 L_norow')
p(f's_load_dword {s_tag}, s[84:85], {EPOCH}')
if OPT['kvtag'] and OPT['clrat'] == -2:
    srd(sWS, 84, WS_SIZE if OPT['stamps'] else WS_END)
    p(f's_lshr_b32 {T[0]}, {T[5]}, 3')
    p(f's_lshl_b32 {T[0]}, {T[0]}, 2')
    p(f's_add_u32 {T[0]}, {T[0]}, {s_q}')
    p(f's_lshl_b32 {T[0]}, {T[0]}, 12')
    p(f's_add_u32 {T[0]}, {T[0]}, {AREA + 32 * 16384}')
    for r in range(4):
        p(f'v_mov_b32 v{244 + r}, -1')
    for q in range(4):
        p(f'buffer_store_dwordx4 v[244:247], v2, {sWS}, {T[0]} offen offset:{q * 1024} sc1')
        CW.vm.issue('st')
p(f's_lshl_b32 {T[0]}, {T[5]}, 10')
p(f's_add_u32 {T[1]}, {T[0]}, 4096')
p(f'buffer_load_dwordx4 v[196:199], v2, {sX}, {T[0]} offen')
p(f'buffer_load_dwordx4 v[208:211], v2, {sX}, {T[1]} offen')
CW.vm.issue('row')
CW.vm.issue('row')
p.label('L_norow')
srd(sWQKV, 66, 512 * 1536 * 2)
if OPT['stamps']:
    p('s_memtime s[98:99]')
    p('s_waitcnt lgkmcnt(0)')
    p('s_mov_b32 s101, s98')
p(f's_cmp_lt_u32 {s_w}, 4')
p('s_cbranch_scc1 L_CW')


def chunk_groups(R, ch):
    slot = RING + (ch % NSLOT) * SLOT

    def xg(q):
        def f():
            p(f's_mov_b32 {T[7]}, {ch * 128 + (q >> 1) * 16384}')
            p(f's_add_u32 m0, {s_mx}, {slot + q * 1024}')
            p(f'buffer_load_dwordx4 v{4 + (q & 1)}, {sX}, {T[7]} offen' + (' nt' if OPT.get('nt_x') else '') + ' lds')
            R.vm.issue(('ch', ch))
        return f

    def wg(q):
        def f():
            p(f's_mov_b32 {T[7]}, {(ch * 64 + q * 8) * 3072}')
            p(f's_add_u32 m0, {s_mw}, {slot + 16384 + q * 1024}')
            p(f'buffer_load_dwordx4 v6, {sWQKV}, {T[7]} offen lds')
            R.vm.issue(('ch', ch))
        return f
    return [wg(0), xg(0), xg(1), wg(1), xg(2), xg(3)]


def wtouch(R, i):
    def f():
        p(f's_add_u32 {T[7]}, {s_tw}, {i * 64 * 3072}')
        p(f'buffer_load_dword v252, v16, {sWQKV}, {T[7]} offen' + (' nt' if OPT.get('nt_t') else ''))
        R.vm.issue('t')
    return f


def qtouch(R):
    def f():
        p(f's_lshl_b32 {T[7]}, {s_j}, 2')
        p(f's_add_u32 {T[7]}, {T[7]}, {s_q}')
        p(f's_mul_i32 {T[7]}, {T[7]}, {4 * 3072}')
        p('v_bfe_u32 v3, v1, 3, 2')
        p('v_mul_u32_u24 v3, 3072, v3')
        p('v_and_b32 v110, 7, v1')
        p('v_lshl_add_u32 v3, v110, 7, v3')
        p(f'buffer_load_dword v252, v3, {sWQKV}, {T[7]} offen')
        R.vm.issue('t')
    return f


def warm_wo(R):
    def f():
        p(f's_lshl_b32 {T[7]}, {s_j}, 2')
        p(f's_add_u32 {T[7]}, {T[7]}, {s_q}')
        p(f's_lshl_b32 {T[7]}, {T[7]}, 12')
        p('v_and_b32 v3, 31, v1')
        p('v_lshlrev_b32 v3, 7, v3')
        p(f'buffer_load_dword v255, v3, {sWO}, {T[7]} offen')
        R.vm.issue('t')
    return f


def warm_mall(R, srd_):
    def f():
        p(f's_lshl_b32 {T[7]}, s2, 2')
        p(f's_add_u32 {T[7]}, {T[7]}, {s_q}')
        p(f's_mul_i32 {T[7]}, {T[7]}, 1536')
        p(f'buffer_load_dword v254, v17, {srd_}, {T[7]} offen')
        R.vm.issue('t')
    return f


def srds_w():
    srd(sWO, 68, 512 * 512 * 2)
    srd(sW1, 72, 512 * 1376 * 2)
    srd(sW2, 76, 1376 * 512 * 2)


def common_setup(R):
    srd(sWS, 84, WS_SIZE if OPT['stamps'] else WS_END)
    srd(sB1, 74, 1376 * 2)
    srd(sB2, 78, 512 * 2)
    srd(sOUT, 80, 2048 * 512 * 2)
    p(f's_lshr_b32 {T[0]}, {s_j}, 3')
    p(f's_lshl_b32 {s_rs}, {s_team}, 2')
    p(f's_add_u32 {s_rs}, {s_rs}, {T[0]}')
    p(f's_and_b32 {s_cb}, {s_j}, 7')
    p(f's_lshr_b32 {s_hd}, {s_w}, 2')
    p(f's_lshl_b32 {s_area}, {s_rb}, 4')
    p(f's_add_u32 {s_area}, {s_area}, {s_c}')
    p(f's_lshl_b32 {s_area}, {s_area}, 14')
    p(f's_add_u32 {s_area}, {s_area}, {AREA}')
    if R is CW:
        p(f's_mov_b32 {s_tt}, {s_w}')
        p(f's_and_b32 {s_t}, {s_w}, 1')
        p(f's_lshr_b32 {s_kh}, {s_w}, 1')
    else:
        p(f's_sub_u32 {s_tt}, 7, {s_w}')
    p('v_mov_b32 v18, 0x3f803f80')
    if R is CW:
        if not OPT['small']:
            p('s_waitcnt lgkmcnt(0)')
        p(f's_add_u32 {s_tag}, {s_tag}, 1')
        p(f'v_mov_b32 v10, {S_TAG}')
        p(f'v_mov_b32 v11, {s_tag}')
        p('ds_write_b32 v10, v11')


def row_stats(R):
    p(f's_lshl_b32 s65, s65, 4')
    p(f's_add_u32 s65, s65, {RST}')
    p(f'v_mov_b32 v3, s65')
    for k in (200, 202, 212, 214):
        p(f'v_mov_b32 v{k}, 0')
    p(f's_getreg_b32 {T[1]}, hwreg(HW_REG_XCC_ID)')
    p(f's_and_b32 {T[1]}, {T[1]}, 15')
    p(f'v_mov_b32 v221, {T[1]}')
    p(f'v_mov_b32 v220, {s_tag}')
    p(f's_lshl_b32 {T[1]}, {s_team}, 5')
    p(f's_add_u32 {T[1]}, {T[1]}, {s_j}')
    p(f's_lshl_b32 {T[1]}, {T[1]}, 3')
    p(f's_add_u32 {T[1]}, {T[1]}, {ST}')
    p(f's_cmp_eq_u32 {s_w}, 0')
    p(f's_cselect_b32 {T[1]}, {T[1]}, {0x7ff00000}')
    p(f'v_mov_b32 v222, {T[1]}')
    R.vm.wait(['row'])
    for r in range(4):
        for o in (0, 12):
            p(f'v_dot2c_f32_bf16 v{200 + o}, v{196 + o + r}, v18')
            p(f'v_dot2c_f32_bf16 v{202 + o}, v{196 + o + r}, v{196 + o + r}')
    for sh in (8, 4, 2, 1):
        for k in (200, 202, 212, 214):
            p(f'v_add_f32_dpp v{k}, v{k}, v{k} row_ror:{sh} row_mask:0xf bank_mask:0xf')
    for op in ('v_permlane16_swap_b32', 'v_permlane32_swap_b32'):
        for k in (200, 202, 212, 214):
            p(f'v_mov_b32 v{k + 1}, v{k}')
        for k in (200, 202, 212, 214):
            p(f'{op} v{k}, v{k + 1}')
        for k in (200, 202, 212, 214):
            p(f'v_add_f32 v{k}, v{k}, v{k + 1}')
    for o in (0, 12):
        ln_finish(f'v{200 + o}', f'v{202 + o}', f'v{204 + o}', f'v{206 + o}')
        p(f'v_mov_b32 v{205 + o}, {s_tag}')
        p(f'v_mov_b32 v{207 + o}, {s_tag}')
    p('s_mov_b64 exec, 1')
    p(f'buffer_store_dwordx4 v[204:207], v3, {sWS}, 0 offen sc1')
    p(f'buffer_store_dwordx4 v[216:219], v3, {sWS}, 0 offen offset:64 sc1')
    p(f'buffer_store_dwordx2 v[220:221], v222, {sWS}, 0 offen sc1')
    p('s_mov_b64 exec, -1')
    for _ in range(3):
        R.vm.issue('st')


VQ, MD, MF = 160, 164, 180
SB = [20, 36]
VP = 52
KF = [60, 64]
VF = [68, 76]
VO = 84
VKA, VVA = 'v100', 'v101'
HALO = 120


def make_masks():
    p('v_and_b32 v10, 31, v1')
    p('v_lshrrev_b32 v11, 5, v1')
    p('v_lshlrev_b32 v11, 2, v11')
    p('v_sub_u32 v10, v10, v11')
    p(f'v_mov_b32 v12, {BIG:#x}')
    p('v_mov_b32 v13, 0')
    for i0 in range(0, 16, 4):
        for i in range(i0, i0 + 4):
            key = 8 * (i >> 2) + (i & 3)
            p(f'v_cmp_le_i32 s[{56 + 2 * (i & 3)}:{57 + 2 * (i & 3)}], {key}, v10')
        for i in range(i0, i0 + 4):
            m = f's[{56 + 2 * (i & 3)}:{57 + 2 * (i & 3)}]'
            p(f'v_cndmask_b32 v{MD + i}, v12, v13, {m}')
            p(f'v_cndmask_b32 v{MF + i}, v13, v12, {m}')


def att_addrs():
    p(f's_lshl_b32 {T[0]}, {s_tt}, 11')
    p(f's_lshl_b32 {T[1]}, {s_hd}, 10')
    p(f's_add_u32 {T[0]}, {T[0]}, {T[1]}')
    p(f's_add_u32 {T[0]}, {T[0]}, {L_K}')
    p(f'v_add_u32 {VKA}, {T[0]}, v2')
    p('v_and_b32 v10, 47, v1')
    p(f's_lshl_b32 {T[1]}, {s_hd}, 4')
    p(f'v_add_u32 v10, {T[1]}, v10')
    p('v_lshlrev_b32 v10, 4, v10')
    p('v_and_b32 v11, 16, v1')
    p('v_cmp_ne_u32 vcc, 0, v11')
    p('v_mov_b32 v11, 1024')
    p('v_cndmask_b32 v10, v10, v11, vcc')
    p(f's_mul_i32 {T[0]}, {s_tt}, {2 * VSTR}')
    p(f's_add_u32 {T[0]}, {T[0]}, {L_V}')
    p(f'v_add_u32 {VVA}, {T[0]}, v10')


def half_sum(a, t):
    p(f'v_mov_b32 {t}, {a}')
    p(f'v_permlane32_swap_b32 {a}, {t}')
    p(f'v_add_f32 {a}, {a}, {t}')


def ln_finish(s1, s2, rstd, mrs):
    p(f'v_mul_f32 {s1}, {fhex(1.0 / 512)}, {s1}')
    p(f'v_mul_f32 {s2}, {fhex(1.0 / 512)}, {s2}')
    p(f'v_fma_f32 {s2}, -{s1}, {s1}, {s2}')
    p(f'v_max_f32 {s2}, 0, {s2}')
    p(f'v_add_f32 {s2}, {fhex(1e-5)}, {s2}')
    p(f'v_rsq_f32 {rstd}, {s2}')
    p(f'v_mul_f32 {mrs}, {s1}, {rstd}')


def att_load(R, u, b, base):
    p(f'ds_read_b128 {vr(KF[b], 4)}, {base[0]} offset:{u * 2048}')
    R.lg.issue(('K', u))
    for g in range(2):
        p(f'ds_read_b128 {vr(VF[b] + 4 * g, 4)}, {base[1]} offset:{(2 * u + g) * VSTR}')
        R.lg.issue(('V', u))


def att_qk(R, u, b, c):
    R.lg.wait([('K', u)])
    p(f'v_mfma_f32_32x32x16_bf16 {vr(SB[b], 16)}, {vr(KF[b], 4)}, {vr(VQ, 4)}, {c}')


def att_body(R, u, b, nxt, first, extra=()):
    S = SB[b]
    if nxt is not None:
        att_load(R, nxt[0], 1 - b, nxt[1])
    extra = list(extra)
    for g in range(2):
        for i in range(8):
            p(f'v_exp_f32 v{S + 8 * g + i}, v{S + 8 * g + i}')
            if i in (0, 2, 3, 5, 7) and extra:
                extra.pop(0)()
        if g == 0 and nxt is not None:
            att_qk(R, nxt[0], 1 - b, nxt[2])
        for r in range(4):
            p(f'v_cvt_pk_bf16_f32 v{VP + 4 * g + r}, v{S + 8 * g + 2 * r}, v{S + 8 * g + 2 * r + 1}')
        R.lg.wait([('V', u)])
        c = '0' if (first and g == 0) else vr(VO, 16)
        p(f'v_mfma_f32_32x32x16_bf16 {vr(VO, 16)}, {vr(VF[b] + 4 * g, 4)}, {vr(VP + 4 * g, 4)}, {c}')
    assert not extra


REL = (VKA, VVA)
ABS = ('v116', 'v117')


def att_2a(R, after_first=None):
    Lx = p.newlabel('L_2a_done')
    att_load(R, 8, 0, REL)
    att_qk(R, 8, 0, vr(MD, 16))
    for n, j in enumerate((8, 7, 6, 5)):
        att_body(R, j, n & 1, (j - 1, REL, '0') if j > 5 else None, n == 0)
        if n == 0 and after_first:
            after_first()
        if j > 5:
            p(f's_cmp_eq_u32 {s_tt}, {n}')
            p(f's_cbranch_scc1 {Lx}')
    p.label(Lx)
    p('s_waitcnt lgkmcnt(0)')
    R.lg.reset()
    R.stamp('2a')
    R.dstamp('P2', '2a')


def att_2b(R, extra, after_store):
    p(f's_max_i32 {T[0]}, {s_rb}, 1')
    p(f's_sub_u32 {T[0]}, {T[0]}, 1')
    p(f's_lshl_b32 {T[0]}, {T[0]}, 4')
    p(f's_add_u32 {T[0]}, {T[0]}, {s_c}')
    p(f's_lshl_b32 {T[0]}, {T[0]}, 7')
    p(f's_add_u32 {T[0]}, {T[0]}, {FKV + 16}')
    p('v_and_b32 v102, 3, v1')
    p('v_lshlrev_b32 v102, 2, v102')
    p(f'v_add_u32 v102, {T[0]}, v102')

    def rd_check():
        p(f'buffer_load_dword v103, v102, {sWS}, 0 offen sc1')
        R.vm.issue('rd')
    Lx = p.newlabel('L_2b_done')
    att_load(R, 0, 0, REL)
    att_qk(R, 0, 0, vr(MF, 16))
    extra = list(extra)
    extra += [lambda: None] * (44 - len(extra)) + [rd_check]
    assert len(extra) <= 50
    for j in range(8):
        att_body(R, j, j & 1, (j + 1, REL, '0') if j < 7 else None, False, extra[10 * j:10 * j + 10])
        if 4 <= j < 7:
            p(f's_cmp_eq_u32 {s_tt}, {7 - j}')
            p(f's_cbranch_scc1 {Lx}')
    p.label(Lx)
    p('s_waitcnt lgkmcnt(0)')
    R.lg.reset()
    Lf = p.newlabel('L_fb')
    Lr = p.newlabel('L_fbret')
    p(f'v_mov_b32 v10, {fhex(2.0 ** -60)}')
    p(f'v_mov_b32 v11, {fhex(2.0 ** 60)}')
    p(f's_lshl_b32 {T[0]}, {s_rb}, 2')
    p(f's_add_u32 {T[0]}, {T[0]}, {s_tt}')
    p(f's_lshl_b32 {T[0]}, {T[0]}, 5')
    p(f's_lshl_b32 {T[6]}, {s_c}, 1')
    p(f's_add_u32 {T[0]}, {T[0]}, {T[6]}')
    p(f's_add_u32 {T[0]}, {T[0]}, {s_hd}')
    p(f's_lshl_b32 {T[7]}, {T[0]}, 2')
    p(f's_add_u32 {T[7]}, {T[7]}, {FO}')
    p(f's_lshl_b32 {T[0]}, {s_tt}, 2')
    p(f's_add_u32 {T[0]}, {T[0]}, {s_hd}')
    p(f's_lshl_b32 {T[0]}, {T[0]}, 10')
    p(f's_add_u32 {T[6]}, {T[0]}, {s_area}')
    p(f'v_cmp_nlt_f32 vcc, v10, v{VO + 8}')
    p(f'v_cmp_nlt_f32 s[56:57], v{VO + 8}, v11')
    p('s_or_b64 vcc, vcc, s[56:57]')
    if OPT['force_fallback']:
        p(f's_branch {Lf}')
    else:
        p(f's_cbranch_vccnz {Lf}')
    p.label(Lr)
    tail.append(lambda: fallback(Lf, Lr))
    p(f'v_rcp_f32 v10, v{VO + 8}')
    for i in range(8):
        p(f'v_mul_f32 v{VO + i}, v{VO + i}, v10')
    for r in range(4):
        p(f'v_cvt_pk_bf16_f32 v{12 + r}, v{VO + 2 * r}, v{VO + 2 * r + 1}')
    R.dstamp('P2', '2b')
    Lc = p.newlabel('L_rdc')
    Lcx = p.newlabel('L_rdx')
    R.vm.wait(['rd'])
    p(f'v_cmp_ne_u32 vcc, {s_tag}, v103')
    p(f's_cbranch_vccnz {Lcx}')
    p.label(Lc)

    def rd_slow():
        p.label(Lcx)
        poll(R2, 'v102', 'v103')
        p(f's_branch {Lc}')
    R2 = Role('tmp')
    tail.append(rd_slow)
    moded_stores(R, [f'buffer_store_dwordx4 v[12:15], v2, {sWS}, {T[6]} offen'], OPT['osc1'])
    after_store()
    flag_store(R, T[7], 'v10', 'v11')
    R.stamp('Oflag')
    R.dstamp('P2', 'Oflag')


def fallback(Lf, Lr):
    S = SB[0]
    p.label(Lf)
    p(f's_lshl_b32 {T[0]}, {s_rb}, 2')
    p(f's_add_u32 {T[0]}, {T[0]}, {s_tt}')
    p(f's_sub_i32 {T[0]}, 8, {T[0]}')
    p(f's_max_i32 s89, {T[0]}, 0')
    p(f'v_mov_b32 v14, {BIG:#x}')
    for pas in range(2):
        L = p.newlabel('L_fbl')
        Lm = p.newlabel('L_fbm')
        Ln = p.newlabel('L_fbn')
        Lc = p.newlabel('L_fbc')
        p(f's_mov_b32 s90, s89')
        if pas == 1:
            for i in range(16):
                p(f'v_mov_b32 v{VO + i}, 0')
        p.label(L)
        p(f's_lshl_b32 {T[0]}, s90, 11')
        p(f'v_add_u32 v10, {T[0]}, {VKA}')
        p(f's_mul_i32 {T[0]}, s90, {2 * VSTR}')
        p(f'v_add_u32 v11, {T[0]}, {VVA}')
        p(f'ds_read_b128 {vr(KF[0], 4)}, v10')
        p(f'ds_read_b128 {vr(VF[0], 4)}, v11')
        p(f'ds_read_b128 {vr(VF[0] + 4, 4)}, v11 offset:{VSTR}')
        p('s_waitcnt lgkmcnt(0)')
        p(f's_cmp_eq_u32 s90, 8')
        p(f's_cbranch_scc1 {Lm}')
        p(f's_cmp_eq_u32 s90, 0')
        p(f's_cbranch_scc1 {Ln}')
        p(f'v_mfma_f32_32x32x16_bf16 {vr(S, 16)}, {vr(KF[0], 4)}, {vr(VQ, 4)}, 0')
        p(f's_branch {Lc}')
        p.label(Lm)
        p(f'v_mfma_f32_32x32x16_bf16 {vr(S, 16)}, {vr(KF[0], 4)}, {vr(VQ, 4)}, {vr(MD, 16)}')
        p(f's_branch {Lc}')
        p.label(Ln)
        p(f'v_mfma_f32_32x32x16_bf16 {vr(S, 16)}, {vr(KF[0], 4)}, {vr(VQ, 4)}, {vr(MF, 16)}')
        p.label(Lc)
        if pas == 0:
            for i in range(16):
                p(f'v_max_f32 v14, v14, v{S + i}')
        else:
            for i in range(16):
                p(f'v_sub_f32 v{S + i}, v{S + i}, v14')
                p(f'v_exp_f32 v{S + i}, v{S + i}')
            for r in range(8):
                p(f'v_cvt_pk_bf16_f32 v{VP + r}, v{S + 2 * r}, v{S + 2 * r + 1}')
            for g in range(2):
                p(f'v_mfma_f32_32x32x16_bf16 {vr(VO, 16)}, {vr(VF[0] + 4 * g, 4)}, {vr(VP + 4 * g, 4)}, {vr(VO, 16)}')
        p(f's_add_u32 s90, s90, 1')
        p(f's_cmp_le_u32 s90, 8')
        p(f's_cbranch_scc1 {L}')
        if pas == 0:
            p('v_mov_b32 v15, v14')
            p('v_permlane32_swap_b32 v14, v15')
            p('v_max_f32 v14, v14, v15')
    p(f's_branch {Lr}')


def w64_dma_lane(dst):
    p('v_lshrrev_b32 v10, 3, v1')
    p('v_lshlrev_b32 v10, 10, v10')
    p('v_and_b32 v11, 7, v1')
    p('v_bfe_u32 v12, v1, 4, 1')
    p('v_lshlrev_b32 v12, 2, v12')
    p('v_xor_b32 v11, v11, v12')
    p('v_lshl_add_u32 v10, v11, 4, v10')
    p(f's_lshl_b32 {T[0]}, {s_cb}, 7')
    p(f'v_add_u32 {dst}, {T[0]}, v10')


def w1_dma_lanes(dsts):
    p(f's_movk_i32 {T[3]}, 5462')
    p(f's_movk_i32 {T[4]}, 2752')
    p(f's_mul_i32 {T[1]}, {s_c}, 192')
    for q, dst in enumerate(dsts):
        p(f'v_add_u32 v10, {64 * q}, v1')
        p(f'v_mul_lo_u32 v11, v10, {T[3]}')
        p('v_lshrrev_b32 v11, 16, v11')
        p('v_mul_u32_u24 v12, 12, v11')
        p('v_sub_u32 v12, v10, v12')
        p('v_lshlrev_b32 v12, 4, v12')
        p(f'v_mul_lo_u32 v11, v11, {T[4]}')
        p(f'v_add3_u32 {dst}, v11, v12, {T[1]}')


def tr64_lanes(a0, a1):
    p('v_bfe_u32 v10, v1, 2, 2')
    p('v_lshrrev_b32 v11, 5, v1')
    p('v_lshl_add_u32 v10, v11, 2, v10')
    p('v_lshlrev_b32 v10, 7, v10')
    p('v_bfe_u32 v11, v1, 4, 1')
    p('v_lshl_add_u32 v10, v11, 5, v10')
    p('v_and_b32 v11, 3, v1')
    p('v_lshl_add_u32 v10, v11, 3, v10')
    p('v_bfe_u32 v11, v1, 3, 1')
    p(f'v_lshl_add_u32 {a0}, v11, 6, v10')
    p(f'v_xor_b32 {a1}, 64, {a0}')


def tr_kv_lane(a):
    p('v_bfe_u32 v10, v1, 2, 2')
    p('v_lshrrev_b32 v11, 5, v1')
    p('v_lshl_add_u32 v10, v11, 3, v10')
    p('v_lshlrev_b32 v10, 7, v10')
    p('v_bfe_u32 v11, v1, 4, 1')
    p('v_lshl_add_u32 v10, v11, 5, v10')
    p('v_and_b32 v11, 3, v1')
    p('v_lshl_add_u32 v10, v11, 3, v10')
    p('v_bfe_u32 v11, v1, 3, 1')
    p(f'v_lshl_add_u32 {a}, v11, 6, v10')


def x_lane(a):
    p('v_and_b32 v10, 31, v1')
    p(f's_lshl_b32 {T[0]}, {s_tt}, 5')
    p(f'v_add_u32 v10, {T[0]}, v10')
    p('v_bfe_u32 v11, v10, 1, 3')
    p('v_lshrrev_b32 v12, 5, v1')
    p('v_xor_b32 v11, v11, v12')
    p('v_lshlrev_b32 v11, 4, v11')
    p(f'v_lshl_add_u32 {a}, v10, 7, v11')


def tr96_lane(a):
    p('v_bfe_u32 v10, v1, 2, 2')
    p('v_lshrrev_b32 v11, 5, v1')
    p('v_lshl_add_u32 v10, v11, 2, v10')
    p('v_mul_u32_u24 v10, 192, v10')
    p('v_bfe_u32 v11, v1, 4, 1')
    p('v_lshl_add_u32 v10, v11, 5, v10')
    p('v_and_b32 v11, 3, v1')
    p(f'v_lshl_add_u32 {a}, v11, 3, v10')


def dump_stamps(R):
    if not OPT['stamps']:
        return
    R.stamp('end')
    p(f's_lshl_b32 {T[0]}, s2, 3')
    p(f's_add_u32 {T[0]}, {T[0]}, {s_w}')
    p(f's_lshl_b32 {T[0]}, {T[0]}, 8')
    p(f's_add_u32 {T[0]}, {T[0]}, {STAMP}')
    p('v_lshlrev_b32 v10, 2, v1')
    p('v_mov_b32 v11, 0')
    for k in range(R.nstamp):
        p(f'v_writelane_b32 v11, s{66 + k}, {k}')
    p(f'v_writelane_b32 v11, {s_mode}, 63')
    p(f'v_writelane_b32 v11, s100, 62')
    p(f'v_writelane_b32 v11, s101, 61')
    p(f'buffer_store_dword v11, v10, {sWS}, {T[0]} offen')
    if OPT.get('dbgout') and R is CW:
        L = p.newlabel('L_dbg')
        p(f's_cmp_lg_u32 s2, {OPT["dbgout"]}')
        p(f's_cbranch_scc1 {L}')
        p(f's_cmp_lg_u32 {s_w}, 0')
        p(f's_cbranch_scc1 {L}')
        p('s_load_dwordx2 s[40:41], s[0:1], 72')
        p('s_memrealtime s[98:99]')
        p('s_waitcnt lgkmcnt(0)')
        p('s_and_b32 s41, s41, 0xffff')
        p('s_mov_b32 s42, 256')
        p('s_mov_b32 s43, 0x20000')
        p('v_subrev_u32 v11, s100, v11')
        p('s_sub_u32 s98, s98, s86')
        p('v_writelane_b32 v11, s98, 15')
        p('buffer_store_dword v11, v10, s[40:43], 0 offen')
        p.label(L)


R = HW
def touch_st():
    p('v_bfe_u32 v250, v1, 2, 1')
    p('v_lshlrev_b32 v250, 12, v250')
    p('v_and_b32 v251, 3, v1')
    p('v_lshl_add_u32 v250, v251, 7, v250')
    p(f's_lshl_b32 {T[6]}, {s_rs}, 13')
    p(f's_lshl_b32 {T[7]}, {s_cb}, 9')
    p(f's_add_u32 {T[6]}, {T[6]}, {T[7]}')
    p(f's_add_u32 {T[6]}, {T[6]}, {STB}')
    p(f'buffer_load_dword v253, v250, {sWS}, {T[6]} offen sc1')
    R.vm.issue('t')


def touch_fl():
    p('v_bfe_u32 v250, v1, 2, 2')
    p('v_min_u32 v250, 2, v250')
    p('v_lshlrev_b32 v250, 13, v250')
    p('v_and_b32 v251, 3, v1')
    p('v_lshl_add_u32 v250, v251, 7, v250')
    p(f's_lshl_b32 {T[6]}, {s_rb}, 9')
    p(f's_add_u32 {T[6]}, {T[6]}, {FO}')
    p(f'buffer_load_dword v254, v250, {sWS}, {T[6]} offen sc1')
    R.vm.issue('t')


TM = OPT['tmode']
after = {1: {0: [2], 1: [4], 2: [6]}, 2: {0: [2, 4], 1: [6]}, 3: {0: [2], 1: [4], 3: [6]}, 4: {0: [2, 4, 6]}}[TM]


def chunk_t(R, ch):
    gs = chunk_groups(R, ch) + [wtouch(R, i) for i in after.get(ch, [])]
    if ch == OPT['qat']:
        gs.append(qtouch(R))
    if OPT['mallat'] < 8:
        m = OPT['mallat']
        gs += {m: [warm_mall(R, sW1)], m + 1: [warm_mall(R, sW2)], m + 2: [warm_wo(R), touch_fl, touch_st]}.get(ch, [])
    return gs


for g in [wtouch(R, 0)] + chunk_t(R, 0) + [srds_w]:
    g()
tr_kv_lane('v19')
p(f's_and_b32 {T[0]}, {s_q}, 1')
p(f's_lshl_b32 {T[0]}, {T[0]}, 6')
p(f'v_xor_b32 v19, {T[0]}, v19')
p(f's_sub_u32 {s_tt}, 7, {s_w}')
x_lane('v9')
XQ = [20 + 4 * i for i in range(4)] + [68 + 4 * i for i in range(8)] + [120 + 4 * i for i in range(10)] + [196 + 4 * i for i in range(10)]
AQ = 236


def wq_lane():
    p('v_lshrrev_b32 v10, 2, v1')
    p(f's_lshl_b32 {T[0]}, {s_q}, 7')
    p(f'v_add_u32 v10, {T[0]}, v10')
    p(f's_movk_i32 {T[1]}, 3072')
    p(f'v_mul_lo_u32 v10, v10, {T[1]}')
    p('v_and_b32 v11, 3, v1')
    p('v_lshl_add_u32 v10, v11, 4, v10')
    p(f's_lshl_b32 {T[1]}, {s_c}, 6')
    p(f'v_add_u32 v7, {T[1]}, v10')
    p('v_bfe_u32 v10, v1, 2, 2')
    p('v_lshrrev_b32 v11, 5, v1')
    p('v_lshl_add_u32 v10, v11, 3, v10')
    p('v_lshlrev_b32 v10, 6, v10')
    p('v_bfe_u32 v11, v1, 4, 1')
    p('v_lshl_add_u32 v10, v11, 5, v10')
    p('v_and_b32 v11, 3, v1')
    p('v_lshl_add_u32 v10, v11, 3, v10')
    p(f'v_add_u32 v8, {L_WQ}, v10')


def wq_piece(n):
    def f():
        p(f's_lshl_b32 {T[7]}, {s_q}, 13')
        p(f's_add_u32 m0, {T[7]}, {L_WQ + n * 1024}')
        p(f's_mov_b32 {T[7]}, {n * 16 * 3072}')
        p(f'buffer_load_dwordx4 v7, {sWQKV}, {T[7]} offen lds')
        R.vm.issue('wq')
    return f

STG = [120 + 4 * i for i in range(10)] + [196 + 4 * i for i in range(14)]
ONE, CSA = 104, 52
for r in range(4):
    p(f'v_mov_b32 v{ONE + r}, 0x3f803f80')


def w1_stage(n):
    def f():
        if n % 3 == 0:
            p(f's_mul_i32 {T[6]}, {s_q}, {8 * 16 * 2752}')
            p(f's_add_u32 {T[6]}, {T[6]}, {(n // 3) * 16 * 2752}')
        p(f'buffer_load_dwordx4 {vr(STG[n], 4)}, v{112 + n % 3}, {sW1}, {T[6]} offen' + (' nt' if OPT.get('nt_w1') else ''))
        R.vm.issue('w1')
    return f


def get_tag():
    p(f'v_mov_b32 v10, {S_TAG}')
    p('ds_read_b32 v10, v10')
    p('s_waitcnt lgkmcnt(0)')
    p(f'v_readfirstlane_b32 {s_tag}, v10')


def hw_masks():
    make_masks()
    p(f's_and_b32 {s_q}, {s_w}, 3')


p('v_mov_b32 v10, 0')
p('v_mov_b32 v11, 0')
p('v_lshlrev_b32 v12, 3, v1')
p('v_and_b32 v12, 63, v12')
p(f'ds_write_b64 v12, v[10:11] offset:{S_SYNC}')
common_setup(R)
w1_dma_lanes(['v112', 'v113', 'v114'])
hw_masks()
w64_dma_lane('v115')
att_addrs()
wq_lane()
R.dstamp('P1', 'setup')
for g in chunk_t(R, 1) + (chunk_t(R, 2) if OPT['la'] == 3 else []):
    g()
R.stamp('start')
late = [w1_stage(n) for n in range(24)]
fill = {1: [get_tag]}
for ch in range(8):
    slot = RING + (ch % NSLOT) * SLOT
    p(f'v_add_u32 v14, {slot + 16384}, v19')
    p(f'v_add_u32 v108, {slot}, v9')
    for ks in range(1, 4):
        p(f'v_xor_b32 v{(108, 109, 116, 117)[ks]}, {32 * ks}, v108')
    if ch >= 4:
        R.dstamp('P1', f'iss{ch}')
    R.vm.wait([('ch', ch)])
    if ch == 0:
        p('s_waitcnt lgkmcnt(0)')
    if ch >= 4:
        R.dstamp('P1', f'vm{ch}')
    R.bar()
    R.dstamp('P1', f'bar{ch}')
    for ks in range(4):
        for rd in range(2):
            p(f'ds_read_b64_tr_b16 {vr(36 + 4 * ks + 2 * rd, 2)}, v14 offset:{ks * 2048 + rd * 512}')
    for ks in range(4):
        p(f'ds_read_b128 {vr(XQ[4 * ch + ks], 4)}, v{(108, 109, 116, 117)[ks]}')
    LA = OPT['la']
    if ch + LA < 8:
        extra = chunk_t(R, ch + LA)
    elif ch == 8 - LA:
        extra = [wq_piece(n) for n in range(8)]
    else:
        extra = []
    mf = [(lambda ks=ks: p(f'v_mfma_f32_32x32x16_bf16 {vr(CSA, 16)}, {vr(ONE, 4)}, {vr(36 + 4 * ks, 4)}, {"0" if ch == 0 and ks == 0 else vr(CSA, 16)}')) for ks in range(4)]
    other = [lambda: p('s_waitcnt lgkmcnt(0)')] + mf + fill.get(ch, [])
    for k, g in enumerate(extra):
        g()
        if k >= 1 and other:
            other.pop(0)()
            if k == 1:
                other.pop(0)()
    for g in other:
        g()
p('v_and_b32 v10, 31, v1')
p('v_lshlrev_b32 v10, 2, v10')
p(f's_and_b32 {T[0]}, {s_q}, 1')
p(f's_lshl_b32 {T[0]}, {T[0]}, 7')
p(f'v_add_u32 v11, {T[0]}, v10')
p(f'ds_write_b32 v11, v{CSA} offset:{S_CS + 128}')
p('s_waitcnt lgkmcnt(0)')
R.bar()
R.stamp('B1')
R.dstamp('P2', 'B1')
burst = [warm_wo(R), warm_mall(R, sW1), warm_mall(R, sW2), touch_fl, touch_st]
if OPT['small']:
    burst[1] = burst[2] = lambda: None
if OPT['mallat'] == 8:
    for g in burst:
        g()
p('v_min_u32 v15, 23, v1')
p('v_lshrrev_b32 v16, 3, v15')
p(f'v_add_u32 v16, {s_rb}, v16')
p('v_cmp_le_u32 vcc, 2, v16')
p('v_mov_b32 v13, 0')
p('v_cndmask_b32 v44, v13, v18, vcc')
p('v_mov_b32 v45, v44')
p('v_mov_b32 v46, v44')
p('v_mov_b32 v47, v44')
p(f'v_mul_u32_u24 v15, {VSTR}, v15')
p(f'v_add_u32 v15, {L_V + 1024}, v15')
p('ds_write_b128 v15, v[44:47]')
p('v_mov_b32 v118, 0')
p('v_mov_b32 v119, 1')
p(f's_lshl_b32 {T[0]}, {s_tt}, 7')
p(f'v_add_u32 v11, {T[0]}, v10')
p(f'ds_read_b32 v108, v11 offset:{S_R}')
p(f'ds_read_b32 v109, v11 offset:{S_M}')
R.vm.wait(['wq'])
p(f's_lshl_b32 {T[0]}, {s_q}, 13')
p(f'v_add_u32 v14, {T[0]}, v8')
signal(R, H_WQ, 'v118', 'v119')
R.lg.reset()
for k in range(8 + 3):
    if k < 8:
        for rd in range(2):
            dsr(R, 'ds_read_b64_tr_b16', vr(36 + 4 * (k % 4) + 2 * rd, 2), ['v14'], k * 1024 + rd * 256, ('c', k))
    if k >= 3:
        R.lg.wait([('c', k - 3)])
        p(f'v_mfma_f32_32x32x16_bf16 {vr(CSA, 16)}, {vr(ONE, 4)}, {vr(36 + 4 * ((k - 3) % 4), 4)}, {"0" if k == 3 else vr(CSA, 16)}')
lwait(R, H_WQ, 'v118', 'v12')
p(f's_lshl_b32 {T[0]}, {s_q}, 7')
p(f'v_add_u32 v11, {T[0]}, v10')
p('v_lshrrev_b32 v12, 5, v1')
p('v_lshlrev_b32 v12, 4, v12')
for k in range(32 + 3):
    if k < 32:
        for rd in range(2):
            dsr(R, 'ds_read_b64_tr_b16', vr(36 + 4 * (k % 4) + 2 * rd, 2), ['v8'], k * 1024 + rd * 256, ('q', k))
    if k >= 3:
        R.lg.wait([('q', k - 3)])
        p(f'v_mfma_f32_32x32x16_bf16 {vr(AQ, 16)}, {vr(36 + 4 * ((k - 3) % 4), 4)}, {vr(XQ[k - 3], 4)}, {"0" if k == 3 else vr(AQ, 16)}')
    if OPT['mallat'] == 9 and k in (8, 10, 12, 14, 16):
        burst[(k - 8) // 2]()
    if k == 4:
        p(f'ds_write_b32 v11, v{CSA} offset:{S_CSQ}')
        R.lg.issue('w')
        signal(R, H_CSQ, 'v118', 'v119')
    if k == 20:
        lwait(R, H_CSQ, 'v118', 'v13')
    if k in (21, 23, 25, 27):
        q = (k - 21) // 2
        R.lg.room(4)
        for g in range(4):
            p(f'ds_read_b128 {vr((CSA if q == 0 else 68 + 16 * ((q - 1) % 2)) + 4 * g, 4)}, v12 offset:{S_CSQ + 128 * q + 32 * g}')
            R.lg.issue(('p', q))
    if k in (25, 27, 29):
        q = (k - 23) // 2
        R.lg.wait([('p', q)])
        for i in range(16):
            p(f'v_add_f32 v{CSA + i}, v{CSA + i}, v{68 + 16 * ((q - 1) % 2) + i}')
c = 0.25 * LOG2E
p(f'v_mul_f32 v108, {fhex(c)}, v108')
p(f'v_mul_f32 v109, {fhex(c)}, v109')
for i in range(16):
    p(f'v_mul_f32 v{CSA + i}, v109, v{CSA + i}')
p(f's_lshl_b32 {T[0]}, {s_tt}, 10')
p(f's_add_u32 {T[0]}, {T[0]}, {L_QX}')
p(f'v_add_u32 v14, {T[0]}, v2')
for i in range(16):
    p(f'v_fma_f32 v{AQ + i}, v{AQ + i}, v108, -v{CSA + i}')
for r in range(4):
    p(f'v_cvt_pk_bf16_f32 v{40 + r}, v{AQ + 2 * r}, v{AQ + 2 * r + 1}')
p('ds_write_b128 v14, v[40:43]')
for r in range(4):
    p(f'v_cvt_pk_bf16_f32 v{VQ + r}, v{AQ + 8 + 2 * r}, v{AQ + 8 + 2 * r + 1}')
signal(R, H_Q, 'v118', 'v119')
R.dstamp('P2', 'epi')
lwait(R, C_KV, 'v118', 'v12')
R.stamp('B2')
R.dstamp('P2', 'B2')


def wo_piece(q):
    def f():
        p(f's_lshl_b32 {T[6]}, {s_q}, 14')
        p(f's_add_u32 m0, {T[6]}, {L_WO + q * 1024}')
        p(f's_lshl_b32 {T[6]}, {s_q}, 17')
        p(f's_add_u32 {T[6]}, {T[6]}, {q * 8192}')
        p(f'buffer_load_dwordx4 v115, {sWO}, {T[6]} offen lds')
        R.vm.issue('wo')
    return f


def wo_done():
    R.vm.wait(['wo'])
    signal(R, H_WO, 'v118', 'v119')


wo = [wo_piece(q) for q in range(16)]
if OPT['mallat'] == 11:
    lwait(R, C_FLAG, 'v118', 'v12')
    for g in [burst[1], burst[0], burst[3], burst[4]] + ([burst[2]] if OPT['m2early'] else []):
        g()
if OPT['wopos'] == 0:
    for g in wo:
        g()
    wo = []
att_2a(R)
if OPT['wopos'] == 1 or OPT['mallat'] == 10:
    lwait(R, C_HALO, 'v118', 'v12')
if OPT['mallat'] == 10:
    for g in [burst[1], burst[0], burst[3], burst[4]] + ([burst[2]] if OPT['m2early'] else []):
        g()
if not OPT['wolate']:
    for g in wo:
        g()
    wo = []
R.dstamp('P2', 'pref')
R.bar()
R.stamp('B3')
R.dstamp('P2', 'B3')
p(f'v_mov_b32 v10, {S_MODE}')
p('ds_read_b32 v10, v10')
p('s_waitcnt lgkmcnt(0)')
p(f'v_readfirstlane_b32 {s_mode}, v10')


def w2_groups(lst, regs=None):
    lst = list(lst)
    while len(lst) % 4:
        lst.append(lst[-1])
    gs = []
    if OPT.get('x_now2'):
        return [lambda: None] * (len(lst) // 2)
    for n in range(len(lst) // 4):
        ks = lst[4 * n:4 * n + 4]
        src = [k * 16 * 1024 for k in ks]
        dst = [w2_pos[k] for k in ks]

        def sel(reg, vals):
            d = vals[1] - vals[0]
            if all(vals[q] == vals[0] + q * d for q in range(4)):
                p(f's_mul_i32 {reg}, {s_q}, {d}')
                p(f's_add_u32 {reg}, {reg}, {vals[0]}')
            else:
                p(f's_mov_b32 {reg}, {vals[0]}')
                for q in range(1, 4):
                    p(f's_cmp_eq_u32 {s_q}, {q}')
                    p(f's_cselect_b32 {reg}, {vals[q]}, {reg}')

        def g0(src=src, dst=dst, n=n):
            sel(T[6], src)
            if regs is None:
                sel(T[7], dst)
                p(f's_mov_b32 m0, {T[7]}')
                p(f'buffer_load_dwordx4 v115, {sW2}, {T[6]} offen lds')
            else:
                p(f'buffer_load_dwordx4 {vr(regs[2 * n], 4)}, v115, {sW2}, {T[6]} offen')
            R.vm.issue(('w2', 2 * n))

        def g1(n=n):
            p(f's_add_u32 {T[6]}, {T[6]}, 8192')
            if regs is None:
                p(f's_add_u32 m0, {T[7]}, 1024')
                p(f'buffer_load_dwordx4 v115, {sW2}, {T[6]} offen lds')
            else:
                p(f'buffer_load_dwordx4 {vr(regs[2 * n + 1], 4)}, v115, {sW2}, {T[6]} offen')
            R.vm.issue(('w2', 2 * n + 1))
        gs += [g0, g1]
    return gs


p(f's_setprio {OPT["hprio"]}')
ex = ([touch_st] if OPT['m2at'] >= 2 else []) + ([burst[2]] if OPT['m2at'] == 3 else []) + wo + late[:8] + [wo_done] + late[8:] + ([burst[2]] if OPT['mallat'] >= 10 and not OPT['m2early'] else [])
sl = [lambda: None] * 44
for i, g in enumerate(ex):
    sl[i * 44 // len(ex)] = g
ex = sl
att_2b(R, ex, lambda: None)
p('s_setprio 0')
p('v_min_u32 v10, 47, v1')
p('v_lshlrev_b32 v11, 2, v10')
p(f's_mul_i32 {T[0]}, {s_c}, 192')
p(f'buffer_load_dword v12, v11, {sB1}, {T[0]} offen')
R.vm.issue('b1')
p(f's_mul_i32 {T[0]}, {s_q}, {8 * 3072}')
p(f's_add_u32 {T[0]}, {T[0]}, {BASE}')
p(f'v_add_u32 v3, {T[0]}, v2')
R.bar()
for n in range(24):
    p(f'ds_write_b128 v3, {vr(STG[n], 4)} offset:{n * 1024}')
    if n % 4 == 3:
        p('s_waitcnt lgkmcnt(4)')
LST = [120 + 4 * i for i in range(28)]
gl = w2_groups(late_order, LST)
NC = OPT['w2c']
R.vm.wait(['b1'])
p('v_lshlrev_b32 v14, 16, v12')
p('v_and_b32 v15, 0xffff0000, v12')
p('v_lshlrev_b32 v11, 3, v10')
p(f'ds_write_b64 v11, v[14:15] offset:{S_B1}')
p('v_mov_b32 v16, 0')
p('v_mov_b32 v17, 1')
signal(R, H_W1, 'v16', 'v17')
R.dstamp('P3', 'w1wr')
tr96_lane('v3')
p(f's_min_u32 {T[1]}, {s_q}, 2')
p(f's_lshl_b32 {T[1]}, {T[1]}, 6')
p(f'v_add_u32 v3, {T[1]}, v3')
p('v_add_u32 v4, 0x10000, v3')
p('v_mov_b32 v18, 0x3f803f80')
p('v_mov_b32 v100, 0')
p('v_mov_b32 v101, 0')
lwait(R, C_OIS, 'v16', 'v10')
if OPT['m2at'] == 2:
    p('v_min_u32 v19, 11, v1')
    p('v_lshlrev_b32 v19, 7, v19')
    p(f's_lshl_b32 {T[7]}, s2, 2')
    p(f's_add_u32 {T[7]}, {T[7]}, {s_q}')
    p(f's_mul_i32 {T[7]}, {T[7]}, 1536')
    p(f'buffer_load_dword v254, v19, {sW2}, {T[7]} offen')
for g in w2_groups(W2_REG) + gl[:NC]:
    g()
lwait(R, H_W1, 'v16', 'v10')
for s0 in range(0, 0 if OPT.get('x_nocs') else 36, 4):
    if s0 < 32:
        for s in range(s0, s0 + 4):
            for rd in range(2):
                dsr(R, 'ds_read_b64_tr_b16', vr(20 + 16 * ((s0 // 4) % 2) + 4 * (s % 4) + 2 * rd, 2), ['v3', 'v4'], w1_addr(s) + rd * 1536, ('c', s0))
    if s0 >= 4:
        R.lg.wait([('c', s0 - 4)])
        for r in range(16):
            p(f'v_dot2c_f32_bf16 v{100 + (r & 1)}, v{20 + 16 * ((s0 // 4 - 1) % 2) + r}, v18')
p('v_add_f32 v100, v100, v101')
half_sum('v100', 'v101')
p('v_and_b32 v10, 31, v1')
p('v_lshlrev_b32 v10, 2, v10')
p(f's_lshl_b32 {T[1]}, {T[1]}, 1')
p(f'v_add_u32 v11, {T[1]}, v10')
p(f'ds_write_b32 v11, v100 offset:{S_CS1}')
p(f's_lshl_b32 {T[1]}, {s_rb}, 2')
p(f's_add_u32 {T[1]}, {T[1]}, {s_q}')
p(f's_lshl_b32 {T[2]}, {T[1]}, 7')
p(f's_add_u32 {T[2]}, {T[2]}, {FH}')
p('v_and_b32 v12, 15, v1')
p('v_lshlrev_b32 v12, 2, v12')
p(f'v_add_u32 v12, {T[2]}, v12')
p(f's_lshl_b32 {T[1]}, {T[1]}, 12')
p(f's_add_u32 {T[1]}, {T[1]}, {STB}')
p('v_lshrrev_b32 v13, 5, v1')
p('v_lshlrev_b32 v13, 11, v13')
p('v_lshl_add_u32 v13, v10, 1, v13')
poll(R, 'v12', 'v11', slow=True)
for q in range(8):
    p(f'buffer_load_dwordx2 {vr(20 + 2 * q, 2)}, v13, {sWS}, {T[1]} offen offset:{q * 256} sc1')
p(f's_lshl_b32 {T[0]}, {s_q}, 7')
p(f'v_add_u32 v10, {T[0]}, v10')
p('s_waitcnt vmcnt(0)')
for q in range(1, 8):
    p(f'v_add_f32 v20, v20, v{20 + 2 * q}')
    p(f'v_add_f32 v21, v21, v{21 + 2 * q}')
half_sum('v20', 'v11')
half_sum('v21', 'v11')
ln_finish('v20', 'v21', 'v22', 'v23')
p('v_sub_f32 v23, 0, v23')
p(f'ds_write_b32 v10, v22 offset:{S_R}')
p(f'ds_write_b32 v10, v23 offset:{S_M}')
signal(R, H_TAB, 'v16', 'v17')
R.dstamp('P3', 'cs1')
R.dstamp('P4', 'cs1')
p(f's_lshl_b32 {T[0]}, {s_q}, 11')
p(f's_add_u32 {T[0]}, {T[0]}, {BASE}')
p(f'v_add_u32 v3, {T[0]}, v2')
p('v_add_u32 v4, 0x10000, v3')
lwait(R, C_ISS, 'v16', 'v10')
R.dstamp('P4', 'iss')
for g in w2_groups(W2_P1):
    g()
R.vm.q = ['w2p1' for _ in R.vm.q]
for g in gl[NC:NC + 8]:
    g()
R.vm.wait(['w2p1'])
signal(R, H_P1, 'v16', 'v17')
for g in gl[NC + 8:]:
    g()
R.dstamp('P4', 'late')
lwait(R, C_END, 'v16', 'v10')
for n in range(28):
    R.vm.wait([('w2', n)])
    off = (n // 2) * 8192 + (n % 2) * 1024
    p(f'ds_write_b128 v{3 + off // 65536}, {vr(LST[n], 4)} offset:{off % 65536}')
    if n % 4 == 3:
        p('s_waitcnt lgkmcnt(4)')
signal(R, H_LATE, 'v16', 'v17')
R.dstamp('P5', 'latedone')
L7 = p.newlabel('L_n7')
Le = p.newlabel('L_ep')
Led = p.newlabel('L_epd')
p('s_cmp_lg_u32 s2, 0')
p(f's_cbranch_scc1 {L7}')
p(f's_cmp_lg_u32 {s_w}, 7')
p(f's_cbranch_scc1 {L7}')
p('v_lshrrev_b32 v12, 2, v1')
p('v_lshlrev_b32 v12, 7, v12')
p('v_and_b32 v13, 3, v1')
p('v_lshl_add_u32 v12, v13, 4, v12')
p(f's_mov_b32 {T[0]}, 0')
p.label(Le)
for q in range(16):
    p(f's_mov_b32 {T[1]}, {RST + 2048 * q}')
    p(f'buffer_load_dword v{20 + q}, v12, {sWS}, {T[1]} offen offset:4 sc1')
p('s_waitcnt vmcnt(0)')
p('s_mov_b64 vcc, 0')
for q in range(16):
    p(f'v_cmp_ne_u32 s[90:91], {s_tag}, v{20 + q}')
    p('s_or_b64 vcc, vcc, s[90:91]')
p(f's_cbranch_vccz {Led}')
p(f's_add_u32 {T[0]}, {T[0]}, 1')
p(f's_cmp_lt_u32 {T[0]}, {OPT["spin"]}')
p(f's_cbranch_scc1 {Le}')
p.label(Led)
p('v_mov_b32 v10, 0')
p(f'v_mov_b32 v11, {s_tag}')
p('s_mov_b64 exec, 1')
p(f'buffer_store_dword v11, v10, {sWS}, 0 offen sc1')
p('s_mov_b64 exec, -1')
p.label(L7)
dump_stamps(R)
p.label('L_end')
p('s_endpgm')
while tail:
    tail.pop(0)()
tail = []

R = CW
p.label('L_CW')
if OPT['small']:
    st = OPT['small']
    p('s_waitcnt lgkmcnt(0)')
    p(f's_lshl_b32 {T[0]}, s2, 2')
    p(f's_add_u32 {T[0]}, {T[0]}, {s_q}')
    p(f's_mul_i32 {T[0]}, {T[0]}, 1376')
    for lo in (72, 76):
        p(f's_add_u32 s90, s{lo}, {T[0]}')
        p(f's_addc_u32 s91, s{lo + 1}, 0')
        for o in sorted(set(list(range(0, 1376, st)) + [1372])):
            p(f's_load_dword s92, s[90:91], {o}')
srds_w()
common_setup(R)


def tlbwarm():
    if not OPT['tlbwarm']:
        return
    p('v_and_b32 v250, 7, v1')
    p('v_min_u32 v250, 5, v250')
    p('v_lshlrev_b32 v250, 21, v250')
    p('v_mov_b32 v251, 0')
    p(f'buffer_load_dword v252, v250, {sWS}, 0 offen offset:2048 sc1')
    for k, d in enumerate((sWO, sW1, sW2, sOUT, sB1, sB2)):
        p(f'buffer_load_dword v{254 + (k & 1)}, v251, {d}, 0 offen')
    for _ in range(7):
        R.vm.issue('t')


p(f's_mov_b32 s65, {T[5]}')
make_masks()
p(f's_and_b32 {s_q}, {s_w}, 3')
x_lane('v9')
p(f's_lshl_b32 {T[0]}, {s_rb}, 11')
p(f's_add_u32 {T[0]}, {T[0]}, {RST}')
p(f'v_lshlrev_b32 v8, 4, v10')
p(f'v_add_u32 v8, {T[0]}, v8')
p('v_and_b32 v7, 31, v1')
p('v_lshlrev_b32 v7, 3, v7')
p(f's_lshl_b32 {T[1]}, {s_team}, 8')
p(f's_add_u32 {T[1]}, {T[1]}, {ST}')
p(f'v_add_u32 v7, {T[1]}, v7')
tr_kv_lane('v19')
XF = [20, 36]
WF = [52, 100]
AK, AV = 212, 228
GR = 148


def p1_addrs(ch):
    slot = RING + (ch % NSLOT) * SLOT
    p(f'v_add_u32 v10, {slot}, v9')
    for ks in range(1, 4):
        p(f'v_xor_b32 v{10 + ks}, {32 * ks}, v10')
    p(f'v_add_u32 v14, {slot + 16384}, v19')
    p('v_xor_b32 v15, 64, v14')


def p1_reads(ch):
    b = ch & 1
    out = []
    for ks in range(4):
        out.append(f'ds_read_b128 {vr(XF[b] + 4 * ks, 4)}, v{10 + ks}')
        for sec in (0, 1):
            for rd in range(2):
                out.append(f'ds_read_b64_tr_b16 {vr(WF[b] + 16 * sec + 4 * ks + 2 * rd, 2)}, v{14 + sec} offset:{ks * 2048 + rd * 512}')
    return out


def p1_mfmas(ch):
    a = ch & 1
    out = []
    for ks in range(4):
        first = ch == 0 and ks == 0
        x = vr(XF[a] + 4 * ks, 4)
        c = lambda r: '0' if first else vr(r, 16)
        out.append(f'v_mfma_f32_32x32x16_bf16 {vr(AK, 16)}, {vr(WF[a] + 4 * ks, 4)}, {x}, {c(AK)}')
        out.append(f'v_mfma_f32_32x32x16_bf16 {vr(AV, 16)}, {x}, {vr(WF[a] + 16 + 4 * ks, 4)}, {c(AV)}')
    return out


def weave(R, mf, lds, extra=(), per=3):
    lds = list(lds)
    extra = list(extra)
    n = 0

    def emit_lds(k):
        nonlocal n
        for _ in range(k):
            if not lds:
                return
            if n and n % 7 == 0 and n >= 14:
                p('s_waitcnt lgkmcnt(7)')
            p(lds.pop(0))
            n += 1
    for i, m in enumerate(mf):
        p(m)
        emit_lds(per)
        if extra and i % 3 == 2:
            extra.pop(0)()
    emit_lds(99)
    for g in extra:
        g()


def kv_ids():
    p(f's_lshl_b32 {T[2]}, {s_rb}, 4')
    p(f's_add_u32 {T[2]}, {T[2]}, {s_c}')
    p(f's_lshl_b32 {T[4]}, {T[2]}, 5')
    p(f's_add_u32 {T[4]}, {T[4]}, {s_w}')
    p(f's_lshl_b32 {T[4]}, {T[4]}, 2')
    p(f's_add_u32 {T[4]}, {T[4]}, {FKV}')
    p(f's_lshl_b32 {T[5]}, {s_w}, 12')
    p(f's_add_u32 {T[5]}, {T[5]}, {s_area}')
    p(f's_add_u32 {T[2]}, {T[5]}, {32 * 16384}')


def kv_clear():
    for r in range(4):
        p(f'v_mov_b32 v{244 + r}, -1')
    for q in range(4):
        p(f'buffer_store_dwordx4 v[244:247], v2, {sWS}, {T[2]} offen offset:{q * 1024} sc1')
        R.vm.issue('st')


def kv_cleared():
    flag_store(R, T[4], 'v248', 'v249', moded=False)


kv_ids()
if OPT['kvtag'] and OPT['clrat'] == -1:
    kv_clear()
p(f's_cmp_ge_u32 {s_rb}, 1')
p(f's_cselect_b32 {T[0]}, {16 * 128}, 0')
p(f's_sub_u32 {T[0]}, {T[4]}, {T[0]}')
p(f's_cmp_ge_u32 {s_rb}, 2')
p(f's_cselect_b32 {T[1]}, {2 * 16 * 128}, 0')
p(f's_sub_u32 {T[1]}, {T[4]}, {T[1]}')
p(f'v_mov_b32 v6, {T[0]}')
p(f'v_mov_b32 v11, {T[1]}')
p('v_and_b32 v12, 1, v1')
p('v_cmp_eq_u32 vcc, 1, v12')
p('v_cndmask_b32 v6, v6, v11, vcc')
row_stats(R)
p1_addrs(0)
R.stamp('start')
CSQ, CSK, RR, MM, CSV = 52, 68, 20, 84, 152
for ch in range(8):
    p('s_waitcnt lgkmcnt(0)')
    if ch >= 4:
        R.dstamp('P1', f'pre{ch}')
    R.bar()
    R.dstamp('P1', f'bar{ch}')
    extra = []
    if ch == 5:
        def ld():
            p(f'buffer_load_dwordx4 {vr(GR, 4)}, v8, {sWS}, 0 offen sc1')
            p(f'buffer_load_dwordx2 v[156:157], v7, {sWS}, 0 offen sc1')
            R.vm.issue('gr')
            R.vm.issue('gr')
            if OPT['fkvt']:
                p(f'buffer_load_dword v253, v6, {sWS}, 0 offen sc1')
                R.vm.issue('t')

        extra = [ld]
    if ch == 0:
        extra = [tlbwarm]
    if OPT.get('probe') and ch == 2:
        def probe():
            p(f'v_mov_b32 v250, {OPT["probe"]}')
            if OPT.get('probe_spread'):
                p(f's_lshl_b32 {T[7]}, s2, 9')
                p(f'v_add_u32 v250, {T[7]}, v250')
            d = {0: sWS, 1: sWO, 2: sW1, 3: sW2, 4: sOUT, 5: sB1, 6: sB2}[OPT.get('probe_buf', 0)]
            p(f'buffer_load_dword v252, v250, {d}, 0 offen')
            R.vm.issue('t')
        extra = extra + [probe]
    if OPT['mallat'] == 20 + ch:
        def cw_burst():
            p('v_min_u32 v17, 11, v1')
            p('v_lshlrev_b32 v17, 7, v17')
            for g in (warm_mall(R, sW1), warm_wo(R), touch_fl) + ((warm_mall(R, sW2), touch_st) if OPT['m2at'] == 0 else ()):
                g()
        extra = extra + [cw_burst]
    if ch == OPT['clrat'] and OPT['kvtag']:
        extra = extra + [kv_clear]
    if ch == OPT['clrdone'] and OPT['kvtag']:
        extra = [kv_cleared]
    weave(R, p1_mfmas(ch - 1) if ch else [], p1_reads(ch), extra)
    if ch < 7:
        p1_addrs(ch + 1)
Lg = p.newlabel('L_gr')
Lgx = p.newlabel('L_grx')
R.vm.wait(['gr'])
p(f's_mov_b32 {T[0]}, 0')
p.label(Lg)
p(f'v_cmp_ne_u32 vcc, {s_tag}, v{GR + 1}')
p(f'v_cmp_ne_u32 s[90:91], {s_tag}, v{GR + 3}')
p('s_or_b64 vcc, vcc, s[90:91]')
p(f'v_cmp_ne_u32 s[90:91], {s_tag}, v156')
p('s_or_b64 vcc, vcc, s[90:91]')

p(f's_cbranch_vccnz {Lgx}')
Lgd = p.newlabel('L_grd')
p.label(Lgd)


def gr_retry():
    p.label(Lgx)
    p(f'buffer_load_dwordx4 {vr(GR, 4)}, v8, {sWS}, 0 offen sc1')
    p(f'buffer_load_dwordx2 v[156:157], v7, {sWS}, 0 offen sc1')
    p('s_waitcnt vmcnt(0)')
    p(f's_add_u32 {T[0]}, {T[0]}, 1')
    p(f's_cmp_lt_u32 {T[0]}, {OPT["spin"]}')
    p(f's_cbranch_scc1 {Lg}')
    p(f's_branch {Lgd}')


tail.append(gr_retry)
p(f'v_readfirstlane_b32 {T[1]}, v157')
p(f'v_cmp_ne_u32 vcc, {T[1]}, v157')
p('s_cmp_eq_u64 vcc, 0')
p(f's_cselect_b32 {s_mode}, 1, 0')
if OPT['force_safe']:
    p(f's_mov_b32 {s_mode}, 0')
p(f'v_mov_b32 v10, {S_MODE}')
p(f'v_mov_b32 v11, {s_mode}')
p('ds_write_b32 v10, v11')
p('v_and_b32 v10, 31, v1')
p('v_lshlrev_b32 v10, 2, v10')
p(f's_lshl_b32 {T[0]}, {s_tt}, 7')
p(f'v_add_u32 v11, {T[0]}, v10')
p(f'ds_write_b32 v11, v{GR} offset:{S_R}')
p(f'ds_write_b32 v11, v{GR + 2} offset:{S_M}')
p('v_lshrrev_b32 v12, 5, v1')
p('v_lshlrev_b32 v12, 4, v12')
p(f'v_add_u32 v13, {T[0]}, v12')
p('s_waitcnt lgkmcnt(0)')
R.bar()
R.stamp('B1')
R.dstamp('P2', 'B1')
lds = [f'ds_read_b128 {vr(CSK + 4 * g, 4)}, v12 offset:{S_CS + 128 + 32 * g}' for g in range(4)]
lds += [f'ds_read_b32 v{CSV}, v10 offset:{S_CS + 256}']
lds += [f'ds_read_b128 {vr(MM + 4 * g, 4)}, v13 offset:{S_M + 32 * g}' for g in range(4)]
lds += [f'ds_read_b128 {vr(RR + 4 * g, 4)}, v13 offset:{S_R + 32 * g}' for g in range(4)]


def pub_addrs():
    p(f's_lshl_b32 {T[0]}, {s_tt}, 11')
    p(f's_add_u32 {T[1]}, {T[0]}, {L_K + 8 * 2048}')
    p(f'v_add_u32 v15, {T[1]}, v2')
    p(f's_mul_i32 {T[0]}, {s_tt}, {2 * VSTR}')
    p(f's_add_u32 {T[0]}, {T[0]}, {L_V + 16 * VSTR}')
    p(f'v_add_u32 v16, {T[0]}, v2')


mf = p1_mfmas(7)
mf = mf[0::2] + mf[1::2]


def st_pair(reg, off):
    def f():
        if OPT['kvtag']:
            for r in range(0, 8, 2):
                p(f'v_min_u32 v{reg + r}, -2, v{reg + r}')
        for g in range(2):
            p(f'buffer_store_dwordx4 {vr(reg + 4 * g, 4)}, v2, {sWS}, {T[2]} offen offset:{off + g * 1024} sc1')
            R.vm.issue('st')
    return f


PKK, PKV = 244, 52
for x in lds[:9]:
    p(x)
p(mf[0])
for x in lds[9:13]:
    p(x)
p(mf[1])
pub_addrs()
p(mf[2])
p('s_waitcnt lgkmcnt(9)')
for i in range(8):
    p(f'v_mul_f32 v{CSK + i}, v{GR + 2}, v{CSK + i}')
p(mf[3])
for i in range(8, 16):
    p(f'v_mul_f32 v{CSK + i}, v{GR + 2}, v{CSK + i}')
p(mf[4])
p('s_waitcnt lgkmcnt(4)')
for i in range(8):
    p(f'v_mul_f32 v{MM + i}, v{CSV}, v{MM + i}')
p(mf[5])
for i in range(8, 16):
    p(f'v_mul_f32 v{MM + i}, v{CSV}, v{MM + i}')
kops = [f'v_fma_f32 v{AK + i}, v{AK + i}, v{GR}, -v{CSK + i}' for i in range(16)]
kops += [f'v_cvt_pk_bf16_f32 v{PKK + r}, v{AK + 2 * r}, v{AK + 2 * r + 1}' for r in range(8)]
for m in (6, 7):
    p(mf[m])
    for x in kops[8 * (m - 6):8 * (m - 5)]:
        p(x)
for x in kops[16:]:
    p(x)
st_pair(PKK, 0)()
p('s_waitcnt lgkmcnt(0)')
for i in range(16):
    p(f'v_fma_f32 v{AV + i}, v{AV + i}, v{RR + i}, -v{MM + i}')
for r in range(8):
    p(f'v_cvt_pk_bf16_f32 v{PKV + r}, v{AV + 2 * r}, v{AV + 2 * r + 1}')
st_pair(PKV, 2048)()
for g in range(2):
    p(f'ds_write_b128 v15, {vr(PKK + 4 * g, 4)} offset:{g * 1024}')
    p(f'ds_write_b128 v16, {vr(PKV + 4 * g, 4)} offset:{g * VSTR}')
p(f's_lshl_b32 {T[0]}, {s_tt}, 10')
p(f's_add_u32 {T[0]}, {T[0]}, {L_QX}')
p(f'v_add_u32 v12, {T[0]}, v2')
p('v_mov_b32 v102, 0')
p('v_mov_b32 v103, 1')
signal(R, C_KV, 'v102', 'v103')
att_addrs()
R.dstamp('P2', 'epi')
if not OPT['kvtag']:
    flag_store(R, T[4], 'v10', 'v11', moded=False)
signal(R, C_FLAG, 'v102', 'v103')
R.stamp('KVflag')
R.dstamp('P2', 'KVflag')
p('v_mov_b32 v13, v12')


def cw_2a():
    lwait(R, H_Q, 'v102', 'v10')
    lwait(R, C_KV, 'v102', 'v10')
    p(f'ds_read_b128 {vr(VQ, 4)}, v13')
    att_2a(R)


if OPT['a_first']:
    cw_2a()
p(f's_add_u32 {T[3]}, {T[5]}, {16 * 16384}')
p(f'v_subrev_u32 v15, {8 * 2048}, v15')
p(f'v_subrev_u32 v16, {16 * VSTR}, v16')


def halo_loads():
    for d in (1, 2):
        for q in range(4):
            p(f'buffer_load_dwordx4 {vr(HALO + 16 * (2 - d) + 4 * q, 4)}, v2, {sWS}, {T[3] if d == 1 else T[5]} offen offset:{q * 1024} sc1')


if not OPT['kvtag']:
    poll(R, 'v6', 'v11')
else:
    p(f's_add_u32 {T[0]}, {T[3]}, 4080')
    p(f's_add_u32 {T[1]}, {T[5]}, 4080')
    p(f'v_mov_b32 v10, {T[0]}')
    p(f'v_mov_b32 v11, {T[1]}')
    p('v_and_b32 v12, 1, v1')
    p('v_cmp_eq_u32 vcc, 1, v12')
    p('v_cndmask_b32 v10, v10, v11, vcc')
    p(f'v_add_u32 v12, 1, v12')
    p(f'v_cmp_ge_u32 s[90:91], {s_rb}, v12')
    p('v_cmp_le_u32 vcc, 32, v1')
    p('v_cndmask_b32 v10, v10, v6, vcc')
    p('s_mov_b32 s91, 0')
    Lk = p.newlabel('L_kv')
    Lkx = p.newlabel('L_kvx')
    Lkd = p.newlabel('L_kvd')
    p(f's_mov_b32 {T[0]}, 0')
    p.label(Lk)
    p(f'buffer_load_dword v11, v10, {sWS}, 0 offen sc1')
    p('s_waitcnt vmcnt(0)')
    p('v_cmp_eq_u32 vcc, -1, v11')
    p('s_and_b64 vcc, vcc, s[90:91]')
    p(f'v_cmp_ne_u32 s[92:93], {s_tag}, v11')
    p('s_or_b32 vcc_hi, vcc_hi, s93')
    p(f's_cbranch_vccnz {Lkx}')
    p.label(Lkd)
    R.vm.reset()

    def kvx():
        p.label(Lkx)
        p(f's_add_u32 {T[0]}, {T[0]}, 1')
        p(f's_cmp_lt_u32 {T[0]}, {OPT["spin"]}')
        p(f's_cbranch_scc1 {Lk}')
        p(f's_branch {Lkd}')
    tail.append(kvx)
R.dstamp('P2', 'kvpoll')
halo_loads()
signal(R, C_HALO, 'v102', 'v103')
if OPT['m2at'] == 1:
    warm_mall(R, sW2)()
    touch_st()
NX = 2 if OPT['m2at'] == 1 else 0
if not OPT['a_first']:
    cw_2a()
XRES = 240
HRES = 248
p('v_and_b32 v10, 31, v1')
p(f's_lshl_b32 {T[0]}, {s_rs}, 1')
p(f's_add_u32 {s_tile}, {T[0]}, {s_t}')
p(f's_lshl_b32 {T[0]}, {s_tile}, 5')
p(f'v_add_u32 v10, {T[0]}, v10')
p('v_lshlrev_b32 v10, 10, v10')
p('v_lshrrev_b32 v11, 5, v1')
p('v_lshl_add_u32 v10, v11, 3, v10')
p(f's_lshl_b32 {T[0]}, {s_cb}, 7')
p(f's_lshl_b32 {T[1]}, {s_kh}, 6')
p(f's_add_u32 {T[0]}, {T[0]}, {T[1]}')
p(f'v_add_u32 v9, {T[0]}, v10')
Lz = p.newlabel('L_nohalo')
Lw = p.newlabel('L_halow')
Lzc = p.newlabel('L_zc')
p(f's_mov_b32 {T[0]}, 0')
p.label(Lzc)
p(f's_cmp_lt_u32 {s_rb}, 2')
p(f's_cbranch_scc1 {Lz}')
p.label(Lw)
if OPT['kvtag']:
    Lw2 = Lw


def zero_blk():
    L1 = p.newlabel('L_z1')
    p.label(Lz)
    p('s_waitcnt vmcnt(0)')
    for r in range(16):
        p(f'v_mov_b32 v{HALO + r}, 0')
    p(f's_cmp_eq_u32 {s_rb}, 1')
    p(f's_cbranch_scc1 {Lw}')
    for r in range(16):
        p(f'v_mov_b32 v{HALO + 16 + r}, 0')
    p(f's_branch {Lw}')


tail.append(zero_blk)
if OPT['kvtag']:
    Lv = p.newlabel('L_hv')
    Lvx = p.newlabel('L_hvx')
    Lvd = p.newlabel('L_hvd')
    p('s_waitcnt vmcnt(0)')
    p(f'v_max3_u32 v10, v{HALO}, v{HALO + 2}, v{HALO + 4}')
    p(f'v_max3_u32 v11, v{HALO + 6}, v{HALO + 8}, v{HALO + 10}')
    for k, r in enumerate(range(12, 32, 4)):
        p(f'v_max3_u32 v{10 + (k & 1)}, v{10 + (k & 1)}, v{HALO + r}, v{HALO + r + 2}')
    p('v_max_u32 v10, v10, v11')
    p('v_cmp_eq_u32 vcc, -1, v10')
    p(f's_cbranch_vccnz {Lvx}')
    p.label(Lvd)

    def hvx():
        p.label(Lvx)
        p(f's_add_u32 {T[0]}, {T[0]}, 1')
        p(f's_cmp_ge_u32 {T[0]}, {OPT["spin"]}')
        p(f's_cbranch_scc1 {Lvd}')
        halo_loads()
        p(f's_branch {Lzc}')
    tail.append(hvx)
for g in range(2):
    p(f's_waitcnt vmcnt({7 - g + NX})')
    p(f'ds_write_b128 v15, {vr(HALO + 16 + 4 * g, 4)} offset:{4 * 2048 + g * 1024}')
for g in range(2):
    p(f's_waitcnt vmcnt({5 - g + NX})')
    p(f'ds_write_b128 v16, {vr(HALO + 24 + 4 * g, 4)} offset:{(8 + g) * VSTR}')
R.vm.q = [('hb', g) for g in range(4)] + ['t'] * NX


def halo2(g):
    def f():
        R.vm.wait([('hb', g)])
        R.lg.room(1)
        if g < 2:
            p(f'ds_write_b128 v15, {vr(HALO + 4 * g, 4)} offset:{g * 1024}')
        else:
            p(f'ds_write_b128 v16, {vr(HALO + 4 * g, 4)} offset:{(g - 2) * VSTR}')
        R.lg.issue('hw')
    return f


def halo_done():
    p(f's_add_u32 {T[4]}, {T[4]}, 16')
    R.vm.q = []
    p(f'v_mov_b32 v10, {T[4]}')
    p(f'v_mov_b32 v11, {s_tag}')
    p('s_mov_b64 exec, 1')
    p(f'buffer_store_dword v11, v10, {sWS}, 0 offen sc1')
    p('s_mov_b64 exec, -1')
    for g in range(4):
        p(f'buffer_load_dwordx2 {vr(XRES + 2 * g, 2)}, v9, {sX}, 0 offen offset:{16 * g}')
        R.vm.issue('xres')


for g in range(4):
    halo2(g)()
halo_done()
tr64_lanes('v4', 'v5')
p(f's_lshl_b32 {T[0]}, {s_kh}, 6')
p(f'v_xor_b32 v4, {T[0]}, v4')
p(f'v_xor_b32 v5, {T[0]}, v5')
p(f's_lshl_b32 {T[0]}, {s_kh}, 15')
p(f's_add_u32 {T[0]}, {T[0]}, {L_WO}')
p(f'v_add_u32 v6, {T[0]}, v4')
p(f'v_add_u32 v7, {T[0]}, v5')
p('s_waitcnt lgkmcnt(0)')
R.dstamp('P2', 'halo')
R.bar()
R.stamp('B3')
R.dstamp('P2', 'B3')
WOF, OF, ACC3 = 16, 144, 208


def wo_reads(lo, hi):
    for s in range(lo, hi):
        for nt in range(2):
            for rd in range(2):
                p(f'ds_read_b64_tr_b16 {vr(WOF + 8 * s + 4 * nt + 2 * rd, 2)}, v{6 + nt} offset:{s * 2048 + rd * 1024}')
        if s % 2 == 1:
            p('s_waitcnt lgkmcnt(4)')


def cw_wo():
    p('v_mov_b32 v102, 0')
    lwait(R, H_WO, 'v102', 'v10')
    wo_reads(0, 8)


att_2b(R, [], cw_wo)
p('s_setprio 2')
wo_reads(8, 16)
p('v_and_b32 v8, 15, v1')
p('v_lshlrev_b32 v8, 2, v8')
p(f's_lshl_b32 {T[0]}, {s_tile}, 1')
p(f's_add_u32 {T[0]}, {T[0]}, {s_kh}')
p(f's_lshl_b32 {T[1]}, {s_rb}, 18')
p(f's_lshl_b32 {T[2]}, {s_kh}, 17')
p(f's_add_u32 {T[1]}, {T[1]}, {T[2]}')
p(f's_and_b32 {T[2]}, {s_tile}, 3')
p(f's_lshl_b32 {T[2]}, {T[2]}, 12')
p(f's_add_u32 {T[1]}, {T[1]}, {T[2]}')
p(f's_lshl_b32 {T[0]}, {T[0]}, 6')
p(f's_add_u32 {T[0]}, {T[0]}, {FO}')
p(f'v_add_u32 v10, {T[0]}, v8')
for g in range(4):
    for k in range(2):
        x = XRES + 2 * g + k
        p(f'v_lshlrev_b32 v{ACC3 + 4 * g + 2 * k}, 16, v{x}')
        p(f'v_and_b32 v{ACC3 + 4 * g + 2 * k + 1}, 0xffff0000, v{x}')
p('s_waitcnt lgkmcnt(0)')
R.bar()
R.dstamp('P3', 'B5')
poll(R, 'v10', 'v11')
R.stamp('Opoll')
R.dstamp('P3', 'Opoll')


def o_load(s):
    if s % 2 == 0:
        p(f's_add_u32 {T[2]}, {T[1]}, {AREA + (s // 2) * 16384}')
    p(f'buffer_load_dwordx4 {vr(OF + 4 * s, 4)}, v2, {sWS}, {T[2]} offen offset:{(s % 2) * 1024} sc1')
    R.vm.issue(('o', s))


def xchg_addrs(area):
    p(f's_lshl_b32 {T[0]}, {s_w}, 12')
    p(f's_add_u32 {T[0]}, {T[0]}, {area}')
    p(f'v_add_u32 v10, {T[0]}, v2')
    p(f's_xor_b32 {T[0]}, {s_w}, 2')
    p(f's_lshl_b32 {T[0]}, {T[0]}, 12')
    p(f's_add_u32 {T[0]}, {T[0]}, {area}')
    p(f'v_add_u32 v11, {T[0]}, v2')


def xchg_finish(R, acc, dst, pair=False):
    if pair:
        signal(R, X_P0, 'v14', 'v13')
        lwait(R, X_P0, 'v14', 'v15', n=2)
    else:
        p('s_waitcnt lgkmcnt(0)')
        R.bar()
    for g in range(4):
        p(f'ds_read_b128 {vr(dst + 4 * g, 4)}, v11 offset:{g * 1024}')
    for g in range(4):
        p(f's_waitcnt lgkmcnt({3 - g})')
        for i in range(4):
            p(f'v_add_f32 v{dst + 4 * g + i}, v{dst + 4 * g + i}, v{acc + 4 * g + i}')
    R.lg.reset()


TAILN = 5
AH = OPT['aho']
for s in range(AH):
    o_load(s)
xchg_addrs(L_HI)
p('v_mov_b32 v12, 0')
p('v_mov_b32 v13, 1')
p(f's_lshl_b32 {T[0]}, {s_t}, 2')
p(f'v_mov_b32 v14, {T[0]}')
seq3 = [(s, nt) for s in range(16 - TAILN) for nt in (1, 0)] + [(s, 1) for s in range(16 - TAILN, 16)] + [(s, 0) for s in range(16 - TAILN, 16)]
no = AH
for k, (s, nt) in enumerate(seq3):
    R.vm.wait([('o', s)])
    p(f'v_mfma_f32_32x32x16_bf16 {vr(ACC3 + 16 * nt, 16)}, {vr(WOF + 8 * s + 4 * nt, 4)}, {vr(OF + 4 * s, 4)}, {"0" if s == 0 and nt == 1 else vr(ACC3 + 16 * nt, 16)}')
    if no < 16:
        o_load(no)
        no += 1
        if no == 16:
            signal(R, C_OIS, 'v12', 'v13')
    g = k - (len(seq3) - 4)
    if g >= 0:
        p(f'ds_write_b128 v10, {vr(ACC3 + 16 + 4 * g, 4)} offset:{g * 1024}')
R.dstamp('P3', 'loop')
xchg_finish(R, ACC3, 16, pair=True)
R.dstamp('P3', 'xchg')
for r in range(8):
    p(f'v_cvt_pk_bf16_f32 v{HRES + r}, v{16 + 2 * r}, v{16 + 2 * r + 1}')
p(f's_lshl_b32 {T[0]}, {s_cb}, 1')
p(f's_add_u32 {T[0]}, {T[0]}, {s_kh}')
p(f's_lshl_b32 {T[3]}, {s_tile}, 4')
p(f's_add_u32 {T[3]}, {T[3]}, {T[0]}')
p(f's_add_u32 {T[1]}, {T[5]}, 2048')
moded_stores(R, [f'buffer_store_dwordx4 {vr(HRES, 4)}, v2, {sWS}, {T[1]} offen',
                 f'buffer_store_dwordx4 {vr(HRES + 4, 4)}, v2, {sWS}, {T[1]} offen offset:1024'], OPT['hsc1'])
p('v_mov_b32 v18, 0x3f803f80')
p('v_mov_b32 v12, 0')
p('v_mov_b32 v13, 0')
for r in range(8):
    p(f'v_dot2c_f32_bf16 v12, v{HRES + r}, v18')
    p(f'v_dot2c_f32_bf16 v13, v{HRES + r}, v{HRES + r}')
p(f's_lshl_b32 {T[2]}, {T[3]}, 8')
p(f's_add_u32 {T[2]}, {T[2]}, {STB}')
p(f's_lshl_b32 {T[3]}, {s_tile}, 5')
p(f's_add_u32 {T[3]}, {T[3]}, {T[0]}')
p(f's_lshl_b32 {T[3]}, {T[3]}, 2')
p(f's_add_u32 {T[3]}, {T[3]}, {FH}')
p('v_and_b32 v14, 31, v1')
p('v_lshlrev_b32 v14, 3, v14')
half_sum('v12', 'v10')
half_sum('v13', 'v10')
moded_stores(R, [f'buffer_store_dwordx2 v[12:13], v14, {sWS}, {T[2]} offen'], OPT['hsc1'])
p('v_mov_b32 v246, 0')
p('v_mov_b32 v247, 1')
lwait(R, H_W1, 'v246', 'v10')
HF, ACC4, W1B, STL = 16, 144, 192, 228
tr96_lane('v3')
p('v_add_u32 v6, 0x10000, v3')
W1A = ['v3', 'v6']


def w1_reads(s):
    b = W1B + 12 * (s % 3)
    for nt in range(3):
        for rd in range(2):
            dsr(R, 'ds_read_b64_tr_b16', vr(b + 4 * nt + 2 * rd, 2), W1A, w1_addr(s) + rd * 1536 + nt * 64, ('w1', s))


w1_reads(0)
w1_reads(1)
flag_store(R, T[3], 'v10', 'v11')
R.stamp('Hflag')
R.dstamp('P3', 'Hflag')
p(f's_lshl_b32 {T[0]}, {s_rb}, 2')
p(f's_add_u32 {T[7]}, {T[0]}, {s_w}')
p(f's_lshl_b32 {T[1]}, {s_rb}, 18')
p(f's_lshl_b32 {T[2]}, {s_kh}, 17')
p(f's_add_u32 {T[1]}, {T[1]}, {T[2]}')
p(f's_lshl_b32 {T[2]}, {s_t}, 12')
p(f's_add_u32 {T[1]}, {T[1]}, {T[2]}')
p(f's_lshl_b32 {T[0]}, {T[7]}, 7')
p(f's_add_u32 {T[0]}, {T[0]}, {FH}')
p(f'v_add_u32 v10, {T[0]}, v8')
poll(R, 'v10', 'v11')
R.stamp('Hpoll')
R.dstamp('P4', 'Hpoll')


def h_load(s):
    if s % 2 == 0:
        p(f's_add_u32 {T[2]}, {T[1]}, {AREA + (s >> 2) * 16384 + ((s >> 1) & 1) * 8192}')
    p(f'buffer_load_dwordx4 {vr(HF + 4 * s, 4)}, v2, {sWS}, {T[2]} offen offset:{2048 + (s % 2) * 1024} sc1')
    R.vm.issue(('h', s))


S0 = OPT['s0']
nh = 0
for s in range(OPT['ahh']):
    h_load(nh)
    nh += 1
p('v_lshrrev_b32 v13, 1, v14')
p(f's_lshl_b32 {T[0]}, {s_w}, 7')
p(f'v_add_u32 v13, {T[0]}, v13')
p('v_lshrrev_b32 v12, 5, v1')
p('v_lshlrev_b32 v12, 4, v12')
p(f's_lshl_b32 {T[4]}, {T[7]}, 4')
p(f's_add_u32 {T[4]}, {T[4]}, {s_c}')
p(f's_lshl_b32 {T[4]}, {T[4]}, 12')
p(f's_add_u32 {T[4]}, {T[4]}, {H1B}')
p(f's_lshl_b32 {T[3]}, {T[7]}, 5')
p(f's_add_u32 {T[3]}, {T[3]}, {s_c}')
p(f's_lshl_b32 {T[3]}, {T[3]}, 2')
p(f's_add_u32 {T[3]}, {T[3]}, {FH1}')


seq = [(s, nt) for s in range(S0) for nt in range(3)] + [(s, nt) for nt in range(3) for s in range(S0, 32)]
EB = [48, 16, 48] if S0 >= 16 else None


def epi_ops(nt):
    e = EB[nt]
    pk = STL + 8 * (nt & 1)
    ops = []
    r = e + 16
    for i in range(16):
        ops.append(f'v_fmac_f32 v{r + i}, v{ACC4 + 16 * nt + i}, v244')
        if i >= 1:
            ops.append(f'v_max_f32 v{r + i - 1}, 0, v{r + i - 1}')
        if i >= 2:
            ops.append(f'v_mul_f32 v{r + i - 2}, v{r + i - 2}, v{r + i - 2}')
        if i >= 4 and i % 2 == 0:
            ops.append(f'v_cvt_pk_bf16_f32 v{pk + (i - 4) // 2}, v{r + i - 4}, v{r + i - 3}')
    ops += [f'v_max_f32 v{r + 15}, 0, v{r + 15}', f'v_mul_f32 v{r + 14}, v{r + 14}, v{r + 14}', f'v_mul_f32 v{r + 15}, v{r + 15}, v{r + 15}',
            f'v_cvt_pk_bf16_f32 v{pk + 6}, v{r + 12}, v{r + 13}', f'v_cvt_pk_bf16_f32 v{pk + 7}, v{r + 14}, v{r + 15}']
    st = []
    for g in range(2):
        f = 2 * nt + g
        st.append(f'buffer_store_dwordx4 {vr(pk + 4 * g, 4)}, v2, {sWS}, {T[4] if f < 4 else T[5]} offen offset:{(f % 4) * 1024}')
    ops.append(st if nt == 2 else tuple(st))
    return ops


def emit_op(x):
    if isinstance(x, (list, tuple)):
        moded_stores(R, x, isinstance(x, tuple))
    else:
        p(x)


def e_reads(nt):
    R.lg.room(8)
    for g in range(4):
        p(f'ds_read_b128 {vr(EB[nt] + 4 * g, 4)}, v12 offset:{S_CS1 + 128 * nt + 32 * g}')
        R.lg.issue(('e', nt))
    for g in range(4):
        p(f'ds_read_b128 {vr(EB[nt] + 16 + 4 * g, 4)}, v12 offset:{S_B1 + 128 * nt + 32 * g}')
        R.lg.issue(('e', nt))


def e_comb(nt):
    return [f'v_fmac_f32 v{EB[nt] + 16 + i}, v245, v{EB[nt] + i}' for i in range(16)]


W2R = 16
PRE = 6
bufs = {}
for k in range(PRE):
    s, nt = seq[k]
    bufs[k] = W1B + 4 * k
valu = []
OPT_K = {0: (0,), 1: (0, 48), 2: (0, 24, 48, 72)}[OPT.get('pk', 0)]
for k, (s, nt) in enumerate(seq):
    if s < S0 and nt == 0 or s >= S0 and nt == 0:
        R.vm.wait([('h', s)])
    if k in OPT_K:
        R.dstamp('P4', f'k{k}')
    R.lg.wait([('w1', s) if k < PRE else ('w1', s, nt)])
    p(f'v_mfma_f32_32x32x16_bf16 {vr(ACC4 + 16 * nt, 16)}, {vr(bufs[k], 4)}, {vr(HF + 4 * s, 4)}, {"0" if s == 0 else vr(ACC4 + 16 * nt, 16)}')
    if k + PRE < len(seq):
        s2, nt2 = seq[k + PRE]
        b = W1B + 4 * ((k + PRE) % 9)
        bufs[k + PRE] = b
        for rd in range(2):
            dsr(R, 'ds_read_b64_tr_b16', vr(b + 2 * rd, 2), W1A, w1_addr(s2) + rd * 1536 + nt2 * 64, ('w1', s2, nt2))
    if nh < 32 and k % OPT['hrate'] == 1:
        h_load(nh)
        nh += 1
        if nh == 32:
            signal(R, C_ISS, 'v246', 'v247')
    if k == 3 * S0 - 6:
        p(f'ds_read_b32 v10, v246 offset:{H_TAB}')
        R.lg.issue(H_TAB)
    seg = (k - 3 * S0) // (32 - S0) if k >= 3 * S0 else -1
    pos = (k - 3 * S0) % (32 - S0)
    if k == 3 * S0:
        lwait(R, H_TAB, 'v246', 'v10', early=True)
        R.lg.room(2)
        p(f'ds_read_b32 v244, v13 offset:{S_R}')
        p(f'ds_read_b32 v245, v13 offset:{S_M}')
        R.lg.issue('rm')
        R.lg.issue('rm')
    if seg >= 0 and pos == (1 if seg == 0 else 32 - S0 - 5):
        e_reads(seg)
    if seg >= 0 and pos == (5 if seg == 0 else 32 - S0 - 3):
        R.lg.wait([('e', seg)])
        valu += e_comb(seg)
    if seg >= 1 and pos == 1:
        valu += epi_ops(seg - 1)
    n = -(-76 // (32 - S0 - 1)) if seg >= 1 else 4
    if OPT.get('x_noepi') and seg >= 0:
        valu = [x for x in valu if isinstance(x, (list, tuple))]
    for _ in range(n):
        if valu:
            emit_op(valu.pop(0))
for x in valu:
    emit_op(x)
R.dstamp('P4', 'loop')
p('v_lshrrev_b32 v10, 5, v1')
p('v_lshlrev_b32 v10, 3, v10')
p(f's_lshl_b32 {T[0]}, {s_cb}, 7')
p(f's_lshl_b32 {T[1]}, {s_kh}, 6')
p(f's_add_u32 {T[0]}, {T[0]}, {T[1]}')
for g in range(4):
    p(f'buffer_load_dwordx2 {vr(200 + 2 * g, 2)}, v10, {sB2}, {T[0]} offen offset:{16 * g}')
    R.vm.issue('b2')
for x in epi_ops(2):
    emit_op(x)
p(f's_lshl_b32 {T[0]}, {s_kh}, 13')
p(f's_add_u32 {T[0]}, {T[0]}, {L_X}')
p(f'v_add_u32 v6, {T[0]}, v4')
p(f'v_add_u32 v7, {T[0]}, v5')
for s in range(4):
    for nt in range(2):
        for rd in range(2):
            p(f'ds_read_b64_tr_b16 {vr(W2R + 8 * s + 4 * nt + 2 * rd, 2)}, v{6 + nt} offset:{s * 2048 + rd * 1024}')
    if s == 1:
        p('s_waitcnt lgkmcnt(4)')
R.lg.reset()
signal(R, C_END, 'v246', 'v247')
R.stamp('P4end')
R.dstamp('P4', 'epi')
ACC5, W2B, H1F, B2R = 48, 80, 136, 200
NWB = 7
NRING = 16
p(f's_mul_i32 {T[0]}, {s_kh}, {11 * 2048}')
p(f'v_add_u32 v6, {T[0]}, v4')
p(f'v_add_u32 v7, {T[0]}, v5')
p('v_add_u32 v6, 0x10000, v6')
p('v_add_u32 v7, 0x10000, v7')
p('v_add_u32 v12, 0x10000, v6')
p('v_add_u32 v13, 0x10000, v7')
p(f's_lshl_b32 {T[0]}, {s_kh}, 11')
p(f'v_add_u32 v4, {T[0]}, v4')
p(f'v_add_u32 v5, {T[0]}, v5')
p('v_add_u32 v14, 0x10000, v4')
p('v_add_u32 v15, 0x10000, v5')
for i in range(4, 15):
    assert w2_pos[42 + KORD[i]] - w2_rd_pos(i) == 11 * 2048
for i in range(15, 44):
    assert w2_pos[42 + KORD[i]] - w2_rd_pos(i) == 2048


def w2_reads(i):
    b = W2B + 8 * (i % NWB)
    for nt in (1, 0):
        if i < 15:
            bases = [None, 'v6' if nt == 0 else 'v7', 'v12' if nt == 0 else 'v13']
        else:
            bases = ['v4' if nt == 0 else 'v5', 'v14' if nt == 0 else 'v15']
        for rd in range(2):
            dsr(R, 'ds_read_b64_tr_b16', vr(b + 4 * nt + 2 * rd, 2), bases, w2_rd_pos(i) + rd * 1024, ('w2', i))


p('s_waitcnt lgkmcnt(0)')
R.lg.reset()
flag_store(R, T[3], 'v10', 'v11')
R.stamp('H1flag')
R.dstamp('P4', 'H1flag')
R.dstamp('P5', 'H1flag')
p('v_and_b32 v10, 7, v1')
p(f's_add_u32 {T[0]}, {s_kh}, 6')
p(f'v_min_u32 v10, {T[0]}, v10')
p('v_lshlrev_b32 v10, 2, v10')
p(f's_lshl_b32 {T[1]}, {s_tile}, 7')
p(f's_mul_i32 {T[0]}, {s_kh}, 28')
p(f's_add_u32 {T[1]}, {T[1]}, {T[0]}')
p(f's_add_u32 {T[1]}, {T[1]}, {FH1}')
p(f'v_add_u32 v10, {T[1]}, v10')
p(f's_lshl_b32 {T[1]}, {s_rb}, 18')
p(f's_mul_i32 {T[2]}, {s_kh}, {7 * 16384}')
p(f's_add_u32 {T[1]}, {T[1]}, {T[2]}')
p(f's_and_b32 {T[2]}, {s_tile}, 3')
p(f's_lshl_b32 {T[2]}, {T[2]}, 12')
p(f's_add_u32 {T[1]}, {T[1]}, {T[2]}')
p(f's_lshl_b32 {T[3]}, {s_tile}, 16')
p(f's_mul_i32 {T[2]}, {s_kh}, {7 * 4096}')
p(f's_add_u32 {T[3]}, {T[3]}, {T[2]}')
for g in range(4):
    for k in range(2):
        a = ACC5 + 4 * g + 2 * k
        p(f'v_lshlrev_b32 v{a}, 16, v{HRES + 2 * g + k}')
        p(f'v_and_b32 v{a + 1}, 0xffff0000, v{HRES + 2 * g + k}')
        p(f'v_lshlrev_b32 v{ACC5 + 16}, 16, v{B2R + 2 * g + k}')
        p(f'v_and_b32 v{ACC5 + 17}, 0xffff0000, v{B2R + 2 * g + k}')
        p(f'v_add_f32 v{a}, v{a}, v{ACC5 + 16}')
        p(f'v_add_f32 v{a + 1}, v{a + 1}, v{ACC5 + 17}')
poll(R, 'v10', 'v11')
R.stamp('H1poll')
R.dstamp('P5', 'H1poll')


def h1_load(i):
    c, f = divmod(KORD[i], 6)
    if f == 4:
        p(f's_add_u32 {T[2]}, {T[1]}, {AREA + c * 16384}')
    if f == 0:
        p(f's_add_u32 {T[2]}, {T[3]}, {H1B + c * 4096}')
    if i == 42:
        p(f's_cmp_eq_u32 {s_kh}, 0')
        p(f's_cselect_b32 {T[2]}, {0x7ff00000}, {T[2]}')
    p(f'buffer_load_dwordx4 {vr(H1F + 4 * (i % NRING), 4)}, v2, {sWS}, {T[2]} offen offset:{(f % 4) * 1024} sc1')
    R.vm.issue(('h1', i))


AH = OPT['ah1']
NS = 44
for i in range(AH):
    h1_load(i)
lwait(R, H_P1, 'v246', 'v10')
w2_reads(4)
w2_reads(5)
seq5 = [(i, nt) for i in range(NS - TAILN) for nt in (1, 0)] + [(i, 1) for i in range(NS - TAILN, NS)] + [(i, 0) for i in range(NS - TAILN, NS)]
nw, nl = 6, AH
last_use = {i: k for k, (i, nt) in enumerate(seq5)}
first_use = {i: k for k, (i, nt) in reversed(list(enumerate(seq5)))}
for k, (i, nt) in enumerate(seq5):
    if k == 20:
        p(f'ds_read_b32 v10, v246 offset:{H_LATE}')
        R.lg.issue(H_LATE)
    if k == 25:
        R.dstamp('P5', 'preL')
        lwait(R, H_LATE, 'v246', 'v10', early=True)
        R.dstamp('P5', 'late')
    if k == 44:
        R.bar()
        xchg_addrs(L_HI)
    R.vm.wait([('h1', i)])
    if k in (0, 56):
        R.dstamp('P5', f'h1_{i}')
    if i >= 4:
        R.lg.wait([('w2', i)])
    b = W2R + 8 * i if i < 4 else W2B + 8 * (i % NWB)
    p(f'v_mfma_f32_32x32x16_bf16 {vr(ACC5 + 16 * nt, 16)}, {vr(b + 4 * nt, 4)}, {vr(H1F + 4 * (i % NRING), 4)}, {"0" if i == 0 and nt == 1 else vr(ACC5 + 16 * nt, 16)}')
    if k >= 8 and nw < NS and (k % 2 == 0 or k >= 2 * (NS - TAILN) - 6) and (nw < 15 or k >= 25):
        assert last_use.get(nw - NWB, -1) <= k and first_use[nw] > k + 1, (nw, k)
        w2_reads(nw)
        nw += 1
    if k % 2 == 1 and nl < NS:
        assert last_use.get(nl - NRING, -1) <= k
        h1_load(nl)
        nl += 1
    g = k - (len(seq5) - 4)
    if g >= 0:
        R.lg.room(1)
        p(f'ds_write_b128 v10, {vr(ACC5 + 16 + 4 * g, 4)} offset:{g * 1024}')
assert nw == NS and nl == NS
R.dstamp('P5', 'loop')
xchg_finish(R, ACC5, 16)
R.stamp('B13')
R.dstamp('P5', 'B13')
for r in range(8):
    p(f'v_cvt_pk_bf16_f32 v{32 + r}, v{16 + 2 * r}, v{16 + 2 * r + 1}')
p('v_lshrrev_b32 v10, 5, v1')
p('v_lshl_add_u32 v9, v10, 3, v9')
for q in range(2):
    p(f'v_permlane32_swap_b32 v{32 + 4 * q}, v{32 + 4 * q + 2}')
    p(f'v_permlane32_swap_b32 v{32 + 4 * q + 1}, v{32 + 4 * q + 3}')
    p(f'buffer_store_dwordx4 {vr(32 + 4 * q, 4)}, v9, {sOUT}, 0 offen offset:{32 * q}' + {0: '', 1: ' nt', 2: ' sc1'}[OPT.get('osm', 0)])
dump_stamps(R)
p('s_endpgm')
while tail:
    tail.pop(0)()
tail = []

assert CW.nbar == HW.nbar + 2, (CW.nbar, HW.nbar)
p.label('L_codeend')

p.fix_hazards()

hdr = open(os.path.join(os.path.dirname(os.path.abspath(__file__)), '..', 'cdna_kernels', NAME + '.s.ref')).read().split('\n')
top = [l for l in hdr if l.startswith(';') and '@launch' not in l and 'Override' not in l and 'grid=ceil' not in l]
out = '\n'.join(top) + '\n'
out += f'; @launch grid=(256,1,1) block=(512,1,1) lds={LDS_BYTES}\n'
out += f'''.amdgcn_target "amdgcn-amd-amdhsa--gfx950"
.text
.globl {KNAME}
.p2align 8
.type {KNAME},@function
'''
out += p.text()
out += f'''.section .rodata,"a"
.p2align 6
.amdhsa_kernel {KNAME}
  .amdhsa_next_free_vgpr 256
  .amdhsa_next_free_sgpr 102
  .amdhsa_accum_offset 256
  .amdhsa_group_segment_fixed_size 0
  .amdhsa_kernarg_size 88
  .amdhsa_user_sgpr_count 2
  .amdhsa_user_sgpr_kernarg_segment_ptr 1
  .amdhsa_system_sgpr_workgroup_id_x 1
.end_amdhsa_kernel
'''
open(sys.argv[1], 'w').write(out)
if OPT['stamps']:
    import json
    json.dump(STAMPS, open(sys.argv[1] + '.stamps.json', 'w'))
print('instructions:', sum(1 for x in p.ins if x.kind not in ('label', 'dir')), 'maxv', p.maxreg('v'), 'maxs', p.maxreg('s'), 'barriers', CW.nbar)
```

```python
import sys
import os
sys.path.insert(0, os.path.dirname(os.path.abspath(__file__)))
from asmlib import Prog, Cnt

NAME = 'sequential_preLN__sliding_block__dense_activation_squared_relu__prompt'
KNAME = NAME + '_kernel'

OPT = dict(stamps=False, force_safe=False, force_fallback=False, spin=200000, h1sc1=0, osc1=0, hsc1=0, mallwarm=1, p1touch=1, la=2, t0=2, tmode=4, codewarm=1, tlbwarm=0, aho=8, ahh=6, ah1=10, mallat=27, m2at=0, m2early=1, a_first=1, wopos=0, fkvt=1, qat=2, slp=2, pgwarm=1, hprio=1, small=0, s0=16, wolate=0, kvtag=0, flagearly=1, w2c=8, clrat=-1, clrdone=4, hrate=2, early0=0)
for a in sys.argv[2:]:
    k, _, v = a.partition('=')
    OPT[k] = int(v) if v else True

EPOCH = 0x0
ST = 0x1000
FKV = 0x2000
FO = 0xA000
FH = 0xC000
FH1 = 0xE000
RST = 0x10000
AREA = 0x100000
H1B = 0x600000
STB = 0xA00000
WS_END = 0xB00000 if not OPT.get('probe') else 0x8000000
STAMP = 0x1000000
WS_SIZE = 0x1100000

S_R = 0
S_M = 512
S_CS = 1024
S_CS1 = 1536
S_B1 = 2048
S_TAG = 2560
S_MODE = 2564
S_SYNC = 2816
C_ISS, C_END, H_TAB, H_P1, H_LATE, H_WO, C_OIS, H_WQ, H_CSQ, H_Q, C_KV, C_HALO, C_FLAG, H_W1, X_P0, X_P1 = [S_SYNC + 4 * i for i in range(16)]
BASE = 3072
RING = BASE
SLOT = 24576
NSLOT = 4
L_WO = BASE
L_K = BASE + 64 * 1024
L_V = L_K + 24 * 1024
VSTR = 1040
L_HI = 116 * 1024
assert L_V + 24 * VSTR <= L_HI and RING + NSLOT * SLOT <= L_HI
L_WQ = L_HI
L_QX = L_HI + 32 * 1024
S_CSQ = S_CS1
L_X = BASE + 96 * 1024
LDS_BYTES = 160 * 1024


def w1_addr(s):
    return BASE + s * 3072


KORD = [6 * c + f for c in range(7) for f in (4, 5)] + [6 * c + f for c in range(7) for f in range(4)] + [42, 43]
W2_REG = KORD[:4] + [42 + k for k in KORD[:4]]
W2_P1 = KORD[4:15] + [42 + k for k in KORD[4:15]]
w2_pos = {}
for i, s in enumerate(W2_REG):
    w2_pos[s] = L_X + i * 2048
for i, s in enumerate(W2_P1):
    w2_pos[s] = L_HI + i * 2048
late_order = []
for i in range(15, 42):
    late_order += [KORD[i], 42 + KORD[i]]
late_order += [84, 85]
assert len(late_order) == 56
for i, s in enumerate(late_order):
    w2_pos[s] = BASE + i * 2048
assert BASE + 56 * 2048 <= L_HI


def w2_rd_pos(i):
    return w2_pos[KORD[i]] if i < 42 else w2_pos[42 + KORD[i]] - 2048


sX, sWQKV, sWO, sW1, sW2, sOUT, sWS, sB1, sB2, sDBG = [f's[{i}:{i + 3}]' for i in range(4, 44, 4)]
s_team, s_j, s_rb, s_c, s_rs, s_cb, s_w, s_tt, s_tag, s_mode, s_hd = [f's{i}' for i in range(44, 55)]
T = [f's{i}' for i in range(55, 64)]
s_xr = [f's{i}' for i in range(86, 90)]
s_wr = [f's{i}' for i in range(90, 94)]
s_t, s_kh = 's94', 's95'
s_tile = 's64'
s_area = 's88'
s_last = 's96'
s_stamp = 's[98:99]'

LOG2E = 1.4426950408889634
BIG = 0xf149f2ca


def fhex(x):
    import struct
    return '0x%08x' % struct.unpack('<I', struct.pack('<f', x))[0]


def vr(a, n=1):
    return f'v{a}' if n == 1 else f'v[{a}:{a + n - 1}]'


p = Prog()
tail = []


class Role:
    def __init__(self, name):
        self.name = name
        self.vm = Cnt(p, 'vmcnt', 63)
        self.lg = Cnt(p, 'lgkmcnt', 15)
        self.nbar = 0
        self.nstamp = 0

    def bar(self):
        p('s_barrier')
        self.nbar += 1

    def dstamp(self, grp, label):
        if OPT.get('d' + grp):
            self.stamp(label, True)

    def stamp(self, label='', force=False):
        if not OPT['stamps']:
            return
        if not force and label not in ('start', 'end') and any(k.startswith('dP') for k in OPT):
            return
        k = self.nstamp
        self.nstamp += 1
        STAMPS.setdefault(self.name, []).append(label)
        assert k < 20
        p(f's_memtime {s_stamp}')
        p('s_waitcnt lgkmcnt(0)')
        self.lg.reset()
        p(f's_mov_b32 s{66 + k}, s98')


STAMPS = {}


def dsr(R, op, dst, bases, off, tag=None):
    k = off // 65536
    R.lg.room(1)
    p(f'{op} {dst}, {bases[k]} offset:{off % 65536}')
    R.lg.issue(tag)


def dma(R, vaddr, srd, soff, ldsaddr, tag=None):
    p(f's_mov_b32 m0, {ldsaddr}')
    p(f'buffer_load_dwordx4 {vaddr}, {srd}, {soff} offen lds')
    R.vm.issue(tag)


def poll(R, vaddr, vtmp, wide=False, slow=False):
    L = p.newlabel('L_poll')
    D = p.newlabel('L_polld')
    X = p.newlabel('L_pollx')
    p(f's_mov_b32 {T[0]}, 0')
    p.label(L)
    first = vtmp if not wide else 'v' + vtmp[2:vtmp.index(':')]
    p(f'buffer_load_dword{"x2" if wide else ""} {vtmp}, {vaddr}, {sWS}, 0 offen sc1')
    p('s_waitcnt vmcnt(0)')
    p(f'v_cmp_ne_u32 vcc, {s_tag}, {first}')
    p(f's_cbranch_vccnz {X}')
    p.label(D)
    R.vm.reset()

    def blk():
        p.label(X)
        if slow:
            p('s_sleep 4')
        p(f's_add_u32 {T[0]}, {T[0]}, 1')
        p(f's_cmp_lt_u32 {T[0]}, {OPT["spin"]}')
        p(f's_cbranch_scc1 {L}')
        p(f's_branch {D}')
    tail.append(blk)


def moded_stores(R, stores, wt=False):
    if wt:
        for s in stores:
            p(s + ' sc1')
            R.vm.issue('st')
        return
    Ls = p.newlabel('L_safe')
    Lb = p.newlabel('L_back')
    p(f's_cmp_eq_u32 {s_mode}, 1')
    p(f's_cbranch_scc0 {Ls}')
    for s in stores:
        p(s)
    p.label(Lb)
    for s in stores:
        if s.startswith('buffer_'):
            R.vm.issue('st')

    def blk():
        p.label(Ls)
        for s in stores:
            p(s + ' sc1' if s.startswith('buffer_') else s)
        p(f's_branch {Lb}')
    tail.append(blk)


def signal(R, word, vz, vone):
    p('s_mov_b64 exec, 1')
    p(f'ds_add_u32 {vz}, {vone} offset:{word}')
    p('s_mov_b64 exec, -1')
    R.lg.issue('sig')


def lwait(R, word, vz, vt, early=False, n=4):
    L = p.newlabel('L_lw')
    X = p.newlabel('L_lwx')
    if early:
        R.lg.wait([word])
    else:
        p(f'ds_read_b32 {vt}, {vz} offset:{word}')
        p('s_waitcnt lgkmcnt(0)')
        R.lg.reset()
    p(f'v_cmp_gt_u32 vcc, {n}, {vt}')
    p(f's_cbranch_vccnz {X}')
    p.label(L)

    def blk():
        Y = p.newlabel('L_lwy')
        p.label(X)
        p(f's_mov_b32 {T[0]}, 0')
        p.label(Y)
        if R.name == 'HW' and OPT['slp']:
            p(f's_sleep {OPT["slp"]}')
        p(f'ds_read_b32 {vt}, {vz} offset:{word}')
        p('s_waitcnt lgkmcnt(0)')
        p(f'v_cmp_gt_u32 vcc, {n}, {vt}')
        p(f's_cbranch_vccz {L}')
        p(f's_add_u32 {T[0]}, {T[0]}, 1')
        p(f's_cmp_lt_u32 {T[0]}, {OPT["spin"] * 8}')
        p(f's_cbranch_scc1 {Y}')
        p(f's_branch {L}')
    tail.append(blk)


def flag_store(R, saddr, vt0, vt1, moded=True):
    p(f'v_mov_b32 {vt0}, {saddr}')
    p(f'v_mov_b32 {vt1}, {s_tag}')
    R.vm.wait_all()
    p('s_mov_b64 exec, 1')
    if moded:
        moded_stores(R, [f'buffer_store_dword {vt1}, {vt0}, {sWS}, 0 offen'])
    else:
        p(f'buffer_store_dword {vt1}, {vt0}, {sWS}, 0 offen sc1')
        R.vm.issue('st')
    p('s_mov_b64 exec, -1')


CW = Role('CW')
HW = Role('HW')
s_q = T[8]
s_mx, s_mw, s_tw = 's96', 's97', 's3'


def srd(dst, lo, size):
    b = int(dst[2:dst.index(':')])
    p(f's_mov_b32 s{b}, s{lo}')
    p(f's_and_b32 s{b + 1}, s{lo + 1}, 0xffff')
    p(f's_mov_b32 s{b + 2}, {size}')
    p(f's_mov_b32 s{b + 3}, 0x20000')


p.label(KNAME)
p('s_cmp_ge_u32 s2, 256')
p('s_cbranch_scc1 L_end')
if OPT['stamps']:
    p('s_memtime s[100:101]')
if OPT.get('dbgout'):
    p('s_memrealtime s[86:87]')
p('s_load_dwordx16 s[64:79], s[0:1], 0')
p('s_load_dwordx4 s[80:83], s[0:1], 64')
p('s_load_dwordx2 s[84:85], s[0:1], 80')
if OPT['codewarm']:
    p('s_getpc_b64 s[56:57]')
    p.label('L_pc')
    p(f's_sub_u32 s56, s56, L_pc-{KNAME}')
    p('s_subb_u32 s57, s57, 0')
    p(f's_lshr_b32 {T[0]}, s2, 3')
    p(f's_lshl_b32 {T[0]}, {T[0]}, 11')
    p('v_lshrrev_b32 v10, 5, v0')
    p('v_lshlrev_b32 v10, 7, v10')
    p(f'v_add_u32 v10, {T[0]}, v10')
    p(f'v_min_u32 v10, L_codeend-{KNAME}-4, v10')
    p('global_load_dword v253, v10, s[56:57]')
    CW.vm.issue('t')
    HW.vm.issue('t')
p('v_and_b32 v1, 63, v0')
p('v_lshrrev_b32 v2, 6, v0')
p(f'v_readfirstlane_b32 {s_w}, v2')
p(f's_and_b32 {s_team}, s2, 7')
p(f's_lshr_b32 {s_j}, s2, 3')
p(f's_and_b32 {s_c}, {s_j}, 15')
p(f's_lshr_b32 {T[0]}, {s_j}, 4')
p(f's_lshl_b32 {s_rb}, {s_team}, 1')
p(f's_add_u32 {s_rb}, {s_rb}, {T[0]}')
p('v_lshlrev_b32 v2, 4, v1')
p(f's_and_b32 {s_q}, {s_w}, 3')
p('v_lshrrev_b32 v3, 3, v1')
p(f's_lshl_b32 {T[0]}, {s_q}, 5')
p(f'v_add_u32 v3, {T[0]}, v3')
p('v_and_b32 v10, 7, v1')
p(f's_lshl_b32 {T[1]}, {s_rb}, 17')
p('v_bfe_u32 v11, v3, 1, 3')
p('v_xor_b32 v11, v10, v11')
p('v_lshlrev_b32 v11, 4, v11')
p('v_lshl_add_u32 v4, v3, 10, v11')
p(f'v_add_u32 v4, {T[1]}, v4')
p('v_xor_b32 v5, 64, v4')
p('v_add_u32 v5, 8192, v5')
p('v_lshrrev_b32 v10, 3, v1')
p(f's_lshl_b32 {T[0]}, {s_q}, 4')
p(f'v_add_u32 v10, {T[0]}, v10')
p(f's_movk_i32 {T[4]}, 3072')
p(f'v_mul_lo_u32 v10, v10, {T[4]}')
p('v_bfe_u32 v11, v1, 2, 1')
p('v_bfe_u32 v12, v1, 4, 1')
p('v_xor_b32 v11, v11, v12')
p('v_lshl_add_u32 v10, v11, 10, v10')
p('v_and_b32 v11, 3, v1')
p('v_lshl_add_u32 v10, v11, 4, v10')
p(f's_lshl_b32 {T[1]}, {s_c}, 6')
p(f's_add_u32 {T[1]}, {T[1]}, 1024')
p(f'v_add_u32 v6, {T[1]}, v10')
p(f's_lshl_b32 {s_mx}, {s_q}, 12')
p(f's_lshl_b32 {s_mw}, {s_q}, 11')
p(f's_lshl_b32 {s_tw}, {s_j}, 2')
p(f's_add_u32 {s_tw}, {s_tw}, {s_q}')
p(f's_lshr_b32 {T[0]}, {s_tw}, 1')
p(f's_mul_i32 {T[0]}, {T[0]}, 3072')
p(f's_and_b32 {s_tw}, {s_tw}, 1')
p(f's_lshl_b32 {s_tw}, {s_tw}, 10')
p(f's_add_u32 {s_tw}, {s_tw}, {T[0]}')
p(f's_add_u32 {s_tw}, {s_tw}, 1024')
p('v_bfe_u32 v16, v1, 3, 1')
p(f'v_mul_u32_u24 v16, {64 * 3072}, v16')
p('v_and_b32 v15, 7, v1')
p('v_lshl_add_u32 v16, v15, 7, v16')
p('v_min_u32 v17, 11, v1')
p('v_lshlrev_b32 v17, 7, v17')
p(f's_lshl_b32 {T[5]}, {s_rb}, 4')
p(f's_add_u32 {T[5]}, {T[5]}, {s_c}')
p(f's_lshl_b32 {T[5]}, {T[5]}, 3')
p(f's_add_u32 {T[5]}, {T[5]}, {s_q}')
p('s_waitcnt lgkmcnt(0)')
srd(sX, 64, 2048 * 512 * 2)
p(f's_cmp_ge_u32 {s_w}, 4')
p('s_cbranch_scc1 L_norow')
p(f's_load_dword {s_tag}, s[84:85], {EPOCH}')
if OPT['pgwarm']:
    p(f's_lshl_b32 {T[0]}, {s_j}, 2')
    p(f's_add_u32 {T[0]}, {T[0]}, {s_w}')
    p(f's_and_b32 {T[0]}, {T[0]}, 15')
    p('s_mov_b64 s[90:91], s[84:85]')
    for k, lo in enumerate((68, 72, 74, 76, 78, 80)):
        p(f's_cmp_eq_u32 {T[0]}, {k}')
        p(f's_cselect_b64 s[90:91], s[{lo}:{lo + 1}], s[90:91]')
    p(f's_sub_i32 {T[0]}, {T[0]}, 6')
    p(f's_max_i32 {T[0]}, {T[0]}, 0')
    p(f's_lshl_b32 {T[0]}, {T[0]}, 20')
    p(f's_add_u32 s90, s90, {T[0]}')
    p('s_addc_u32 s91, s91, 0')
    p('s_load_dword s92, s[90:91], 0')
    if OPT['pgwarm'] == 2:
        p('s_load_dword s93, s[84:85], 0xf0000')
if OPT['kvtag'] and OPT['clrat'] == -2:
    srd(sWS, 84, WS_SIZE if OPT['stamps'] else WS_END)
    p(f's_lshr_b32 {T[0]}, {T[5]}, 3')
    p(f's_lshl_b32 {T[0]}, {T[0]}, 2')
    p(f's_add_u32 {T[0]}, {T[0]}, {s_q}')
    p(f's_lshl_b32 {T[0]}, {T[0]}, 12')
    p(f's_add_u32 {T[0]}, {T[0]}, {AREA + 32 * 16384}')
    for r in range(4):
        p(f'v_mov_b32 v{244 + r}, -1')
    for q in range(4):
        p(f'buffer_store_dwordx4 v[244:247], v2, {sWS}, {T[0]} offen offset:{q * 1024} sc1')
        CW.vm.issue('st')
p(f's_lshl_b32 {T[0]}, {T[5]}, 10')
p(f's_add_u32 {T[1]}, {T[0]}, 4096')
p(f'buffer_load_dwordx4 v[196:199], v2, {sX}, {T[0]} offen')
p(f'buffer_load_dwordx4 v[208:211], v2, {sX}, {T[1]} offen')
CW.vm.issue('row')
CW.vm.issue('row')
p.label('L_norow')
srd(sWQKV, 66, 512 * 1536 * 2)
if OPT['stamps']:
    p('s_memtime s[98:99]')
    p('s_waitcnt lgkmcnt(0)')
    p('s_mov_b32 s101, s98')
p(f's_cmp_lt_u32 {s_w}, 4')
p('s_cbranch_scc1 L_CW')


def chunk_groups(R, ch):
    slot = RING + (ch % NSLOT) * SLOT

    def xg(q):
        def f():
            p(f's_mov_b32 {T[7]}, {ch * 128 + (q >> 1) * 16384}')
            p(f's_add_u32 m0, {s_mx}, {slot + q * 1024}')
            p(f'buffer_load_dwordx4 v{4 + (q & 1)}, {sX}, {T[7]} offen' + (' nt' if OPT.get('nt_x') else '') + ' lds')
            R.vm.issue(('ch', ch))
        return f

    def wg(q):
        def f():
            p(f's_mov_b32 {T[7]}, {(ch * 64 + q * 8) * 3072}')
            p(f's_add_u32 m0, {s_mw}, {slot + 16384 + q * 1024}')
            p(f'buffer_load_dwordx4 v6, {sWQKV}, {T[7]} offen lds')
            R.vm.issue(('ch', ch))
        return f
    return [wg(0), xg(0), xg(1), wg(1), xg(2), xg(3)]


def wtouch(R, i):
    def f():
        p(f's_add_u32 {T[7]}, {s_tw}, {i * 64 * 3072}')
        p(f'buffer_load_dword v252, v16, {sWQKV}, {T[7]} offen' + (' nt' if OPT.get('nt_t') else ''))
        R.vm.issue('t')
    return f


def qtouch(R):
    def f():
        p(f's_lshl_b32 {T[7]}, {s_j}, 2')
        p(f's_add_u32 {T[7]}, {T[7]}, {s_q}')
        p(f's_mul_i32 {T[7]}, {T[7]}, {4 * 3072}')
        p('v_bfe_u32 v3, v1, 3, 2')
        p('v_mul_u32_u24 v3, 3072, v3')
        p('v_and_b32 v110, 7, v1')
        p('v_lshl_add_u32 v3, v110, 7, v3')
        p(f'buffer_load_dword v252, v3, {sWQKV}, {T[7]} offen')
        R.vm.issue('t')
    return f


def warm_wo(R):
    def f():
        p(f's_lshl_b32 {T[7]}, {s_j}, 2')
        p(f's_add_u32 {T[7]}, {T[7]}, {s_q}')
        p(f's_lshl_b32 {T[7]}, {T[7]}, 12')
        p('v_and_b32 v3, 31, v1')
        p('v_lshlrev_b32 v3, 7, v3')
        p(f'buffer_load_dword v255, v3, {sWO}, {T[7]} offen')
        R.vm.issue('t')
    return f


def warm_mall(R, srd_):
    def f():
        p(f's_lshl_b32 {T[7]}, s2, 2')
        p(f's_add_u32 {T[7]}, {T[7]}, {s_q}')
        p(f's_mul_i32 {T[7]}, {T[7]}, 1536')
        p(f'buffer_load_dword v254, v17, {srd_}, {T[7]} offen')
        R.vm.issue('t')
    return f


def srds_w():
    srd(sWO, 68, 512 * 512 * 2)
    srd(sW1, 72, 512 * 1376 * 2)
    srd(sW2, 76, 1376 * 512 * 2)


def common_setup(R):
    srd(sWS, 84, WS_SIZE if OPT['stamps'] else WS_END)
    srd(sB1, 74, 1376 * 2)
    srd(sB2, 78, 512 * 2)
    srd(sOUT, 80, 2048 * 512 * 2)
    p(f's_lshr_b32 {T[0]}, {s_j}, 3')
    p(f's_lshl_b32 {s_rs}, {s_team}, 2')
    p(f's_add_u32 {s_rs}, {s_rs}, {T[0]}')
    p(f's_and_b32 {s_cb}, {s_j}, 7')
    p(f's_lshr_b32 {s_hd}, {s_w}, 2')
    p(f's_lshl_b32 {s_area}, {s_rb}, 4')
    p(f's_add_u32 {s_area}, {s_area}, {s_c}')
    p(f's_lshl_b32 {s_area}, {s_area}, 14')
    p(f's_add_u32 {s_area}, {s_area}, {AREA}')
    if R is CW:
        p(f's_mov_b32 {s_tt}, {s_w}')
        p(f's_and_b32 {s_t}, {s_w}, 1')
        p(f's_lshr_b32 {s_kh}, {s_w}, 1')
    else:
        p(f's_sub_u32 {s_tt}, 7, {s_w}')
    p('v_mov_b32 v18, 0x3f803f80')
    if R is CW:
        if not OPT['small']:
            p('s_waitcnt lgkmcnt(0)')
        p(f's_add_u32 {s_tag}, {s_tag}, 1')
        p(f'v_mov_b32 v10, {S_TAG}')
        p(f'v_mov_b32 v11, {s_tag}')
        p('ds_write_b32 v10, v11')


def row_stats(R):
    p(f's_lshl_b32 s65, s65, 4')
    p(f's_add_u32 s65, s65, {RST}')
    p(f'v_mov_b32 v3, s65')
    for k in (200, 202, 212, 214):
        p(f'v_mov_b32 v{k}, 0')
    p(f's_getreg_b32 {T[1]}, hwreg(HW_REG_XCC_ID)')
    p(f's_and_b32 {T[1]}, {T[1]}, 15')
    p(f'v_mov_b32 v221, {T[1]}')
    p(f'v_mov_b32 v220, {s_tag}')
    p(f's_lshl_b32 {T[1]}, {s_team}, 5')
    p(f's_add_u32 {T[1]}, {T[1]}, {s_j}')
    p(f's_lshl_b32 {T[1]}, {T[1]}, 3')
    p(f's_add_u32 {T[1]}, {T[1]}, {ST}')
    p(f's_cmp_eq_u32 {s_w}, 0')
    p(f's_cselect_b32 {T[1]}, {T[1]}, {0x7ff00000}')
    p(f'v_mov_b32 v222, {T[1]}')
    R.vm.wait(['row'])
    for r in range(4):
        for o in (0, 12):
            p(f'v_dot2c_f32_bf16 v{200 + o}, v{196 + o + r}, v18')
            p(f'v_dot2c_f32_bf16 v{202 + o}, v{196 + o + r}, v{196 + o + r}')
    for sh in (8, 4, 2, 1):
        for k in (200, 202, 212, 214):
            p(f'v_add_f32_dpp v{k}, v{k}, v{k} row_ror:{sh} row_mask:0xf bank_mask:0xf')
    for op in ('v_permlane16_swap_b32', 'v_permlane32_swap_b32'):
        for k in (200, 202, 212, 214):
            p(f'v_mov_b32 v{k + 1}, v{k}')
        for k in (200, 202, 212, 214):
            p(f'{op} v{k}, v{k + 1}')
        for k in (200, 202, 212, 214):
            p(f'v_add_f32 v{k}, v{k}, v{k + 1}')
    for o in (0, 12):
        ln_finish(f'v{200 + o}', f'v{202 + o}', f'v{204 + o}', f'v{206 + o}')
        p(f'v_mov_b32 v{205 + o}, {s_tag}')
        p(f'v_mov_b32 v{207 + o}, {s_tag}')
    p('s_mov_b64 exec, 1')
    p(f'buffer_store_dwordx4 v[204:207], v3, {sWS}, 0 offen sc1')
    p(f'buffer_store_dwordx4 v[216:219], v3, {sWS}, 0 offen offset:64 sc1')
    p(f'buffer_store_dwordx2 v[220:221], v222, {sWS}, 0 offen sc1')
    p('s_mov_b64 exec, -1')
    for _ in range(3):
        R.vm.issue('st')


VQ, MD, MF = 160, 164, 180
SB = [20, 36]
VP = 52
KF = [60, 64]
VF = [68, 76]
VO = 84
VKA, VVA = 'v100', 'v101'
HALO = 120


def make_masks():
    p('v_and_b32 v10, 31, v1')
    p('v_lshrrev_b32 v11, 5, v1')
    p('v_lshlrev_b32 v11, 2, v11')
    p('v_sub_u32 v10, v10, v11')
    p(f'v_mov_b32 v12, {BIG:#x}')
    p('v_mov_b32 v13, 0')
    for i0 in range(0, 16, 4):
        for i in range(i0, i0 + 4):
            key = 8 * (i >> 2) + (i & 3)
            p(f'v_cmp_le_i32 s[{56 + 2 * (i & 3)}:{57 + 2 * (i & 3)}], {key}, v10')
        for i in range(i0, i0 + 4):
            m = f's[{56 + 2 * (i & 3)}:{57 + 2 * (i & 3)}]'
            p(f'v_cndmask_b32 v{MD + i}, v12, v13, {m}')
            p(f'v_cndmask_b32 v{MF + i}, v13, v12, {m}')


def att_addrs():
    p(f's_lshl_b32 {T[0]}, {s_tt}, 11')
    p(f's_lshl_b32 {T[1]}, {s_hd}, 10')
    p(f's_add_u32 {T[0]}, {T[0]}, {T[1]}')
    p(f's_add_u32 {T[0]}, {T[0]}, {L_K}')
    p(f'v_add_u32 {VKA}, {T[0]}, v2')
    p('v_and_b32 v10, 47, v1')
    p(f's_lshl_b32 {T[1]}, {s_hd}, 4')
    p(f'v_add_u32 v10, {T[1]}, v10')
    p('v_lshlrev_b32 v10, 4, v10')
    p('v_and_b32 v11, 16, v1')
    p('v_cmp_ne_u32 vcc, 0, v11')
    p('v_mov_b32 v11, 1024')
    p('v_cndmask_b32 v10, v10, v11, vcc')
    p(f's_mul_i32 {T[0]}, {s_tt}, {2 * VSTR}')
    p(f's_add_u32 {T[0]}, {T[0]}, {L_V}')
    p(f'v_add_u32 {VVA}, {T[0]}, v10')


def half_sum(a, t):
    p(f'v_mov_b32 {t}, {a}')
    p(f'v_permlane32_swap_b32 {a}, {t}')
    p(f'v_add_f32 {a}, {a}, {t}')


def ln_finish(s1, s2, rstd, mrs):
    p(f'v_mul_f32 {s1}, {fhex(1.0 / 512)}, {s1}')
    p(f'v_mul_f32 {s2}, {fhex(1.0 / 512)}, {s2}')
    p(f'v_fma_f32 {s2}, -{s1}, {s1}, {s2}')
    p(f'v_max_f32 {s2}, 0, {s2}')
    p(f'v_add_f32 {s2}, {fhex(1e-5)}, {s2}')
    p(f'v_rsq_f32 {rstd}, {s2}')
    p(f'v_mul_f32 {mrs}, {s1}, {rstd}')


def att_load(R, u, b, base):
    p(f'ds_read_b128 {vr(KF[b], 4)}, {base[0]} offset:{u * 2048}')
    R.lg.issue(('K', u))
    for g in range(2):
        p(f'ds_read_b128 {vr(VF[b] + 4 * g, 4)}, {base[1]} offset:{(2 * u + g) * VSTR}')
        R.lg.issue(('V', u))


def att_qk(R, u, b, c):
    R.lg.wait([('K', u)])
    p(f'v_mfma_f32_32x32x16_bf16 {vr(SB[b], 16)}, {vr(KF[b], 4)}, {vr(VQ, 4)}, {c}')


def att_body(R, u, b, nxt, first, extra=()):
    S = SB[b]
    if nxt is not None:
        att_load(R, nxt[0], 1 - b, nxt[1])
    extra = list(extra)
    for g in range(2):
        for i in range(8):
            p(f'v_exp_f32 v{S + 8 * g + i}, v{S + 8 * g + i}')
            if i in (0, 2, 3, 5, 7) and extra:
                extra.pop(0)()
        if g == 0 and nxt is not None:
            att_qk(R, nxt[0], 1 - b, nxt[2])
        for r in range(4):
            p(f'v_cvt_pk_bf16_f32 v{VP + 4 * g + r}, v{S + 8 * g + 2 * r}, v{S + 8 * g + 2 * r + 1}')
        R.lg.wait([('V', u)])
        c = '0' if (first and g == 0) else vr(VO, 16)
        p(f'v_mfma_f32_32x32x16_bf16 {vr(VO, 16)}, {vr(VF[b] + 4 * g, 4)}, {vr(VP + 4 * g, 4)}, {c}')
    assert not extra


REL = (VKA, VVA)
ABS = ('v116', 'v117')


def att_2a(R, after_first=None):
    Lx = p.newlabel('L_2a_done')
    att_load(R, 8, 0, REL)
    att_qk(R, 8, 0, vr(MD, 16))
    for n, j in enumerate((8, 7, 6, 5)):
        att_body(R, j, n & 1, (j - 1, REL, '0') if j > 5 else None, n == 0)
        if n == 0 and after_first:
            after_first()
        if j > 5:
            p(f's_cmp_eq_u32 {s_tt}, {n}')
            p(f's_cbranch_scc1 {Lx}')
    p.label(Lx)
    p('s_waitcnt lgkmcnt(0)')
    R.lg.reset()
    R.stamp('2a')
    R.dstamp('P2', '2a')


def att_2b(R, extra, after_store):
    p(f's_max_i32 {T[0]}, {s_rb}, 1')
    p(f's_sub_u32 {T[0]}, {T[0]}, 1')
    p(f's_lshl_b32 {T[0]}, {T[0]}, 4')
    p(f's_add_u32 {T[0]}, {T[0]}, {s_c}')
    p(f's_lshl_b32 {T[0]}, {T[0]}, 7')
    p(f's_add_u32 {T[0]}, {T[0]}, {FKV + 16}')
    p('v_and_b32 v102, 3, v1')
    p('v_lshlrev_b32 v102, 2, v102')
    p(f'v_add_u32 v102, {T[0]}, v102')

    def rd_check():
        p(f'buffer_load_dword v103, v102, {sWS}, 0 offen sc1')
        R.vm.issue('rd')
    Lx = p.newlabel('L_2b_done')
    att_load(R, 0, 0, REL)
    att_qk(R, 0, 0, vr(MF, 16))
    extra = list(extra)
    extra += [lambda: None] * (44 - len(extra)) + [rd_check]
    assert len(extra) <= 50
    for j in range(8):
        att_body(R, j, j & 1, (j + 1, REL, '0') if j < 7 else None, False, extra[10 * j:10 * j + 10])
        if 4 <= j < 7:
            p(f's_cmp_eq_u32 {s_tt}, {7 - j}')
            p(f's_cbranch_scc1 {Lx}')
    p.label(Lx)
    p('s_waitcnt lgkmcnt(0)')
    R.lg.reset()
    Lf = p.newlabel('L_fb')
    Lr = p.newlabel('L_fbret')
    p(f'v_mov_b32 v10, {fhex(2.0 ** -60)}')
    p(f'v_mov_b32 v11, {fhex(2.0 ** 60)}')
    p(f's_lshl_b32 {T[0]}, {s_rb}, 2')
    p(f's_add_u32 {T[0]}, {T[0]}, {s_tt}')
    p(f's_lshl_b32 {T[0]}, {T[0]}, 5')
    p(f's_lshl_b32 {T[6]}, {s_c}, 1')
    p(f's_add_u32 {T[0]}, {T[0]}, {T[6]}')
    p(f's_add_u32 {T[0]}, {T[0]}, {s_hd}')
    p(f's_lshl_b32 {T[7]}, {T[0]}, 2')
    p(f's_add_u32 {T[7]}, {T[7]}, {FO}')
    p(f's_lshl_b32 {T[0]}, {s_tt}, 2')
    p(f's_add_u32 {T[0]}, {T[0]}, {s_hd}')
    p(f's_lshl_b32 {T[0]}, {T[0]}, 10')
    p(f's_add_u32 {T[6]}, {T[0]}, {s_area}')
    p(f'v_cmp_nlt_f32 vcc, v10, v{VO + 8}')
    p(f'v_cmp_nlt_f32 s[56:57], v{VO + 8}, v11')
    p('s_or_b64 vcc, vcc, s[56:57]')
    if OPT['force_fallback']:
        p(f's_branch {Lf}')
    else:
        p(f's_cbranch_vccnz {Lf}')
    p.label(Lr)
    tail.append(lambda: fallback(Lf, Lr))
    p(f'v_rcp_f32 v10, v{VO + 8}')
    for i in range(8):
        p(f'v_mul_f32 v{VO + i}, v{VO + i}, v10')
    for r in range(4):
        p(f'v_cvt_pk_bf16_f32 v{12 + r}, v{VO + 2 * r}, v{VO + 2 * r + 1}')
    R.dstamp('P2', '2b')
    Lc = p.newlabel('L_rdc')
    Lcx = p.newlabel('L_rdx')
    R.vm.wait(['rd'])
    p(f'v_cmp_ne_u32 vcc, {s_tag}, v103')
    p(f's_cbranch_vccnz {Lcx}')
    p.label(Lc)

    def rd_slow():
        p.label(Lcx)
        poll(R2, 'v102', 'v103')
        p(f's_branch {Lc}')
    R2 = Role('tmp')
    tail.append(rd_slow)
    moded_stores(R, [f'buffer_store_dwordx4 v[12:15], v2, {sWS}, {T[6]} offen'], OPT['osc1'])
    after_store()
    flag_store(R, T[7], 'v10', 'v11')
    R.stamp('Oflag')
    R.dstamp('P2', 'Oflag')


def fallback(Lf, Lr):
    S = SB[0]
    p.label(Lf)
    p(f's_lshl_b32 {T[0]}, {s_rb}, 2')
    p(f's_add_u32 {T[0]}, {T[0]}, {s_tt}')
    p(f's_sub_i32 {T[0]}, 8, {T[0]}')
    p(f's_max_i32 s89, {T[0]}, 0')
    p(f'v_mov_b32 v14, {BIG:#x}')
    for pas in range(2):
        L = p.newlabel('L_fbl')
        Lm = p.newlabel('L_fbm')
        Ln = p.newlabel('L_fbn')
        Lc = p.newlabel('L_fbc')
        p(f's_mov_b32 s90, s89')
        if pas == 1:
            for i in range(16):
                p(f'v_mov_b32 v{VO + i}, 0')
        p.label(L)
        p(f's_lshl_b32 {T[0]}, s90, 11')
        p(f'v_add_u32 v10, {T[0]}, {VKA}')
        p(f's_mul_i32 {T[0]}, s90, {2 * VSTR}')
        p(f'v_add_u32 v11, {T[0]}, {VVA}')
        p(f'ds_read_b128 {vr(KF[0], 4)}, v10')
        p(f'ds_read_b128 {vr(VF[0], 4)}, v11')
        p(f'ds_read_b128 {vr(VF[0] + 4, 4)}, v11 offset:{VSTR}')
        p('s_waitcnt lgkmcnt(0)')
        p(f's_cmp_eq_u32 s90, 8')
        p(f's_cbranch_scc1 {Lm}')
        p(f's_cmp_eq_u32 s90, 0')
        p(f's_cbranch_scc1 {Ln}')
        p(f'v_mfma_f32_32x32x16_bf16 {vr(S, 16)}, {vr(KF[0], 4)}, {vr(VQ, 4)}, 0')
        p(f's_branch {Lc}')
        p.label(Lm)
        p(f'v_mfma_f32_32x32x16_bf16 {vr(S, 16)}, {vr(KF[0], 4)}, {vr(VQ, 4)}, {vr(MD, 16)}')
        p(f's_branch {Lc}')
        p.label(Ln)
        p(f'v_mfma_f32_32x32x16_bf16 {vr(S, 16)}, {vr(KF[0], 4)}, {vr(VQ, 4)}, {vr(MF, 16)}')
        p.label(Lc)
        if pas == 0:
            for i in range(16):
                p(f'v_max_f32 v14, v14, v{S + i}')
        else:
            for i in range(16):
                p(f'v_sub_f32 v{S + i}, v{S + i}, v14')
                p(f'v_exp_f32 v{S + i}, v{S + i}')
            for r in range(8):
                p(f'v_cvt_pk_bf16_f32 v{VP + r}, v{S + 2 * r}, v{S + 2 * r + 1}')
            for g in range(2):
                p(f'v_mfma_f32_32x32x16_bf16 {vr(VO, 16)}, {vr(VF[0] + 4 * g, 4)}, {vr(VP + 4 * g, 4)}, {vr(VO, 16)}')
        p(f's_add_u32 s90, s90, 1')
        p(f's_cmp_le_u32 s90, 8')
        p(f's_cbranch_scc1 {L}')
        if pas == 0:
            p('v_mov_b32 v15, v14')
            p('v_permlane32_swap_b32 v14, v15')
            p('v_max_f32 v14, v14, v15')
    p(f's_branch {Lr}')


def w64_dma_lane(dst):
    p('v_lshrrev_b32 v10, 3, v1')
    p('v_lshlrev_b32 v10, 10, v10')
    p('v_and_b32 v11, 7, v1')
    p('v_bfe_u32 v12, v1, 4, 1')
    p('v_lshlrev_b32 v12, 2, v12')
    p('v_xor_b32 v11, v11, v12')
    p('v_lshl_add_u32 v10, v11, 4, v10')
    p(f's_lshl_b32 {T[0]}, {s_cb}, 7')
    p(f'v_add_u32 {dst}, {T[0]}, v10')


def w1_dma_lanes(dsts):
    p(f's_movk_i32 {T[3]}, 5462')
    p(f's_movk_i32 {T[4]}, 2752')
    p(f's_mul_i32 {T[1]}, {s_c}, 192')
    for q, dst in enumerate(dsts):
        p(f'v_add_u32 v10, {64 * q}, v1')
        p(f'v_mul_lo_u32 v11, v10, {T[3]}')
        p('v_lshrrev_b32 v11, 16, v11')
        p('v_mul_u32_u24 v12, 12, v11')
        p('v_sub_u32 v12, v10, v12')
        p('v_lshlrev_b32 v12, 4, v12')
        p(f'v_mul_lo_u32 v11, v11, {T[4]}')
        p(f'v_add3_u32 {dst}, v11, v12, {T[1]}')


def tr64_lanes(a0, a1):
    p('v_bfe_u32 v10, v1, 2, 2')
    p('v_lshrrev_b32 v11, 5, v1')
    p('v_lshl_add_u32 v10, v11, 2, v10')
    p('v_lshlrev_b32 v10, 7, v10')
    p('v_bfe_u32 v11, v1, 4, 1')
    p('v_lshl_add_u32 v10, v11, 5, v10')
    p('v_and_b32 v11, 3, v1')
    p('v_lshl_add_u32 v10, v11, 3, v10')
    p('v_bfe_u32 v11, v1, 3, 1')
    p(f'v_lshl_add_u32 {a0}, v11, 6, v10')
    p(f'v_xor_b32 {a1}, 64, {a0}')


def tr_kv_lane(a):
    p('v_bfe_u32 v10, v1, 2, 2')
    p('v_lshrrev_b32 v11, 5, v1')
    p('v_lshl_add_u32 v10, v11, 3, v10')
    p('v_lshlrev_b32 v10, 7, v10')
    p('v_bfe_u32 v11, v1, 4, 1')
    p('v_lshl_add_u32 v10, v11, 5, v10')
    p('v_and_b32 v11, 3, v1')
    p('v_lshl_add_u32 v10, v11, 3, v10')
    p('v_bfe_u32 v11, v1, 3, 1')
    p(f'v_lshl_add_u32 {a}, v11, 6, v10')


def x_lane(a):
    p('v_and_b32 v10, 31, v1')
    p(f's_lshl_b32 {T[0]}, {s_tt}, 5')
    p(f'v_add_u32 v10, {T[0]}, v10')
    p('v_bfe_u32 v11, v10, 1, 3')
    p('v_lshrrev_b32 v12, 5, v1')
    p('v_xor_b32 v11, v11, v12')
    p('v_lshlrev_b32 v11, 4, v11')
    p(f'v_lshl_add_u32 {a}, v10, 7, v11')


def tr96_lane(a):
    p('v_bfe_u32 v10, v1, 2, 2')
    p('v_lshrrev_b32 v11, 5, v1')
    p('v_lshl_add_u32 v10, v11, 2, v10')
    p('v_mul_u32_u24 v10, 192, v10')
    p('v_bfe_u32 v11, v1, 4, 1')
    p('v_lshl_add_u32 v10, v11, 5, v10')
    p('v_and_b32 v11, 3, v1')
    p(f'v_lshl_add_u32 {a}, v11, 3, v10')


def dump_stamps(R):
    if not OPT['stamps']:
        return
    R.stamp('end')
    p(f's_lshl_b32 {T[0]}, s2, 3')
    p(f's_add_u32 {T[0]}, {T[0]}, {s_w}')
    p(f's_lshl_b32 {T[0]}, {T[0]}, 8')
    p(f's_add_u32 {T[0]}, {T[0]}, {STAMP}')
    p('v_lshlrev_b32 v10, 2, v1')
    p('v_mov_b32 v11, 0')
    for k in range(R.nstamp):
        p(f'v_writelane_b32 v11, s{66 + k}, {k}')
    p(f'v_writelane_b32 v11, {s_mode}, 63')
    p(f'v_writelane_b32 v11, s100, 62')
    p(f'v_writelane_b32 v11, s101, 61')
    p(f'buffer_store_dword v11, v10, {sWS}, {T[0]} offen')
    if OPT.get('dbgout') and R is CW:
        L = p.newlabel('L_dbg')
        p(f's_cmp_lg_u32 s2, {OPT["dbgout"]}')
        p(f's_cbranch_scc1 {L}')
        p(f's_cmp_lg_u32 {s_w}, 0')
        p(f's_cbranch_scc1 {L}')
        p('s_load_dwordx2 s[40:41], s[0:1], 72')
        p('s_memrealtime s[98:99]')
        p('s_waitcnt lgkmcnt(0)')
        p('s_and_b32 s41, s41, 0xffff')
        p('s_mov_b32 s42, 256')
        p('s_mov_b32 s43, 0x20000')
        p('v_subrev_u32 v11, s100, v11')
        p('s_sub_u32 s98, s98, s86')
        p('v_writelane_b32 v11, s98, 15')
        p('buffer_store_dword v11, v10, s[40:43], 0 offen')
        p.label(L)


R = HW
def touch_st():
    p('v_bfe_u32 v250, v1, 2, 1')
    p('v_lshlrev_b32 v250, 12, v250')
    p('v_and_b32 v251, 3, v1')
    p('v_lshl_add_u32 v250, v251, 7, v250')
    p(f's_lshl_b32 {T[6]}, {s_rs}, 13')
    p(f's_lshl_b32 {T[7]}, {s_cb}, 9')
    p(f's_add_u32 {T[6]}, {T[6]}, {T[7]}')
    p(f's_add_u32 {T[6]}, {T[6]}, {STB}')
    p(f'buffer_load_dword v253, v250, {sWS}, {T[6]} offen sc1')
    R.vm.issue('t')


def touch_fl():
    p('v_bfe_u32 v250, v1, 2, 2')
    p('v_min_u32 v250, 2, v250')
    p('v_lshlrev_b32 v250, 13, v250')
    p('v_and_b32 v251, 3, v1')
    p('v_lshl_add_u32 v250, v251, 7, v250')
    p(f's_lshl_b32 {T[6]}, {s_rb}, 9')
    p(f's_add_u32 {T[6]}, {T[6]}, {FO}')
    p(f'buffer_load_dword v254, v250, {sWS}, {T[6]} offen sc1')
    R.vm.issue('t')


TM = OPT['tmode']
after = {1: {0: [2], 1: [4], 2: [6]}, 2: {0: [2, 4], 1: [6]}, 3: {0: [2], 1: [4], 3: [6]}, 4: {0: [2, 4, 6]}}[TM]


def chunk_t(R, ch):
    gs = chunk_groups(R, ch) + [wtouch(R, i) for i in after.get(ch, [])]
    if ch == OPT['qat']:
        gs.append(qtouch(R))
    if OPT['mallat'] < 8:
        m = OPT['mallat']
        gs += {m: [warm_mall(R, sW1)], m + 1: [warm_mall(R, sW2)], m + 2: [warm_wo(R), touch_fl, touch_st]}.get(ch, [])
    return gs


for g in [wtouch(R, 0)] + chunk_t(R, 0) + [srds_w]:
    g()
tr_kv_lane('v19')
p(f's_and_b32 {T[0]}, {s_q}, 1')
p(f's_lshl_b32 {T[0]}, {T[0]}, 6')
p(f'v_xor_b32 v19, {T[0]}, v19')
p(f's_sub_u32 {s_tt}, 7, {s_w}')
x_lane('v9')
XQ = [20 + 4 * i for i in range(4)] + [68 + 4 * i for i in range(8)] + [120 + 4 * i for i in range(10)] + [196 + 4 * i for i in range(10)]
AQ = 236


def wq_lane():
    p('v_lshrrev_b32 v10, 2, v1')
    p(f's_lshl_b32 {T[0]}, {s_q}, 7')
    p(f'v_add_u32 v10, {T[0]}, v10')
    p(f's_movk_i32 {T[1]}, 3072')
    p(f'v_mul_lo_u32 v10, v10, {T[1]}')
    p('v_and_b32 v11, 3, v1')
    p('v_lshl_add_u32 v10, v11, 4, v10')
    p(f's_lshl_b32 {T[1]}, {s_c}, 6')
    p(f'v_add_u32 v7, {T[1]}, v10')
    p('v_bfe_u32 v10, v1, 2, 2')
    p('v_lshrrev_b32 v11, 5, v1')
    p('v_lshl_add_u32 v10, v11, 3, v10')
    p('v_lshlrev_b32 v10, 6, v10')
    p('v_bfe_u32 v11, v1, 4, 1')
    p('v_lshl_add_u32 v10, v11, 5, v10')
    p('v_and_b32 v11, 3, v1')
    p('v_lshl_add_u32 v10, v11, 3, v10')
    p(f'v_add_u32 v8, {L_WQ}, v10')


def wq_piece(n):
    def f():
        p(f's_lshl_b32 {T[7]}, {s_q}, 13')
        p(f's_add_u32 m0, {T[7]}, {L_WQ + n * 1024}')
        p(f's_mov_b32 {T[7]}, {n * 16 * 3072}')
        p(f'buffer_load_dwordx4 v7, {sWQKV}, {T[7]} offen lds')
        R.vm.issue('wq')
    return f

STG = [120 + 4 * i for i in range(10)] + [196 + 4 * i for i in range(14)]
ONE, CSA = 104, 52
for r in range(4):
    p(f'v_mov_b32 v{ONE + r}, 0x3f803f80')


def w1_stage(n):
    def f():
        if n % 3 == 0:
            p(f's_mul_i32 {T[6]}, {s_q}, {8 * 16 * 2752}')
            p(f's_add_u32 {T[6]}, {T[6]}, {(n // 3) * 16 * 2752}')
        p(f'buffer_load_dwordx4 {vr(STG[n], 4)}, v{112 + n % 3}, {sW1}, {T[6]} offen' + (' nt' if OPT.get('nt_w1') else ''))
        R.vm.issue('w1')
    return f


def get_tag():
    p(f'v_mov_b32 v10, {S_TAG}')
    p('ds_read_b32 v10, v10')
    p('s_waitcnt lgkmcnt(0)')
    p(f'v_readfirstlane_b32 {s_tag}, v10')


def hw_masks():
    make_masks()
    p(f's_and_b32 {s_q}, {s_w}, 3')


p('v_mov_b32 v10, 0')
p('v_mov_b32 v11, 0')
p('v_lshlrev_b32 v12, 3, v1')
p('v_and_b32 v12, 63, v12')
p(f'ds_write_b64 v12, v[10:11] offset:{S_SYNC}')
common_setup(R)
w1_dma_lanes(['v112', 'v113', 'v114'])
hw_masks()
w64_dma_lane('v115')
att_addrs()
wq_lane()
R.dstamp('P1', 'setup')
for g in chunk_t(R, 1) + (chunk_t(R, 2) if OPT['la'] == 3 else []):
    g()
R.stamp('start')
late = [w1_stage(n) for n in range(24)]
fill = {1: [get_tag]}
for ch in range(8):
    slot = RING + (ch % NSLOT) * SLOT
    p(f'v_add_u32 v14, {slot + 16384}, v19')
    p(f'v_add_u32 v108, {slot}, v9')
    for ks in range(1, 4):
        p(f'v_xor_b32 v{(108, 109, 116, 117)[ks]}, {32 * ks}, v108')
    if ch >= 4:
        R.dstamp('P1', f'iss{ch}')
    R.vm.wait([('ch', ch)])
    if ch == 0:
        p('s_waitcnt lgkmcnt(0)')
    if ch >= 4:
        R.dstamp('P1', f'vm{ch}')
    R.bar()
    R.dstamp('P1', f'bar{ch}')
    for ks in range(4):
        for rd in range(2):
            p(f'ds_read_b64_tr_b16 {vr(36 + 4 * ks + 2 * rd, 2)}, v14 offset:{ks * 2048 + rd * 512}')
    for ks in range(4):
        p(f'ds_read_b128 {vr(XQ[4 * ch + ks], 4)}, v{(108, 109, 116, 117)[ks]}')
    LA = OPT['la']
    if ch + LA < 8:
        extra = chunk_t(R, ch + LA)
    elif ch == 8 - LA:
        extra = [wq_piece(n) for n in range(8)]
    else:
        extra = []
    mf = [(lambda ks=ks: p(f'v_mfma_f32_32x32x16_bf16 {vr(CSA, 16)}, {vr(ONE, 4)}, {vr(36 + 4 * ks, 4)}, {"0" if ch == 0 and ks == 0 else vr(CSA, 16)}')) for ks in range(4)]
    other = [lambda: p('s_waitcnt lgkmcnt(0)')] + mf + fill.get(ch, [])
    for k, g in enumerate(extra):
        g()
        if k >= 1 and other:
            other.pop(0)()
            if k == 1:
                other.pop(0)()
    for g in other:
        g()
p('v_and_b32 v10, 31, v1')
p('v_lshlrev_b32 v10, 2, v10')
p(f's_and_b32 {T[0]}, {s_q}, 1')
p(f's_lshl_b32 {T[0]}, {T[0]}, 7')
p(f'v_add_u32 v11, {T[0]}, v10')
p(f'ds_write_b32 v11, v{CSA} offset:{S_CS + 128}')
p('s_waitcnt lgkmcnt(0)')
R.bar()
R.stamp('B1')
R.dstamp('P2', 'B1')
burst = [warm_wo(R), warm_mall(R, sW1), warm_mall(R, sW2), touch_fl, touch_st]
if OPT['small']:
    burst[1] = burst[2] = lambda: None
if OPT['mallat'] == 8:
    for g in burst:
        g()
p('v_min_u32 v15, 23, v1')
p('v_lshrrev_b32 v16, 3, v15')
p(f'v_add_u32 v16, {s_rb}, v16')
p('v_cmp_le_u32 vcc, 2, v16')
p('v_mov_b32 v13, 0')
p('v_cndmask_b32 v44, v13, v18, vcc')
p('v_mov_b32 v45, v44')
p('v_mov_b32 v46, v44')
p('v_mov_b32 v47, v44')
p(f'v_mul_u32_u24 v15, {VSTR}, v15')
p(f'v_add_u32 v15, {L_V + 1024}, v15')
p('ds_write_b128 v15, v[44:47]')
p('v_mov_b32 v118, 0')
p('v_mov_b32 v119, 1')
p(f's_lshl_b32 {T[0]}, {s_tt}, 7')
p(f'v_add_u32 v11, {T[0]}, v10')
p(f'ds_read_b32 v108, v11 offset:{S_R}')
p(f'ds_read_b32 v109, v11 offset:{S_M}')
R.vm.wait(['wq'])
p(f's_lshl_b32 {T[0]}, {s_q}, 13')
p(f'v_add_u32 v14, {T[0]}, v8')
signal(R, H_WQ, 'v118', 'v119')
R.lg.reset()
for k in range(8 + 3):
    if k < 8:
        for rd in range(2):
            dsr(R, 'ds_read_b64_tr_b16', vr(36 + 4 * (k % 4) + 2 * rd, 2), ['v14'], k * 1024 + rd * 256, ('c', k))
    if k >= 3:
        R.lg.wait([('c', k - 3)])
        p(f'v_mfma_f32_32x32x16_bf16 {vr(CSA, 16)}, {vr(ONE, 4)}, {vr(36 + 4 * ((k - 3) % 4), 4)}, {"0" if k == 3 else vr(CSA, 16)}')
lwait(R, H_WQ, 'v118', 'v12')
p(f's_lshl_b32 {T[0]}, {s_q}, 7')
p(f'v_add_u32 v11, {T[0]}, v10')
p('v_lshrrev_b32 v12, 5, v1')
p('v_lshlrev_b32 v12, 4, v12')
for k in range(32 + 3):
    if k < 32:
        for rd in range(2):
            dsr(R, 'ds_read_b64_tr_b16', vr(36 + 4 * (k % 4) + 2 * rd, 2), ['v8'], k * 1024 + rd * 256, ('q', k))
    if k >= 3:
        R.lg.wait([('q', k - 3)])
        p(f'v_mfma_f32_32x32x16_bf16 {vr(AQ, 16)}, {vr(36 + 4 * ((k - 3) % 4), 4)}, {vr(XQ[k - 3], 4)}, {"0" if k == 3 else vr(AQ, 16)}')
    if OPT['mallat'] == 9 and k in (8, 10, 12, 14, 16):
        burst[(k - 8) // 2]()
    if k == 4:
        p(f'ds_write_b32 v11, v{CSA} offset:{S_CSQ}')
        R.lg.issue('w')
        signal(R, H_CSQ, 'v118', 'v119')
    if k == 20:
        lwait(R, H_CSQ, 'v118', 'v13')
    if k in (21, 23, 25, 27):
        q = (k - 21) // 2
        R.lg.room(4)
        for g in range(4):
            p(f'ds_read_b128 {vr((CSA if q == 0 else 68 + 16 * ((q - 1) % 2)) + 4 * g, 4)}, v12 offset:{S_CSQ + 128 * q + 32 * g}')
            R.lg.issue(('p', q))
    if k in (25, 27, 29):
        q = (k - 23) // 2
        R.lg.wait([('p', q)])
        for i in range(16):
            p(f'v_add_f32 v{CSA + i}, v{CSA + i}, v{68 + 16 * ((q - 1) % 2) + i}')
c = 0.25 * LOG2E
p(f'v_mul_f32 v108, {fhex(c)}, v108')
p(f'v_mul_f32 v109, {fhex(c)}, v109')
for i in range(16):
    p(f'v_mul_f32 v{CSA + i}, v109, v{CSA + i}')
p(f's_lshl_b32 {T[0]}, {s_tt}, 10')
p(f's_add_u32 {T[0]}, {T[0]}, {L_QX}')
p(f'v_add_u32 v14, {T[0]}, v2')
for i in range(16):
    p(f'v_fma_f32 v{AQ + i}, v{AQ + i}, v108, -v{CSA + i}')
for r in range(4):
    p(f'v_cvt_pk_bf16_f32 v{40 + r}, v{AQ + 2 * r}, v{AQ + 2 * r + 1}')
p('ds_write_b128 v14, v[40:43]')
for r in range(4):
    p(f'v_cvt_pk_bf16_f32 v{VQ + r}, v{AQ + 8 + 2 * r}, v{AQ + 8 + 2 * r + 1}')
signal(R, H_Q, 'v118', 'v119')
R.dstamp('P2', 'epi')
lwait(R, C_KV, 'v118', 'v12')
R.stamp('B2')
R.dstamp('P2', 'B2')


def wo_piece(q):
    def f():
        p(f's_lshl_b32 {T[6]}, {s_q}, 14')
        p(f's_add_u32 m0, {T[6]}, {L_WO + q * 1024}')
        p(f's_lshl_b32 {T[6]}, {s_q}, 17')
        p(f's_add_u32 {T[6]}, {T[6]}, {q * 8192}')
        p(f'buffer_load_dwordx4 v115, {sWO}, {T[6]} offen lds')
        R.vm.issue('wo')
    return f


def wo_done():
    R.vm.wait(['wo'])
    signal(R, H_WO, 'v118', 'v119')


wo = [wo_piece(q) for q in range(16)]
if OPT['mallat'] == 11:
    lwait(R, C_FLAG, 'v118', 'v12')
    for g in [burst[1], burst[0], burst[3], burst[4]] + ([burst[2]] if OPT['m2early'] else []):
        g()
if OPT['wopos'] == 0:
    for g in wo:
        g()
    wo = []
att_2a(R)
if OPT['wopos'] == 1 or OPT['mallat'] == 10:
    lwait(R, C_HALO, 'v118', 'v12')
if OPT['mallat'] == 10:
    for g in [burst[1], burst[0], burst[3], burst[4]] + ([burst[2]] if OPT['m2early'] else []):
        g()
if not OPT['wolate']:
    for g in wo:
        g()
    wo = []
R.dstamp('P2', 'pref')
R.bar()
R.stamp('B3')
R.dstamp('P2', 'B3')
p(f'v_mov_b32 v10, {S_MODE}')
p('ds_read_b32 v10, v10')
p('s_waitcnt lgkmcnt(0)')
p(f'v_readfirstlane_b32 {s_mode}, v10')


def w2_groups(lst, regs=None):
    lst = list(lst)
    while len(lst) % 4:
        lst.append(lst[-1])
    gs = []
    if OPT.get('x_now2'):
        return [lambda: None] * (len(lst) // 2)
    for n in range(len(lst) // 4):
        ks = lst[4 * n:4 * n + 4]
        src = [k * 16 * 1024 for k in ks]
        dst = [w2_pos[k] for k in ks]

        def sel(reg, vals):
            d = vals[1] - vals[0]
            if all(vals[q] == vals[0] + q * d for q in range(4)):
                p(f's_mul_i32 {reg}, {s_q}, {d}')
                p(f's_add_u32 {reg}, {reg}, {vals[0]}')
            else:
                p(f's_mov_b32 {reg}, {vals[0]}')
                for q in range(1, 4):
                    p(f's_cmp_eq_u32 {s_q}, {q}')
                    p(f's_cselect_b32 {reg}, {vals[q]}, {reg}')

        def g0(src=src, dst=dst, n=n):
            sel(T[6], src)
            if regs is None:
                sel(T[7], dst)
                p(f's_mov_b32 m0, {T[7]}')
                p(f'buffer_load_dwordx4 v115, {sW2}, {T[6]} offen lds')
            else:
                p(f'buffer_load_dwordx4 {vr(regs[2 * n], 4)}, v115, {sW2}, {T[6]} offen')
            R.vm.issue(('w2', 2 * n))

        def g1(n=n):
            p(f's_add_u32 {T[6]}, {T[6]}, 8192')
            if regs is None:
                p(f's_add_u32 m0, {T[7]}, 1024')
                p(f'buffer_load_dwordx4 v115, {sW2}, {T[6]} offen lds')
            else:
                p(f'buffer_load_dwordx4 {vr(regs[2 * n + 1], 4)}, v115, {sW2}, {T[6]} offen')
            R.vm.issue(('w2', 2 * n + 1))
        gs += [g0, g1]
    return gs


p(f's_setprio {OPT["hprio"]}')
ex = ([touch_st] if OPT['m2at'] >= 2 else []) + ([burst[2]] if OPT['m2at'] == 3 else []) + wo + late[:8] + [wo_done] + late[8:] + ([burst[2]] if OPT['mallat'] >= 10 and not OPT['m2early'] else [])
sl = [lambda: None] * 44
for i, g in enumerate(ex):
    sl[i * 44 // len(ex)] = g
ex = sl
att_2b(R, ex, lambda: None)
p('s_setprio 0')
p('v_min_u32 v10, 47, v1')
p('v_lshlrev_b32 v11, 2, v10')
p(f's_mul_i32 {T[0]}, {s_c}, 192')
p(f'buffer_load_dword v12, v11, {sB1}, {T[0]} offen')
R.vm.issue('b1')
p(f's_mul_i32 {T[0]}, {s_q}, {8 * 3072}')
p(f's_add_u32 {T[0]}, {T[0]}, {BASE}')
p(f'v_add_u32 v3, {T[0]}, v2')
R.bar()
for n in range(24):
    p(f'ds_write_b128 v3, {vr(STG[n], 4)} offset:{n * 1024}')
    if n % 4 == 3:
        p('s_waitcnt lgkmcnt(4)')
LST = [120 + 4 * i for i in range(28)]
gl = w2_groups(late_order, LST)
NC = OPT['w2c']
R.vm.wait(['b1'])
p('v_lshlrev_b32 v14, 16, v12')
p('v_and_b32 v15, 0xffff0000, v12')
p('v_lshlrev_b32 v11, 3, v10')
p(f'ds_write_b64 v11, v[14:15] offset:{S_B1}')
p('v_mov_b32 v16, 0')
p('v_mov_b32 v17, 1')
signal(R, H_W1, 'v16', 'v17')
R.dstamp('P3', 'w1wr')
tr96_lane('v3')
p(f's_min_u32 {T[1]}, {s_q}, 2')
p(f's_lshl_b32 {T[1]}, {T[1]}, 6')
p(f'v_add_u32 v3, {T[1]}, v3')
p('v_add_u32 v4, 0x10000, v3')
p('v_mov_b32 v18, 0x3f803f80')
p('v_mov_b32 v100, 0')
p('v_mov_b32 v101, 0')
lwait(R, C_OIS, 'v16', 'v10')
if OPT['m2at'] == 2:
    p('v_min_u32 v19, 11, v1')
    p('v_lshlrev_b32 v19, 7, v19')
    p(f's_lshl_b32 {T[7]}, s2, 2')
    p(f's_add_u32 {T[7]}, {T[7]}, {s_q}')
    p(f's_mul_i32 {T[7]}, {T[7]}, 1536')
    p(f'buffer_load_dword v254, v19, {sW2}, {T[7]} offen')
for g in w2_groups(W2_REG) + gl[:NC]:
    g()
lwait(R, H_W1, 'v16', 'v10')
for s0 in range(0, 0 if OPT.get('x_nocs') else 36, 4):
    if s0 < 32:
        for s in range(s0, s0 + 4):
            for rd in range(2):
                dsr(R, 'ds_read_b64_tr_b16', vr(20 + 16 * ((s0 // 4) % 2) + 4 * (s % 4) + 2 * rd, 2), ['v3', 'v4'], w1_addr(s) + rd * 1536, ('c', s0))
    if s0 >= 4:
        R.lg.wait([('c', s0 - 4)])
        for r in range(16):
            p(f'v_dot2c_f32_bf16 v{100 + (r & 1)}, v{20 + 16 * ((s0 // 4 - 1) % 2) + r}, v18')
p('v_add_f32 v100, v100, v101')
half_sum('v100', 'v101')
p('v_and_b32 v10, 31, v1')
p('v_lshlrev_b32 v10, 2, v10')
p(f's_lshl_b32 {T[1]}, {T[1]}, 1')
p(f'v_add_u32 v11, {T[1]}, v10')
p(f'ds_write_b32 v11, v100 offset:{S_CS1}')
p(f's_lshl_b32 {T[1]}, {s_rb}, 2')
p(f's_add_u32 {T[1]}, {T[1]}, {s_q}')
p(f's_lshl_b32 {T[2]}, {T[1]}, 7')
p(f's_add_u32 {T[2]}, {T[2]}, {FH}')
p('v_and_b32 v12, 15, v1')
p('v_lshlrev_b32 v12, 2, v12')
p(f'v_add_u32 v12, {T[2]}, v12')
p(f's_lshl_b32 {T[1]}, {T[1]}, 12')
p(f's_add_u32 {T[1]}, {T[1]}, {STB}')
p('v_lshrrev_b32 v13, 5, v1')
p('v_lshlrev_b32 v13, 11, v13')
p('v_lshl_add_u32 v13, v10, 1, v13')
poll(R, 'v12', 'v11', slow=True)
for q in range(8):
    p(f'buffer_load_dwordx2 {vr(20 + 2 * q, 2)}, v13, {sWS}, {T[1]} offen offset:{q * 256} sc1')
p(f's_lshl_b32 {T[0]}, {s_q}, 7')
p(f'v_add_u32 v10, {T[0]}, v10')
p('s_waitcnt vmcnt(0)')
for q in range(1, 8):
    p(f'v_add_f32 v20, v20, v{20 + 2 * q}')
    p(f'v_add_f32 v21, v21, v{21 + 2 * q}')
half_sum('v20', 'v11')
half_sum('v21', 'v11')
ln_finish('v20', 'v21', 'v22', 'v23')
p('v_sub_f32 v23, 0, v23')
p(f'ds_write_b32 v10, v22 offset:{S_R}')
p(f'ds_write_b32 v10, v23 offset:{S_M}')
signal(R, H_TAB, 'v16', 'v17')
R.dstamp('P3', 'cs1')
R.dstamp('P4', 'cs1')
p(f's_lshl_b32 {T[0]}, {s_q}, 11')
p(f's_add_u32 {T[0]}, {T[0]}, {BASE}')
p(f'v_add_u32 v3, {T[0]}, v2')
p('v_add_u32 v4, 0x10000, v3')
lwait(R, C_ISS, 'v16', 'v10')
R.dstamp('P4', 'iss')
for g in w2_groups(W2_P1):
    g()
R.vm.q = ['w2p1' for _ in R.vm.q]
for g in gl[NC:NC + 8]:
    g()
R.vm.wait(['w2p1'])
signal(R, H_P1, 'v16', 'v17')
for g in gl[NC + 8:]:
    g()
R.dstamp('P4', 'late')
lwait(R, C_END, 'v16', 'v10')
for n in range(28):
    R.vm.wait([('w2', n)])
    off = (n // 2) * 8192 + (n % 2) * 1024
    p(f'ds_write_b128 v{3 + off // 65536}, {vr(LST[n], 4)} offset:{off % 65536}')
    if n % 4 == 3:
        p('s_waitcnt lgkmcnt(4)')
signal(R, H_LATE, 'v16', 'v17')
R.dstamp('P5', 'latedone')
L7 = p.newlabel('L_n7')
Le = p.newlabel('L_ep')
Led = p.newlabel('L_epd')
p('s_cmp_lg_u32 s2, 0')
p(f's_cbranch_scc1 {L7}')
p(f's_cmp_lg_u32 {s_w}, 7')
p(f's_cbranch_scc1 {L7}')
p('v_lshrrev_b32 v12, 2, v1')
p('v_lshlrev_b32 v12, 7, v12')
p('v_and_b32 v13, 3, v1')
p('v_lshl_add_u32 v12, v13, 4, v12')
p(f's_mov_b32 {T[0]}, 0')
p.label(Le)
for q in range(16):
    p(f's_mov_b32 {T[1]}, {RST + 2048 * q}')
    p(f'buffer_load_dword v{20 + q}, v12, {sWS}, {T[1]} offen offset:4 sc1')
p('s_waitcnt vmcnt(0)')
p('s_mov_b64 vcc, 0')
for q in range(16):
    p(f'v_cmp_ne_u32 s[90:91], {s_tag}, v{20 + q}')
    p('s_or_b64 vcc, vcc, s[90:91]')
p(f's_cbranch_vccz {Led}')
p(f's_add_u32 {T[0]}, {T[0]}, 1')
p(f's_cmp_lt_u32 {T[0]}, {OPT["spin"]}')
p(f's_cbranch_scc1 {Le}')
p.label(Led)
p('v_mov_b32 v10, 0')
p(f'v_mov_b32 v11, {s_tag}')
p('s_mov_b64 exec, 1')
p(f'buffer_store_dword v11, v10, {sWS}, 0 offen sc1')
p('s_mov_b64 exec, -1')
p.label(L7)
dump_stamps(R)
p.label('L_end')
p('s_endpgm')
while tail:
    tail.pop(0)()
tail = []

R = CW
p.label('L_CW')
if OPT['small']:
    st = OPT['small']
    p('s_waitcnt lgkmcnt(0)')
    p(f's_lshl_b32 {T[0]}, s2, 2')
    p(f's_add_u32 {T[0]}, {T[0]}, {s_q}')
    p(f's_mul_i32 {T[0]}, {T[0]}, 1376')
    for lo in (72, 76):
        p(f's_add_u32 s90, s{lo}, {T[0]}')
        p(f's_addc_u32 s91, s{lo + 1}, 0')
        for o in sorted(set(list(range(0, 1376, st)) + [1372])):
            p(f's_load_dword s92, s[90:91], {o}')
srds_w()
common_setup(R)


def tlbwarm():
    if not OPT['tlbwarm']:
        return
    p('v_and_b32 v250, 7, v1')
    p('v_min_u32 v250, 5, v250')
    p('v_lshlrev_b32 v250, 21, v250')
    p('v_mov_b32 v251, 0')
    p(f'buffer_load_dword v252, v250, {sWS}, 0 offen offset:2048 sc1')
    for k, d in enumerate((sWO, sW1, sW2, sOUT, sB1, sB2)):
        p(f'buffer_load_dword v{254 + (k & 1)}, v251, {d}, 0 offen')
    for _ in range(7):
        R.vm.issue('t')


p(f's_mov_b32 s65, {T[5]}')
make_masks()
p(f's_and_b32 {s_q}, {s_w}, 3')
x_lane('v9')
p(f's_lshl_b32 {T[0]}, {s_rb}, 11')
p(f's_add_u32 {T[0]}, {T[0]}, {RST}')
p(f'v_lshlrev_b32 v8, 4, v10')
p(f'v_add_u32 v8, {T[0]}, v8')
p('v_and_b32 v7, 31, v1')
p('v_lshlrev_b32 v7, 3, v7')
p(f's_lshl_b32 {T[1]}, {s_team}, 8')
p(f's_add_u32 {T[1]}, {T[1]}, {ST}')
p(f'v_add_u32 v7, {T[1]}, v7')
tr_kv_lane('v19')
XF = [20, 36]
WF = [52, 100]
AK, AV = 212, 228
GR = 148


def p1_addrs(ch):
    slot = RING + (ch % NSLOT) * SLOT
    p(f'v_add_u32 v10, {slot}, v9')
    for ks in range(1, 4):
        p(f'v_xor_b32 v{10 + ks}, {32 * ks}, v10')
    p(f'v_add_u32 v14, {slot + 16384}, v19')
    p('v_xor_b32 v15, 64, v14')


def p1_reads(ch):
    b = ch & 1
    out = []
    for ks in range(4):
        out.append(f'ds_read_b128 {vr(XF[b] + 4 * ks, 4)}, v{10 + ks}')
        for sec in (0, 1):
            for rd in range(2):
                out.append(f'ds_read_b64_tr_b16 {vr(WF[b] + 16 * sec + 4 * ks + 2 * rd, 2)}, v{14 + sec} offset:{ks * 2048 + rd * 512}')
    return out


def p1_mfmas(ch):
    a = ch & 1
    out = []
    for ks in range(4):
        first = ch == 0 and ks == 0
        x = vr(XF[a] + 4 * ks, 4)
        c = lambda r: '0' if first else vr(r, 16)
        out.append(f'v_mfma_f32_32x32x16_bf16 {vr(AK, 16)}, {vr(WF[a] + 4 * ks, 4)}, {x}, {c(AK)}')
        out.append(f'v_mfma_f32_32x32x16_bf16 {vr(AV, 16)}, {x}, {vr(WF[a] + 16 + 4 * ks, 4)}, {c(AV)}')
    return out


def weave(R, mf, lds, extra=(), per=3):
    lds = list(lds)
    extra = list(extra)
    n = 0

    def emit_lds(k):
        nonlocal n
        for _ in range(k):
            if not lds:
                return
            if n and n % 7 == 0 and n >= 14:
                p('s_waitcnt lgkmcnt(7)')
            p(lds.pop(0))
            n += 1
    for i, m in enumerate(mf):
        p(m)
        emit_lds(per)
        if extra and i % 3 == 2:
            extra.pop(0)()
    emit_lds(99)
    for g in extra:
        g()


def kv_ids():
    p(f's_lshl_b32 {T[2]}, {s_rb}, 4')
    p(f's_add_u32 {T[2]}, {T[2]}, {s_c}')
    p(f's_lshl_b32 {T[4]}, {T[2]}, 5')
    p(f's_add_u32 {T[4]}, {T[4]}, {s_w}')
    p(f's_lshl_b32 {T[4]}, {T[4]}, 2')
    p(f's_add_u32 {T[4]}, {T[4]}, {FKV}')
    p(f's_lshl_b32 {T[5]}, {s_w}, 12')
    p(f's_add_u32 {T[5]}, {T[5]}, {s_area}')
    p(f's_add_u32 {T[2]}, {T[5]}, {32 * 16384}')


def kv_clear():
    for r in range(4):
        p(f'v_mov_b32 v{244 + r}, -1')
    for q in range(4):
        p(f'buffer_store_dwordx4 v[244:247], v2, {sWS}, {T[2]} offen offset:{q * 1024} sc1')
        R.vm.issue('st')


def kv_cleared():
    flag_store(R, T[4], 'v248', 'v249', moded=False)


kv_ids()
if OPT['kvtag'] and OPT['clrat'] == -1:
    kv_clear()
p(f's_cmp_ge_u32 {s_rb}, 1')
p(f's_cselect_b32 {T[0]}, {16 * 128}, 0')
p(f's_sub_u32 {T[0]}, {T[4]}, {T[0]}')
p(f's_cmp_ge_u32 {s_rb}, 2')
p(f's_cselect_b32 {T[1]}, {2 * 16 * 128}, 0')
p(f's_sub_u32 {T[1]}, {T[4]}, {T[1]}')
p(f'v_mov_b32 v6, {T[0]}')
p(f'v_mov_b32 v11, {T[1]}')
p('v_and_b32 v12, 1, v1')
p('v_cmp_eq_u32 vcc, 1, v12')
p('v_cndmask_b32 v6, v6, v11, vcc')
row_stats(R)
p1_addrs(0)
R.stamp('start')
CSQ, CSK, RR, MM, CSV = 52, 68, 20, 84, 152
for ch in range(8):
    p('s_waitcnt lgkmcnt(0)')
    if ch >= 4:
        R.dstamp('P1', f'pre{ch}')
    R.bar()
    R.dstamp('P1', f'bar{ch}')
    extra = []
    if ch == 5:
        def ld():
            p(f'buffer_load_dwordx4 {vr(GR, 4)}, v8, {sWS}, 0 offen sc1')
            p(f'buffer_load_dwordx2 v[156:157], v7, {sWS}, 0 offen sc1')
            R.vm.issue('gr')
            R.vm.issue('gr')
            if OPT['fkvt']:
                p(f'buffer_load_dword v253, v6, {sWS}, 0 offen sc1')
                R.vm.issue('t')

        extra = [ld]
    if ch == 0:
        extra = [tlbwarm]
    if OPT.get('probe') and ch == 2:
        def probe():
            p(f'v_mov_b32 v250, {OPT["probe"]}')
            if OPT.get('probe_spread'):
                p(f's_lshl_b32 {T[7]}, s2, 9')
                p(f'v_add_u32 v250, {T[7]}, v250')
            d = {0: sWS, 1: sWO, 2: sW1, 3: sW2, 4: sOUT, 5: sB1, 6: sB2}[OPT.get('probe_buf', 0)]
            p(f'buffer_load_dword v252, v250, {d}, 0 offen')
            R.vm.issue('t')
        extra = extra + [probe]
    if OPT['mallat'] == 20 + ch:
        def cw_burst():
            p('v_min_u32 v17, 11, v1')
            p('v_lshlrev_b32 v17, 7, v17')
            for g in (warm_mall(R, sW1), warm_wo(R), touch_fl) + ((warm_mall(R, sW2), touch_st) if OPT['m2at'] == 0 else ()):
                g()
        extra = extra + [cw_burst]
    if ch == OPT['clrat'] and OPT['kvtag']:
        extra = extra + [kv_clear]
    if ch == OPT['clrdone'] and OPT['kvtag']:
        extra = [kv_cleared]
    weave(R, p1_mfmas(ch - 1) if ch else [], p1_reads(ch), extra)
    if ch < 7:
        p1_addrs(ch + 1)
Lg = p.newlabel('L_gr')
Lgx = p.newlabel('L_grx')
R.vm.wait(['gr'])
p(f's_mov_b32 {T[0]}, 0')
p.label(Lg)
p(f'v_cmp_ne_u32 vcc, {s_tag}, v{GR + 1}')
p(f'v_cmp_ne_u32 s[90:91], {s_tag}, v{GR + 3}')
p('s_or_b64 vcc, vcc, s[90:91]')
p(f'v_cmp_ne_u32 s[90:91], {s_tag}, v156')
p('s_or_b64 vcc, vcc, s[90:91]')

p(f's_cbranch_vccnz {Lgx}')
Lgd = p.newlabel('L_grd')
p.label(Lgd)


def gr_retry():
    p.label(Lgx)
    p(f'buffer_load_dwordx4 {vr(GR, 4)}, v8, {sWS}, 0 offen sc1')
    p(f'buffer_load_dwordx2 v[156:157], v7, {sWS}, 0 offen sc1')
    p('s_waitcnt vmcnt(0)')
    p(f's_add_u32 {T[0]}, {T[0]}, 1')
    p(f's_cmp_lt_u32 {T[0]}, {OPT["spin"]}')
    p(f's_cbranch_scc1 {Lg}')
    p(f's_branch {Lgd}')


tail.append(gr_retry)
p(f'v_readfirstlane_b32 {T[1]}, v157')
p(f'v_cmp_ne_u32 vcc, {T[1]}, v157')
p('s_cmp_eq_u64 vcc, 0')
p(f's_cselect_b32 {s_mode}, 1, 0')
if OPT['force_safe']:
    p(f's_mov_b32 {s_mode}, 0')
p(f'v_mov_b32 v10, {S_MODE}')
p(f'v_mov_b32 v11, {s_mode}')
p('ds_write_b32 v10, v11')
p('v_and_b32 v10, 31, v1')
p('v_lshlrev_b32 v10, 2, v10')
p(f's_lshl_b32 {T[0]}, {s_tt}, 7')
p(f'v_add_u32 v11, {T[0]}, v10')
p(f'ds_write_b32 v11, v{GR} offset:{S_R}')
p(f'ds_write_b32 v11, v{GR + 2} offset:{S_M}')
p('v_lshrrev_b32 v12, 5, v1')
p('v_lshlrev_b32 v12, 4, v12')
p(f'v_add_u32 v13, {T[0]}, v12')
p('s_waitcnt lgkmcnt(0)')
R.bar()
R.stamp('B1')
R.dstamp('P2', 'B1')
lds = [f'ds_read_b128 {vr(CSK + 4 * g, 4)}, v12 offset:{S_CS + 128 + 32 * g}' for g in range(4)]
lds += [f'ds_read_b32 v{CSV}, v10 offset:{S_CS + 256}']
lds += [f'ds_read_b128 {vr(MM + 4 * g, 4)}, v13 offset:{S_M + 32 * g}' for g in range(4)]
lds += [f'ds_read_b128 {vr(RR + 4 * g, 4)}, v13 offset:{S_R + 32 * g}' for g in range(4)]


def pub_addrs():
    p(f's_lshl_b32 {T[0]}, {s_tt}, 11')
    p(f's_add_u32 {T[1]}, {T[0]}, {L_K + 8 * 2048}')
    p(f'v_add_u32 v15, {T[1]}, v2')
    p(f's_mul_i32 {T[0]}, {s_tt}, {2 * VSTR}')
    p(f's_add_u32 {T[0]}, {T[0]}, {L_V + 16 * VSTR}')
    p(f'v_add_u32 v16, {T[0]}, v2')


mf = p1_mfmas(7)
mf = mf[0::2] + mf[1::2]


def st_pair(reg, off):
    def f():
        if OPT['kvtag']:
            for r in range(0, 8, 2):
                p(f'v_min_u32 v{reg + r}, -2, v{reg + r}')
        for g in range(2):
            p(f'buffer_store_dwordx4 {vr(reg + 4 * g, 4)}, v2, {sWS}, {T[2]} offen offset:{off + g * 1024} sc1')
            R.vm.issue('st')
    return f


PKK, PKV = 244, 52
for x in lds[:9]:
    p(x)
p(mf[0])
for x in lds[9:13]:
    p(x)
p(mf[1])
pub_addrs()
p(mf[2])
p('s_waitcnt lgkmcnt(9)')
for i in range(8):
    p(f'v_mul_f32 v{CSK + i}, v{GR + 2}, v{CSK + i}')
p(mf[3])
for i in range(8, 16):
    p(f'v_mul_f32 v{CSK + i}, v{GR + 2}, v{CSK + i}')
p(mf[4])
p('s_waitcnt lgkmcnt(4)')
for i in range(8):
    p(f'v_mul_f32 v{MM + i}, v{CSV}, v{MM + i}')
p(mf[5])
for i in range(8, 16):
    p(f'v_mul_f32 v{MM + i}, v{CSV}, v{MM + i}')
kops = [f'v_fma_f32 v{AK + i}, v{AK + i}, v{GR}, -v{CSK + i}' for i in range(16)]
kops += [f'v_cvt_pk_bf16_f32 v{PKK + r}, v{AK + 2 * r}, v{AK + 2 * r + 1}' for r in range(8)]
for m in (6, 7):
    p(mf[m])
    for x in kops[8 * (m - 6):8 * (m - 5)]:
        p(x)
for x in kops[16:]:
    p(x)
st_pair(PKK, 0)()
p('s_waitcnt lgkmcnt(0)')
for i in range(16):
    p(f'v_fma_f32 v{AV + i}, v{AV + i}, v{RR + i}, -v{MM + i}')
for r in range(8):
    p(f'v_cvt_pk_bf16_f32 v{PKV + r}, v{AV + 2 * r}, v{AV + 2 * r + 1}')
st_pair(PKV, 2048)()
for g in range(2):
    p(f'ds_write_b128 v15, {vr(PKK + 4 * g, 4)} offset:{g * 1024}')
    p(f'ds_write_b128 v16, {vr(PKV + 4 * g, 4)} offset:{g * VSTR}')
p(f's_lshl_b32 {T[0]}, {s_tt}, 10')
p(f's_add_u32 {T[0]}, {T[0]}, {L_QX}')
p(f'v_add_u32 v12, {T[0]}, v2')
p('v_mov_b32 v102, 0')
p('v_mov_b32 v103, 1')
signal(R, C_KV, 'v102', 'v103')
att_addrs()
R.dstamp('P2', 'epi')
if not OPT['kvtag']:
    flag_store(R, T[4], 'v10', 'v11', moded=False)
signal(R, C_FLAG, 'v102', 'v103')
R.stamp('KVflag')
R.dstamp('P2', 'KVflag')
p('v_mov_b32 v13, v12')


def cw_2a():
    lwait(R, H_Q, 'v102', 'v10')
    lwait(R, C_KV, 'v102', 'v10')
    p(f'ds_read_b128 {vr(VQ, 4)}, v13')
    att_2a(R)


if OPT['a_first']:
    cw_2a()
p(f's_add_u32 {T[3]}, {T[5]}, {16 * 16384}')
p(f'v_subrev_u32 v15, {8 * 2048}, v15')
p(f'v_subrev_u32 v16, {16 * VSTR}, v16')


def halo_loads():
    for d in (1, 2):
        for q in range(4):
            p(f'buffer_load_dwordx4 {vr(HALO + 16 * (2 - d) + 4 * q, 4)}, v2, {sWS}, {T[3] if d == 1 else T[5]} offen offset:{q * 1024} sc1')


if not OPT['kvtag']:
    poll(R, 'v6', 'v11')
else:
    p(f's_add_u32 {T[0]}, {T[3]}, 4080')
    p(f's_add_u32 {T[1]}, {T[5]}, 4080')
    p(f'v_mov_b32 v10, {T[0]}')
    p(f'v_mov_b32 v11, {T[1]}')
    p('v_and_b32 v12, 1, v1')
    p('v_cmp_eq_u32 vcc, 1, v12')
    p('v_cndmask_b32 v10, v10, v11, vcc')
    p(f'v_add_u32 v12, 1, v12')
    p(f'v_cmp_ge_u32 s[90:91], {s_rb}, v12')
    p('v_cmp_le_u32 vcc, 32, v1')
    p('v_cndmask_b32 v10, v10, v6, vcc')
    p('s_mov_b32 s91, 0')
    Lk = p.newlabel('L_kv')
    Lkx = p.newlabel('L_kvx')
    Lkd = p.newlabel('L_kvd')
    p(f's_mov_b32 {T[0]}, 0')
    p.label(Lk)
    p(f'buffer_load_dword v11, v10, {sWS}, 0 offen sc1')
    p('s_waitcnt vmcnt(0)')
    p('v_cmp_eq_u32 vcc, -1, v11')
    p('s_and_b64 vcc, vcc, s[90:91]')
    p(f'v_cmp_ne_u32 s[92:93], {s_tag}, v11')
    p('s_or_b32 vcc_hi, vcc_hi, s93')
    p(f's_cbranch_vccnz {Lkx}')
    p.label(Lkd)
    R.vm.reset()

    def kvx():
        p.label(Lkx)
        p(f's_add_u32 {T[0]}, {T[0]}, 1')
        p(f's_cmp_lt_u32 {T[0]}, {OPT["spin"]}')
        p(f's_cbranch_scc1 {Lk}')
        p(f's_branch {Lkd}')
    tail.append(kvx)
R.dstamp('P2', 'kvpoll')
halo_loads()
signal(R, C_HALO, 'v102', 'v103')
if OPT['m2at'] == 1:
    warm_mall(R, sW2)()
    touch_st()
NX = 2 if OPT['m2at'] == 1 else 0
if not OPT['a_first']:
    cw_2a()
XRES = 240
HRES = 248
p('v_and_b32 v10, 31, v1')
p(f's_lshl_b32 {T[0]}, {s_rs}, 1')
p(f's_add_u32 {s_tile}, {T[0]}, {s_t}')
p(f's_lshl_b32 {T[0]}, {s_tile}, 5')
p(f'v_add_u32 v10, {T[0]}, v10')
p('v_lshlrev_b32 v10, 10, v10')
p('v_lshrrev_b32 v11, 5, v1')
p('v_lshl_add_u32 v10, v11, 3, v10')
p(f's_lshl_b32 {T[0]}, {s_cb}, 7')
p(f's_lshl_b32 {T[1]}, {s_kh}, 6')
p(f's_add_u32 {T[0]}, {T[0]}, {T[1]}')
p(f'v_add_u32 v9, {T[0]}, v10')
Lz = p.newlabel('L_nohalo')
Lw = p.newlabel('L_halow')
Lzc = p.newlabel('L_zc')
p(f's_mov_b32 {T[0]}, 0')
p.label(Lzc)
p(f's_cmp_lt_u32 {s_rb}, 2')
p(f's_cbranch_scc1 {Lz}')
p.label(Lw)
if OPT['kvtag']:
    Lw2 = Lw


def zero_blk():
    L1 = p.newlabel('L_z1')
    p.label(Lz)
    p('s_waitcnt vmcnt(0)')
    for r in range(16):
        p(f'v_mov_b32 v{HALO + r}, 0')
    p(f's_cmp_eq_u32 {s_rb}, 1')
    p(f's_cbranch_scc1 {Lw}')
    for r in range(16):
        p(f'v_mov_b32 v{HALO + 16 + r}, 0')
    p(f's_branch {Lw}')


tail.append(zero_blk)
if OPT['kvtag']:
    Lv = p.newlabel('L_hv')
    Lvx = p.newlabel('L_hvx')
    Lvd = p.newlabel('L_hvd')
    p('s_waitcnt vmcnt(0)')
    p(f'v_max3_u32 v10, v{HALO}, v{HALO + 2}, v{HALO + 4}')
    p(f'v_max3_u32 v11, v{HALO + 6}, v{HALO + 8}, v{HALO + 10}')
    for k, r in enumerate(range(12, 32, 4)):
        p(f'v_max3_u32 v{10 + (k & 1)}, v{10 + (k & 1)}, v{HALO + r}, v{HALO + r + 2}')
    p('v_max_u32 v10, v10, v11')
    p('v_cmp_eq_u32 vcc, -1, v10')
    p(f's_cbranch_vccnz {Lvx}')
    p.label(Lvd)

    def hvx():
        p.label(Lvx)
        p(f's_add_u32 {T[0]}, {T[0]}, 1')
        p(f's_cmp_ge_u32 {T[0]}, {OPT["spin"]}')
        p(f's_cbranch_scc1 {Lvd}')
        halo_loads()
        p(f's_branch {Lzc}')
    tail.append(hvx)
for g in range(2):
    p(f's_waitcnt vmcnt({7 - g + NX})')
    p(f'ds_write_b128 v15, {vr(HALO + 16 + 4 * g, 4)} offset:{4 * 2048 + g * 1024}')
for g in range(2):
    p(f's_waitcnt vmcnt({5 - g + NX})')
    p(f'ds_write_b128 v16, {vr(HALO + 24 + 4 * g, 4)} offset:{(8 + g) * VSTR}')
R.vm.q = [('hb', g) for g in range(4)] + ['t'] * NX


def halo2(g):
    def f():
        R.vm.wait([('hb', g)])
        R.lg.room(1)
        if g < 2:
            p(f'ds_write_b128 v15, {vr(HALO + 4 * g, 4)} offset:{g * 1024}')
        else:
            p(f'ds_write_b128 v16, {vr(HALO + 4 * g, 4)} offset:{(g - 2) * VSTR}')
        R.lg.issue('hw')
    return f


def halo_done():
    p(f's_add_u32 {T[4]}, {T[4]}, 16')
    R.vm.q = []
    p(f'v_mov_b32 v10, {T[4]}')
    p(f'v_mov_b32 v11, {s_tag}')
    p('s_mov_b64 exec, 1')
    p(f'buffer_store_dword v11, v10, {sWS}, 0 offen sc1')
    p('s_mov_b64 exec, -1')
    for g in range(4):
        p(f'buffer_load_dwordx2 {vr(XRES + 2 * g, 2)}, v9, {sX}, 0 offen offset:{16 * g}')
        R.vm.issue('xres')


for g in range(4):
    halo2(g)()
halo_done()
tr64_lanes('v4', 'v5')
p(f's_lshl_b32 {T[0]}, {s_kh}, 6')
p(f'v_xor_b32 v4, {T[0]}, v4')
p(f'v_xor_b32 v5, {T[0]}, v5')
p(f's_lshl_b32 {T[0]}, {s_kh}, 15')
p(f's_add_u32 {T[0]}, {T[0]}, {L_WO}')
p(f'v_add_u32 v6, {T[0]}, v4')
p(f'v_add_u32 v7, {T[0]}, v5')
p('s_waitcnt lgkmcnt(0)')
R.dstamp('P2', 'halo')
R.bar()
R.stamp('B3')
R.dstamp('P2', 'B3')
WOF, OF, ACC3 = 16, 144, 208


def wo_reads(lo, hi):
    for s in range(lo, hi):
        for nt in range(2):
            for rd in range(2):
                p(f'ds_read_b64_tr_b16 {vr(WOF + 8 * s + 4 * nt + 2 * rd, 2)}, v{6 + nt} offset:{s * 2048 + rd * 1024}')
        if s % 2 == 1:
            p('s_waitcnt lgkmcnt(4)')


def cw_wo():
    p('v_mov_b32 v102, 0')
    lwait(R, H_WO, 'v102', 'v10')
    wo_reads(0, 8)


att_2b(R, [], cw_wo)
p('s_setprio 2')
wo_reads(8, 16)
p('v_and_b32 v8, 15, v1')
p('v_lshlrev_b32 v8, 2, v8')
p(f's_lshl_b32 {T[0]}, {s_tile}, 1')
p(f's_add_u32 {T[0]}, {T[0]}, {s_kh}')
p(f's_lshl_b32 {T[1]}, {s_rb}, 18')
p(f's_lshl_b32 {T[2]}, {s_kh}, 17')
p(f's_add_u32 {T[1]}, {T[1]}, {T[2]}')
p(f's_and_b32 {T[2]}, {s_tile}, 3')
p(f's_lshl_b32 {T[2]}, {T[2]}, 12')
p(f's_add_u32 {T[1]}, {T[1]}, {T[2]}')
p(f's_lshl_b32 {T[0]}, {T[0]}, 6')
p(f's_add_u32 {T[0]}, {T[0]}, {FO}')
p(f'v_add_u32 v10, {T[0]}, v8')
for g in range(4):
    for k in range(2):
        x = XRES + 2 * g + k
        p(f'v_lshlrev_b32 v{ACC3 + 4 * g + 2 * k}, 16, v{x}')
        p(f'v_and_b32 v{ACC3 + 4 * g + 2 * k + 1}, 0xffff0000, v{x}')
p('s_waitcnt lgkmcnt(0)')
R.bar()
R.dstamp('P3', 'B5')
poll(R, 'v10', 'v11')
R.stamp('Opoll')
R.dstamp('P3', 'Opoll')


def o_load(s):
    if s % 2 == 0:
        p(f's_add_u32 {T[2]}, {T[1]}, {AREA + (s // 2) * 16384}')
    p(f'buffer_load_dwordx4 {vr(OF + 4 * s, 4)}, v2, {sWS}, {T[2]} offen offset:{(s % 2) * 1024} sc1')
    R.vm.issue(('o', s))


def xchg_addrs(area):
    p(f's_lshl_b32 {T[0]}, {s_w}, 12')
    p(f's_add_u32 {T[0]}, {T[0]}, {area}')
    p(f'v_add_u32 v10, {T[0]}, v2')
    p(f's_xor_b32 {T[0]}, {s_w}, 2')
    p(f's_lshl_b32 {T[0]}, {T[0]}, 12')
    p(f's_add_u32 {T[0]}, {T[0]}, {area}')
    p(f'v_add_u32 v11, {T[0]}, v2')


def xchg_finish(R, acc, dst, pair=False):
    if pair:
        signal(R, X_P0, 'v14', 'v13')
        lwait(R, X_P0, 'v14', 'v15', n=2)
    else:
        p('s_waitcnt lgkmcnt(0)')
        R.bar()
    for g in range(4):
        p(f'ds_read_b128 {vr(dst + 4 * g, 4)}, v11 offset:{g * 1024}')
    for g in range(4):
        p(f's_waitcnt lgkmcnt({3 - g})')
        for i in range(4):
            p(f'v_add_f32 v{dst + 4 * g + i}, v{dst + 4 * g + i}, v{acc + 4 * g + i}')
    R.lg.reset()


TAILN = 5
AH = OPT['aho']
for s in range(AH):
    o_load(s)
xchg_addrs(L_HI)
p('v_mov_b32 v12, 0')
p('v_mov_b32 v13, 1')
p(f's_lshl_b32 {T[0]}, {s_t}, 2')
p(f'v_mov_b32 v14, {T[0]}')
seq3 = [(s, nt) for s in range(16 - TAILN) for nt in (1, 0)] + [(s, 1) for s in range(16 - TAILN, 16)] + [(s, 0) for s in range(16 - TAILN, 16)]
no = AH
for k, (s, nt) in enumerate(seq3):
    R.vm.wait([('o', s)])
    p(f'v_mfma_f32_32x32x16_bf16 {vr(ACC3 + 16 * nt, 16)}, {vr(WOF + 8 * s + 4 * nt, 4)}, {vr(OF + 4 * s, 4)}, {"0" if s == 0 and nt == 1 else vr(ACC3 + 16 * nt, 16)}')
    if no < 16:
        o_load(no)
        no += 1
        if no == 16:
            signal(R, C_OIS, 'v12', 'v13')
    g = k - (len(seq3) - 4)
    if g >= 0:
        p(f'ds_write_b128 v10, {vr(ACC3 + 16 + 4 * g, 4)} offset:{g * 1024}')
R.dstamp('P3', 'loop')
xchg_finish(R, ACC3, 16, pair=True)
R.dstamp('P3', 'xchg')
for r in range(8):
    p(f'v_cvt_pk_bf16_f32 v{HRES + r}, v{16 + 2 * r}, v{16 + 2 * r + 1}')
p(f's_lshl_b32 {T[0]}, {s_cb}, 1')
p(f's_add_u32 {T[0]}, {T[0]}, {s_kh}')
p(f's_lshl_b32 {T[3]}, {s_tile}, 4')
p(f's_add_u32 {T[3]}, {T[3]}, {T[0]}')
p(f's_add_u32 {T[1]}, {T[5]}, 2048')
moded_stores(R, [f'buffer_store_dwordx4 {vr(HRES, 4)}, v2, {sWS}, {T[1]} offen',
                 f'buffer_store_dwordx4 {vr(HRES + 4, 4)}, v2, {sWS}, {T[1]} offen offset:1024'], OPT['hsc1'])
p('v_mov_b32 v18, 0x3f803f80')
p('v_mov_b32 v12, 0')
p('v_mov_b32 v13, 0')
for r in range(8):
    p(f'v_dot2c_f32_bf16 v12, v{HRES + r}, v18')
    p(f'v_dot2c_f32_bf16 v13, v{HRES + r}, v{HRES + r}')
p(f's_lshl_b32 {T[2]}, {T[3]}, 8')
p(f's_add_u32 {T[2]}, {T[2]}, {STB}')
p(f's_lshl_b32 {T[3]}, {s_tile}, 5')
p(f's_add_u32 {T[3]}, {T[3]}, {T[0]}')
p(f's_lshl_b32 {T[3]}, {T[3]}, 2')
p(f's_add_u32 {T[3]}, {T[3]}, {FH}')
p('v_and_b32 v14, 31, v1')
p('v_lshlrev_b32 v14, 3, v14')
half_sum('v12', 'v10')
half_sum('v13', 'v10')
moded_stores(R, [f'buffer_store_dwordx2 v[12:13], v14, {sWS}, {T[2]} offen'], OPT['hsc1'])
p('v_mov_b32 v246, 0')
p('v_mov_b32 v247, 1')
lwait(R, H_W1, 'v246', 'v10')
HF, ACC4, W1B, STL = 16, 144, 192, 228
tr96_lane('v3')
p('v_add_u32 v6, 0x10000, v3')
W1A = ['v3', 'v6']


def w1_reads(s):
    b = W1B + 12 * (s % 3)
    for nt in range(3):
        for rd in range(2):
            dsr(R, 'ds_read_b64_tr_b16', vr(b + 4 * nt + 2 * rd, 2), W1A, w1_addr(s) + rd * 1536 + nt * 64, ('w1', s))


w1_reads(0)
w1_reads(1)
flag_store(R, T[3], 'v10', 'v11')
R.stamp('Hflag')
R.dstamp('P3', 'Hflag')
p(f's_lshl_b32 {T[0]}, {s_rb}, 2')
p(f's_add_u32 {T[7]}, {T[0]}, {s_w}')
p(f's_lshl_b32 {T[1]}, {s_rb}, 18')
p(f's_lshl_b32 {T[2]}, {s_kh}, 17')
p(f's_add_u32 {T[1]}, {T[1]}, {T[2]}')
p(f's_lshl_b32 {T[2]}, {s_t}, 12')
p(f's_add_u32 {T[1]}, {T[1]}, {T[2]}')
p(f's_lshl_b32 {T[0]}, {T[7]}, 7')
p(f's_add_u32 {T[0]}, {T[0]}, {FH}')
p(f'v_add_u32 v10, {T[0]}, v8')
poll(R, 'v10', 'v11')
R.stamp('Hpoll')
R.dstamp('P4', 'Hpoll')


def h_load(s):
    if s % 2 == 0:
        p(f's_add_u32 {T[2]}, {T[1]}, {AREA + (s >> 2) * 16384 + ((s >> 1) & 1) * 8192}')
    p(f'buffer_load_dwordx4 {vr(HF + 4 * s, 4)}, v2, {sWS}, {T[2]} offen offset:{2048 + (s % 2) * 1024} sc1')
    R.vm.issue(('h', s))


S0 = OPT['s0']
nh = 0
for s in range(OPT['ahh']):
    h_load(nh)
    nh += 1
p('v_lshrrev_b32 v13, 1, v14')
p(f's_lshl_b32 {T[0]}, {s_w}, 7')
p(f'v_add_u32 v13, {T[0]}, v13')
p('v_lshrrev_b32 v12, 5, v1')
p('v_lshlrev_b32 v12, 4, v12')
p(f's_lshl_b32 {T[4]}, {T[7]}, 4')
p(f's_add_u32 {T[4]}, {T[4]}, {s_c}')
p(f's_lshl_b32 {T[4]}, {T[4]}, 12')
p(f's_add_u32 {T[4]}, {T[4]}, {H1B}')
p(f's_lshl_b32 {T[3]}, {T[7]}, 5')
p(f's_add_u32 {T[3]}, {T[3]}, {s_c}')
p(f's_lshl_b32 {T[3]}, {T[3]}, 2')
p(f's_add_u32 {T[3]}, {T[3]}, {FH1}')


seq = [(s, nt) for s in range(S0) for nt in range(3)] + [(s, nt) for nt in range(3) for s in range(S0, 32)]
EB = [48, 16, 48] if S0 >= 16 else None


def epi_ops(nt):
    e = EB[nt]
    pk = STL + 8 * (nt & 1)
    ops = []
    r = e + 16
    for i in range(16):
        ops.append(f'v_fmac_f32 v{r + i}, v{ACC4 + 16 * nt + i}, v244')
        if i >= 1:
            ops.append(f'v_max_f32 v{r + i - 1}, 0, v{r + i - 1}')
        if i >= 2:
            ops.append(f'v_mul_f32 v{r + i - 2}, v{r + i - 2}, v{r + i - 2}')
        if i >= 4 and i % 2 == 0:
            ops.append(f'v_cvt_pk_bf16_f32 v{pk + (i - 4) // 2}, v{r + i - 4}, v{r + i - 3}')
    ops += [f'v_max_f32 v{r + 15}, 0, v{r + 15}', f'v_mul_f32 v{r + 14}, v{r + 14}, v{r + 14}', f'v_mul_f32 v{r + 15}, v{r + 15}, v{r + 15}',
            f'v_cvt_pk_bf16_f32 v{pk + 6}, v{r + 12}, v{r + 13}', f'v_cvt_pk_bf16_f32 v{pk + 7}, v{r + 14}, v{r + 15}']
    st = []
    for g in range(2):
        f = 2 * nt + g
        st.append(f'buffer_store_dwordx4 {vr(pk + 4 * g, 4)}, v2, {sWS}, {T[4] if f < 4 else T[5]} offen offset:{(f % 4) * 1024}')
    ops.append(st if nt == 2 else tuple(st))
    return ops


def emit_op(x):
    if isinstance(x, (list, tuple)):
        moded_stores(R, x, isinstance(x, tuple))
    else:
        p(x)


def e_reads(nt):
    R.lg.room(8)
    for g in range(4):
        p(f'ds_read_b128 {vr(EB[nt] + 4 * g, 4)}, v12 offset:{S_CS1 + 128 * nt + 32 * g}')
        R.lg.issue(('e', nt))
    for g in range(4):
        p(f'ds_read_b128 {vr(EB[nt] + 16 + 4 * g, 4)}, v12 offset:{S_B1 + 128 * nt + 32 * g}')
        R.lg.issue(('e', nt))


def e_comb(nt):
    return [f'v_fmac_f32 v{EB[nt] + 16 + i}, v245, v{EB[nt] + i}' for i in range(16)]


W2R = 16
PRE = 6
bufs = {}
for k in range(PRE):
    s, nt = seq[k]
    bufs[k] = W1B + 4 * k
valu = []
OPT_K = {0: (0,), 1: (0, 48), 2: (0, 24, 48, 72)}[OPT.get('pk', 0)]
for k, (s, nt) in enumerate(seq):
    if s < S0 and nt == 0 or s >= S0 and nt == 0:
        R.vm.wait([('h', s)])
    if k in OPT_K:
        R.dstamp('P4', f'k{k}')
    R.lg.wait([('w1', s) if k < PRE else ('w1', s, nt)])
    p(f'v_mfma_f32_32x32x16_bf16 {vr(ACC4 + 16 * nt, 16)}, {vr(bufs[k], 4)}, {vr(HF + 4 * s, 4)}, {"0" if s == 0 else vr(ACC4 + 16 * nt, 16)}')
    if k + PRE < len(seq):
        s2, nt2 = seq[k + PRE]
        b = W1B + 4 * ((k + PRE) % 9)
        bufs[k + PRE] = b
        for rd in range(2):
            dsr(R, 'ds_read_b64_tr_b16', vr(b + 2 * rd, 2), W1A, w1_addr(s2) + rd * 1536 + nt2 * 64, ('w1', s2, nt2))
    if nh < 32 and k % OPT['hrate'] == 1:
        h_load(nh)
        nh += 1
        if nh == 32:
            signal(R, C_ISS, 'v246', 'v247')
    if k == 3 * S0 - 6:
        p(f'ds_read_b32 v10, v246 offset:{H_TAB}')
        R.lg.issue(H_TAB)
    seg = (k - 3 * S0) // (32 - S0) if k >= 3 * S0 else -1
    pos = (k - 3 * S0) % (32 - S0)
    if k == 3 * S0:
        lwait(R, H_TAB, 'v246', 'v10', early=True)
        R.lg.room(2)
        p(f'ds_read_b32 v244, v13 offset:{S_R}')
        p(f'ds_read_b32 v245, v13 offset:{S_M}')
        R.lg.issue('rm')
        R.lg.issue('rm')
    if seg >= 0 and pos == (1 if seg == 0 else 32 - S0 - 5):
        e_reads(seg)
    if seg >= 0 and pos == (5 if seg == 0 else 32 - S0 - 3):
        R.lg.wait([('e', seg)])
        valu += e_comb(seg)
    if seg >= 1 and pos == 1:
        valu += epi_ops(seg - 1)
    n = -(-76 // (32 - S0 - 1)) if seg >= 1 else 4
    if OPT.get('x_noepi') and seg >= 0:
        valu = [x for x in valu if isinstance(x, (list, tuple))]
    for _ in range(n):
        if valu:
            emit_op(valu.pop(0))
for x in valu:
    emit_op(x)
R.dstamp('P4', 'loop')
p('v_lshrrev_b32 v10, 5, v1')
p('v_lshlrev_b32 v10, 3, v10')
p(f's_lshl_b32 {T[0]}, {s_cb}, 7')
p(f's_lshl_b32 {T[1]}, {s_kh}, 6')
p(f's_add_u32 {T[0]}, {T[0]}, {T[1]}')
for g in range(4):
    p(f'buffer_load_dwordx2 {vr(200 + 2 * g, 2)}, v10, {sB2}, {T[0]} offen offset:{16 * g}')
    R.vm.issue('b2')
for x in epi_ops(2):
    emit_op(x)
p(f's_lshl_b32 {T[0]}, {s_kh}, 13')
p(f's_add_u32 {T[0]}, {T[0]}, {L_X}')
p(f'v_add_u32 v6, {T[0]}, v4')
p(f'v_add_u32 v7, {T[0]}, v5')
for s in range(4):
    for nt in range(2):
        for rd in range(2):
            p(f'ds_read_b64_tr_b16 {vr(W2R + 8 * s + 4 * nt + 2 * rd, 2)}, v{6 + nt} offset:{s * 2048 + rd * 1024}')
    if s == 1:
        p('s_waitcnt lgkmcnt(4)')
R.lg.reset()
signal(R, C_END, 'v246', 'v247')
R.stamp('P4end')
R.dstamp('P4', 'epi')
ACC5, W2B, H1F, B2R = 48, 80, 136, 200
NWB = 7
NRING = 16
p(f's_mul_i32 {T[0]}, {s_kh}, {11 * 2048}')
p(f'v_add_u32 v6, {T[0]}, v4')
p(f'v_add_u32 v7, {T[0]}, v5')
p('v_add_u32 v6, 0x10000, v6')
p('v_add_u32 v7, 0x10000, v7')
p('v_add_u32 v12, 0x10000, v6')
p('v_add_u32 v13, 0x10000, v7')
p(f's_lshl_b32 {T[0]}, {s_kh}, 11')
p(f'v_add_u32 v4, {T[0]}, v4')
p(f'v_add_u32 v5, {T[0]}, v5')
p('v_add_u32 v14, 0x10000, v4')
p('v_add_u32 v15, 0x10000, v5')
for i in range(4, 15):
    assert w2_pos[42 + KORD[i]] - w2_rd_pos(i) == 11 * 2048
for i in range(15, 44):
    assert w2_pos[42 + KORD[i]] - w2_rd_pos(i) == 2048


def w2_reads(i):
    b = W2B + 8 * (i % NWB)
    for nt in (1, 0):
        if i < 15:
            bases = [None, 'v6' if nt == 0 else 'v7', 'v12' if nt == 0 else 'v13']
        else:
            bases = ['v4' if nt == 0 else 'v5', 'v14' if nt == 0 else 'v15']
        for rd in range(2):
            dsr(R, 'ds_read_b64_tr_b16', vr(b + 4 * nt + 2 * rd, 2), bases, w2_rd_pos(i) + rd * 1024, ('w2', i))


p('s_waitcnt lgkmcnt(0)')
R.lg.reset()
flag_store(R, T[3], 'v10', 'v11')
R.stamp('H1flag')
R.dstamp('P4', 'H1flag')
R.dstamp('P5', 'H1flag')
p('v_and_b32 v10, 7, v1')
p(f's_add_u32 {T[0]}, {s_kh}, 6')
p(f'v_min_u32 v10, {T[0]}, v10')
p('v_lshlrev_b32 v10, 2, v10')
p(f's_lshl_b32 {T[1]}, {s_tile}, 7')
p(f's_mul_i32 {T[0]}, {s_kh}, 28')
p(f's_add_u32 {T[1]}, {T[1]}, {T[0]}')
p(f's_add_u32 {T[1]}, {T[1]}, {FH1}')
p(f'v_add_u32 v10, {T[1]}, v10')
p(f's_lshl_b32 {T[1]}, {s_rb}, 18')
p(f's_mul_i32 {T[2]}, {s_kh}, {7 * 16384}')
p(f's_add_u32 {T[1]}, {T[1]}, {T[2]}')
p(f's_and_b32 {T[2]}, {s_tile}, 3')
p(f's_lshl_b32 {T[2]}, {T[2]}, 12')
p(f's_add_u32 {T[1]}, {T[1]}, {T[2]}')
p(f's_lshl_b32 {T[3]}, {s_tile}, 16')
p(f's_mul_i32 {T[2]}, {s_kh}, {7 * 4096}')
p(f's_add_u32 {T[3]}, {T[3]}, {T[2]}')
for g in range(4):
    for k in range(2):
        a = ACC5 + 4 * g + 2 * k
        p(f'v_lshlrev_b32 v{a}, 16, v{HRES + 2 * g + k}')
        p(f'v_and_b32 v{a + 1}, 0xffff0000, v{HRES + 2 * g + k}')
        p(f'v_lshlrev_b32 v{ACC5 + 16}, 16, v{B2R + 2 * g + k}')
        p(f'v_and_b32 v{ACC5 + 17}, 0xffff0000, v{B2R + 2 * g + k}')
        p(f'v_add_f32 v{a}, v{a}, v{ACC5 + 16}')
        p(f'v_add_f32 v{a + 1}, v{a + 1}, v{ACC5 + 17}')
poll(R, 'v10', 'v11')
R.stamp('H1poll')
R.dstamp('P5', 'H1poll')


def h1_load(i):
    c, f = divmod(KORD[i], 6)
    if f == 4:
        p(f's_add_u32 {T[2]}, {T[1]}, {AREA + c * 16384}')
    if f == 0:
        p(f's_add_u32 {T[2]}, {T[3]}, {H1B + c * 4096}')
    if i == 42:
        p(f's_cmp_eq_u32 {s_kh}, 0')
        p(f's_cselect_b32 {T[2]}, {0x7ff00000}, {T[2]}')
    p(f'buffer_load_dwordx4 {vr(H1F + 4 * (i % NRING), 4)}, v2, {sWS}, {T[2]} offen offset:{(f % 4) * 1024} sc1')
    R.vm.issue(('h1', i))


AH = OPT['ah1']
NS = 44
for i in range(AH):
    h1_load(i)
lwait(R, H_P1, 'v246', 'v10')
w2_reads(4)
w2_reads(5)
seq5 = [(i, nt) for i in range(NS - TAILN) for nt in (1, 0)] + [(i, 1) for i in range(NS - TAILN, NS)] + [(i, 0) for i in range(NS - TAILN, NS)]
nw, nl = 6, AH
last_use = {i: k for k, (i, nt) in enumerate(seq5)}
first_use = {i: k for k, (i, nt) in reversed(list(enumerate(seq5)))}
for k, (i, nt) in enumerate(seq5):
    if k == 20:
        p(f'ds_read_b32 v10, v246 offset:{H_LATE}')
        R.lg.issue(H_LATE)
    if k == 25:
        R.dstamp('P5', 'preL')
        lwait(R, H_LATE, 'v246', 'v10', early=True)
        R.dstamp('P5', 'late')
    if k == 44:
        R.bar()
        xchg_addrs(L_HI)
    R.vm.wait([('h1', i)])
    if k in (0, 56):
        R.dstamp('P5', f'h1_{i}')
    if i >= 4:
        R.lg.wait([('w2', i)])
    b = W2R + 8 * i if i < 4 else W2B + 8 * (i % NWB)
    p(f'v_mfma_f32_32x32x16_bf16 {vr(ACC5 + 16 * nt, 16)}, {vr(b + 4 * nt, 4)}, {vr(H1F + 4 * (i % NRING), 4)}, {"0" if i == 0 and nt == 1 else vr(ACC5 + 16 * nt, 16)}')
    if k >= 8 and nw < NS and (k % 2 == 0 or k >= 2 * (NS - TAILN) - 6) and (nw < 15 or k >= 25):
        assert last_use.get(nw - NWB, -1) <= k and first_use[nw] > k + 1, (nw, k)
        w2_reads(nw)
        nw += 1
    if k % 2 == 1 and nl < NS:
        assert last_use.get(nl - NRING, -1) <= k
        h1_load(nl)
        nl += 1
    g = k - (len(seq5) - 4)
    if g >= 0:
        R.lg.room(1)
        p(f'ds_write_b128 v10, {vr(ACC5 + 16 + 4 * g, 4)} offset:{g * 1024}')
assert nw == NS and nl == NS
R.dstamp('P5', 'loop')
xchg_finish(R, ACC5, 16)
R.stamp('B13')
R.dstamp('P5', 'B13')
for r in range(8):
    p(f'v_cvt_pk_bf16_f32 v{32 + r}, v{16 + 2 * r}, v{16 + 2 * r + 1}')
p('v_lshrrev_b32 v10, 5, v1')
p('v_lshl_add_u32 v9, v10, 3, v9')
for q in range(2):
    p(f'v_permlane32_swap_b32 v{32 + 4 * q}, v{32 + 4 * q + 2}')
    p(f'v_permlane32_swap_b32 v{32 + 4 * q + 1}, v{32 + 4 * q + 3}')
    p(f'buffer_store_dwordx4 {vr(32 + 4 * q, 4)}, v9, {sOUT}, 0 offen offset:{32 * q}' + {0: '', 1: ' nt', 2: ' sc1'}[OPT.get('osm', 0)])
dump_stamps(R)
p('s_endpgm')
while tail:
    tail.pop(0)()
tail = []

assert CW.nbar == HW.nbar + 2, (CW.nbar, HW.nbar)
p.label('L_codeend')

p.fix_hazards()

hdr = open(os.path.join(os.path.dirname(os.path.abspath(__file__)), '..', 'cdna_kernels', NAME + '.s.ref')).read().split('\n')
top = [l for l in hdr if l.startswith(';') and '@launch' not in l and 'Override' not in l and 'grid=ceil' not in l]
out = '\n'.join(top) + '\n'
out += f'; @launch grid=(256,1,1) block=(512,1,1) lds={LDS_BYTES}\n'
out += f'''.amdgcn_target "amdgcn-amd-amdhsa--gfx950"
.text
.globl {KNAME}
.p2align 8
.type {KNAME},@function
'''
out += p.text()
out += f'''.section .rodata,"a"
.p2align 6
.amdhsa_kernel {KNAME}
  .amdhsa_next_free_vgpr 256
  .amdhsa_next_free_sgpr 102
  .amdhsa_accum_offset 256
  .amdhsa_group_segment_fixed_size 0
  .amdhsa_kernarg_size 88
  .amdhsa_user_sgpr_count 2
  .amdhsa_user_sgpr_kernarg_segment_ptr 1
  .amdhsa_system_sgpr_workgroup_id_x 1
.end_amdhsa_kernel
'''
open(sys.argv[1], 'w').write(out)
if OPT['stamps']:
    import json
    json.dump(STAMPS, open(sys.argv[1] + '.stamps.json', 'w'))
print('instructions:', sum(1 for x in p.ins if x.kind not in ('label', 'dir')), 'maxv', p.maxreg('v'), 'maxs', p.maxreg('s'), 'barriers', CW.nbar)
```

```python
import sys
import os
sys.path.insert(0, os.path.dirname(os.path.abspath(__file__)))
from asmlib import Prog, Cnt

NAME = 'sequential_preLN__sliding_block__dense_activation_squared_relu__prompt'
KNAME = NAME + '_kernel'

OPT = dict(stamps=False, force_safe=False, force_fallback=False, spin=200000, h1sc1=0, osc1=0, hsc1=0, mallwarm=1, p1touch=1, la=2, t0=2, tmode=4, codewarm=1, tlbwarm=0, aho=8, ahh=6, ah1=10, mallat=27, m2at=0, m2early=1, a_first=1, wopos=0, fkvt=1, qat=2, slp=2, pgwarm=0, hprio=1, small=0, s0=16, wolate=0, kvtag=0, flagearly=1, w2c=8, clrat=-1, clrdone=4, hrate=2, early0=0)
for a in sys.argv[2:]:
    k, _, v = a.partition('=')
    OPT[k] = int(v) if v else True

EPOCH = 0x0
ST = 0x1000
FKV = 0x2000
FO = 0xA000
FH = 0xC000
FH1 = 0xE000
RST = 0x10000
AREA = 0x100000
H1B = 0x600000
STB = 0xA00000
WS_END = 0xB00000 if not OPT.get('probe') else 0x8000000
STAMP = 0x1000000
WS_SIZE = 0x1100000

S_R = 0
S_M = 512
S_CS = 1024
S_CS1 = 1536
S_B1 = 2048
S_TAG = 2560
S_MODE = 2564
S_SYNC = 2816
C_ISS, C_END, H_TAB, H_P1, H_LATE, H_WO, C_OIS, H_WQ, H_CSQ, H_Q, C_KV, C_HALO, C_FLAG, H_W1, X_P0, X_P1 = [S_SYNC + 4 * i for i in range(16)]
BASE = 3072
RING = BASE
SLOT = 24576
NSLOT = 4
L_WO = BASE
L_K = BASE + 64 * 1024
L_V = L_K + 24 * 1024
VSTR = 1040
L_HI = 116 * 1024
assert L_V + 24 * VSTR <= L_HI and RING + NSLOT * SLOT <= L_HI
L_WQ = L_HI
L_QX = L_HI + 32 * 1024
S_CSQ = S_CS1
L_X = BASE + 96 * 1024
LDS_BYTES = 160 * 1024


def w1_addr(s):
    return BASE + s * 3072


KORD = [6 * c + f for c in range(7) for f in (4, 5)] + [6 * c + f for c in range(7) for f in range(4)] + [42, 43]
W2_REG = KORD[:4] + [42 + k for k in KORD[:4]]
W2_P1 = KORD[4:15] + [42 + k for k in KORD[4:15]]
w2_pos = {}
for i, s in enumerate(W2_REG):
    w2_pos[s] = L_X + i * 2048
for i, s in enumerate(W2_P1):
    w2_pos[s] = L_HI + i * 2048
late_order = []
for i in range(15, 42):
    late_order += [KORD[i], 42 + KORD[i]]
late_order += [84, 85]
assert len(late_order) == 56
for i, s in enumerate(late_order):
    w2_pos[s] = BASE + i * 2048
assert BASE + 56 * 2048 <= L_HI


def w2_rd_pos(i):
    return w2_pos[KORD[i]] if i < 42 else w2_pos[42 + KORD[i]] - 2048


sX, sWQKV, sWO, sW1, sW2, sOUT, sWS, sB1, sB2, sDBG = [f's[{i}:{i + 3}]' for i in range(4, 44, 4)]
s_team, s_j, s_rb, s_c, s_rs, s_cb, s_w, s_tt, s_tag, s_mode, s_hd = [f's{i}' for i in range(44, 55)]
T = [f's{i}' for i in range(55, 64)]
s_xr = [f's{i}' for i in range(86, 90)]
s_wr = [f's{i}' for i in range(90, 94)]
s_t, s_kh = 's94', 's95'
s_tile = 's64'
s_area = 's88'
s_last = 's96'
s_stamp = 's[98:99]'

LOG2E = 1.4426950408889634
BIG = 0xf149f2ca


def fhex(x):
    import struct
    return '0x%08x' % struct.unpack('<I', struct.pack('<f', x))[0]


def vr(a, n=1):
    return f'v{a}' if n == 1 else f'v[{a}:{a + n - 1}]'


p = Prog()
tail = []


class Role:
    def __init__(self, name):
        self.name = name
        self.vm = Cnt(p, 'vmcnt', 63)
        self.lg = Cnt(p, 'lgkmcnt', 15)
        self.nbar = 0
        self.nstamp = 0

    def bar(self):
        p('s_barrier')
        self.nbar += 1

    def dstamp(self, grp, label):
        if OPT.get('d' + grp):
            self.stamp(label, True)

    def stamp(self, label='', force=False):
        if not OPT['stamps']:
            return
        if not force and label not in ('start', 'end') and any(k.startswith('dP') for k in OPT):
            return
        k = self.nstamp
        self.nstamp += 1
        STAMPS.setdefault(self.name, []).append(label)
        assert k < 20
        p(f's_memtime {s_stamp}')
        p('s_waitcnt lgkmcnt(0)')
        self.lg.reset()
        p(f's_mov_b32 s{66 + k}, s98')


STAMPS = {}


def dsr(R, op, dst, bases, off, tag=None):
    k = off // 65536
    R.lg.room(1)
    p(f'{op} {dst}, {bases[k]} offset:{off % 65536}')
    R.lg.issue(tag)


def dma(R, vaddr, srd, soff, ldsaddr, tag=None):
    p(f's_mov_b32 m0, {ldsaddr}')
    p(f'buffer_load_dwordx4 {vaddr}, {srd}, {soff} offen lds')
    R.vm.issue(tag)


def poll(R, vaddr, vtmp, wide=False, slow=False):
    L = p.newlabel('L_poll')
    D = p.newlabel('L_polld')
    X = p.newlabel('L_pollx')
    p(f's_mov_b32 {T[0]}, 0')
    p.label(L)
    first = vtmp if not wide else 'v' + vtmp[2:vtmp.index(':')]
    p(f'buffer_load_dword{"x2" if wide else ""} {vtmp}, {vaddr}, {sWS}, 0 offen sc1')
    p('s_waitcnt vmcnt(0)')
    p(f'v_cmp_ne_u32 vcc, {s_tag}, {first}')
    p(f's_cbranch_vccnz {X}')
    p.label(D)
    R.vm.reset()

    def blk():
        p.label(X)
        if slow:
            p('s_sleep 4')
        p(f's_add_u32 {T[0]}, {T[0]}, 1')
        p(f's_cmp_lt_u32 {T[0]}, {OPT["spin"]}')
        p(f's_cbranch_scc1 {L}')
        p(f's_branch {D}')
    tail.append(blk)


def moded_stores(R, stores, wt=False):
    if wt:
        for s in stores:
            p(s + ' sc1')
            R.vm.issue('st')
        return
    Ls = p.newlabel('L_safe')
    Lb = p.newlabel('L_back')
    p(f's_cmp_eq_u32 {s_mode}, 1')
    p(f's_cbranch_scc0 {Ls}')
    for s in stores:
        p(s)
    p.label(Lb)
    for s in stores:
        if s.startswith('buffer_'):
            R.vm.issue('st')

    def blk():
        p.label(Ls)
        for s in stores:
            p(s + ' sc1' if s.startswith('buffer_') else s)
        p(f's_branch {Lb}')
    tail.append(blk)


def signal(R, word, vz, vone):
    p('s_mov_b64 exec, 1')
    p(f'ds_add_u32 {vz}, {vone} offset:{word}')
    p('s_mov_b64 exec, -1')
    R.lg.issue('sig')


def lwait(R, word, vz, vt, early=False, n=4):
    L = p.newlabel('L_lw')
    X = p.newlabel('L_lwx')
    if early:
        R.lg.wait([word])
    else:
        p(f'ds_read_b32 {vt}, {vz} offset:{word}')
        p('s_waitcnt lgkmcnt(0)')
        R.lg.reset()
    p(f'v_cmp_gt_u32 vcc, {n}, {vt}')
    p(f's_cbranch_vccnz {X}')
    p.label(L)

    def blk():
        Y = p.newlabel('L_lwy')
        p.label(X)
        p(f's_mov_b32 {T[0]}, 0')
        p.label(Y)
        if R.name == 'HW' and OPT['slp']:
            p(f's_sleep {OPT["slp"]}')
        p(f'ds_read_b32 {vt}, {vz} offset:{word}')
        p('s_waitcnt lgkmcnt(0)')
        p(f'v_cmp_gt_u32 vcc, {n}, {vt}')
        p(f's_cbranch_vccz {L}')
        p(f's_add_u32 {T[0]}, {T[0]}, 1')
        p(f's_cmp_lt_u32 {T[0]}, {OPT["spin"] * 8}')
        p(f's_cbranch_scc1 {Y}')
        p(f's_branch {L}')
    tail.append(blk)


def flag_store(R, saddr, vt0, vt1, moded=True):
    p(f'v_mov_b32 {vt0}, {saddr}')
    p(f'v_mov_b32 {vt1}, {s_tag}')
    R.vm.wait_all()
    p('s_mov_b64 exec, 1')
    if moded:
        moded_stores(R, [f'buffer_store_dword {vt1}, {vt0}, {sWS}, 0 offen'])
    else:
        p(f'buffer_store_dword {vt1}, {vt0}, {sWS}, 0 offen sc1')
        R.vm.issue('st')
    p('s_mov_b64 exec, -1')


CW = Role('CW')
HW = Role('HW')
s_q = T[8]
s_mx, s_mw, s_tw = 's96', 's97', 's3'


def srd(dst, lo, size):
    b = int(dst[2:dst.index(':')])
    p(f's_mov_b32 s{b}, s{lo}')
    p(f's_and_b32 s{b + 1}, s{lo + 1}, 0xffff')
    p(f's_mov_b32 s{b + 2}, {size}')
    p(f's_mov_b32 s{b + 3}, 0x20000')


p.label(KNAME)
p('s_cmp_ge_u32 s2, 256')
p('s_cbranch_scc1 L_end')
if OPT['stamps']:
    p('s_memtime s[100:101]')
if OPT.get('dbgout'):
    p('s_memrealtime s[86:87]')
p('s_load_dwordx16 s[64:79], s[0:1], 0')
p('s_load_dwordx4 s[80:83], s[0:1], 64')
p('s_load_dwordx2 s[84:85], s[0:1], 80')
if OPT['codewarm']:
    p('s_getpc_b64 s[56:57]')
    p.label('L_pc')
    p(f's_sub_u32 s56, s56, L_pc-{KNAME}')
    p('s_subb_u32 s57, s57, 0')
    p(f's_lshr_b32 {T[0]}, s2, 3')
    p(f's_lshl_b32 {T[0]}, {T[0]}, 11')
    p('v_lshrrev_b32 v10, 5, v0')
    p('v_lshlrev_b32 v10, 7, v10')
    p(f'v_add_u32 v10, {T[0]}, v10')
    p(f'v_min_u32 v10, L_codeend-{KNAME}-4, v10')
    p('global_load_dword v253, v10, s[56:57]')
    CW.vm.issue('t')
    HW.vm.issue('t')
p('v_and_b32 v1, 63, v0')
p('v_lshrrev_b32 v2, 6, v0')
p(f'v_readfirstlane_b32 {s_w}, v2')
p(f's_and_b32 {s_team}, s2, 7')
p(f's_lshr_b32 {s_j}, s2, 3')
p(f's_and_b32 {s_c}, {s_j}, 15')
p(f's_lshr_b32 {T[0]}, {s_j}, 4')
p(f's_lshl_b32 {s_rb}, {s_team}, 1')
p(f's_add_u32 {s_rb}, {s_rb}, {T[0]}')
p('v_lshlrev_b32 v2, 4, v1')
p(f's_and_b32 {s_q}, {s_w}, 3')
p('v_lshrrev_b32 v3, 3, v1')
p(f's_lshl_b32 {T[0]}, {s_q}, 5')
p(f'v_add_u32 v3, {T[0]}, v3')
p('v_and_b32 v10, 7, v1')
p(f's_lshl_b32 {T[1]}, {s_rb}, 17')
p('v_bfe_u32 v11, v3, 1, 3')
p('v_xor_b32 v11, v10, v11')
p('v_lshlrev_b32 v11, 4, v11')
p('v_lshl_add_u32 v4, v3, 10, v11')
p(f'v_add_u32 v4, {T[1]}, v4')
p('v_xor_b32 v5, 64, v4')
p('v_add_u32 v5, 8192, v5')
p('v_lshrrev_b32 v10, 3, v1')
p(f's_lshl_b32 {T[0]}, {s_q}, 4')
p(f'v_add_u32 v10, {T[0]}, v10')
p(f's_movk_i32 {T[4]}, 3072')
p(f'v_mul_lo_u32 v10, v10, {T[4]}')
p('v_bfe_u32 v11, v1, 2, 1')
p('v_bfe_u32 v12, v1, 4, 1')
p('v_xor_b32 v11, v11, v12')
p('v_lshl_add_u32 v10, v11, 10, v10')
p('v_and_b32 v11, 3, v1')
p('v_lshl_add_u32 v10, v11, 4, v10')
p(f's_lshl_b32 {T[1]}, {s_c}, 6')
p(f's_add_u32 {T[1]}, {T[1]}, 1024')
p(f'v_add_u32 v6, {T[1]}, v10')
p(f's_lshl_b32 {s_mx}, {s_q}, 12')
p(f's_lshl_b32 {s_mw}, {s_q}, 11')
p(f's_lshl_b32 {s_tw}, {s_j}, 2')
p(f's_add_u32 {s_tw}, {s_tw}, {s_q}')
p(f's_lshr_b32 {T[0]}, {s_tw}, 1')
p(f's_mul_i32 {T[0]}, {T[0]}, 3072')
p(f's_and_b32 {s_tw}, {s_tw}, 1')
p(f's_lshl_b32 {s_tw}, {s_tw}, 10')
p(f's_add_u32 {s_tw}, {s_tw}, {T[0]}')
p(f's_add_u32 {s_tw}, {s_tw}, 1024')
p('v_bfe_u32 v16, v1, 3, 1')
p(f'v_mul_u32_u24 v16, {64 * 3072}, v16')
p('v_and_b32 v15, 7, v1')
p('v_lshl_add_u32 v16, v15, 7, v16')
p('v_min_u32 v17, 11, v1')
p('v_lshlrev_b32 v17, 7, v17')
p(f's_lshl_b32 {T[5]}, {s_rb}, 4')
p(f's_add_u32 {T[5]}, {T[5]}, {s_c}')
p(f's_lshl_b32 {T[5]}, {T[5]}, 3')
p(f's_add_u32 {T[5]}, {T[5]}, {s_q}')
p('s_waitcnt lgkmcnt(0)')
srd(sX, 64, 2048 * 512 * 2)
p(f's_cmp_ge_u32 {s_w}, 4')
p('s_cbranch_scc1 L_norow')
p(f's_load_dword {s_tag}, s[84:85], {EPOCH}')
if OPT['pgwarm']:
    p(f's_lshl_b32 {T[0]}, {s_j}, 2')
    p(f's_add_u32 {T[0]}, {T[0]}, {s_w}')
    p(f's_and_b32 {T[0]}, {T[0]}, 15')
    p('s_mov_b64 s[90:91], s[84:85]')
    for k, lo in enumerate((68, 72, 74, 76, 78, 80)):
        p(f's_cmp_eq_u32 {T[0]}, {k}')
        p(f's_cselect_b64 s[90:91], s[{lo}:{lo + 1}], s[90:91]')
    p(f's_sub_i32 {T[0]}, {T[0]}, 6')
    p(f's_max_i32 {T[0]}, {T[0]}, 0')
    p(f's_lshl_b32 {T[0]}, {T[0]}, 20')
    p(f's_add_u32 s90, s90, {T[0]}')
    p('s_addc_u32 s91, s91, 0')
    p('s_load_dword s92, s[90:91], 0')
    if OPT['pgwarm'] == 2:
        p('s_load_dword s93, s[84:85], 0xf0000')
if OPT['kvtag'] and OPT['clrat'] == -2:
    srd(sWS, 84, WS_SIZE if OPT['stamps'] else WS_END)
    p(f's_lshr_b32 {T[0]}, {T[5]}, 3')
    p(f's_lshl_b32 {T[0]}, {T[0]}, 2')
    p(f's_add_u32 {T[0]}, {T[0]}, {s_q}')
    p(f's_lshl_b32 {T[0]}, {T[0]}, 12')
    p(f's_add_u32 {T[0]}, {T[0]}, {AREA + 32 * 16384}')
    for r in range(4):
        p(f'v_mov_b32 v{244 + r}, -1')
    for q in range(4):
        p(f'buffer_store_dwordx4 v[244:247], v2, {sWS}, {T[0]} offen offset:{q * 1024} sc1')
        CW.vm.issue('st')
p(f's_lshl_b32 {T[0]}, {T[5]}, 10')
p(f's_add_u32 {T[1]}, {T[0]}, 4096')
p(f'buffer_load_dwordx4 v[196:199], v2, {sX}, {T[0]} offen')
p(f'buffer_load_dwordx4 v[208:211], v2, {sX}, {T[1]} offen')
CW.vm.issue('row')
CW.vm.issue('row')
p.label('L_norow')
srd(sWQKV, 66, 512 * 1536 * 2)
if OPT['stamps']:
    p('s_memtime s[98:99]')
    p('s_waitcnt lgkmcnt(0)')
    p('s_mov_b32 s101, s98')
p(f's_cmp_lt_u32 {s_w}, 4')
p('s_cbranch_scc1 L_CW')


def chunk_groups(R, ch):
    slot = RING + (ch % NSLOT) * SLOT

    def xg(q):
        def f():
            p(f's_mov_b32 {T[7]}, {ch * 128 + (q >> 1) * 16384}')
            p(f's_add_u32 m0, {s_mx}, {slot + q * 1024}')
            p(f'buffer_load_dwordx4 v{4 + (q & 1)}, {sX}, {T[7]} offen' + (' nt' if OPT.get('nt_x') else '') + ' lds')
            R.vm.issue(('ch', ch))
        return f

    def wg(q):
        def f():
            p(f's_mov_b32 {T[7]}, {(ch * 64 + q * 8) * 3072}')
            p(f's_add_u32 m0, {s_mw}, {slot + 16384 + q * 1024}')
            p(f'buffer_load_dwordx4 v6, {sWQKV}, {T[7]} offen lds')
            R.vm.issue(('ch', ch))
        return f
    return [wg(0), xg(0), xg(1), wg(1), xg(2), xg(3)]


def wtouch(R, i):
    def f():
        p(f's_add_u32 {T[7]}, {s_tw}, {i * 64 * 3072}')
        p(f'buffer_load_dword v252, v16, {sWQKV}, {T[7]} offen' + (' nt' if OPT.get('nt_t') else ''))
        R.vm.issue('t')
    return f


def qtouch(R):
    def f():
        p(f's_lshl_b32 {T[7]}, {s_j}, 2')
        p(f's_add_u32 {T[7]}, {T[7]}, {s_q}')
        p(f's_mul_i32 {T[7]}, {T[7]}, {4 * 3072}')
        p('v_bfe_u32 v3, v1, 3, 2')
        p('v_mul_u32_u24 v3, 3072, v3')
        p('v_and_b32 v110, 7, v1')
        p('v_lshl_add_u32 v3, v110, 7, v3')
        p(f'buffer_load_dword v252, v3, {sWQKV}, {T[7]} offen')
        R.vm.issue('t')
    return f


def warm_wo(R):
    def f():
        p(f's_lshl_b32 {T[7]}, {s_j}, 2')
        p(f's_add_u32 {T[7]}, {T[7]}, {s_q}')
        p(f's_lshl_b32 {T[7]}, {T[7]}, 12')
        p('v_and_b32 v3, 31, v1')
        p('v_lshlrev_b32 v3, 7, v3')
        p(f'buffer_load_dword v255, v3, {sWO}, {T[7]} offen')
        R.vm.issue('t')
    return f


def warm_mall(R, srd_):
    def f():
        p(f's_lshl_b32 {T[7]}, s2, 2')
        p(f's_add_u32 {T[7]}, {T[7]}, {s_q}')
        p(f's_mul_i32 {T[7]}, {T[7]}, 1536')
        p(f'buffer_load_dword v254, v17, {srd_}, {T[7]} offen')
        R.vm.issue('t')
    return f


def srds_w():
    srd(sWO, 68, 512 * 512 * 2)
    srd(sW1, 72, 512 * 1376 * 2)
    srd(sW2, 76, 1376 * 512 * 2)


def common_setup(R):
    srd(sWS, 84, WS_SIZE if OPT['stamps'] else WS_END)
    srd(sB1, 74, 1376 * 2)
    srd(sB2, 78, 512 * 2)
    srd(sOUT, 80, 2048 * 512 * 2)
    p(f's_lshr_b32 {T[0]}, {s_j}, 3')
    p(f's_lshl_b32 {s_rs}, {s_team}, 2')
    p(f's_add_u32 {s_rs}, {s_rs}, {T[0]}')
    p(f's_and_b32 {s_cb}, {s_j}, 7')
    p(f's_lshr_b32 {s_hd}, {s_w}, 2')
    p(f's_lshl_b32 {s_area}, {s_rb}, 4')
    p(f's_add_u32 {s_area}, {s_area}, {s_c}')
    p(f's_lshl_b32 {s_area}, {s_area}, 14')
    p(f's_add_u32 {s_area}, {s_area}, {AREA}')
    if R is CW:
        p(f's_mov_b32 {s_tt}, {s_w}')
        p(f's_and_b32 {s_t}, {s_w}, 1')
        p(f's_lshr_b32 {s_kh}, {s_w}, 1')
    else:
        p(f's_sub_u32 {s_tt}, 7, {s_w}')
    p('v_mov_b32 v18, 0x3f803f80')
    if R is CW:
        if not OPT['small']:
            p('s_waitcnt lgkmcnt(0)')
        p(f's_add_u32 {s_tag}, {s_tag}, 1')
        p(f'v_mov_b32 v10, {S_TAG}')
        p(f'v_mov_b32 v11, {s_tag}')
        p('ds_write_b32 v10, v11')


def row_stats(R):
    p(f's_lshl_b32 s65, s65, 4')
    p(f's_add_u32 s65, s65, {RST}')
    p(f'v_mov_b32 v3, s65')
    for k in (200, 202, 212, 214):
        p(f'v_mov_b32 v{k}, 0')
    p(f's_getreg_b32 {T[1]}, hwreg(HW_REG_XCC_ID)')
    p(f's_and_b32 {T[1]}, {T[1]}, 15')
    p(f'v_mov_b32 v221, {T[1]}')
    p(f'v_mov_b32 v220, {s_tag}')
    p(f's_lshl_b32 {T[1]}, {s_team}, 5')
    p(f's_add_u32 {T[1]}, {T[1]}, {s_j}')
    p(f's_lshl_b32 {T[1]}, {T[1]}, 3')
    p(f's_add_u32 {T[1]}, {T[1]}, {ST}')
    p(f's_cmp_eq_u32 {s_w}, 0')
    p(f's_cselect_b32 {T[1]}, {T[1]}, {0x7ff00000}')
    p(f'v_mov_b32 v222, {T[1]}')
    R.vm.wait(['row'])
    for r in range(4):
        for o in (0, 12):
            p(f'v_dot2c_f32_bf16 v{200 + o}, v{196 + o + r}, v18')
            p(f'v_dot2c_f32_bf16 v{202 + o}, v{196 + o + r}, v{196 + o + r}')
    for sh in (8, 4, 2, 1):
        for k in (200, 202, 212, 214):
            p(f'v_add_f32_dpp v{k}, v{k}, v{k} row_ror:{sh} row_mask:0xf bank_mask:0xf')
    for op in ('v_permlane16_swap_b32', 'v_permlane32_swap_b32'):
        for k in (200, 202, 212, 214):
            p(f'v_mov_b32 v{k + 1}, v{k}')
        for k in (200, 202, 212, 214):
            p(f'{op} v{k}, v{k + 1}')
        for k in (200, 202, 212, 214):
            p(f'v_add_f32 v{k}, v{k}, v{k + 1}')
    for o in (0, 12):
        ln_finish(f'v{200 + o}', f'v{202 + o}', f'v{204 + o}', f'v{206 + o}')
        p(f'v_mov_b32 v{205 + o}, {s_tag}')
        p(f'v_mov_b32 v{207 + o}, {s_tag}')
    p('s_mov_b64 exec, 1')
    p(f'buffer_store_dwordx4 v[204:207], v3, {sWS}, 0 offen sc1')
    p(f'buffer_store_dwordx4 v[216:219], v3, {sWS}, 0 offen offset:64 sc1')
    p(f'buffer_store_dwordx2 v[220:221], v222, {sWS}, 0 offen sc1')
    p('s_mov_b64 exec, -1')
    for _ in range(3):
        R.vm.issue('st')


VQ, MD, MF = 160, 164, 180
SB = [20, 36]
VP = 52
KF = [60, 64]
VF = [68, 76]
VO = 84
VKA, VVA = 'v100', 'v101'
HALO = 120


def make_masks():
    p('v_and_b32 v10, 31, v1')
    p('v_lshrrev_b32 v11, 5, v1')
    p('v_lshlrev_b32 v11, 2, v11')
    p('v_sub_u32 v10, v10, v11')
    p(f'v_mov_b32 v12, {BIG:#x}')
    p('v_mov_b32 v13, 0')
    for i0 in range(0, 16, 4):
        for i in range(i0, i0 + 4):
            key = 8 * (i >> 2) + (i & 3)
            p(f'v_cmp_le_i32 s[{56 + 2 * (i & 3)}:{57 + 2 * (i & 3)}], {key}, v10')
        for i in range(i0, i0 + 4):
            m = f's[{56 + 2 * (i & 3)}:{57 + 2 * (i & 3)}]'
            p(f'v_cndmask_b32 v{MD + i}, v12, v13, {m}')
            p(f'v_cndmask_b32 v{MF + i}, v13, v12, {m}')


def att_addrs():
    p(f's_lshl_b32 {T[0]}, {s_tt}, 11')
    p(f's_lshl_b32 {T[1]}, {s_hd}, 10')
    p(f's_add_u32 {T[0]}, {T[0]}, {T[1]}')
    p(f's_add_u32 {T[0]}, {T[0]}, {L_K}')
    p(f'v_add_u32 {VKA}, {T[0]}, v2')
    p('v_and_b32 v10, 47, v1')
    p(f's_lshl_b32 {T[1]}, {s_hd}, 4')
    p(f'v_add_u32 v10, {T[1]}, v10')
    p('v_lshlrev_b32 v10, 4, v10')
    p('v_and_b32 v11, 16, v1')
    p('v_cmp_ne_u32 vcc, 0, v11')
    p('v_mov_b32 v11, 1024')
    p('v_cndmask_b32 v10, v10, v11, vcc')
    p(f's_mul_i32 {T[0]}, {s_tt}, {2 * VSTR}')
    p(f's_add_u32 {T[0]}, {T[0]}, {L_V}')
    p(f'v_add_u32 {VVA}, {T[0]}, v10')


def half_sum(a, t):
    p(f'v_mov_b32 {t}, {a}')
    p(f'v_permlane32_swap_b32 {a}, {t}')
    p(f'v_add_f32 {a}, {a}, {t}')


def ln_finish(s1, s2, rstd, mrs):
    p(f'v_mul_f32 {s1}, {fhex(1.0 / 512)}, {s1}')
    p(f'v_mul_f32 {s2}, {fhex(1.0 / 512)}, {s2}')
    p(f'v_fma_f32 {s2}, -{s1}, {s1}, {s2}')
    p(f'v_max_f32 {s2}, 0, {s2}')
    p(f'v_add_f32 {s2}, {fhex(1e-5)}, {s2}')
    p(f'v_rsq_f32 {rstd}, {s2}')
    p(f'v_mul_f32 {mrs}, {s1}, {rstd}')


def att_load(R, u, b, base):
    p(f'ds_read_b128 {vr(KF[b], 4)}, {base[0]} offset:{u * 2048}')
    R.lg.issue(('K', u))
    for g in range(2):
        p(f'ds_read_b128 {vr(VF[b] + 4 * g, 4)}, {base[1]} offset:{(2 * u + g) * VSTR}')
        R.lg.issue(('V', u))


def att_qk(R, u, b, c):
    R.lg.wait([('K', u)])
    p(f'v_mfma_f32_32x32x16_bf16 {vr(SB[b], 16)}, {vr(KF[b], 4)}, {vr(VQ, 4)}, {c}')


def att_body(R, u, b, nxt, first, extra=()):
    S = SB[b]
    if nxt is not None:
        att_load(R, nxt[0], 1 - b, nxt[1])
    extra = list(extra)
    for g in range(2):
        for i in range(8):
            p(f'v_exp_f32 v{S + 8 * g + i}, v{S + 8 * g + i}')
            if i in (0, 2, 3, 5, 7) and extra:
                extra.pop(0)()
        if g == 0 and nxt is not None:
            att_qk(R, nxt[0], 1 - b, nxt[2])
        for r in range(4):
            p(f'v_cvt_pk_bf16_f32 v{VP + 4 * g + r}, v{S + 8 * g + 2 * r}, v{S + 8 * g + 2 * r + 1}')
        R.lg.wait([('V', u)])
        c = '0' if (first and g == 0) else vr(VO, 16)
        p(f'v_mfma_f32_32x32x16_bf16 {vr(VO, 16)}, {vr(VF[b] + 4 * g, 4)}, {vr(VP + 4 * g, 4)}, {c}')
    assert not extra


REL = (VKA, VVA)
ABS = ('v116', 'v117')


def att_2a(R, after_first=None):
    Lx = p.newlabel('L_2a_done')
    att_load(R, 8, 0, REL)
    att_qk(R, 8, 0, vr(MD, 16))
    for n, j in enumerate((8, 7, 6, 5)):
        att_body(R, j, n & 1, (j - 1, REL, '0') if j > 5 else None, n == 0)
        if n == 0 and after_first:
            after_first()
        if j > 5:
            p(f's_cmp_eq_u32 {s_tt}, {n}')
            p(f's_cbranch_scc1 {Lx}')
    p.label(Lx)
    p('s_waitcnt lgkmcnt(0)')
    R.lg.reset()
    R.stamp('2a')
    R.dstamp('P2', '2a')


def att_2b(R, extra, after_store):
    p(f's_max_i32 {T[0]}, {s_rb}, 1')
    p(f's_sub_u32 {T[0]}, {T[0]}, 1')
    p(f's_lshl_b32 {T[0]}, {T[0]}, 4')
    p(f's_add_u32 {T[0]}, {T[0]}, {s_c}')
    p(f's_lshl_b32 {T[0]}, {T[0]}, 7')
    p(f's_add_u32 {T[0]}, {T[0]}, {FKV + 16}')
    p('v_and_b32 v102, 3, v1')
    p('v_lshlrev_b32 v102, 2, v102')
    p(f'v_add_u32 v102, {T[0]}, v102')

    def rd_check():
        p(f'buffer_load_dword v103, v102, {sWS}, 0 offen sc1')
        R.vm.issue('rd')
    Lx = p.newlabel('L_2b_done')
    att_load(R, 0, 0, REL)
    att_qk(R, 0, 0, vr(MF, 16))
    extra = list(extra)
    extra += [lambda: None] * (44 - len(extra)) + [rd_check]
    assert len(extra) <= 50
    for j in range(8):
        att_body(R, j, j & 1, (j + 1, REL, '0') if j < 7 else None, False, extra[10 * j:10 * j + 10])
        if 4 <= j < 7:
            p(f's_cmp_eq_u32 {s_tt}, {7 - j}')
            p(f's_cbranch_scc1 {Lx}')
    p.label(Lx)
    p('s_waitcnt lgkmcnt(0)')
    R.lg.reset()
    Lf = p.newlabel('L_fb')
    Lr = p.newlabel('L_fbret')
    p(f'v_mov_b32 v10, {fhex(2.0 ** -60)}')
    p(f'v_mov_b32 v11, {fhex(2.0 ** 60)}')
    p(f's_lshl_b32 {T[0]}, {s_rb}, 2')
    p(f's_add_u32 {T[0]}, {T[0]}, {s_tt}')
    p(f's_lshl_b32 {T[0]}, {T[0]}, 5')
    p(f's_lshl_b32 {T[6]}, {s_c}, 1')
    p(f's_add_u32 {T[0]}, {T[0]}, {T[6]}')
    p(f's_add_u32 {T[0]}, {T[0]}, {s_hd}')
    p(f's_lshl_b32 {T[7]}, {T[0]}, 2')
    p(f's_add_u32 {T[7]}, {T[7]}, {FO}')
    p(f's_lshl_b32 {T[0]}, {s_tt}, 2')
    p(f's_add_u32 {T[0]}, {T[0]}, {s_hd}')
    p(f's_lshl_b32 {T[0]}, {T[0]}, 10')
    p(f's_add_u32 {T[6]}, {T[0]}, {s_area}')
    p(f'v_cmp_nlt_f32 vcc, v10, v{VO + 8}')
    p(f'v_cmp_nlt_f32 s[56:57], v{VO + 8}, v11')
    p('s_or_b64 vcc, vcc, s[56:57]')
    if OPT['force_fallback']:
        p(f's_branch {Lf}')
    else:
        p(f's_cbranch_vccnz {Lf}')
    p.label(Lr)
    tail.append(lambda: fallback(Lf, Lr))
    p(f'v_rcp_f32 v10, v{VO + 8}')
    for i in range(8):
        p(f'v_mul_f32 v{VO + i}, v{VO + i}, v10')
    for r in range(4):
        p(f'v_cvt_pk_bf16_f32 v{12 + r}, v{VO + 2 * r}, v{VO + 2 * r + 1}')
    R.dstamp('P2', '2b')
    Lc = p.newlabel('L_rdc')
    Lcx = p.newlabel('L_rdx')
    R.vm.wait(['rd'])
    p(f'v_cmp_ne_u32 vcc, {s_tag}, v103')
    p(f's_cbranch_vccnz {Lcx}')
    p.label(Lc)

    def rd_slow():
        p.label(Lcx)
        poll(R2, 'v102', 'v103')
        p(f's_branch {Lc}')
    R2 = Role('tmp')
    tail.append(rd_slow)
    moded_stores(R, [f'buffer_store_dwordx4 v[12:15], v2, {sWS}, {T[6]} offen'], OPT['osc1'])
    after_store()
    flag_store(R, T[7], 'v10', 'v11')
    R.stamp('Oflag')
    R.dstamp('P2', 'Oflag')


def fallback(Lf, Lr):
    S = SB[0]
    p.label(Lf)
    p(f's_lshl_b32 {T[0]}, {s_rb}, 2')
    p(f's_add_u32 {T[0]}, {T[0]}, {s_tt}')
    p(f's_sub_i32 {T[0]}, 8, {T[0]}')
    p(f's_max_i32 s89, {T[0]}, 0')
    p(f'v_mov_b32 v14, {BIG:#x}')
    for pas in range(2):
        L = p.newlabel('L_fbl')
        Lm = p.newlabel('L_fbm')
        Ln = p.newlabel('L_fbn')
        Lc = p.newlabel('L_fbc')
        p(f's_mov_b32 s90, s89')
        if pas == 1:
            for i in range(16):
                p(f'v_mov_b32 v{VO + i}, 0')
        p.label(L)
        p(f's_lshl_b32 {T[0]}, s90, 11')
        p(f'v_add_u32 v10, {T[0]}, {VKA}')
        p(f's_mul_i32 {T[0]}, s90, {2 * VSTR}')
        p(f'v_add_u32 v11, {T[0]}, {VVA}')
        p(f'ds_read_b128 {vr(KF[0], 4)}, v10')
        p(f'ds_read_b128 {vr(VF[0], 4)}, v11')
        p(f'ds_read_b128 {vr(VF[0] + 4, 4)}, v11 offset:{VSTR}')
        p('s_waitcnt lgkmcnt(0)')
        p(f's_cmp_eq_u32 s90, 8')
        p(f's_cbranch_scc1 {Lm}')
        p(f's_cmp_eq_u32 s90, 0')
        p(f's_cbranch_scc1 {Ln}')
        p(f'v_mfma_f32_32x32x16_bf16 {vr(S, 16)}, {vr(KF[0], 4)}, {vr(VQ, 4)}, 0')
        p(f's_branch {Lc}')
        p.label(Lm)
        p(f'v_mfma_f32_32x32x16_bf16 {vr(S, 16)}, {vr(KF[0], 4)}, {vr(VQ, 4)}, {vr(MD, 16)}')
        p(f's_branch {Lc}')
        p.label(Ln)
        p(f'v_mfma_f32_32x32x16_bf16 {vr(S, 16)}, {vr(KF[0], 4)}, {vr(VQ, 4)}, {vr(MF, 16)}')
        p.label(Lc)
        if pas == 0:
            for i in range(16):
                p(f'v_max_f32 v14, v14, v{S + i}')
        else:
            for i in range(16):
                p(f'v_sub_f32 v{S + i}, v{S + i}, v14')
                p(f'v_exp_f32 v{S + i}, v{S + i}')
            for r in range(8):
                p(f'v_cvt_pk_bf16_f32 v{VP + r}, v{S + 2 * r}, v{S + 2 * r + 1}')
            for g in range(2):
                p(f'v_mfma_f32_32x32x16_bf16 {vr(VO, 16)}, {vr(VF[0] + 4 * g, 4)}, {vr(VP + 4 * g, 4)}, {vr(VO, 16)}')
        p(f's_add_u32 s90, s90, 1')
        p(f's_cmp_le_u32 s90, 8')
        p(f's_cbranch_scc1 {L}')
        if pas == 0:
            p('v_mov_b32 v15, v14')
            p('v_permlane32_swap_b32 v14, v15')
            p('v_max_f32 v14, v14, v15')
    p(f's_branch {Lr}')


def w64_dma_lane(dst):
    p('v_lshrrev_b32 v10, 3, v1')
    p('v_lshlrev_b32 v10, 10, v10')
    p('v_and_b32 v11, 7, v1')
    p('v_bfe_u32 v12, v1, 4, 1')
    p('v_lshlrev_b32 v12, 2, v12')
    p('v_xor_b32 v11, v11, v12')
    p('v_lshl_add_u32 v10, v11, 4, v10')
    p(f's_lshl_b32 {T[0]}, {s_cb}, 7')
    p(f'v_add_u32 {dst}, {T[0]}, v10')


def w1_dma_lanes(dsts):
    p(f's_movk_i32 {T[3]}, 5462')
    p(f's_movk_i32 {T[4]}, 2752')
    p(f's_mul_i32 {T[1]}, {s_c}, 192')
    for q, dst in enumerate(dsts):
        p(f'v_add_u32 v10, {64 * q}, v1')
        p(f'v_mul_lo_u32 v11, v10, {T[3]}')
        p('v_lshrrev_b32 v11, 16, v11')
        p('v_mul_u32_u24 v12, 12, v11')
        p('v_sub_u32 v12, v10, v12')
        p('v_lshlrev_b32 v12, 4, v12')
        p(f'v_mul_lo_u32 v11, v11, {T[4]}')
        p(f'v_add3_u32 {dst}, v11, v12, {T[1]}')


def tr64_lanes(a0, a1):
    p('v_bfe_u32 v10, v1, 2, 2')
    p('v_lshrrev_b32 v11, 5, v1')
    p('v_lshl_add_u32 v10, v11, 2, v10')
    p('v_lshlrev_b32 v10, 7, v10')
    p('v_bfe_u32 v11, v1, 4, 1')
    p('v_lshl_add_u32 v10, v11, 5, v10')
    p('v_and_b32 v11, 3, v1')
    p('v_lshl_add_u32 v10, v11, 3, v10')
    p('v_bfe_u32 v11, v1, 3, 1')
    p(f'v_lshl_add_u32 {a0}, v11, 6, v10')
    p(f'v_xor_b32 {a1}, 64, {a0}')


def tr_kv_lane(a):
    p('v_bfe_u32 v10, v1, 2, 2')
    p('v_lshrrev_b32 v11, 5, v1')
    p('v_lshl_add_u32 v10, v11, 3, v10')
    p('v_lshlrev_b32 v10, 7, v10')
    p('v_bfe_u32 v11, v1, 4, 1')
    p('v_lshl_add_u32 v10, v11, 5, v10')
    p('v_and_b32 v11, 3, v1')
    p('v_lshl_add_u32 v10, v11, 3, v10')
    p('v_bfe_u32 v11, v1, 3, 1')
    p(f'v_lshl_add_u32 {a}, v11, 6, v10')


def x_lane(a):
    p('v_and_b32 v10, 31, v1')
    p(f's_lshl_b32 {T[0]}, {s_tt}, 5')
    p(f'v_add_u32 v10, {T[0]}, v10')
    p('v_bfe_u32 v11, v10, 1, 3')
    p('v_lshrrev_b32 v12, 5, v1')
    p('v_xor_b32 v11, v11, v12')
    p('v_lshlrev_b32 v11, 4, v11')
    p(f'v_lshl_add_u32 {a}, v10, 7, v11')


def tr96_lane(a):
    p('v_bfe_u32 v10, v1, 2, 2')
    p('v_lshrrev_b32 v11, 5, v1')
    p('v_lshl_add_u32 v10, v11, 2, v10')
    p('v_mul_u32_u24 v10, 192, v10')
    p('v_bfe_u32 v11, v1, 4, 1')
    p('v_lshl_add_u32 v10, v11, 5, v10')
    p('v_and_b32 v11, 3, v1')
    p(f'v_lshl_add_u32 {a}, v11, 3, v10')


def dump_stamps(R):
    if not OPT['stamps']:
        return
    R.stamp('end')
    p(f's_lshl_b32 {T[0]}, s2, 3')
    p(f's_add_u32 {T[0]}, {T[0]}, {s_w}')
    p(f's_lshl_b32 {T[0]}, {T[0]}, 8')
    p(f's_add_u32 {T[0]}, {T[0]}, {STAMP}')
    p('v_lshlrev_b32 v10, 2, v1')
    p('v_mov_b32 v11, 0')
    for k in range(R.nstamp):
        p(f'v_writelane_b32 v11, s{66 + k}, {k}')
    p(f'v_writelane_b32 v11, {s_mode}, 63')
    p(f'v_writelane_b32 v11, s100, 62')
    p(f'v_writelane_b32 v11, s101, 61')
    p(f'buffer_store_dword v11, v10, {sWS}, {T[0]} offen')
    if OPT.get('dbgout') and R is CW:
        L = p.newlabel('L_dbg')
        p(f's_cmp_lg_u32 s2, {OPT["dbgout"]}')
        p(f's_cbranch_scc1 {L}')
        p(f's_cmp_lg_u32 {s_w}, 0')
        p(f's_cbranch_scc1 {L}')
        p('s_load_dwordx2 s[40:41], s[0:1], 72')
        p('s_memrealtime s[98:99]')
        p('s_waitcnt lgkmcnt(0)')
        p('s_and_b32 s41, s41, 0xffff')
        p('s_mov_b32 s42, 256')
        p('s_mov_b32 s43, 0x20000')
        p('v_subrev_u32 v11, s100, v11')
        p('s_sub_u32 s98, s98, s86')
        p('v_writelane_b32 v11, s98, 15')
        p('buffer_store_dword v11, v10, s[40:43], 0 offen')
        p.label(L)


R = HW
def touch_st():
    p('v_bfe_u32 v250, v1, 2, 1')
    p('v_lshlrev_b32 v250, 12, v250')
    p('v_and_b32 v251, 3, v1')
    p('v_lshl_add_u32 v250, v251, 7, v250')
    p(f's_lshl_b32 {T[6]}, {s_rs}, 13')
    p(f's_lshl_b32 {T[7]}, {s_cb}, 9')
    p(f's_add_u32 {T[6]}, {T[6]}, {T[7]}')
    p(f's_add_u32 {T[6]}, {T[6]}, {STB}')
    p(f'buffer_load_dword v253, v250, {sWS}, {T[6]} offen sc1')
    R.vm.issue('t')


def touch_fl():
    p('v_bfe_u32 v250, v1, 2, 2')
    p('v_min_u32 v250, 2, v250')
    p('v_lshlrev_b32 v250, 13, v250')
    p('v_and_b32 v251, 3, v1')
    p('v_lshl_add_u32 v250, v251, 7, v250')
    p(f's_lshl_b32 {T[6]}, {s_rb}, 9')
    p(f's_add_u32 {T[6]}, {T[6]}, {FO}')
    p(f'buffer_load_dword v254, v250, {sWS}, {T[6]} offen sc1')
    R.vm.issue('t')


TM = OPT['tmode']
after = {1: {0: [2], 1: [4], 2: [6]}, 2: {0: [2, 4], 1: [6]}, 3: {0: [2], 1: [4], 3: [6]}, 4: {0: [2, 4, 6]}}[TM]


def chunk_t(R, ch):
    gs = chunk_groups(R, ch) + [wtouch(R, i) for i in after.get(ch, [])]
    if ch == OPT['qat']:
        gs.append(qtouch(R))
    if OPT['mallat'] < 8:
        m = OPT['mallat']
        gs += {m: [warm_mall(R, sW1)], m + 1: [warm_mall(R, sW2)], m + 2: [warm_wo(R), touch_fl, touch_st]}.get(ch, [])
    return gs


for g in [wtouch(R, 0)] + chunk_t(R, 0) + [srds_w]:
    g()
tr_kv_lane('v19')
p(f's_and_b32 {T[0]}, {s_q}, 1')
p(f's_lshl_b32 {T[0]}, {T[0]}, 6')
p(f'v_xor_b32 v19, {T[0]}, v19')
p(f's_sub_u32 {s_tt}, 7, {s_w}')
x_lane('v9')
XQ = [20 + 4 * i for i in range(4)] + [68 + 4 * i for i in range(8)] + [120 + 4 * i for i in range(10)] + [196 + 4 * i for i in range(10)]
AQ = 236


def wq_lane():
    p('v_lshrrev_b32 v10, 2, v1')
    p(f's_lshl_b32 {T[0]}, {s_q}, 7')
    p(f'v_add_u32 v10, {T[0]}, v10')
    p(f's_movk_i32 {T[1]}, 3072')
    p(f'v_mul_lo_u32 v10, v10, {T[1]}')
    p('v_and_b32 v11, 3, v1')
    p('v_lshl_add_u32 v10, v11, 4, v10')
    p(f's_lshl_b32 {T[1]}, {s_c}, 6')
    p(f'v_add_u32 v7, {T[1]}, v10')
    p('v_bfe_u32 v10, v1, 2, 2')
    p('v_lshrrev_b32 v11, 5, v1')
    p('v_lshl_add_u32 v10, v11, 3, v10')
    p('v_lshlrev_b32 v10, 6, v10')
    p('v_bfe_u32 v11, v1, 4, 1')
    p('v_lshl_add_u32 v10, v11, 5, v10')
    p('v_and_b32 v11, 3, v1')
    p('v_lshl_add_u32 v10, v11, 3, v10')
    p(f'v_add_u32 v8, {L_WQ}, v10')


def wq_piece(n):
    def f():
        p(f's_lshl_b32 {T[7]}, {s_q}, 13')
        p(f's_add_u32 m0, {T[7]}, {L_WQ + n * 1024}')
        p(f's_mov_b32 {T[7]}, {n * 16 * 3072}')
        p(f'buffer_load_dwordx4 v7, {sWQKV}, {T[7]} offen lds')
        R.vm.issue('wq')
    return f

STG = [120 + 4 * i for i in range(10)] + [196 + 4 * i for i in range(14)]
ONE, CSA = 104, 52
for r in range(4):
    p(f'v_mov_b32 v{ONE + r}, 0x3f803f80')


def w1_stage(n):
    def f():
        if n % 3 == 0:
            p(f's_mul_i32 {T[6]}, {s_q}, {8 * 16 * 2752}')
            p(f's_add_u32 {T[6]}, {T[6]}, {(n // 3) * 16 * 2752}')
        p(f'buffer_load_dwordx4 {vr(STG[n], 4)}, v{112 + n % 3}, {sW1}, {T[6]} offen' + (' nt' if OPT.get('nt_w1') else ''))
        R.vm.issue('w1')
    return f


def get_tag():
    p(f'v_mov_b32 v10, {S_TAG}')
    p('ds_read_b32 v10, v10')
    p('s_waitcnt lgkmcnt(0)')
    p(f'v_readfirstlane_b32 {s_tag}, v10')


def hw_masks():
    make_masks()
    p(f's_and_b32 {s_q}, {s_w}, 3')


p('v_mov_b32 v10, 0')
p('v_mov_b32 v11, 0')
p('v_lshlrev_b32 v12, 3, v1')
p('v_and_b32 v12, 63, v12')
p(f'ds_write_b64 v12, v[10:11] offset:{S_SYNC}')
common_setup(R)
w1_dma_lanes(['v112', 'v113', 'v114'])
hw_masks()
w64_dma_lane('v115')
att_addrs()
wq_lane()
R.dstamp('P1', 'setup')
for g in chunk_t(R, 1) + (chunk_t(R, 2) if OPT['la'] == 3 else []):
    g()
R.stamp('start')
late = [w1_stage(n) for n in range(24)]
fill = {1: [get_tag]}
for ch in range(8):
    slot = RING + (ch % NSLOT) * SLOT
    p(f'v_add_u32 v14, {slot + 16384}, v19')
    p(f'v_add_u32 v108, {slot}, v9')
    for ks in range(1, 4):
        p(f'v_xor_b32 v{(108, 109, 116, 117)[ks]}, {32 * ks}, v108')
    if ch >= 4:
        R.dstamp('P1', f'iss{ch}')
    R.vm.wait([('ch', ch)])
    if ch == 0:
        p('s_waitcnt lgkmcnt(0)')
    if ch >= 4:
        R.dstamp('P1', f'vm{ch}')
    R.bar()
    R.dstamp('P1', f'bar{ch}')
    for ks in range(4):
        for rd in range(2):
            p(f'ds_read_b64_tr_b16 {vr(36 + 4 * ks + 2 * rd, 2)}, v14 offset:{ks * 2048 + rd * 512}')
    for ks in range(4):
        p(f'ds_read_b128 {vr(XQ[4 * ch + ks], 4)}, v{(108, 109, 116, 117)[ks]}')
    LA = OPT['la']
    if ch + LA < 8:
        extra = chunk_t(R, ch + LA)
    elif ch == 8 - LA:
        extra = [wq_piece(n) for n in range(8)]
    else:
        extra = []
    mf = [(lambda ks=ks: p(f'v_mfma_f32_32x32x16_bf16 {vr(CSA, 16)}, {vr(ONE, 4)}, {vr(36 + 4 * ks, 4)}, {"0" if ch == 0 and ks == 0 else vr(CSA, 16)}')) for ks in range(4)]
    other = [lambda: p('s_waitcnt lgkmcnt(0)')] + mf + fill.get(ch, [])
    for k, g in enumerate(extra):
        g()
        if k >= 1 and other:
            other.pop(0)()
            if k == 1:
                other.pop(0)()
    for g in other:
        g()
p('v_and_b32 v10, 31, v1')
p('v_lshlrev_b32 v10, 2, v10')
p(f's_and_b32 {T[0]}, {s_q}, 1')
p(f's_lshl_b32 {T[0]}, {T[0]}, 7')
p(f'v_add_u32 v11, {T[0]}, v10')
p(f'ds_write_b32 v11, v{CSA} offset:{S_CS + 128}')
p('s_waitcnt lgkmcnt(0)')
R.bar()
R.stamp('B1')
R.dstamp('P2', 'B1')
burst = [warm_wo(R), warm_mall(R, sW1), warm_mall(R, sW2), touch_fl, touch_st]
if OPT['small']:
    burst[1] = burst[2] = lambda: None
if OPT['mallat'] == 8:
    for g in burst:
        g()
p('v_min_u32 v15, 23, v1')
p('v_lshrrev_b32 v16, 3, v15')
p(f'v_add_u32 v16, {s_rb}, v16')
p('v_cmp_le_u32 vcc, 2, v16')
p('v_mov_b32 v13, 0')
p('v_cndmask_b32 v44, v13, v18, vcc')
p('v_mov_b32 v45, v44')
p('v_mov_b32 v46, v44')
p('v_mov_b32 v47, v44')
p(f'v_mul_u32_u24 v15, {VSTR}, v15')
p(f'v_add_u32 v15, {L_V + 1024}, v15')
p('ds_write_b128 v15, v[44:47]')
p('v_mov_b32 v118, 0')
p('v_mov_b32 v119, 1')
p(f's_lshl_b32 {T[0]}, {s_tt}, 7')
p(f'v_add_u32 v11, {T[0]}, v10')
p(f'ds_read_b32 v108, v11 offset:{S_R}')
p(f'ds_read_b32 v109, v11 offset:{S_M}')
R.vm.wait(['wq'])
p(f's_lshl_b32 {T[0]}, {s_q}, 13')
p(f'v_add_u32 v14, {T[0]}, v8')
signal(R, H_WQ, 'v118', 'v119')
R.lg.reset()
for k in range(8 + 3):
    if k < 8:
        for rd in range(2):
            dsr(R, 'ds_read_b64_tr_b16', vr(36 + 4 * (k % 4) + 2 * rd, 2), ['v14'], k * 1024 + rd * 256, ('c', k))
    if k >= 3:
        R.lg.wait([('c', k - 3)])
        p(f'v_mfma_f32_32x32x16_bf16 {vr(CSA, 16)}, {vr(ONE, 4)}, {vr(36 + 4 * ((k - 3) % 4), 4)}, {"0" if k == 3 else vr(CSA, 16)}')
lwait(R, H_WQ, 'v118', 'v12')
p(f's_lshl_b32 {T[0]}, {s_q}, 7')
p(f'v_add_u32 v11, {T[0]}, v10')
p('v_lshrrev_b32 v12, 5, v1')
p('v_lshlrev_b32 v12, 4, v12')
for k in range(32 + 3):
    if k < 32:
        for rd in range(2):
            dsr(R, 'ds_read_b64_tr_b16', vr(36 + 4 * (k % 4) + 2 * rd, 2), ['v8'], k * 1024 + rd * 256, ('q', k))
    if k >= 3:
        R.lg.wait([('q', k - 3)])
        p(f'v_mfma_f32_32x32x16_bf16 {vr(AQ, 16)}, {vr(36 + 4 * ((k - 3) % 4), 4)}, {vr(XQ[k - 3], 4)}, {"0" if k == 3 else vr(AQ, 16)}')
    if OPT['mallat'] == 9 and k in (8, 10, 12, 14, 16):
        burst[(k - 8) // 2]()
    if k == 4:
        p(f'ds_write_b32 v11, v{CSA} offset:{S_CSQ}')
        R.lg.issue('w')
        signal(R, H_CSQ, 'v118', 'v119')
    if k == 20:
        lwait(R, H_CSQ, 'v118', 'v13')
    if k in (21, 23, 25, 27):
        q = (k - 21) // 2
        R.lg.room(4)
        for g in range(4):
            p(f'ds_read_b128 {vr((CSA if q == 0 else 68 + 16 * ((q - 1) % 2)) + 4 * g, 4)}, v12 offset:{S_CSQ + 128 * q + 32 * g}')
            R.lg.issue(('p', q))
    if k in (25, 27, 29):
        q = (k - 23) // 2
        R.lg.wait([('p', q)])
        for i in range(16):
            p(f'v_add_f32 v{CSA + i}, v{CSA + i}, v{68 + 16 * ((q - 1) % 2) + i}')
c = 0.25 * LOG2E
p(f'v_mul_f32 v108, {fhex(c)}, v108')
p(f'v_mul_f32 v109, {fhex(c)}, v109')
for i in range(16):
    p(f'v_mul_f32 v{CSA + i}, v109, v{CSA + i}')
p(f's_lshl_b32 {T[0]}, {s_tt}, 10')
p(f's_add_u32 {T[0]}, {T[0]}, {L_QX}')
p(f'v_add_u32 v14, {T[0]}, v2')
for i in range(16):
    p(f'v_fma_f32 v{AQ + i}, v{AQ + i}, v108, -v{CSA + i}')
for r in range(4):
    p(f'v_cvt_pk_bf16_f32 v{40 + r}, v{AQ + 2 * r}, v{AQ + 2 * r + 1}')
p('ds_write_b128 v14, v[40:43]')
for r in range(4):
    p(f'v_cvt_pk_bf16_f32 v{VQ + r}, v{AQ + 8 + 2 * r}, v{AQ + 8 + 2 * r + 1}')
signal(R, H_Q, 'v118', 'v119')
R.dstamp('P2', 'epi')
lwait(R, C_KV, 'v118', 'v12')
R.stamp('B2')
R.dstamp('P2', 'B2')


def wo_piece(q):
    def f():
        p(f's_lshl_b32 {T[6]}, {s_q}, 14')
        p(f's_add_u32 m0, {T[6]}, {L_WO + q * 1024}')
        p(f's_lshl_b32 {T[6]}, {s_q}, 17')
        p(f's_add_u32 {T[6]}, {T[6]}, {q * 8192}')
        p(f'buffer_load_dwordx4 v115, {sWO}, {T[6]} offen lds')
        R.vm.issue('wo')
    return f


def wo_done():
    R.vm.wait(['wo'])
    signal(R, H_WO, 'v118', 'v119')


wo = [wo_piece(q) for q in range(16)]
if OPT['mallat'] == 11:
    lwait(R, C_FLAG, 'v118', 'v12')
    for g in [burst[1], burst[0], burst[3], burst[4]] + ([burst[2]] if OPT['m2early'] else []):
        g()
if OPT['wopos'] == 0:
    for g in wo:
        g()
    wo = []
att_2a(R)
if OPT['wopos'] == 1 or OPT['mallat'] == 10:
    lwait(R, C_HALO, 'v118', 'v12')
if OPT['mallat'] == 10:
    for g in [burst[1], burst[0], burst[3], burst[4]] + ([burst[2]] if OPT['m2early'] else []):
        g()
if not OPT['wolate']:
    for g in wo:
        g()
    wo = []
R.dstamp('P2', 'pref')
R.bar()
R.stamp('B3')
R.dstamp('P2', 'B3')
p(f'v_mov_b32 v10, {S_MODE}')
p('ds_read_b32 v10, v10')
p('s_waitcnt lgkmcnt(0)')
p(f'v_readfirstlane_b32 {s_mode}, v10')


def w2_groups(lst, regs=None):
    lst = list(lst)
    while len(lst) % 4:
        lst.append(lst[-1])
    gs = []
    if OPT.get('x_now2'):
        return [lambda: None] * (len(lst) // 2)
    for n in range(len(lst) // 4):
        ks = lst[4 * n:4 * n + 4]
        src = [k * 16 * 1024 for k in ks]
        dst = [w2_pos[k] for k in ks]

        def sel(reg, vals):
            d = vals[1] - vals[0]
            if all(vals[q] == vals[0] + q * d for q in range(4)):
                p(f's_mul_i32 {reg}, {s_q}, {d}')
                p(f's_add_u32 {reg}, {reg}, {vals[0]}')
            else:
                p(f's_mov_b32 {reg}, {vals[0]}')
                for q in range(1, 4):
                    p(f's_cmp_eq_u32 {s_q}, {q}')
                    p(f's_cselect_b32 {reg}, {vals[q]}, {reg}')

        def g0(src=src, dst=dst, n=n):
            sel(T[6], src)
            if regs is None:
                sel(T[7], dst)
                p(f's_mov_b32 m0, {T[7]}')
                p(f'buffer_load_dwordx4 v115, {sW2}, {T[6]} offen lds')
            else:
                p(f'buffer_load_dwordx4 {vr(regs[2 * n], 4)}, v115, {sW2}, {T[6]} offen')
            R.vm.issue(('w2', 2 * n))

        def g1(n=n):
            p(f's_add_u32 {T[6]}, {T[6]}, 8192')
            if regs is None:
                p(f's_add_u32 m0, {T[7]}, 1024')
                p(f'buffer_load_dwordx4 v115, {sW2}, {T[6]} offen lds')
            else:
                p(f'buffer_load_dwordx4 {vr(regs[2 * n + 1], 4)}, v115, {sW2}, {T[6]} offen')
            R.vm.issue(('w2', 2 * n + 1))
        gs += [g0, g1]
    return gs


p(f's_setprio {OPT["hprio"]}')
ex = ([touch_st] if OPT['m2at'] >= 2 else []) + ([burst[2]] if OPT['m2at'] == 3 else []) + wo + late[:8] + [wo_done] + late[8:] + ([burst[2]] if OPT['mallat'] >= 10 and not OPT['m2early'] else [])
sl = [lambda: None] * 44
for i, g in enumerate(ex):
    sl[i * 44 // len(ex)] = g
ex = sl
att_2b(R, ex, lambda: None)
p('s_setprio 0')
p('v_min_u32 v10, 47, v1')
p('v_lshlrev_b32 v11, 2, v10')
p(f's_mul_i32 {T[0]}, {s_c}, 192')
p(f'buffer_load_dword v12, v11, {sB1}, {T[0]} offen')
R.vm.issue('b1')
p(f's_mul_i32 {T[0]}, {s_q}, {8 * 3072}')
p(f's_add_u32 {T[0]}, {T[0]}, {BASE}')
p(f'v_add_u32 v3, {T[0]}, v2')
R.bar()
for n in range(24):
    p(f'ds_write_b128 v3, {vr(STG[n], 4)} offset:{n * 1024}')
    if n % 4 == 3:
        p('s_waitcnt lgkmcnt(4)')
LST = [120 + 4 * i for i in range(28)]
gl = w2_groups(late_order, LST)
NC = OPT['w2c']
R.vm.wait(['b1'])
p('v_lshlrev_b32 v14, 16, v12')
p('v_and_b32 v15, 0xffff0000, v12')
p('v_lshlrev_b32 v11, 3, v10')
p(f'ds_write_b64 v11, v[14:15] offset:{S_B1}')
p('v_mov_b32 v16, 0')
p('v_mov_b32 v17, 1')
signal(R, H_W1, 'v16', 'v17')
R.dstamp('P3', 'w1wr')
tr96_lane('v3')
p(f's_min_u32 {T[1]}, {s_q}, 2')
p(f's_lshl_b32 {T[1]}, {T[1]}, 6')
p(f'v_add_u32 v3, {T[1]}, v3')
p('v_add_u32 v4, 0x10000, v3')
p('v_mov_b32 v18, 0x3f803f80')
p('v_mov_b32 v100, 0')
p('v_mov_b32 v101, 0')
lwait(R, C_OIS, 'v16', 'v10')
if OPT['m2at'] == 2:
    p('v_min_u32 v19, 11, v1')
    p('v_lshlrev_b32 v19, 7, v19')
    p(f's_lshl_b32 {T[7]}, s2, 2')
    p(f's_add_u32 {T[7]}, {T[7]}, {s_q}')
    p(f's_mul_i32 {T[7]}, {T[7]}, 1536')
    p(f'buffer_load_dword v254, v19, {sW2}, {T[7]} offen')
for g in w2_groups(W2_REG) + gl[:NC]:
    g()
lwait(R, H_W1, 'v16', 'v10')
for s0 in range(0, 0 if OPT.get('x_nocs') else 36, 4):
    if s0 < 32:
        for s in range(s0, s0 + 4):
            for rd in range(2):
                dsr(R, 'ds_read_b64_tr_b16', vr(20 + 16 * ((s0 // 4) % 2) + 4 * (s % 4) + 2 * rd, 2), ['v3', 'v4'], w1_addr(s) + rd * 1536, ('c', s0))
    if s0 >= 4:
        R.lg.wait([('c', s0 - 4)])
        for r in range(16):
            p(f'v_dot2c_f32_bf16 v{100 + (r & 1)}, v{20 + 16 * ((s0 // 4 - 1) % 2) + r}, v18')
p('v_add_f32 v100, v100, v101')
half_sum('v100', 'v101')
p('v_and_b32 v10, 31, v1')
p('v_lshlrev_b32 v10, 2, v10')
p(f's_lshl_b32 {T[1]}, {T[1]}, 1')
p(f'v_add_u32 v11, {T[1]}, v10')
p(f'ds_write_b32 v11, v100 offset:{S_CS1}')
p(f's_lshl_b32 {T[1]}, {s_rb}, 2')
p(f's_add_u32 {T[1]}, {T[1]}, {s_q}')
p(f's_lshl_b32 {T[2]}, {T[1]}, 7')
p(f's_add_u32 {T[2]}, {T[2]}, {FH}')
p('v_and_b32 v12, 15, v1')
p('v_lshlrev_b32 v12, 2, v12')
p(f'v_add_u32 v12, {T[2]}, v12')
p(f's_lshl_b32 {T[1]}, {T[1]}, 12')
p(f's_add_u32 {T[1]}, {T[1]}, {STB}')
p('v_lshrrev_b32 v13, 5, v1')
p('v_lshlrev_b32 v13, 11, v13')
p('v_lshl_add_u32 v13, v10, 1, v13')
poll(R, 'v12', 'v11', slow=True)
for q in range(8):
    p(f'buffer_load_dwordx2 {vr(20 + 2 * q, 2)}, v13, {sWS}, {T[1]} offen offset:{q * 256} sc1')
p(f's_lshl_b32 {T[0]}, {s_q}, 7')
p(f'v_add_u32 v10, {T[0]}, v10')
p('s_waitcnt vmcnt(0)')
for q in range(1, 8):
    p(f'v_add_f32 v20, v20, v{20 + 2 * q}')
    p(f'v_add_f32 v21, v21, v{21 + 2 * q}')
half_sum('v20', 'v11')
half_sum('v21', 'v11')
ln_finish('v20', 'v21', 'v22', 'v23')
p('v_sub_f32 v23, 0, v23')
p(f'ds_write_b32 v10, v22 offset:{S_R}')
p(f'ds_write_b32 v10, v23 offset:{S_M}')
signal(R, H_TAB, 'v16', 'v17')
R.dstamp('P3', 'cs1')
R.dstamp('P4', 'cs1')
p(f's_lshl_b32 {T[0]}, {s_q}, 11')
p(f's_add_u32 {T[0]}, {T[0]}, {BASE}')
p(f'v_add_u32 v3, {T[0]}, v2')
p('v_add_u32 v4, 0x10000, v3')
lwait(R, C_ISS, 'v16', 'v10')
R.dstamp('P4', 'iss')
for g in w2_groups(W2_P1):
    g()
R.vm.q = ['w2p1' for _ in R.vm.q]
for g in gl[NC:NC + 8]:
    g()
R.vm.wait(['w2p1'])
signal(R, H_P1, 'v16', 'v17')
for g in gl[NC + 8:]:
    g()
R.dstamp('P4', 'late')
lwait(R, C_END, 'v16', 'v10')
for n in range(28):
    R.vm.wait([('w2', n)])
    off = (n // 2) * 8192 + (n % 2) * 1024
    p(f'ds_write_b128 v{3 + off // 65536}, {vr(LST[n], 4)} offset:{off % 65536}')
    if n % 4 == 3:
        p('s_waitcnt lgkmcnt(4)')
signal(R, H_LATE, 'v16', 'v17')
R.dstamp('P5', 'latedone')
L7 = p.newlabel('L_n7')
Le = p.newlabel('L_ep')
Led = p.newlabel('L_epd')
p('s_cmp_lg_u32 s2, 0')
p(f's_cbranch_scc1 {L7}')
p(f's_cmp_lg_u32 {s_w}, 7')
p(f's_cbranch_scc1 {L7}')
p('v_lshrrev_b32 v12, 2, v1')
p('v_lshlrev_b32 v12, 7, v12')
p('v_and_b32 v13, 3, v1')
p('v_lshl_add_u32 v12, v13, 4, v12')
p(f's_mov_b32 {T[0]}, 0')
p.label(Le)
for q in range(16):
    p(f's_mov_b32 {T[1]}, {RST + 2048 * q}')
    p(f'buffer_load_dword v{20 + q}, v12, {sWS}, {T[1]} offen offset:4 sc1')
p('s_waitcnt vmcnt(0)')
p('s_mov_b64 vcc, 0')
for q in range(16):
    p(f'v_cmp_ne_u32 s[90:91], {s_tag}, v{20 + q}')
    p('s_or_b64 vcc, vcc, s[90:91]')
p(f's_cbranch_vccz {Led}')
p(f's_add_u32 {T[0]}, {T[0]}, 1')
p(f's_cmp_lt_u32 {T[0]}, {OPT["spin"]}')
p(f's_cbranch_scc1 {Le}')
p.label(Led)
p('v_mov_b32 v10, 0')
p(f'v_mov_b32 v11, {s_tag}')
p('s_mov_b64 exec, 1')
p(f'buffer_store_dword v11, v10, {sWS}, 0 offen sc1')
p('s_mov_b64 exec, -1')
p.label(L7)
dump_stamps(R)
p.label('L_end')
p('s_endpgm')
while tail:
    tail.pop(0)()
tail = []

R = CW
p.label('L_CW')
if OPT['small']:
    st = OPT['small']
    p('s_waitcnt lgkmcnt(0)')
    p(f's_lshl_b32 {T[0]}, s2, 2')
    p(f's_add_u32 {T[0]}, {T[0]}, {s_q}')
    p(f's_mul_i32 {T[0]}, {T[0]}, 1376')
    for lo in (72, 76):
        p(f's_add_u32 s90, s{lo}, {T[0]}')
        p(f's_addc_u32 s91, s{lo + 1}, 0')
        for o in sorted(set(list(range(0, 1376, st)) + [1372])):
            p(f's_load_dword s92, s[90:91], {o}')
srds_w()
common_setup(R)


def tlbwarm():
    if not OPT['tlbwarm']:
        return
    p('v_and_b32 v250, 7, v1')
    p('v_min_u32 v250, 5, v250')
    p('v_lshlrev_b32 v250, 21, v250')
    p('v_mov_b32 v251, 0')
    p(f'buffer_load_dword v252, v250, {sWS}, 0 offen offset:2048 sc1')
    for k, d in enumerate((sWO, sW1, sW2, sOUT, sB1, sB2)):
        p(f'buffer_load_dword v{254 + (k & 1)}, v251, {d}, 0 offen')
    for _ in range(7):
        R.vm.issue('t')


p(f's_mov_b32 s65, {T[5]}')
make_masks()
p(f's_and_b32 {s_q}, {s_w}, 3')
x_lane('v9')
p(f's_lshl_b32 {T[0]}, {s_rb}, 11')
p(f's_add_u32 {T[0]}, {T[0]}, {RST}')
p(f'v_lshlrev_b32 v8, 4, v10')
p(f'v_add_u32 v8, {T[0]}, v8')
p('v_and_b32 v7, 31, v1')
p('v_lshlrev_b32 v7, 3, v7')
p(f's_lshl_b32 {T[1]}, {s_team}, 8')
p(f's_add_u32 {T[1]}, {T[1]}, {ST}')
p(f'v_add_u32 v7, {T[1]}, v7')
tr_kv_lane('v19')
XF = [20, 36]
WF = [52, 100]
AK, AV = 212, 228
GR = 148


def p1_addrs(ch):
    slot = RING + (ch % NSLOT) * SLOT
    p(f'v_add_u32 v10, {slot}, v9')
    for ks in range(1, 4):
        p(f'v_xor_b32 v{10 + ks}, {32 * ks}, v10')
    p(f'v_add_u32 v14, {slot + 16384}, v19')
    p('v_xor_b32 v15, 64, v14')


def p1_reads(ch):
    b = ch & 1
    out = []
    for ks in range(4):
        out.append(f'ds_read_b128 {vr(XF[b] + 4 * ks, 4)}, v{10 + ks}')
        for sec in (0, 1):
            for rd in range(2):
                out.append(f'ds_read_b64_tr_b16 {vr(WF[b] + 16 * sec + 4 * ks + 2 * rd, 2)}, v{14 + sec} offset:{ks * 2048 + rd * 512}')
    return out


def p1_mfmas(ch):
    a = ch & 1
    out = []
    for ks in range(4):
        first = ch == 0 and ks == 0
        x = vr(XF[a] + 4 * ks, 4)
        c = lambda r: '0' if first else vr(r, 16)
        out.append(f'v_mfma_f32_32x32x16_bf16 {vr(AK, 16)}, {vr(WF[a] + 4 * ks, 4)}, {x}, {c(AK)}')
        out.append(f'v_mfma_f32_32x32x16_bf16 {vr(AV, 16)}, {x}, {vr(WF[a] + 16 + 4 * ks, 4)}, {c(AV)}')
    return out


def weave(R, mf, lds, extra=(), per=3):
    lds = list(lds)
    extra = list(extra)
    n = 0

    def emit_lds(k):
        nonlocal n
        for _ in range(k):
            if not lds:
                return
            if n and n % 7 == 0 and n >= 14:
                p('s_waitcnt lgkmcnt(7)')
            p(lds.pop(0))
            n += 1
    for i, m in enumerate(mf):
        p(m)
        emit_lds(per)
        if extra and i % 3 == 2:
            extra.pop(0)()
    emit_lds(99)
    for g in extra:
        g()


def kv_ids():
    p(f's_lshl_b32 {T[2]}, {s_rb}, 4')
    p(f's_add_u32 {T[2]}, {T[2]}, {s_c}')
    p(f's_lshl_b32 {T[4]}, {T[2]}, 5')
    p(f's_add_u32 {T[4]}, {T[4]}, {s_w}')
    p(f's_lshl_b32 {T[4]}, {T[4]}, 2')
    p(f's_add_u32 {T[4]}, {T[4]}, {FKV}')
    p(f's_lshl_b32 {T[5]}, {s_w}, 12')
    p(f's_add_u32 {T[5]}, {T[5]}, {s_area}')
    p(f's_add_u32 {T[2]}, {T[5]}, {32 * 16384}')


def kv_clear():
    for r in range(4):
        p(f'v_mov_b32 v{244 + r}, -1')
    for q in range(4):
        p(f'buffer_store_dwordx4 v[244:247], v2, {sWS}, {T[2]} offen offset:{q * 1024} sc1')
        R.vm.issue('st')


def kv_cleared():
    flag_store(R, T[4], 'v248', 'v249', moded=False)


kv_ids()
if OPT['kvtag'] and OPT['clrat'] == -1:
    kv_clear()
p(f's_cmp_ge_u32 {s_rb}, 1')
p(f's_cselect_b32 {T[0]}, {16 * 128}, 0')
p(f's_sub_u32 {T[0]}, {T[4]}, {T[0]}')
p(f's_cmp_ge_u32 {s_rb}, 2')
p(f's_cselect_b32 {T[1]}, {2 * 16 * 128}, 0')
p(f's_sub_u32 {T[1]}, {T[4]}, {T[1]}')
p(f'v_mov_b32 v6, {T[0]}')
p(f'v_mov_b32 v11, {T[1]}')
p('v_and_b32 v12, 1, v1')
p('v_cmp_eq_u32 vcc, 1, v12')
p('v_cndmask_b32 v6, v6, v11, vcc')
row_stats(R)
p1_addrs(0)
R.stamp('start')
CSQ, CSK, RR, MM, CSV = 52, 68, 20, 84, 152
for ch in range(8):
    p('s_waitcnt lgkmcnt(0)')
    if ch >= 4:
        R.dstamp('P1', f'pre{ch}')
    R.bar()
    R.dstamp('P1', f'bar{ch}')
    extra = []
    if ch == 5:
        def ld():
            p(f'buffer_load_dwordx4 {vr(GR, 4)}, v8, {sWS}, 0 offen sc1')
            p(f'buffer_load_dwordx2 v[156:157], v7, {sWS}, 0 offen sc1')
            R.vm.issue('gr')
            R.vm.issue('gr')
            if OPT['fkvt']:
                p(f'buffer_load_dword v253, v6, {sWS}, 0 offen sc1')
                R.vm.issue('t')

        extra = [ld]
    if ch == 0:
        extra = [tlbwarm]
    if OPT.get('probe') and ch == 2:
        def probe():
            p(f'v_mov_b32 v250, {OPT["probe"]}')
            if OPT.get('probe_n'):
                p(f'v_min_u32 v251, {OPT["probe_n"] - 1}, v1')
                p(f'v_lshlrev_b32 v251, {OPT.get("probe_sh", 21)}, v251')
                p('v_add_u32 v250, v250, v251')
            if OPT.get('probe_spread'):
                p(f's_lshl_b32 {T[7]}, s2, 9')
                p(f'v_add_u32 v250, {T[7]}, v250')
            d = {0: sWS, 1: sWO, 2: sW1, 3: sW2, 4: sOUT, 5: sB1, 6: sB2}[OPT.get('probe_buf', 0)]
            p(f'buffer_load_dword v252, v250, {d}, 0 offen')
            R.vm.issue('t')
        extra = extra + [probe]
    if OPT['mallat'] == 20 + ch:
        def cw_burst():
            p('v_min_u32 v17, 11, v1')
            p('v_lshlrev_b32 v17, 7, v17')
            for g in (warm_mall(R, sW1), warm_wo(R), touch_fl) + ((warm_mall(R, sW2), touch_st) if OPT['m2at'] == 0 else ()):
                g()
        extra = extra + [cw_burst]
    if ch == OPT['clrat'] and OPT['kvtag']:
        extra = extra + [kv_clear]
    if ch == OPT['clrdone'] and OPT['kvtag']:
        extra = [kv_cleared]
    weave(R, p1_mfmas(ch - 1) if ch else [], p1_reads(ch), extra)
    if ch < 7:
        p1_addrs(ch + 1)
Lg = p.newlabel('L_gr')
Lgx = p.newlabel('L_grx')
R.vm.wait(['gr'])
p(f's_mov_b32 {T[0]}, 0')
p.label(Lg)
p(f'v_cmp_ne_u32 vcc, {s_tag}, v{GR + 1}')
p(f'v_cmp_ne_u32 s[90:91], {s_tag}, v{GR + 3}')
p('s_or_b64 vcc, vcc, s[90:91]')
p(f'v_cmp_ne_u32 s[90:91], {s_tag}, v156')
p('s_or_b64 vcc, vcc, s[90:91]')

p(f's_cbranch_vccnz {Lgx}')
Lgd = p.newlabel('L_grd')
p.label(Lgd)


def gr_retry():
    p.label(Lgx)
    p(f'buffer_load_dwordx4 {vr(GR, 4)}, v8, {sWS}, 0 offen sc1')
    p(f'buffer_load_dwordx2 v[156:157], v7, {sWS}, 0 offen sc1')
    p('s_waitcnt vmcnt(0)')
    p(f's_add_u32 {T[0]}, {T[0]}, 1')
    p(f's_cmp_lt_u32 {T[0]}, {OPT["spin"]}')
    p(f's_cbranch_scc1 {Lg}')
    p(f's_branch {Lgd}')


tail.append(gr_retry)
p(f'v_readfirstlane_b32 {T[1]}, v157')
p(f'v_cmp_ne_u32 vcc, {T[1]}, v157')
p('s_cmp_eq_u64 vcc, 0')
p(f's_cselect_b32 {s_mode}, 1, 0')
if OPT['force_safe']:
    p(f's_mov_b32 {s_mode}, 0')
p(f'v_mov_b32 v10, {S_MODE}')
p(f'v_mov_b32 v11, {s_mode}')
p('ds_write_b32 v10, v11')
p('v_and_b32 v10, 31, v1')
p('v_lshlrev_b32 v10, 2, v10')
p(f's_lshl_b32 {T[0]}, {s_tt}, 7')
p(f'v_add_u32 v11, {T[0]}, v10')
p(f'ds_write_b32 v11, v{GR} offset:{S_R}')
p(f'ds_write_b32 v11, v{GR + 2} offset:{S_M}')
p('v_lshrrev_b32 v12, 5, v1')
p('v_lshlrev_b32 v12, 4, v12')
p(f'v_add_u32 v13, {T[0]}, v12')
p('s_waitcnt lgkmcnt(0)')
R.bar()
R.stamp('B1')
R.dstamp('P2', 'B1')
lds = [f'ds_read_b128 {vr(CSK + 4 * g, 4)}, v12 offset:{S_CS + 128 + 32 * g}' for g in range(4)]
lds += [f'ds_read_b32 v{CSV}, v10 offset:{S_CS + 256}']
lds += [f'ds_read_b128 {vr(MM + 4 * g, 4)}, v13 offset:{S_M + 32 * g}' for g in range(4)]
lds += [f'ds_read_b128 {vr(RR + 4 * g, 4)}, v13 offset:{S_R + 32 * g}' for g in range(4)]


def pub_addrs():
    p(f's_lshl_b32 {T[0]}, {s_tt}, 11')
    p(f's_add_u32 {T[1]}, {T[0]}, {L_K + 8 * 2048}')
    p(f'v_add_u32 v15, {T[1]}, v2')
    p(f's_mul_i32 {T[0]}, {s_tt}, {2 * VSTR}')
    p(f's_add_u32 {T[0]}, {T[0]}, {L_V + 16 * VSTR}')
    p(f'v_add_u32 v16, {T[0]}, v2')


mf = p1_mfmas(7)
mf = mf[0::2] + mf[1::2]


def st_pair(reg, off):
    def f():
        if OPT['kvtag']:
            for r in range(0, 8, 2):
                p(f'v_min_u32 v{reg + r}, -2, v{reg + r}')
        for g in range(2):
            p(f'buffer_store_dwordx4 {vr(reg + 4 * g, 4)}, v2, {sWS}, {T[2]} offen offset:{off + g * 1024} sc1')
            R.vm.issue('st')
    return f


PKK, PKV = 244, 52
for x in lds[:9]:
    p(x)
p(mf[0])
for x in lds[9:13]:
    p(x)
p(mf[1])
pub_addrs()
p(mf[2])
p('s_waitcnt lgkmcnt(9)')
for i in range(8):
    p(f'v_mul_f32 v{CSK + i}, v{GR + 2}, v{CSK + i}')
p(mf[3])
for i in range(8, 16):
    p(f'v_mul_f32 v{CSK + i}, v{GR + 2}, v{CSK + i}')
p(mf[4])
p('s_waitcnt lgkmcnt(4)')
for i in range(8):
    p(f'v_mul_f32 v{MM + i}, v{CSV}, v{MM + i}')
p(mf[5])
for i in range(8, 16):
    p(f'v_mul_f32 v{MM + i}, v{CSV}, v{MM + i}')
kops = [f'v_fma_f32 v{AK + i}, v{AK + i}, v{GR}, -v{CSK + i}' for i in range(16)]
kops += [f'v_cvt_pk_bf16_f32 v{PKK + r}, v{AK + 2 * r}, v{AK + 2 * r + 1}' for r in range(8)]
for m in (6, 7):
    p(mf[m])
    for x in kops[8 * (m - 6):8 * (m - 5)]:
        p(x)
for x in kops[16:]:
    p(x)
st_pair(PKK, 0)()
p('s_waitcnt lgkmcnt(0)')
for i in range(16):
    p(f'v_fma_f32 v{AV + i}, v{AV + i}, v{RR + i}, -v{MM + i}')
for r in range(8):
    p(f'v_cvt_pk_bf16_f32 v{PKV + r}, v{AV + 2 * r}, v{AV + 2 * r + 1}')
st_pair(PKV, 2048)()
for g in range(2):
    p(f'ds_write_b128 v15, {vr(PKK + 4 * g, 4)} offset:{g * 1024}')
    p(f'ds_write_b128 v16, {vr(PKV + 4 * g, 4)} offset:{g * VSTR}')
p(f's_lshl_b32 {T[0]}, {s_tt}, 10')
p(f's_add_u32 {T[0]}, {T[0]}, {L_QX}')
p(f'v_add_u32 v12, {T[0]}, v2')
p('v_mov_b32 v102, 0')
p('v_mov_b32 v103, 1')
signal(R, C_KV, 'v102', 'v103')
att_addrs()
R.dstamp('P2', 'epi')
if not OPT['kvtag']:
    flag_store(R, T[4], 'v10', 'v11', moded=False)
signal(R, C_FLAG, 'v102', 'v103')
R.stamp('KVflag')
R.dstamp('P2', 'KVflag')
p('v_mov_b32 v13, v12')


def cw_2a():
    lwait(R, H_Q, 'v102', 'v10')
    lwait(R, C_KV, 'v102', 'v10')
    p(f'ds_read_b128 {vr(VQ, 4)}, v13')
    att_2a(R)


if OPT['a_first']:
    cw_2a()
p(f's_add_u32 {T[3]}, {T[5]}, {16 * 16384}')
p(f'v_subrev_u32 v15, {8 * 2048}, v15')
p(f'v_subrev_u32 v16, {16 * VSTR}, v16')


def halo_loads():
    for d in (1, 2):
        for q in range(4):
            p(f'buffer_load_dwordx4 {vr(HALO + 16 * (2 - d) + 4 * q, 4)}, v2, {sWS}, {T[3] if d == 1 else T[5]} offen offset:{q * 1024} sc1')


if not OPT['kvtag']:
    poll(R, 'v6', 'v11')
else:
    p(f's_add_u32 {T[0]}, {T[3]}, 4080')
    p(f's_add_u32 {T[1]}, {T[5]}, 4080')
    p(f'v_mov_b32 v10, {T[0]}')
    p(f'v_mov_b32 v11, {T[1]}')
    p('v_and_b32 v12, 1, v1')
    p('v_cmp_eq_u32 vcc, 1, v12')
    p('v_cndmask_b32 v10, v10, v11, vcc')
    p(f'v_add_u32 v12, 1, v12')
    p(f'v_cmp_ge_u32 s[90:91], {s_rb}, v12')
    p('v_cmp_le_u32 vcc, 32, v1')
    p('v_cndmask_b32 v10, v10, v6, vcc')
    p('s_mov_b32 s91, 0')
    Lk = p.newlabel('L_kv')
    Lkx = p.newlabel('L_kvx')
    Lkd = p.newlabel('L_kvd')
    p(f's_mov_b32 {T[0]}, 0')
    p.label(Lk)
    p(f'buffer_load_dword v11, v10, {sWS}, 0 offen sc1')
    p('s_waitcnt vmcnt(0)')
    p('v_cmp_eq_u32 vcc, -1, v11')
    p('s_and_b64 vcc, vcc, s[90:91]')
    p(f'v_cmp_ne_u32 s[92:93], {s_tag}, v11')
    p('s_or_b32 vcc_hi, vcc_hi, s93')
    p(f's_cbranch_vccnz {Lkx}')
    p.label(Lkd)
    R.vm.reset()

    def kvx():
        p.label(Lkx)
        p(f's_add_u32 {T[0]}, {T[0]}, 1')
        p(f's_cmp_lt_u32 {T[0]}, {OPT["spin"]}')
        p(f's_cbranch_scc1 {Lk}')
        p(f's_branch {Lkd}')
    tail.append(kvx)
R.dstamp('P2', 'kvpoll')
halo_loads()
signal(R, C_HALO, 'v102', 'v103')
if OPT['m2at'] == 1:
    warm_mall(R, sW2)()
    touch_st()
NX = 2 if OPT['m2at'] == 1 else 0
if not OPT['a_first']:
    cw_2a()
XRES = 240
HRES = 248
p('v_and_b32 v10, 31, v1')
p(f's_lshl_b32 {T[0]}, {s_rs}, 1')
p(f's_add_u32 {s_tile}, {T[0]}, {s_t}')
p(f's_lshl_b32 {T[0]}, {s_tile}, 5')
p(f'v_add_u32 v10, {T[0]}, v10')
p('v_lshlrev_b32 v10, 10, v10')
p('v_lshrrev_b32 v11, 5, v1')
p('v_lshl_add_u32 v10, v11, 3, v10')
p(f's_lshl_b32 {T[0]}, {s_cb}, 7')
p(f's_lshl_b32 {T[1]}, {s_kh}, 6')
p(f's_add_u32 {T[0]}, {T[0]}, {T[1]}')
p(f'v_add_u32 v9, {T[0]}, v10')
Lz = p.newlabel('L_nohalo')
Lw = p.newlabel('L_halow')
Lzc = p.newlabel('L_zc')
p(f's_mov_b32 {T[0]}, 0')
p.label(Lzc)
p(f's_cmp_lt_u32 {s_rb}, 2')
p(f's_cbranch_scc1 {Lz}')
p.label(Lw)
if OPT['kvtag']:
    Lw2 = Lw


def zero_blk():
    L1 = p.newlabel('L_z1')
    p.label(Lz)
    p('s_waitcnt vmcnt(0)')
    for r in range(16):
        p(f'v_mov_b32 v{HALO + r}, 0')
    p(f's_cmp_eq_u32 {s_rb}, 1')
    p(f's_cbranch_scc1 {Lw}')
    for r in range(16):
        p(f'v_mov_b32 v{HALO + 16 + r}, 0')
    p(f's_branch {Lw}')


tail.append(zero_blk)
if OPT['kvtag']:
    Lv = p.newlabel('L_hv')
    Lvx = p.newlabel('L_hvx')
    Lvd = p.newlabel('L_hvd')
    p('s_waitcnt vmcnt(0)')
    p(f'v_max3_u32 v10, v{HALO}, v{HALO + 2}, v{HALO + 4}')
    p(f'v_max3_u32 v11, v{HALO + 6}, v{HALO + 8}, v{HALO + 10}')
    for k, r in enumerate(range(12, 32, 4)):
        p(f'v_max3_u32 v{10 + (k & 1)}, v{10 + (k & 1)}, v{HALO + r}, v{HALO + r + 2}')
    p('v_max_u32 v10, v10, v11')
    p('v_cmp_eq_u32 vcc, -1, v10')
    p(f's_cbranch_vccnz {Lvx}')
    p.label(Lvd)

    def hvx():
        p.label(Lvx)
        p(f's_add_u32 {T[0]}, {T[0]}, 1')
        p(f's_cmp_ge_u32 {T[0]}, {OPT["spin"]}')
        p(f's_cbranch_scc1 {Lvd}')
        halo_loads()
        p(f's_branch {Lzc}')
    tail.append(hvx)
for g in range(2):
    p(f's_waitcnt vmcnt({7 - g + NX})')
    p(f'ds_write_b128 v15, {vr(HALO + 16 + 4 * g, 4)} offset:{4 * 2048 + g * 1024}')
for g in range(2):
    p(f's_waitcnt vmcnt({5 - g + NX})')
    p(f'ds_write_b128 v16, {vr(HALO + 24 + 4 * g, 4)} offset:{(8 + g) * VSTR}')
R.vm.q = [('hb', g) for g in range(4)] + ['t'] * NX


def halo2(g):
    def f():
        R.vm.wait([('hb', g)])
        R.lg.room(1)
        if g < 2:
            p(f'ds_write_b128 v15, {vr(HALO + 4 * g, 4)} offset:{g * 1024}')
        else:
            p(f'ds_write_b128 v16, {vr(HALO + 4 * g, 4)} offset:{(g - 2) * VSTR}')
        R.lg.issue('hw')
    return f


def halo_done():
    p(f's_add_u32 {T[4]}, {T[4]}, 16')
    R.vm.q = []
    p(f'v_mov_b32 v10, {T[4]}')
    p(f'v_mov_b32 v11, {s_tag}')
    p('s_mov_b64 exec, 1')
    p(f'buffer_store_dword v11, v10, {sWS}, 0 offen sc1')
    p('s_mov_b64 exec, -1')
    for g in range(4):
        p(f'buffer_load_dwordx2 {vr(XRES + 2 * g, 2)}, v9, {sX}, 0 offen offset:{16 * g}')
        R.vm.issue('xres')


for g in range(4):
    halo2(g)()
halo_done()
tr64_lanes('v4', 'v5')
p(f's_lshl_b32 {T[0]}, {s_kh}, 6')
p(f'v_xor_b32 v4, {T[0]}, v4')
p(f'v_xor_b32 v5, {T[0]}, v5')
p(f's_lshl_b32 {T[0]}, {s_kh}, 15')
p(f's_add_u32 {T[0]}, {T[0]}, {L_WO}')
p(f'v_add_u32 v6, {T[0]}, v4')
p(f'v_add_u32 v7, {T[0]}, v5')
p('s_waitcnt lgkmcnt(0)')
R.dstamp('P2', 'halo')
R.bar()
R.stamp('B3')
R.dstamp('P2', 'B3')
WOF, OF, ACC3 = 16, 144, 208


def wo_reads(lo, hi):
    for s in range(lo, hi):
        for nt in range(2):
            for rd in range(2):
                p(f'ds_read_b64_tr_b16 {vr(WOF + 8 * s + 4 * nt + 2 * rd, 2)}, v{6 + nt} offset:{s * 2048 + rd * 1024}')
        if s % 2 == 1:
            p('s_waitcnt lgkmcnt(4)')


def cw_wo():
    p('v_mov_b32 v102, 0')
    lwait(R, H_WO, 'v102', 'v10')
    wo_reads(0, 8)


att_2b(R, [], cw_wo)
p('s_setprio 2')
wo_reads(8, 16)
p('v_and_b32 v8, 15, v1')
p('v_lshlrev_b32 v8, 2, v8')
p(f's_lshl_b32 {T[0]}, {s_tile}, 1')
p(f's_add_u32 {T[0]}, {T[0]}, {s_kh}')
p(f's_lshl_b32 {T[1]}, {s_rb}, 18')
p(f's_lshl_b32 {T[2]}, {s_kh}, 17')
p(f's_add_u32 {T[1]}, {T[1]}, {T[2]}')
p(f's_and_b32 {T[2]}, {s_tile}, 3')
p(f's_lshl_b32 {T[2]}, {T[2]}, 12')
p(f's_add_u32 {T[1]}, {T[1]}, {T[2]}')
p(f's_lshl_b32 {T[0]}, {T[0]}, 6')
p(f's_add_u32 {T[0]}, {T[0]}, {FO}')
p(f'v_add_u32 v10, {T[0]}, v8')
for g in range(4):
    for k in range(2):
        x = XRES + 2 * g + k
        p(f'v_lshlrev_b32 v{ACC3 + 4 * g + 2 * k}, 16, v{x}')
        p(f'v_and_b32 v{ACC3 + 4 * g + 2 * k + 1}, 0xffff0000, v{x}')
p('s_waitcnt lgkmcnt(0)')
R.bar()
R.dstamp('P3', 'B5')
poll(R, 'v10', 'v11')
R.stamp('Opoll')
R.dstamp('P3', 'Opoll')


def o_load(s):
    if s % 2 == 0:
        p(f's_add_u32 {T[2]}, {T[1]}, {AREA + (s // 2) * 16384}')
    p(f'buffer_load_dwordx4 {vr(OF + 4 * s, 4)}, v2, {sWS}, {T[2]} offen offset:{(s % 2) * 1024} sc1')
    R.vm.issue(('o', s))


def xchg_addrs(area):
    p(f's_lshl_b32 {T[0]}, {s_w}, 12')
    p(f's_add_u32 {T[0]}, {T[0]}, {area}')
    p(f'v_add_u32 v10, {T[0]}, v2')
    p(f's_xor_b32 {T[0]}, {s_w}, 2')
    p(f's_lshl_b32 {T[0]}, {T[0]}, 12')
    p(f's_add_u32 {T[0]}, {T[0]}, {area}')
    p(f'v_add_u32 v11, {T[0]}, v2')


def xchg_finish(R, acc, dst, pair=False):
    if pair:
        signal(R, X_P0, 'v14', 'v13')
        lwait(R, X_P0, 'v14', 'v15', n=2)
    else:
        p('s_waitcnt lgkmcnt(0)')
        R.bar()
    for g in range(4):
        p(f'ds_read_b128 {vr(dst + 4 * g, 4)}, v11 offset:{g * 1024}')
    for g in range(4):
        p(f's_waitcnt lgkmcnt({3 - g})')
        for i in range(4):
            p(f'v_add_f32 v{dst + 4 * g + i}, v{dst + 4 * g + i}, v{acc + 4 * g + i}')
    R.lg.reset()


TAILN = 5
AH = OPT['aho']
for s in range(AH):
    o_load(s)
xchg_addrs(L_HI)
p('v_mov_b32 v12, 0')
p('v_mov_b32 v13, 1')
p(f's_lshl_b32 {T[0]}, {s_t}, 2')
p(f'v_mov_b32 v14, {T[0]}')
seq3 = [(s, nt) for s in range(16 - TAILN) for nt in (1, 0)] + [(s, 1) for s in range(16 - TAILN, 16)] + [(s, 0) for s in range(16 - TAILN, 16)]
no = AH
for k, (s, nt) in enumerate(seq3):
    R.vm.wait([('o', s)])
    p(f'v_mfma_f32_32x32x16_bf16 {vr(ACC3 + 16 * nt, 16)}, {vr(WOF + 8 * s + 4 * nt, 4)}, {vr(OF + 4 * s, 4)}, {"0" if s == 0 and nt == 1 else vr(ACC3 + 16 * nt, 16)}')
    if no < 16:
        o_load(no)
        no += 1
        if no == 16:
            signal(R, C_OIS, 'v12', 'v13')
    g = k - (len(seq3) - 4)
    if g >= 0:
        p(f'ds_write_b128 v10, {vr(ACC3 + 16 + 4 * g, 4)} offset:{g * 1024}')
R.dstamp('P3', 'loop')
xchg_finish(R, ACC3, 16, pair=True)
R.dstamp('P3', 'xchg')
for r in range(8):
    p(f'v_cvt_pk_bf16_f32 v{HRES + r}, v{16 + 2 * r}, v{16 + 2 * r + 1}')
p(f's_lshl_b32 {T[0]}, {s_cb}, 1')
p(f's_add_u32 {T[0]}, {T[0]}, {s_kh}')
p(f's_lshl_b32 {T[3]}, {s_tile}, 4')
p(f's_add_u32 {T[3]}, {T[3]}, {T[0]}')
p(f's_add_u32 {T[1]}, {T[5]}, 2048')
moded_stores(R, [f'buffer_store_dwordx4 {vr(HRES, 4)}, v2, {sWS}, {T[1]} offen',
                 f'buffer_store_dwordx4 {vr(HRES + 4, 4)}, v2, {sWS}, {T[1]} offen offset:1024'], OPT['hsc1'])
p('v_mov_b32 v18, 0x3f803f80')
p('v_mov_b32 v12, 0')
p('v_mov_b32 v13, 0')
for r in range(8):
    p(f'v_dot2c_f32_bf16 v12, v{HRES + r}, v18')
    p(f'v_dot2c_f32_bf16 v13, v{HRES + r}, v{HRES + r}')
p(f's_lshl_b32 {T[2]}, {T[3]}, 8')
p(f's_add_u32 {T[2]}, {T[2]}, {STB}')
p(f's_lshl_b32 {T[3]}, {s_tile}, 5')
p(f's_add_u32 {T[3]}, {T[3]}, {T[0]}')
p(f's_lshl_b32 {T[3]}, {T[3]}, 2')
p(f's_add_u32 {T[3]}, {T[3]}, {FH}')
p('v_and_b32 v14, 31, v1')
p('v_lshlrev_b32 v14, 3, v14')
half_sum('v12', 'v10')
half_sum('v13', 'v10')
moded_stores(R, [f'buffer_store_dwordx2 v[12:13], v14, {sWS}, {T[2]} offen'], OPT['hsc1'])
p('v_mov_b32 v246, 0')
p('v_mov_b32 v247, 1')
lwait(R, H_W1, 'v246', 'v10')
HF, ACC4, W1B, STL = 16, 144, 192, 228
tr96_lane('v3')
p('v_add_u32 v6, 0x10000, v3')
W1A = ['v3', 'v6']


def w1_reads(s):
    b = W1B + 12 * (s % 3)
    for nt in range(3):
        for rd in range(2):
            dsr(R, 'ds_read_b64_tr_b16', vr(b + 4 * nt + 2 * rd, 2), W1A, w1_addr(s) + rd * 1536 + nt * 64, ('w1', s))


w1_reads(0)
w1_reads(1)
flag_store(R, T[3], 'v10', 'v11')
R.stamp('Hflag')
R.dstamp('P3', 'Hflag')
p(f's_lshl_b32 {T[0]}, {s_rb}, 2')
p(f's_add_u32 {T[7]}, {T[0]}, {s_w}')
p(f's_lshl_b32 {T[1]}, {s_rb}, 18')
p(f's_lshl_b32 {T[2]}, {s_kh}, 17')
p(f's_add_u32 {T[1]}, {T[1]}, {T[2]}')
p(f's_lshl_b32 {T[2]}, {s_t}, 12')
p(f's_add_u32 {T[1]}, {T[1]}, {T[2]}')
p(f's_lshl_b32 {T[0]}, {T[7]}, 7')
p(f's_add_u32 {T[0]}, {T[0]}, {FH}')
p(f'v_add_u32 v10, {T[0]}, v8')
poll(R, 'v10', 'v11')
R.stamp('Hpoll')
R.dstamp('P4', 'Hpoll')


def h_load(s):
    if s % 2 == 0:
        p(f's_add_u32 {T[2]}, {T[1]}, {AREA + (s >> 2) * 16384 + ((s >> 1) & 1) * 8192}')
    p(f'buffer_load_dwordx4 {vr(HF + 4 * s, 4)}, v2, {sWS}, {T[2]} offen offset:{2048 + (s % 2) * 1024} sc1')
    R.vm.issue(('h', s))


S0 = OPT['s0']
nh = 0
for s in range(OPT['ahh']):
    h_load(nh)
    nh += 1
p('v_lshrrev_b32 v13, 1, v14')
p(f's_lshl_b32 {T[0]}, {s_w}, 7')
p(f'v_add_u32 v13, {T[0]}, v13')
p('v_lshrrev_b32 v12, 5, v1')
p('v_lshlrev_b32 v12, 4, v12')
p(f's_lshl_b32 {T[4]}, {T[7]}, 4')
p(f's_add_u32 {T[4]}, {T[4]}, {s_c}')
p(f's_lshl_b32 {T[4]}, {T[4]}, 12')
p(f's_add_u32 {T[4]}, {T[4]}, {H1B}')
p(f's_lshl_b32 {T[3]}, {T[7]}, 5')
p(f's_add_u32 {T[3]}, {T[3]}, {s_c}')
p(f's_lshl_b32 {T[3]}, {T[3]}, 2')
p(f's_add_u32 {T[3]}, {T[3]}, {FH1}')


seq = [(s, nt) for s in range(S0) for nt in range(3)] + [(s, nt) for nt in range(3) for s in range(S0, 32)]
EB = [48, 16, 48] if S0 >= 16 else None


def epi_ops(nt):
    e = EB[nt]
    pk = STL + 8 * (nt & 1)
    ops = []
    r = e + 16
    for i in range(16):
        ops.append(f'v_fmac_f32 v{r + i}, v{ACC4 + 16 * nt + i}, v244')
        if i >= 1:
            ops.append(f'v_max_f32 v{r + i - 1}, 0, v{r + i - 1}')
        if i >= 2:
            ops.append(f'v_mul_f32 v{r + i - 2}, v{r + i - 2}, v{r + i - 2}')
        if i >= 4 and i % 2 == 0:
            ops.append(f'v_cvt_pk_bf16_f32 v{pk + (i - 4) // 2}, v{r + i - 4}, v{r + i - 3}')
    ops += [f'v_max_f32 v{r + 15}, 0, v{r + 15}', f'v_mul_f32 v{r + 14}, v{r + 14}, v{r + 14}', f'v_mul_f32 v{r + 15}, v{r + 15}, v{r + 15}',
            f'v_cvt_pk_bf16_f32 v{pk + 6}, v{r + 12}, v{r + 13}', f'v_cvt_pk_bf16_f32 v{pk + 7}, v{r + 14}, v{r + 15}']
    st = []
    for g in range(2):
        f = 2 * nt + g
        st.append(f'buffer_store_dwordx4 {vr(pk + 4 * g, 4)}, v2, {sWS}, {T[4] if f < 4 else T[5]} offen offset:{(f % 4) * 1024}')
    ops.append(st if nt == 2 else tuple(st))
    return ops


def emit_op(x):
    if isinstance(x, (list, tuple)):
        moded_stores(R, x, isinstance(x, tuple))
    else:
        p(x)


def e_reads(nt):
    R.lg.room(8)
    for g in range(4):
        p(f'ds_read_b128 {vr(EB[nt] + 4 * g, 4)}, v12 offset:{S_CS1 + 128 * nt + 32 * g}')
        R.lg.issue(('e', nt))
    for g in range(4):
        p(f'ds_read_b128 {vr(EB[nt] + 16 + 4 * g, 4)}, v12 offset:{S_B1 + 128 * nt + 32 * g}')
        R.lg.issue(('e', nt))


def e_comb(nt):
    return [f'v_fmac_f32 v{EB[nt] + 16 + i}, v245, v{EB[nt] + i}' for i in range(16)]


W2R = 16
PRE = 6
bufs = {}
for k in range(PRE):
    s, nt = seq[k]
    bufs[k] = W1B + 4 * k
valu = []
OPT_K = {0: (0,), 1: (0, 48), 2: (0, 24, 48, 72)}[OPT.get('pk', 0)]
for k, (s, nt) in enumerate(seq):
    if s < S0 and nt == 0 or s >= S0 and nt == 0:
        R.vm.wait([('h', s)])
    if k in OPT_K:
        R.dstamp('P4', f'k{k}')
    R.lg.wait([('w1', s) if k < PRE else ('w1', s, nt)])
    p(f'v_mfma_f32_32x32x16_bf16 {vr(ACC4 + 16 * nt, 16)}, {vr(bufs[k], 4)}, {vr(HF + 4 * s, 4)}, {"0" if s == 0 else vr(ACC4 + 16 * nt, 16)}')
    if k + PRE < len(seq):
        s2, nt2 = seq[k + PRE]
        b = W1B + 4 * ((k + PRE) % 9)
        bufs[k + PRE] = b
        for rd in range(2):
            dsr(R, 'ds_read_b64_tr_b16', vr(b + 2 * rd, 2), W1A, w1_addr(s2) + rd * 1536 + nt2 * 64, ('w1', s2, nt2))
    if nh < 32 and k % OPT['hrate'] == 1:
        h_load(nh)
        nh += 1
        if nh == 32:
            signal(R, C_ISS, 'v246', 'v247')
    if k == 3 * S0 - 6:
        p(f'ds_read_b32 v10, v246 offset:{H_TAB}')
        R.lg.issue(H_TAB)
    seg = (k - 3 * S0) // (32 - S0) if k >= 3 * S0 else -1
    pos = (k - 3 * S0) % (32 - S0)
    if k == 3 * S0:
        lwait(R, H_TAB, 'v246', 'v10', early=True)
        R.lg.room(2)
        p(f'ds_read_b32 v244, v13 offset:{S_R}')
        p(f'ds_read_b32 v245, v13 offset:{S_M}')
        R.lg.issue('rm')
        R.lg.issue('rm')
    if seg >= 0 and pos == (1 if seg == 0 else 32 - S0 - 5):
        e_reads(seg)
    if seg >= 0 and pos == (5 if seg == 0 else 32 - S0 - 3):
        R.lg.wait([('e', seg)])
        valu += e_comb(seg)
    if seg >= 1 and pos == 1:
        valu += epi_ops(seg - 1)
    n = -(-76 // (32 - S0 - 1)) if seg >= 1 else 4
    if OPT.get('x_noepi') and seg >= 0:
        valu = [x for x in valu if isinstance(x, (list, tuple))]
    for _ in range(n):
        if valu:
            emit_op(valu.pop(0))
for x in valu:
    emit_op(x)
R.dstamp('P4', 'loop')
p('v_lshrrev_b32 v10, 5, v1')
p('v_lshlrev_b32 v10, 3, v10')
p(f's_lshl_b32 {T[0]}, {s_cb}, 7')
p(f's_lshl_b32 {T[1]}, {s_kh}, 6')
p(f's_add_u32 {T[0]}, {T[0]}, {T[1]}')
for g in range(4):
    p(f'buffer_load_dwordx2 {vr(200 + 2 * g, 2)}, v10, {sB2}, {T[0]} offen offset:{16 * g}')
    R.vm.issue('b2')
for x in epi_ops(2):
    emit_op(x)
p(f's_lshl_b32 {T[0]}, {s_kh}, 13')
p(f's_add_u32 {T[0]}, {T[0]}, {L_X}')
p(f'v_add_u32 v6, {T[0]}, v4')
p(f'v_add_u32 v7, {T[0]}, v5')
for s in range(4):
    for nt in range(2):
        for rd in range(2):
            p(f'ds_read_b64_tr_b16 {vr(W2R + 8 * s + 4 * nt + 2 * rd, 2)}, v{6 + nt} offset:{s * 2048 + rd * 1024}')
    if s == 1:
        p('s_waitcnt lgkmcnt(4)')
R.lg.reset()
signal(R, C_END, 'v246', 'v247')
R.stamp('P4end')
R.dstamp('P4', 'epi')
ACC5, W2B, H1F, B2R = 48, 80, 136, 200
NWB = 7
NRING = 16
p(f's_mul_i32 {T[0]}, {s_kh}, {11 * 2048}')
p(f'v_add_u32 v6, {T[0]}, v4')
p(f'v_add_u32 v7, {T[0]}, v5')
p('v_add_u32 v6, 0x10000, v6')
p('v_add_u32 v7, 0x10000, v7')
p('v_add_u32 v12, 0x10000, v6')
p('v_add_u32 v13, 0x10000, v7')
p(f's_lshl_b32 {T[0]}, {s_kh}, 11')
p(f'v_add_u32 v4, {T[0]}, v4')
p(f'v_add_u32 v5, {T[0]}, v5')
p('v_add_u32 v14, 0x10000, v4')
p('v_add_u32 v15, 0x10000, v5')
for i in range(4, 15):
    assert w2_pos[42 + KORD[i]] - w2_rd_pos(i) == 11 * 2048
for i in range(15, 44):
    assert w2_pos[42 + KORD[i]] - w2_rd_pos(i) == 2048


def w2_reads(i):
    b = W2B + 8 * (i % NWB)
    for nt in (1, 0):
        if i < 15:
            bases = [None, 'v6' if nt == 0 else 'v7', 'v12' if nt == 0 else 'v13']
        else:
            bases = ['v4' if nt == 0 else 'v5', 'v14' if nt == 0 else 'v15']
        for rd in range(2):
            dsr(R, 'ds_read_b64_tr_b16', vr(b + 4 * nt + 2 * rd, 2), bases, w2_rd_pos(i) + rd * 1024, ('w2', i))


p('s_waitcnt lgkmcnt(0)')
R.lg.reset()
flag_store(R, T[3], 'v10', 'v11')
R.stamp('H1flag')
R.dstamp('P4', 'H1flag')
R.dstamp('P5', 'H1flag')
p('v_and_b32 v10, 7, v1')
p(f's_add_u32 {T[0]}, {s_kh}, 6')
p(f'v_min_u32 v10, {T[0]}, v10')
p('v_lshlrev_b32 v10, 2, v10')
p(f's_lshl_b32 {T[1]}, {s_tile}, 7')
p(f's_mul_i32 {T[0]}, {s_kh}, 28')
p(f's_add_u32 {T[1]}, {T[1]}, {T[0]}')
p(f's_add_u32 {T[1]}, {T[1]}, {FH1}')
p(f'v_add_u32 v10, {T[1]}, v10')
p(f's_lshl_b32 {T[1]}, {s_rb}, 18')
p(f's_mul_i32 {T[2]}, {s_kh}, {7 * 16384}')
p(f's_add_u32 {T[1]}, {T[1]}, {T[2]}')
p(f's_and_b32 {T[2]}, {s_tile}, 3')
p(f's_lshl_b32 {T[2]}, {T[2]}, 12')
p(f's_add_u32 {T[1]}, {T[1]}, {T[2]}')
p(f's_lshl_b32 {T[3]}, {s_tile}, 16')
p(f's_mul_i32 {T[2]}, {s_kh}, {7 * 4096}')
p(f's_add_u32 {T[3]}, {T[3]}, {T[2]}')
for g in range(4):
    for k in range(2):
        a = ACC5 + 4 * g + 2 * k
        p(f'v_lshlrev_b32 v{a}, 16, v{HRES + 2 * g + k}')
        p(f'v_and_b32 v{a + 1}, 0xffff0000, v{HRES + 2 * g + k}')
        p(f'v_lshlrev_b32 v{ACC5 + 16}, 16, v{B2R + 2 * g + k}')
        p(f'v_and_b32 v{ACC5 + 17}, 0xffff0000, v{B2R + 2 * g + k}')
        p(f'v_add_f32 v{a}, v{a}, v{ACC5 + 16}')
        p(f'v_add_f32 v{a + 1}, v{a + 1}, v{ACC5 + 17}')
poll(R, 'v10', 'v11')
R.stamp('H1poll')
R.dstamp('P5', 'H1poll')


def h1_load(i):
    c, f = divmod(KORD[i], 6)
    if f == 4:
        p(f's_add_u32 {T[2]}, {T[1]}, {AREA + c * 16384}')
    if f == 0:
        p(f's_add_u32 {T[2]}, {T[3]}, {H1B + c * 4096}')
    if i == 42:
        p(f's_cmp_eq_u32 {s_kh}, 0')
        p(f's_cselect_b32 {T[2]}, {0x7ff00000}, {T[2]}')
    p(f'buffer_load_dwordx4 {vr(H1F + 4 * (i % NRING), 4)}, v2, {sWS}, {T[2]} offen offset:{(f % 4) * 1024} sc1')
    R.vm.issue(('h1', i))


AH = OPT['ah1']
NS = 44
for i in range(AH):
    h1_load(i)
lwait(R, H_P1, 'v246', 'v10')
w2_reads(4)
w2_reads(5)
seq5 = [(i, nt) for i in range(NS - TAILN) for nt in (1, 0)] + [(i, 1) for i in range(NS - TAILN, NS)] + [(i, 0) for i in range(NS - TAILN, NS)]
nw, nl = 6, AH
last_use = {i: k for k, (i, nt) in enumerate(seq5)}
first_use = {i: k for k, (i, nt) in reversed(list(enumerate(seq5)))}
for k, (i, nt) in enumerate(seq5):
    if k == 20:
        p(f'ds_read_b32 v10, v246 offset:{H_LATE}')
        R.lg.issue(H_LATE)
    if k == 25:
        R.dstamp('P5', 'preL')
        lwait(R, H_LATE, 'v246', 'v10', early=True)
        R.dstamp('P5', 'late')
    if k == 44:
        R.bar()
        xchg_addrs(L_HI)
    R.vm.wait([('h1', i)])
    if k in (0, 56):
        R.dstamp('P5', f'h1_{i}')
    if i >= 4:
        R.lg.wait([('w2', i)])
    b = W2R + 8 * i if i < 4 else W2B + 8 * (i % NWB)
    p(f'v_mfma_f32_32x32x16_bf16 {vr(ACC5 + 16 * nt, 16)}, {vr(b + 4 * nt, 4)}, {vr(H1F + 4 * (i % NRING), 4)}, {"0" if i == 0 and nt == 1 else vr(ACC5 + 16 * nt, 16)}')
    if k >= 8 and nw < NS and (k % 2 == 0 or k >= 2 * (NS - TAILN) - 6) and (nw < 15 or k >= 25):
        assert last_use.get(nw - NWB, -1) <= k and first_use[nw] > k + 1, (nw, k)
        w2_reads(nw)
        nw += 1
    if k % 2 == 1 and nl < NS:
        assert last_use.get(nl - NRING, -1) <= k
        h1_load(nl)
        nl += 1
    g = k - (len(seq5) - 4)
    if g >= 0:
        R.lg.room(1)
        p(f'ds_write_b128 v10, {vr(ACC5 + 16 + 4 * g, 4)} offset:{g * 1024}')
assert nw == NS and nl == NS
R.dstamp('P5', 'loop')
xchg_finish(R, ACC5, 16)
R.stamp('B13')
R.dstamp('P5', 'B13')
for r in range(8):
    p(f'v_cvt_pk_bf16_f32 v{32 + r}, v{16 + 2 * r}, v{16 + 2 * r + 1}')
p('v_lshrrev_b32 v10, 5, v1')
p('v_lshl_add_u32 v9, v10, 3, v9')
for q in range(2):
    p(f'v_permlane32_swap_b32 v{32 + 4 * q}, v{32 + 4 * q + 2}')
    p(f'v_permlane32_swap_b32 v{32 + 4 * q + 1}, v{32 + 4 * q + 3}')
    p(f'buffer_store_dwordx4 {vr(32 + 4 * q, 4)}, v9, {sOUT}, 0 offen offset:{32 * q}' + {0: '', 1: ' nt', 2: ' sc1'}[OPT.get('osm', 0)])
dump_stamps(R)
p('s_endpgm')
while tail:
    tail.pop(0)()
tail = []

assert CW.nbar == HW.nbar + 2, (CW.nbar, HW.nbar)
p.label('L_codeend')

p.fix_hazards()

hdr = open(os.path.join(os.path.dirname(os.path.abspath(__file__)), '..', 'cdna_kernels', NAME + '.s.ref')).read().split('\n')
top = [l for l in hdr if l.startswith(';') and '@launch' not in l and 'Override' not in l and 'grid=ceil' not in l]
out = '\n'.join(top) + '\n'
out += f'; @launch grid=(256,1,1) block=(512,1,1) lds={LDS_BYTES}\n'
out += f'''.amdgcn_target "amdgcn-amd-amdhsa--gfx950"
.text
.globl {KNAME}
.p2align 8
.type {KNAME},@function
'''
out += p.text()
out += f'''.section .rodata,"a"
.p2align 6
.amdhsa_kernel {KNAME}
  .amdhsa_next_free_vgpr 256
  .amdhsa_next_free_sgpr 102
  .amdhsa_accum_offset 256
  .amdhsa_group_segment_fixed_size 0
  .amdhsa_kernarg_size 88
  .amdhsa_user_sgpr_count 2
  .amdhsa_user_sgpr_kernarg_segment_ptr 1
  .amdhsa_system_sgpr_workgroup_id_x 1
.end_amdhsa_kernel
'''
open(sys.argv[1], 'w').write(out)
if OPT['stamps']:
    import json
    json.dump(STAMPS, open(sys.argv[1] + '.stamps.json', 'w'))
print('instructions:', sum(1 for x in p.ins if x.kind not in ('label', 'dir')), 'maxv', p.maxreg('v'), 'maxs', p.maxreg('s'), 'barriers', CW.nbar)
```

```python
import sys
import os
sys.path.insert(0, os.path.dirname(os.path.abspath(__file__)))
from asmlib import Prog, Cnt

NAME = 'sequential_preLN__sliding_block__dense_activation_squared_relu__prompt'
KNAME = NAME + '_kernel'

OPT = dict(stamps=False, force_safe=False, force_fallback=False, spin=200000, h1sc1=0, osc1=0, hsc1=0, mallwarm=1, p1touch=1, la=2, t0=2, tmode=4, codewarm=1, tlbwarm=0, aho=8, ahh=6, ah1=10, mallat=27, m2at=0, m2early=1, a_first=1, wopos=0, fkvt=1, qat=2, slp=2, pack=1, twait=0, pgwarm=0, hprio=1, small=0, s0=16, wolate=0, kvtag=0, flagearly=1, w2c=8, clrat=-1, clrdone=4, hrate=2, early0=0)
for a in sys.argv[2:]:
    k, _, v = a.partition('=')
    OPT[k] = int(v) if v else True

EPOCH = 0x0
ST = 0x1000
FKV = 0x2000
FO = 0xA000
FH = 0xC000
FH1 = 0xE000
RST = 0x10000
AREA = 0x100000
H1B = 0x600000
STB = 0xA00000
WS_END = 0xB00000 if not OPT.get('probe') else 0x8000000
STAMP = 0x1000000
WS_SIZE = 0x1100000

S_R = 0
S_M = 512
S_CS = 1024
S_CS1 = 1536
S_B1 = 2048
S_TAG = 2560
S_MODE = 2564
S_SYNC = 2816
C_ISS, C_END, H_TAB, H_P1, H_LATE, H_WO, C_OIS, H_WQ, H_CSQ, H_Q, C_KV, C_HALO, C_FLAG, H_W1, X_P0, X_P1 = [S_SYNC + 4 * i for i in range(16)]
BASE = 3072
RING = BASE
SLOT = 24576
NSLOT = 4
L_WO = BASE
L_K = BASE + 64 * 1024
L_V = L_K + 24 * 1024
VSTR = 1040
L_HI = 116 * 1024
assert L_V + 24 * VSTR <= L_HI and RING + NSLOT * SLOT <= L_HI
L_WQ = L_HI
L_QX = L_HI + 32 * 1024
S_CSQ = S_CS1
L_X = BASE + 96 * 1024
LDS_BYTES = 160 * 1024


def w1_addr(s):
    return BASE + s * 3072


KORD = [6 * c + f for c in range(7) for f in (4, 5)] + [6 * c + f for c in range(7) for f in range(4)] + [42, 43]
W2_REG = KORD[:4] + [42 + k for k in KORD[:4]]
W2_P1 = KORD[4:15] + [42 + k for k in KORD[4:15]]
w2_pos = {}
for i, s in enumerate(W2_REG):
    w2_pos[s] = L_X + i * 2048
for i, s in enumerate(W2_P1):
    w2_pos[s] = L_HI + i * 2048
late_order = []
for i in range(15, 42):
    late_order += [KORD[i], 42 + KORD[i]]
late_order += [84, 85]
assert len(late_order) == 56
for i, s in enumerate(late_order):
    w2_pos[s] = BASE + i * 2048
assert BASE + 56 * 2048 <= L_HI


def w2_rd_pos(i):
    return w2_pos[KORD[i]] if i < 42 else w2_pos[42 + KORD[i]] - 2048


sX, sWQKV, sWO, sW1, sW2, sOUT, sWS, sB1, sB2, sDBG = [f's[{i}:{i + 3}]' for i in range(4, 44, 4)]
s_team, s_j, s_rb, s_c, s_rs, s_cb, s_w, s_tt, s_tag, s_mode, s_hd = [f's{i}' for i in range(44, 55)]
T = [f's{i}' for i in range(55, 64)]
s_xr = [f's{i}' for i in range(86, 90)]
s_wr = [f's{i}' for i in range(90, 94)]
s_t, s_kh = 's94', 's95'
s_tile = 's64'
s_area = 's88'
s_last = 's96'
s_stamp = 's[98:99]'

LOG2E = 1.4426950408889634
BIG = 0xf149f2ca


def fhex(x):
    import struct
    return '0x%08x' % struct.unpack('<I', struct.pack('<f', x))[0]


def vr(a, n=1):
    return f'v{a}' if n == 1 else f'v[{a}:{a + n - 1}]'


p = Prog()
tail = []


class Role:
    def __init__(self, name):
        self.name = name
        self.vm = Cnt(p, 'vmcnt', 63)
        self.lg = Cnt(p, 'lgkmcnt', 15)
        self.nbar = 0
        self.nstamp = 0

    def bar(self):
        p('s_barrier')
        self.nbar += 1

    def dstamp(self, grp, label):
        if OPT.get('d' + grp):
            self.stamp(label, True)

    def stamp(self, label='', force=False):
        if not OPT['stamps']:
            return
        if not force and label not in ('start', 'end') and any(k.startswith('dP') for k in OPT):
            return
        k = self.nstamp
        self.nstamp += 1
        STAMPS.setdefault(self.name, []).append(label)
        assert k < 20
        p(f's_memtime {s_stamp}')
        p('s_waitcnt lgkmcnt(0)')
        self.lg.reset()
        p(f's_mov_b32 s{66 + k}, s98')


STAMPS = {}


def dsr(R, op, dst, bases, off, tag=None):
    k = off // 65536
    R.lg.room(1)
    p(f'{op} {dst}, {bases[k]} offset:{off % 65536}')
    R.lg.issue(tag)


def dma(R, vaddr, srd, soff, ldsaddr, tag=None):
    p(f's_mov_b32 m0, {ldsaddr}')
    p(f'buffer_load_dwordx4 {vaddr}, {srd}, {soff} offen lds')
    R.vm.issue(tag)


def poll(R, vaddr, vtmp, slow=False):
    L = p.newlabel('L_poll')
    p(f's_mov_b32 {T[0]}, 0')
    p.label(L)
    if slow:
        p('s_sleep 2')
    p(f'buffer_load_dword {vtmp}, {vaddr}, {sWS}, 0 offen sc1')
    p(f's_add_u32 {T[0]}, {T[0]}, 1')
    p(f's_cmp_lt_u32 {T[0]}, {OPT["spin"]}')
    p('s_cselect_b64 s[92:93], -1, 0')
    p('s_waitcnt vmcnt(0)')
    p(f'v_cmp_ne_u32 vcc, {s_tag}, {vtmp}')
    p('s_and_b64 vcc, vcc, s[92:93]')
    p(f's_cbranch_vccnz {L}')
    R.vm.reset()


def moded_stores(R, stores, wt=False):
    if wt:
        for s in stores:
            p(s + ' sc1')
            R.vm.issue('st')
        return
    Ls = p.newlabel('L_safe')
    Lb = p.newlabel('L_back')
    p(f's_cmp_eq_u32 {s_mode}, 1')
    p(f's_cbranch_scc0 {Ls}')
    for s in stores:
        p(s)
    p.label(Lb)
    for s in stores:
        if s.startswith('buffer_'):
            R.vm.issue('st')

    def blk():
        p.label(Ls)
        for s in stores:
            p(s + ' sc1' if s.startswith('buffer_') else s)
        p(f's_branch {Lb}')
    tail.append(blk)


def signal(R, word, vz, vone):
    p('s_mov_b64 exec, 1')
    p(f'ds_add_u32 {vz}, {vone} offset:{word}')
    p('s_mov_b64 exec, -1')
    R.lg.issue('sig')


def lwait(R, word, vz, vt, early=False, n=4):
    L = p.newlabel('L_lw')
    X = p.newlabel('L_lwx')
    if early:
        R.lg.wait([word])
    else:
        p(f'ds_read_b32 {vt}, {vz} offset:{word}')
        p('s_waitcnt lgkmcnt(0)')
        R.lg.reset()
    p(f'v_cmp_gt_u32 vcc, {n}, {vt}')
    p(f's_cbranch_vccnz {X}')
    p.label(L)

    def blk():
        Y = p.newlabel('L_lwy')
        p.label(X)
        p(f's_mov_b32 {T[0]}, 0')
        p.label(Y)
        if R.name == 'HW' and OPT['slp']:
            p(f's_sleep {OPT["slp"]}')
        p(f'ds_read_b32 {vt}, {vz} offset:{word}')
        p('s_waitcnt lgkmcnt(0)')
        p(f'v_cmp_gt_u32 vcc, {n}, {vt}')
        p(f's_cbranch_vccz {L}')
        p(f's_add_u32 {T[0]}, {T[0]}, 1')
        p(f's_cmp_lt_u32 {T[0]}, {OPT["spin"] * 8}')
        p(f's_cbranch_scc1 {Y}')
        p(f's_branch {L}')
    tail.append(blk)


def flag_store(R, saddr, vt0, vt1, moded=True):
    p(f'v_mov_b32 {vt0}, {saddr}')
    p(f'v_mov_b32 {vt1}, {s_tag}')
    R.vm.wait_all()
    p('s_mov_b64 exec, 1')
    if moded:
        moded_stores(R, [f'buffer_store_dword {vt1}, {vt0}, {sWS}, 0 offen'])
    else:
        p(f'buffer_store_dword {vt1}, {vt0}, {sWS}, 0 offen sc1')
        R.vm.issue('st')
    p('s_mov_b64 exec, -1')


CW = Role('CW')
HW = Role('HW')
s_q = T[8]
s_mx, s_mw, s_tw = 's96', 's97', 's3'


def srd(dst, lo, size):
    b = int(dst[2:dst.index(':')])
    p(f's_mov_b32 s{b}, s{lo}')
    p(f's_and_b32 s{b + 1}, s{lo + 1}, 0xffff')
    p(f's_mov_b32 s{b + 2}, {size}')
    p(f's_mov_b32 s{b + 3}, 0x20000')


p.label(KNAME)
p('s_cmp_ge_u32 s2, 256')
p('s_cbranch_scc1 L_end')
if OPT['stamps']:
    p('s_memtime s[100:101]')
if OPT.get('dbgout'):
    p('s_memrealtime s[86:87]')
p('s_load_dwordx16 s[64:79], s[0:1], 0')
p('s_load_dwordx4 s[80:83], s[0:1], 64')
p('s_load_dwordx2 s[84:85], s[0:1], 80')
if OPT['codewarm']:
    p('s_getpc_b64 s[56:57]')
    p.label('L_pc')
    p(f's_sub_u32 s56, s56, L_pc-{KNAME}')
    p('s_subb_u32 s57, s57, 0')
    p(f's_lshr_b32 {T[0]}, s2, 3')
    p(f's_lshl_b32 {T[0]}, {T[0]}, 11')
    p('v_lshrrev_b32 v10, 5, v0')
    p('v_lshlrev_b32 v10, 7, v10')
    p(f'v_add_u32 v10, {T[0]}, v10')
    p(f'v_min_u32 v10, L_codeend-{KNAME}-4, v10')
    p('global_load_dword v253, v10, s[56:57]')
    CW.vm.issue('t')
    HW.vm.issue('t')
p('v_and_b32 v1, 63, v0')
p('v_lshrrev_b32 v2, 6, v0')
p(f'v_readfirstlane_b32 {s_w}, v2')
p(f's_and_b32 {s_team}, s2, 7')
p(f's_lshr_b32 {s_j}, s2, 3')
p(f's_and_b32 {s_c}, {s_j}, 15')
p(f's_lshr_b32 {T[0]}, {s_j}, 4')
p(f's_lshl_b32 {s_rb}, {s_team}, 1')
p(f's_add_u32 {s_rb}, {s_rb}, {T[0]}')
p('v_lshlrev_b32 v2, 4, v1')
p(f's_and_b32 {s_q}, {s_w}, 3')
p('v_lshrrev_b32 v3, 3, v1')
p(f's_lshl_b32 {T[0]}, {s_q}, 5')
p(f'v_add_u32 v3, {T[0]}, v3')
p('v_and_b32 v10, 7, v1')
p(f's_lshl_b32 {T[1]}, {s_rb}, 17')
p('v_bfe_u32 v11, v3, 1, 3')
p('v_xor_b32 v11, v10, v11')
p('v_lshlrev_b32 v11, 4, v11')
p('v_lshl_add_u32 v4, v3, 10, v11')
p(f'v_add_u32 v4, {T[1]}, v4')
p('v_xor_b32 v5, 64, v4')
p('v_add_u32 v5, 8192, v5')
p('v_lshrrev_b32 v10, 3, v1')
p(f's_lshl_b32 {T[0]}, {s_q}, 4')
p(f'v_add_u32 v10, {T[0]}, v10')
p(f's_movk_i32 {T[4]}, 3072')
p(f'v_mul_lo_u32 v10, v10, {T[4]}')
p('v_bfe_u32 v11, v1, 2, 1')
p('v_bfe_u32 v12, v1, 4, 1')
p('v_xor_b32 v11, v11, v12')
p('v_lshl_add_u32 v10, v11, 10, v10')
p('v_and_b32 v11, 3, v1')
p('v_lshl_add_u32 v10, v11, 4, v10')
p(f's_lshl_b32 {T[1]}, {s_c}, 6')
p(f's_add_u32 {T[1]}, {T[1]}, 1024')
p(f'v_add_u32 v6, {T[1]}, v10')
p(f's_lshl_b32 {s_mx}, {s_q}, 12')
p(f's_lshl_b32 {s_mw}, {s_q}, 11')
p(f's_lshl_b32 {s_tw}, {s_j}, 2')
p(f's_add_u32 {s_tw}, {s_tw}, {s_q}')
p(f's_lshr_b32 {T[0]}, {s_tw}, 1')
p(f's_mul_i32 {T[0]}, {T[0]}, 3072')
p(f's_and_b32 {s_tw}, {s_tw}, 1')
p(f's_lshl_b32 {s_tw}, {s_tw}, 10')
p(f's_add_u32 {s_tw}, {s_tw}, {T[0]}')
p(f's_add_u32 {s_tw}, {s_tw}, 1024')
p('v_bfe_u32 v16, v1, 3, 1')
p(f'v_mul_u32_u24 v16, {64 * 3072}, v16')
p('v_and_b32 v15, 7, v1')
p('v_lshl_add_u32 v16, v15, 7, v16')
p('v_min_u32 v17, 11, v1')
p('v_lshlrev_b32 v17, 7, v17')
p(f's_lshl_b32 {T[5]}, {s_rb}, 4')
p(f's_add_u32 {T[5]}, {T[5]}, {s_c}')
p(f's_lshl_b32 {T[5]}, {T[5]}, 3')
p(f's_add_u32 {T[5]}, {T[5]}, {s_q}')
p('s_waitcnt lgkmcnt(0)')
srd(sX, 64, 2048 * 512 * 2)
p(f's_cmp_ge_u32 {s_w}, 4')
p('s_cbranch_scc1 L_norow')
p(f's_load_dword {s_tag}, s[84:85], {EPOCH}')
if OPT['pgwarm']:
    p(f's_lshl_b32 {T[0]}, {s_j}, 2')
    p(f's_add_u32 {T[0]}, {T[0]}, {s_w}')
    p(f's_and_b32 {T[0]}, {T[0]}, 15')
    p('s_mov_b64 s[90:91], s[84:85]')
    for k, lo in enumerate((68, 72, 74, 76, 78, 80)):
        p(f's_cmp_eq_u32 {T[0]}, {k}')
        p(f's_cselect_b64 s[90:91], s[{lo}:{lo + 1}], s[90:91]')
    p(f's_sub_i32 {T[0]}, {T[0]}, 6')
    p(f's_max_i32 {T[0]}, {T[0]}, 0')
    p(f's_lshl_b32 {T[0]}, {T[0]}, 20')
    p(f's_add_u32 s90, s90, {T[0]}')
    p('s_addc_u32 s91, s91, 0')
    p('s_load_dword s92, s[90:91], 0')
    if OPT['pgwarm'] == 2:
        p('s_load_dword s93, s[84:85], 0xf0000')
if OPT['kvtag'] and OPT['clrat'] == -2:
    srd(sWS, 84, WS_SIZE if OPT['stamps'] else WS_END)
    p(f's_lshr_b32 {T[0]}, {T[5]}, 3')
    p(f's_lshl_b32 {T[0]}, {T[0]}, 2')
    p(f's_add_u32 {T[0]}, {T[0]}, {s_q}')
    p(f's_lshl_b32 {T[0]}, {T[0]}, 12')
    p(f's_add_u32 {T[0]}, {T[0]}, {AREA + 32 * 16384}')
    for r in range(4):
        p(f'v_mov_b32 v{244 + r}, -1')
    for q in range(4):
        p(f'buffer_store_dwordx4 v[244:247], v2, {sWS}, {T[0]} offen offset:{q * 1024} sc1')
        CW.vm.issue('st')
p(f's_lshl_b32 {T[0]}, {T[5]}, 10')
p(f's_add_u32 {T[1]}, {T[0]}, 4096')
p(f'buffer_load_dwordx4 v[196:199], v2, {sX}, {T[0]} offen')
p(f'buffer_load_dwordx4 v[208:211], v2, {sX}, {T[1]} offen')
CW.vm.issue('row')
CW.vm.issue('row')
p.label('L_norow')
srd(sWQKV, 66, 512 * 1536 * 2)
if OPT['stamps']:
    p('s_memtime s[98:99]')
    p('s_waitcnt lgkmcnt(0)')
    p('s_mov_b32 s101, s98')
p(f's_cmp_lt_u32 {s_w}, 4')
p('s_cbranch_scc1 L_CW')


def chunk_groups(R, ch):
    slot = RING + (ch % NSLOT) * SLOT

    def xg(q):
        def f():
            p(f's_mov_b32 {T[7]}, {ch * 128 + (q >> 1) * 16384}')
            p(f's_add_u32 m0, {s_mx}, {slot + q * 1024}')
            p(f'buffer_load_dwordx4 v{4 + (q & 1)}, {sX}, {T[7]} offen' + (' nt' if OPT.get('nt_x') else '') + ' lds')
            R.vm.issue(('ch', ch))
        return f

    def wg(q):
        def f():
            p(f's_mov_b32 {T[7]}, {(ch * 64 + q * 8) * 3072}')
            p(f's_add_u32 m0, {s_mw}, {slot + 16384 + q * 1024}')
            p(f'buffer_load_dwordx4 v6, {sWQKV}, {T[7]} offen lds')
            R.vm.issue(('ch', ch))
        return f
    return [wg(0), xg(0), xg(1), wg(1), xg(2), xg(3)]


def wtouch(R, i):
    def f():
        p(f's_add_u32 {T[7]}, {s_tw}, {i * 64 * 3072}')
        p(f'buffer_load_dword v252, v16, {sWQKV}, {T[7]} offen' + (' nt' if OPT.get('nt_t') else ''))
        R.vm.issue('t')
    return f


def qtouch(R):
    def f():
        p(f's_lshl_b32 {T[7]}, {s_j}, 2')
        p(f's_add_u32 {T[7]}, {T[7]}, {s_q}')
        p(f's_mul_i32 {T[7]}, {T[7]}, {4 * 3072}')
        p('v_bfe_u32 v3, v1, 3, 2')
        p('v_mul_u32_u24 v3, 3072, v3')
        p('v_and_b32 v110, 7, v1')
        p('v_lshl_add_u32 v3, v110, 7, v3')
        p(f'buffer_load_dword v252, v3, {sWQKV}, {T[7]} offen')
        R.vm.issue('t')
    return f


def warm_wo(R):
    def f():
        p(f's_lshl_b32 {T[7]}, {s_j}, 2')
        p(f's_add_u32 {T[7]}, {T[7]}, {s_q}')
        p(f's_lshl_b32 {T[7]}, {T[7]}, 12')
        p('v_and_b32 v3, 31, v1')
        p('v_lshlrev_b32 v3, 7, v3')
        p(f'buffer_load_dword v255, v3, {sWO}, {T[7]} offen')
        R.vm.issue('t')
    return f


def warm_mall(R, srd_):
    def f():
        p(f's_lshl_b32 {T[7]}, s2, 2')
        p(f's_add_u32 {T[7]}, {T[7]}, {s_q}')
        p(f's_mul_i32 {T[7]}, {T[7]}, 1536')
        p(f'buffer_load_dword v254, v17, {srd_}, {T[7]} offen')
        R.vm.issue('t')
    return f


def srds_w():
    srd(sWO, 68, 512 * 512 * 2)
    srd(sW1, 72, 512 * 1376 * 2)
    srd(sW2, 76, 1376 * 512 * 2)


def common_setup(R):
    srd(sWS, 84, WS_SIZE if OPT['stamps'] else WS_END)
    srd(sB1, 74, 1376 * 2)
    srd(sB2, 78, 512 * 2)
    srd(sOUT, 80, 2048 * 512 * 2)
    p(f's_lshr_b32 {T[0]}, {s_j}, 3')
    p(f's_lshl_b32 {s_rs}, {s_team}, 2')
    p(f's_add_u32 {s_rs}, {s_rs}, {T[0]}')
    p(f's_and_b32 {s_cb}, {s_j}, 7')
    p(f's_lshr_b32 {s_hd}, {s_w}, 2')
    p(f's_lshl_b32 {s_area}, {s_rb}, 4')
    p(f's_add_u32 {s_area}, {s_area}, {s_c}')
    p(f's_lshl_b32 {s_area}, {s_area}, 14')
    p(f's_add_u32 {s_area}, {s_area}, {AREA}')
    if R is CW:
        p(f's_mov_b32 {s_tt}, {s_w}')
        p(f's_and_b32 {s_t}, {s_w}, 1')
        p(f's_lshr_b32 {s_kh}, {s_w}, 1')
    else:
        p(f's_sub_u32 {s_tt}, 7, {s_w}')
    p('v_mov_b32 v18, 0x3f803f80')
    if R is CW:
        if not OPT['small']:
            p('s_waitcnt lgkmcnt(0)')
        p(f's_add_u32 {s_tag}, {s_tag}, 1')
        p(f'v_mov_b32 v10, {S_TAG}')
        p(f'v_mov_b32 v11, {s_tag}')
        p('ds_write_b32 v10, v11')


def row_stats(R):
    p(f's_lshl_b32 s65, s65, 4')
    p(f's_add_u32 s65, s65, {RST}')
    p(f'v_mov_b32 v3, s65')
    for k in (200, 202, 212, 214):
        p(f'v_mov_b32 v{k}, 0')
    p(f's_getreg_b32 {T[1]}, hwreg(HW_REG_XCC_ID)')
    p(f's_and_b32 {T[1]}, {T[1]}, 15')
    p(f'v_mov_b32 v221, {T[1]}')
    p(f'v_mov_b32 v220, {s_tag}')
    p(f's_lshl_b32 {T[1]}, {s_team}, 5')
    p(f's_add_u32 {T[1]}, {T[1]}, {s_j}')
    p(f's_lshl_b32 {T[1]}, {T[1]}, 3')
    p(f's_add_u32 {T[1]}, {T[1]}, {ST}')
    p(f's_cmp_eq_u32 {s_w}, 0')
    p(f's_cselect_b32 {T[1]}, {T[1]}, {0x7ff00000}')
    p(f'v_mov_b32 v222, {T[1]}')
    R.vm.wait(['row'])
    for r in range(4):
        for o in (0, 12):
            p(f'v_dot2c_f32_bf16 v{200 + o}, v{196 + o + r}, v18')
            p(f'v_dot2c_f32_bf16 v{202 + o}, v{196 + o + r}, v{196 + o + r}')
    for sh in (8, 4, 2, 1):
        for k in (200, 202, 212, 214):
            p(f'v_add_f32_dpp v{k}, v{k}, v{k} row_ror:{sh} row_mask:0xf bank_mask:0xf')
    for op in ('v_permlane16_swap_b32', 'v_permlane32_swap_b32'):
        for k in (200, 202, 212, 214):
            p(f'v_mov_b32 v{k + 1}, v{k}')
        for k in (200, 202, 212, 214):
            p(f'{op} v{k}, v{k + 1}')
        for k in (200, 202, 212, 214):
            p(f'v_add_f32 v{k}, v{k}, v{k + 1}')
    for o in (0, 12):
        ln_finish(f'v{200 + o}', f'v{202 + o}', f'v{204 + o}', f'v{206 + o}')
        p(f'v_mov_b32 v{205 + o}, {s_tag}')
        p(f'v_mov_b32 v{207 + o}, {s_tag}')
    p('s_mov_b64 exec, 1')
    p(f'buffer_store_dwordx4 v[204:207], v3, {sWS}, 0 offen sc1')
    p(f'buffer_store_dwordx4 v[216:219], v3, {sWS}, 0 offen offset:64 sc1')
    p(f'buffer_store_dwordx2 v[220:221], v222, {sWS}, 0 offen sc1')
    p('s_mov_b64 exec, -1')
    for _ in range(3):
        R.vm.issue('st')


VQ, MD, MF = 160, 164, 180
SB = [20, 36]
VP = 52
KF = [60, 64]
VF = [68, 76]
VO = 84
VKA, VVA = 'v100', 'v101'
HALO = 120


def make_masks():
    p('v_and_b32 v10, 31, v1')
    p('v_lshrrev_b32 v11, 5, v1')
    p('v_lshlrev_b32 v11, 2, v11')
    p('v_sub_u32 v10, v10, v11')
    p(f'v_mov_b32 v12, {BIG:#x}')
    p('v_mov_b32 v13, 0')
    for i0 in range(0, 16, 4):
        for i in range(i0, i0 + 4):
            key = 8 * (i >> 2) + (i & 3)
            p(f'v_cmp_le_i32 s[{56 + 2 * (i & 3)}:{57 + 2 * (i & 3)}], {key}, v10')
        for i in range(i0, i0 + 4):
            m = f's[{56 + 2 * (i & 3)}:{57 + 2 * (i & 3)}]'
            p(f'v_cndmask_b32 v{MD + i}, v12, v13, {m}')
            p(f'v_cndmask_b32 v{MF + i}, v13, v12, {m}')


def att_addrs():
    p(f's_lshl_b32 {T[0]}, {s_tt}, 11')
    p(f's_lshl_b32 {T[1]}, {s_hd}, 10')
    p(f's_add_u32 {T[0]}, {T[0]}, {T[1]}')
    p(f's_add_u32 {T[0]}, {T[0]}, {L_K}')
    p(f'v_add_u32 {VKA}, {T[0]}, v2')
    p('v_and_b32 v10, 47, v1')
    p(f's_lshl_b32 {T[1]}, {s_hd}, 4')
    p(f'v_add_u32 v10, {T[1]}, v10')
    p('v_lshlrev_b32 v10, 4, v10')
    p('v_and_b32 v11, 16, v1')
    p('v_cmp_ne_u32 vcc, 0, v11')
    p('v_mov_b32 v11, 1024')
    p('v_cndmask_b32 v10, v10, v11, vcc')
    p(f's_mul_i32 {T[0]}, {s_tt}, {2 * VSTR}')
    p(f's_add_u32 {T[0]}, {T[0]}, {L_V}')
    p(f'v_add_u32 {VVA}, {T[0]}, v10')


def half_sum(a, t):
    p(f'v_mov_b32 {t}, {a}')
    p(f'v_permlane32_swap_b32 {a}, {t}')
    p(f'v_add_f32 {a}, {a}, {t}')


def ln_finish(s1, s2, rstd, mrs):
    p(f'v_mul_f32 {s1}, {fhex(1.0 / 512)}, {s1}')
    p(f'v_mul_f32 {s2}, {fhex(1.0 / 512)}, {s2}')
    p(f'v_fma_f32 {s2}, -{s1}, {s1}, {s2}')
    p(f'v_max_f32 {s2}, 0, {s2}')
    p(f'v_add_f32 {s2}, {fhex(1e-5)}, {s2}')
    p(f'v_rsq_f32 {rstd}, {s2}')
    p(f'v_mul_f32 {mrs}, {s1}, {rstd}')


def att_load(R, u, b, base):
    p(f'ds_read_b128 {vr(KF[b], 4)}, {base[0]} offset:{u * 2048}')
    R.lg.issue(('K', u))
    for g in range(2):
        p(f'ds_read_b128 {vr(VF[b] + 4 * g, 4)}, {base[1]} offset:{(2 * u + g) * VSTR}')
        R.lg.issue(('V', u))


def att_qk(R, u, b, c):
    R.lg.wait([('K', u)])
    p(f'v_mfma_f32_32x32x16_bf16 {vr(SB[b], 16)}, {vr(KF[b], 4)}, {vr(VQ, 4)}, {c}')


def att_body(R, u, b, nxt, first, extra=()):
    S = SB[b]
    if nxt is not None:
        att_load(R, nxt[0], 1 - b, nxt[1])
    extra = list(extra)
    for g in range(2):
        for i in range(8):
            p(f'v_exp_f32 v{S + 8 * g + i}, v{S + 8 * g + i}')
            if i in (0, 2, 3, 5, 7) and extra:
                extra.pop(0)()
        if g == 0 and nxt is not None:
            att_qk(R, nxt[0], 1 - b, nxt[2])
        for r in range(4):
            p(f'v_cvt_pk_bf16_f32 v{VP + 4 * g + r}, v{S + 8 * g + 2 * r}, v{S + 8 * g + 2 * r + 1}')
        R.lg.wait([('V', u)])
        c = '0' if (first and g == 0) else vr(VO, 16)
        p(f'v_mfma_f32_32x32x16_bf16 {vr(VO, 16)}, {vr(VF[b] + 4 * g, 4)}, {vr(VP + 4 * g, 4)}, {c}')
    assert not extra


REL = (VKA, VVA)
ABS = ('v116', 'v117')


def att_2a(R, after_first=None):
    Lx = p.newlabel('L_2a_done')
    att_load(R, 8, 0, REL)
    att_qk(R, 8, 0, vr(MD, 16))
    for n, j in enumerate((8, 7, 6, 5)):
        att_body(R, j, n & 1, (j - 1, REL, '0') if j > 5 else None, n == 0)
        if n == 0 and after_first:
            after_first()
        if j > 5:
            p(f's_cmp_eq_u32 {s_tt}, {n}')
            p(f's_cbranch_scc1 {Lx}')
    p.label(Lx)
    p('s_waitcnt lgkmcnt(0)')
    R.lg.reset()
    R.stamp('2a')
    R.dstamp('P2', '2a')


def att_2b(R, extra, after_store):
    p(f's_max_i32 {T[0]}, {s_rb}, 1')
    p(f's_sub_u32 {T[0]}, {T[0]}, 1')
    p(f's_lshl_b32 {T[0]}, {T[0]}, 4')
    p(f's_add_u32 {T[0]}, {T[0]}, {s_c}')
    p(f's_lshl_b32 {T[0]}, {T[0]}, 7')
    p(f's_add_u32 {T[0]}, {T[0]}, {FKV + 16}')
    p('v_and_b32 v102, 3, v1')
    p('v_lshlrev_b32 v102, 2, v102')
    p(f'v_add_u32 v102, {T[0]}, v102')

    def rd_check():
        p(f'buffer_load_dword v103, v102, {sWS}, 0 offen sc1')
        R.vm.issue('rd')
    Lx = p.newlabel('L_2b_done')
    att_load(R, 0, 0, REL)
    att_qk(R, 0, 0, vr(MF, 16))
    extra = list(extra)
    extra += [lambda: None] * (44 - len(extra)) + [rd_check]
    assert len(extra) <= 50
    for j in range(8):
        att_body(R, j, j & 1, (j + 1, REL, '0') if j < 7 else None, False, extra[10 * j:10 * j + 10])
        if 4 <= j < 7:
            p(f's_cmp_eq_u32 {s_tt}, {7 - j}')
            p(f's_cbranch_scc1 {Lx}')
    p.label(Lx)
    p('s_waitcnt lgkmcnt(0)')
    R.lg.reset()
    Lf = p.newlabel('L_fb')
    Lr = p.newlabel('L_fbret')
    p(f'v_mov_b32 v10, {fhex(2.0 ** -60)}')
    p(f'v_mov_b32 v11, {fhex(2.0 ** 60)}')
    p(f's_lshl_b32 {T[0]}, {s_rb}, 2')
    p(f's_add_u32 {T[0]}, {T[0]}, {s_tt}')
    p(f's_lshl_b32 {T[0]}, {T[0]}, 5')
    p(f's_lshl_b32 {T[6]}, {s_c}, 1')
    p(f's_add_u32 {T[0]}, {T[0]}, {T[6]}')
    p(f's_add_u32 {T[0]}, {T[0]}, {s_hd}')
    p(f's_lshl_b32 {T[7]}, {T[0]}, 2')
    p(f's_add_u32 {T[7]}, {T[7]}, {FO}')
    p(f's_lshl_b32 {T[0]}, {s_tt}, 2')
    p(f's_add_u32 {T[0]}, {T[0]}, {s_hd}')
    p(f's_lshl_b32 {T[0]}, {T[0]}, 10')
    p(f's_add_u32 {T[6]}, {T[0]}, {s_area}')
    p(f'v_cmp_nlt_f32 vcc, v10, v{VO + 8}')
    p(f'v_cmp_nlt_f32 s[56:57], v{VO + 8}, v11')
    p('s_or_b64 vcc, vcc, s[56:57]')
    if OPT['force_fallback']:
        p(f's_branch {Lf}')
    else:
        p(f's_cbranch_vccnz {Lf}')
    p.label(Lr)
    tail.append(lambda: fallback(Lf, Lr))
    p(f'v_rcp_f32 v10, v{VO + 8}')
    for i in range(8):
        p(f'v_mul_f32 v{VO + i}, v{VO + i}, v10')
    for r in range(4):
        p(f'v_cvt_pk_bf16_f32 v{12 + r}, v{VO + 2 * r}, v{VO + 2 * r + 1}')
    R.dstamp('P2', '2b')
    Lc = p.newlabel('L_rdc')
    Lcx = p.newlabel('L_rdx')
    R.vm.wait(['rd'])
    p(f'v_cmp_ne_u32 vcc, {s_tag}, v103')
    p(f's_cbranch_vccnz {Lcx}')
    p.label(Lc)

    def rd_slow():
        p.label(Lcx)
        poll(R2, 'v102', 'v103')
        p(f's_branch {Lc}')
    R2 = Role('tmp')
    tail.append(rd_slow)
    moded_stores(R, [f'buffer_store_dwordx4 v[12:15], v2, {sWS}, {T[6]} offen'], OPT['osc1'])
    after_store()
    flag_store(R, T[7], 'v10', 'v11')
    R.stamp('Oflag')
    R.dstamp('P2', 'Oflag')


def fallback(Lf, Lr):
    S = SB[0]
    p.label(Lf)
    p(f's_lshl_b32 {T[0]}, {s_rb}, 2')
    p(f's_add_u32 {T[0]}, {T[0]}, {s_tt}')
    p(f's_sub_i32 {T[0]}, 8, {T[0]}')
    p(f's_max_i32 s89, {T[0]}, 0')
    p(f'v_mov_b32 v14, {BIG:#x}')
    for pas in range(2):
        L = p.newlabel('L_fbl')
        Lm = p.newlabel('L_fbm')
        Ln = p.newlabel('L_fbn')
        Lc = p.newlabel('L_fbc')
        p(f's_mov_b32 s90, s89')
        if pas == 1:
            for i in range(16):
                p(f'v_mov_b32 v{VO + i}, 0')
        p.label(L)
        p(f's_lshl_b32 {T[0]}, s90, 11')
        p(f'v_add_u32 v10, {T[0]}, {VKA}')
        p(f's_mul_i32 {T[0]}, s90, {2 * VSTR}')
        p(f'v_add_u32 v11, {T[0]}, {VVA}')
        p(f'ds_read_b128 {vr(KF[0], 4)}, v10')
        p(f'ds_read_b128 {vr(VF[0], 4)}, v11')
        p(f'ds_read_b128 {vr(VF[0] + 4, 4)}, v11 offset:{VSTR}')
        p('s_waitcnt lgkmcnt(0)')
        p(f's_cmp_eq_u32 s90, 8')
        p(f's_cbranch_scc1 {Lm}')
        p(f's_cmp_eq_u32 s90, 0')
        p(f's_cbranch_scc1 {Ln}')
        p(f'v_mfma_f32_32x32x16_bf16 {vr(S, 16)}, {vr(KF[0], 4)}, {vr(VQ, 4)}, 0')
        p(f's_branch {Lc}')
        p.label(Lm)
        p(f'v_mfma_f32_32x32x16_bf16 {vr(S, 16)}, {vr(KF[0], 4)}, {vr(VQ, 4)}, {vr(MD, 16)}')
        p(f's_branch {Lc}')
        p.label(Ln)
        p(f'v_mfma_f32_32x32x16_bf16 {vr(S, 16)}, {vr(KF[0], 4)}, {vr(VQ, 4)}, {vr(MF, 16)}')
        p.label(Lc)
        if pas == 0:
            for i in range(16):
                p(f'v_max_f32 v14, v14, v{S + i}')
        else:
            for i in range(16):
                p(f'v_sub_f32 v{S + i}, v{S + i}, v14')
                p(f'v_exp_f32 v{S + i}, v{S + i}')
            for r in range(8):
                p(f'v_cvt_pk_bf16_f32 v{VP + r}, v{S + 2 * r}, v{S + 2 * r + 1}')
            for g in range(2):
                p(f'v_mfma_f32_32x32x16_bf16 {vr(VO, 16)}, {vr(VF[0] + 4 * g, 4)}, {vr(VP + 4 * g, 4)}, {vr(VO, 16)}')
        p(f's_add_u32 s90, s90, 1')
        p(f's_cmp_le_u32 s90, 8')
        p(f's_cbranch_scc1 {L}')
        if pas == 0:
            p('v_mov_b32 v15, v14')
            p('v_permlane32_swap_b32 v14, v15')
            p('v_max_f32 v14, v14, v15')
    p(f's_branch {Lr}')


def w64_dma_lane(dst):
    p('v_lshrrev_b32 v10, 3, v1')
    p('v_lshlrev_b32 v10, 10, v10')
    p('v_and_b32 v11, 7, v1')
    p('v_bfe_u32 v12, v1, 4, 1')
    p('v_lshlrev_b32 v12, 2, v12')
    p('v_xor_b32 v11, v11, v12')
    p('v_lshl_add_u32 v10, v11, 4, v10')
    p(f's_lshl_b32 {T[0]}, {s_cb}, 7')
    p(f'v_add_u32 {dst}, {T[0]}, v10')


def w1_dma_lanes(dsts):
    p(f's_movk_i32 {T[3]}, 5462')
    p(f's_movk_i32 {T[4]}, 2752')
    p(f's_mul_i32 {T[1]}, {s_c}, 192')
    for q, dst in enumerate(dsts):
        p(f'v_add_u32 v10, {64 * q}, v1')
        p(f'v_mul_lo_u32 v11, v10, {T[3]}')
        p('v_lshrrev_b32 v11, 16, v11')
        p('v_mul_u32_u24 v12, 12, v11')
        p('v_sub_u32 v12, v10, v12')
        p('v_lshlrev_b32 v12, 4, v12')
        p(f'v_mul_lo_u32 v11, v11, {T[4]}')
        p(f'v_add3_u32 {dst}, v11, v12, {T[1]}')


def tr64_lanes(a0, a1):
    p('v_bfe_u32 v10, v1, 2, 2')
    p('v_lshrrev_b32 v11, 5, v1')
    p('v_lshl_add_u32 v10, v11, 2, v10')
    p('v_lshlrev_b32 v10, 7, v10')
    p('v_bfe_u32 v11, v1, 4, 1')
    p('v_lshl_add_u32 v10, v11, 5, v10')
    p('v_and_b32 v11, 3, v1')
    p('v_lshl_add_u32 v10, v11, 3, v10')
    p('v_bfe_u32 v11, v1, 3, 1')
    p(f'v_lshl_add_u32 {a0}, v11, 6, v10')
    p(f'v_xor_b32 {a1}, 64, {a0}')


def tr_kv_lane(a):
    p('v_bfe_u32 v10, v1, 2, 2')
    p('v_lshrrev_b32 v11, 5, v1')
    p('v_lshl_add_u32 v10, v11, 3, v10')
    p('v_lshlrev_b32 v10, 7, v10')
    p('v_bfe_u32 v11, v1, 4, 1')
    p('v_lshl_add_u32 v10, v11, 5, v10')
    p('v_and_b32 v11, 3, v1')
    p('v_lshl_add_u32 v10, v11, 3, v10')
    p('v_bfe_u32 v11, v1, 3, 1')
    p(f'v_lshl_add_u32 {a}, v11, 6, v10')


def x_lane(a):
    p('v_and_b32 v10, 31, v1')
    p(f's_lshl_b32 {T[0]}, {s_tt}, 5')
    p(f'v_add_u32 v10, {T[0]}, v10')
    p('v_bfe_u32 v11, v10, 1, 3')
    p('v_lshrrev_b32 v12, 5, v1')
    p('v_xor_b32 v11, v11, v12')
    p('v_lshlrev_b32 v11, 4, v11')
    p(f'v_lshl_add_u32 {a}, v10, 7, v11')


def tr96_lane(a):
    p('v_bfe_u32 v10, v1, 2, 2')
    p('v_lshrrev_b32 v11, 5, v1')
    p('v_lshl_add_u32 v10, v11, 2, v10')
    p('v_mul_u32_u24 v10, 192, v10')
    p('v_bfe_u32 v11, v1, 4, 1')
    p('v_lshl_add_u32 v10, v11, 5, v10')
    p('v_and_b32 v11, 3, v1')
    p(f'v_lshl_add_u32 {a}, v11, 3, v10')


def dump_stamps(R):
    if not OPT['stamps']:
        return
    R.stamp('end')
    p(f's_lshl_b32 {T[0]}, s2, 3')
    p(f's_add_u32 {T[0]}, {T[0]}, {s_w}')
    p(f's_lshl_b32 {T[0]}, {T[0]}, 8')
    p(f's_add_u32 {T[0]}, {T[0]}, {STAMP}')
    p('v_lshlrev_b32 v10, 2, v1')
    p('v_mov_b32 v11, 0')
    for k in range(R.nstamp):
        p(f'v_writelane_b32 v11, s{66 + k}, {k}')
    p(f'v_writelane_b32 v11, {s_mode}, 63')
    p(f'v_writelane_b32 v11, s100, 62')
    p(f'v_writelane_b32 v11, s101, 61')
    p(f'buffer_store_dword v11, v10, {sWS}, {T[0]} offen')
    if OPT.get('dbgout') and R is CW:
        L = p.newlabel('L_dbg')
        p(f's_cmp_lg_u32 s2, {OPT["dbgout"]}')
        p(f's_cbranch_scc1 {L}')
        p(f's_cmp_lg_u32 {s_w}, 0')
        p(f's_cbranch_scc1 {L}')
        p('s_load_dwordx2 s[40:41], s[0:1], 72')
        p('s_memrealtime s[98:99]')
        p('s_waitcnt lgkmcnt(0)')
        p('s_and_b32 s41, s41, 0xffff')
        p('s_mov_b32 s42, 256')
        p('s_mov_b32 s43, 0x20000')
        p('v_subrev_u32 v11, s100, v11')
        p('s_sub_u32 s98, s98, s86')
        p('v_writelane_b32 v11, s98, 15')
        p('buffer_store_dword v11, v10, s[40:43], 0 offen')
        p.label(L)


R = HW
def touch_st():
    p('v_bfe_u32 v250, v1, 2, 1')
    p('v_lshlrev_b32 v250, 12, v250')
    p('v_and_b32 v251, 3, v1')
    p('v_lshl_add_u32 v250, v251, 7, v250')
    p(f's_lshl_b32 {T[6]}, {s_rs}, 13')
    p(f's_lshl_b32 {T[7]}, {s_cb}, 9')
    p(f's_add_u32 {T[6]}, {T[6]}, {T[7]}')
    p(f's_add_u32 {T[6]}, {T[6]}, {STB}')
    p(f'buffer_load_dword v253, v250, {sWS}, {T[6]} offen sc1')
    R.vm.issue('t')


def touch_fl():
    p('v_bfe_u32 v250, v1, 2, 2')
    p('v_min_u32 v250, 2, v250')
    p('v_lshlrev_b32 v250, 13, v250')
    p('v_and_b32 v251, 3, v1')
    p('v_lshl_add_u32 v250, v251, 7, v250')
    p(f's_lshl_b32 {T[6]}, {s_rb}, 9')
    p(f's_add_u32 {T[6]}, {T[6]}, {FO}')
    p(f'buffer_load_dword v254, v250, {sWS}, {T[6]} offen sc1')
    R.vm.issue('t')


TM = OPT['tmode']
after = {1: {0: [2], 1: [4], 2: [6]}, 2: {0: [2, 4], 1: [6]}, 3: {0: [2], 1: [4], 3: [6]}, 4: {0: [2, 4, 6]}}[TM]


def chunk_t(R, ch):
    gs = chunk_groups(R, ch) + [wtouch(R, i) for i in after.get(ch, [])]
    if ch == OPT['qat']:
        gs.append(qtouch(R))
    if OPT['mallat'] < 8:
        m = OPT['mallat']
        gs += {m: [warm_mall(R, sW1)], m + 1: [warm_mall(R, sW2)], m + 2: [warm_wo(R), touch_fl, touch_st]}.get(ch, [])
    return gs


if OPT['twait']:
    first = [wtouch(R, 0)] + [wtouch(R, i) for i in after.pop(0, [])] + [srds_w]
else:
    first = [wtouch(R, 0)] + chunk_t(R, 0) + [srds_w]
for g in first:
    g()
tr_kv_lane('v19')
p(f's_and_b32 {T[0]}, {s_q}, 1')
p(f's_lshl_b32 {T[0]}, {T[0]}, 6')
p(f'v_xor_b32 v19, {T[0]}, v19')
p(f's_sub_u32 {s_tt}, 7, {s_w}')
x_lane('v9')
XQ = [20 + 4 * i for i in range(4)] + [68 + 4 * i for i in range(8)] + [120 + 4 * i for i in range(10)] + [196 + 4 * i for i in range(10)]
AQ = 236


def wq_lane():
    p('v_lshrrev_b32 v10, 2, v1')
    p(f's_lshl_b32 {T[0]}, {s_q}, 7')
    p(f'v_add_u32 v10, {T[0]}, v10')
    p(f's_movk_i32 {T[1]}, 3072')
    p(f'v_mul_lo_u32 v10, v10, {T[1]}')
    p('v_and_b32 v11, 3, v1')
    p('v_lshl_add_u32 v10, v11, 4, v10')
    p(f's_lshl_b32 {T[1]}, {s_c}, 6')
    p(f'v_add_u32 v7, {T[1]}, v10')
    p('v_bfe_u32 v10, v1, 2, 2')
    p('v_lshrrev_b32 v11, 5, v1')
    p('v_lshl_add_u32 v10, v11, 3, v10')
    p('v_lshlrev_b32 v10, 6, v10')
    p('v_bfe_u32 v11, v1, 4, 1')
    p('v_lshl_add_u32 v10, v11, 5, v10')
    p('v_and_b32 v11, 3, v1')
    p('v_lshl_add_u32 v10, v11, 3, v10')
    p(f'v_add_u32 v8, {L_WQ}, v10')


def wq_piece(n):
    def f():
        p(f's_lshl_b32 {T[7]}, {s_q}, 13')
        p(f's_add_u32 m0, {T[7]}, {L_WQ + n * 1024}')
        p(f's_mov_b32 {T[7]}, {n * 16 * 3072}')
        p(f'buffer_load_dwordx4 v7, {sWQKV}, {T[7]} offen lds')
        R.vm.issue('wq')
    return f

STG = [120 + 4 * i for i in range(10)] + [196 + 4 * i for i in range(14)]
ONE, CSA = 104, 52
for r in range(4):
    p(f'v_mov_b32 v{ONE + r}, 0x3f803f80')


def w1_stage(n):
    def f():
        if n % 3 == 0:
            p(f's_mul_i32 {T[6]}, {s_q}, {8 * 16 * 2752}')
            p(f's_add_u32 {T[6]}, {T[6]}, {(n // 3) * 16 * 2752}')
        p(f'buffer_load_dwordx4 {vr(STG[n], 4)}, v{112 + n % 3}, {sW1}, {T[6]} offen' + (' nt' if OPT.get('nt_w1') else ''))
        R.vm.issue('w1')
    return f


def get_tag():
    p(f'v_mov_b32 v10, {S_TAG}')
    p('ds_read_b32 v10, v10')
    p('s_waitcnt lgkmcnt(0)')
    p(f'v_readfirstlane_b32 {s_tag}, v10')


def hw_masks():
    make_masks()
    p(f's_and_b32 {s_q}, {s_w}, 3')


p('v_mov_b32 v10, 0')
p('v_mov_b32 v11, 0')
p('v_lshlrev_b32 v12, 3, v1')
p('v_and_b32 v12, 63, v12')
p(f'ds_write_b64 v12, v[10:11] offset:{S_SYNC}')
common_setup(R)
w1_dma_lanes(['v112', 'v113', 'v114'])
hw_masks()
w64_dma_lane('v115')
att_addrs()
wq_lane()
R.dstamp('P1', 'setup')
if OPT['twait']:
    p(f's_waitcnt vmcnt({OPT["twait"] - 1})')
    for g in chunk_t(R, 0):
        g()
for g in chunk_t(R, 1) + (chunk_t(R, 2) if OPT['la'] == 3 else []):
    g()
R.stamp('start')
late = [w1_stage(n) for n in range(24)]
fill = {1: [get_tag]}
for ch in range(8):
    slot = RING + (ch % NSLOT) * SLOT
    p(f'v_add_u32 v14, {slot + 16384}, v19')
    p(f'v_add_u32 v108, {slot}, v9')
    for ks in range(1, 4):
        p(f'v_xor_b32 v{(108, 109, 116, 117)[ks]}, {32 * ks}, v108')
    if ch >= 4:
        R.dstamp('P1', f'iss{ch}')
    R.vm.wait([('ch', ch)])
    if ch == 0:
        p('s_waitcnt lgkmcnt(0)')
    if ch >= 4:
        R.dstamp('P1', f'vm{ch}')
    R.bar()
    R.dstamp('P1', f'bar{ch}')
    for ks in range(4):
        for rd in range(2):
            p(f'ds_read_b64_tr_b16 {vr(36 + 4 * ks + 2 * rd, 2)}, v14 offset:{ks * 2048 + rd * 512}')
    for ks in range(4):
        p(f'ds_read_b128 {vr(XQ[4 * ch + ks], 4)}, v{(108, 109, 116, 117)[ks]}')
    LA = OPT['la']
    if ch + LA < 8:
        extra = chunk_t(R, ch + LA)
    elif ch == 8 - LA:
        extra = [wq_piece(n) for n in range(8)]
    else:
        extra = []
    mf = [(lambda ks=ks: p(f'v_mfma_f32_32x32x16_bf16 {vr(CSA, 16)}, {vr(ONE, 4)}, {vr(36 + 4 * ks, 4)}, {"0" if ch == 0 and ks == 0 else vr(CSA, 16)}')) for ks in range(4)]
    other = [lambda: p('s_waitcnt lgkmcnt(0)')] + mf + fill.get(ch, [])
    for k, g in enumerate(extra):
        g()
        if k >= 1 and other:
            other.pop(0)()
            if k == 1:
                other.pop(0)()
    for g in other:
        g()
p('v_and_b32 v10, 31, v1')
p('v_lshlrev_b32 v10, 2, v10')
p(f's_and_b32 {T[0]}, {s_q}, 1')
p(f's_lshl_b32 {T[0]}, {T[0]}, 7')
p(f'v_add_u32 v11, {T[0]}, v10')
p(f'ds_write_b32 v11, v{CSA} offset:{S_CS + 128}')
p('s_waitcnt lgkmcnt(0)')
R.bar()
R.stamp('B1')
R.dstamp('P2', 'B1')
burst = [warm_wo(R), warm_mall(R, sW1), warm_mall(R, sW2), touch_fl, touch_st]
if OPT['small']:
    burst[1] = burst[2] = lambda: None
if OPT['mallat'] == 8:
    for g in burst:
        g()
p('v_min_u32 v15, 23, v1')
p('v_lshrrev_b32 v16, 3, v15')
p(f'v_add_u32 v16, {s_rb}, v16')
p('v_cmp_le_u32 vcc, 2, v16')
p('v_mov_b32 v13, 0')
p('v_cndmask_b32 v44, v13, v18, vcc')
p('v_mov_b32 v45, v44')
p('v_mov_b32 v46, v44')
p('v_mov_b32 v47, v44')
p(f'v_mul_u32_u24 v15, {VSTR}, v15')
p(f'v_add_u32 v15, {L_V + 1024}, v15')
p('ds_write_b128 v15, v[44:47]')
p('v_mov_b32 v118, 0')
p('v_mov_b32 v119, 1')
p(f's_lshl_b32 {T[0]}, {s_tt}, 7')
p(f'v_add_u32 v11, {T[0]}, v10')
p(f'ds_read_b32 v108, v11 offset:{S_R}')
p(f'ds_read_b32 v109, v11 offset:{S_M}')
R.vm.wait(['wq'])
p(f's_lshl_b32 {T[0]}, {s_q}, 13')
p(f'v_add_u32 v14, {T[0]}, v8')
signal(R, H_WQ, 'v118', 'v119')
R.lg.reset()
for k in range(8 + 3):
    if k < 8:
        for rd in range(2):
            dsr(R, 'ds_read_b64_tr_b16', vr(36 + 4 * (k % 4) + 2 * rd, 2), ['v14'], k * 1024 + rd * 256, ('c', k))
    if k >= 3:
        R.lg.wait([('c', k - 3)])
        p(f'v_mfma_f32_32x32x16_bf16 {vr(CSA, 16)}, {vr(ONE, 4)}, {vr(36 + 4 * ((k - 3) % 4), 4)}, {"0" if k == 3 else vr(CSA, 16)}')
lwait(R, H_WQ, 'v118', 'v12')
p(f's_lshl_b32 {T[0]}, {s_q}, 7')
p(f'v_add_u32 v11, {T[0]}, v10')
p('v_lshrrev_b32 v12, 5, v1')
p('v_lshlrev_b32 v12, 4, v12')
for k in range(32 + 3):
    if k < 32:
        for rd in range(2):
            dsr(R, 'ds_read_b64_tr_b16', vr(36 + 4 * (k % 4) + 2 * rd, 2), ['v8'], k * 1024 + rd * 256, ('q', k))
    if k >= 3:
        R.lg.wait([('q', k - 3)])
        p(f'v_mfma_f32_32x32x16_bf16 {vr(AQ, 16)}, {vr(36 + 4 * ((k - 3) % 4), 4)}, {vr(XQ[k - 3], 4)}, {"0" if k == 3 else vr(AQ, 16)}')
    if OPT['mallat'] == 9 and k in (8, 10, 12, 14, 16):
        burst[(k - 8) // 2]()
    if k == 4:
        p(f'ds_write_b32 v11, v{CSA} offset:{S_CSQ}')
        R.lg.issue('w')
        signal(R, H_CSQ, 'v118', 'v119')
    if k == 20:
        lwait(R, H_CSQ, 'v118', 'v13')
    if k in (21, 23, 25, 27):
        q = (k - 21) // 2
        R.lg.room(4)
        for g in range(4):
            p(f'ds_read_b128 {vr((CSA if q == 0 else 68 + 16 * ((q - 1) % 2)) + 4 * g, 4)}, v12 offset:{S_CSQ + 128 * q + 32 * g}')
            R.lg.issue(('p', q))
    if k in (25, 27, 29):
        q = (k - 23) // 2
        R.lg.wait([('p', q)])
        for i in range(16):
            p(f'v_add_f32 v{CSA + i}, v{CSA + i}, v{68 + 16 * ((q - 1) % 2) + i}')
c = 0.25 * LOG2E
p(f'v_mul_f32 v108, {fhex(c)}, v108')
p(f'v_mul_f32 v109, {fhex(c)}, v109')
for i in range(16):
    p(f'v_mul_f32 v{CSA + i}, v109, v{CSA + i}')
p(f's_lshl_b32 {T[0]}, {s_tt}, 10')
p(f's_add_u32 {T[0]}, {T[0]}, {L_QX}')
p(f'v_add_u32 v14, {T[0]}, v2')
for i in range(16):
    p(f'v_fma_f32 v{AQ + i}, v{AQ + i}, v108, -v{CSA + i}')
for r in range(4):
    p(f'v_cvt_pk_bf16_f32 v{40 + r}, v{AQ + 2 * r}, v{AQ + 2 * r + 1}')
p('ds_write_b128 v14, v[40:43]')
for r in range(4):
    p(f'v_cvt_pk_bf16_f32 v{VQ + r}, v{AQ + 8 + 2 * r}, v{AQ + 8 + 2 * r + 1}')
signal(R, H_Q, 'v118', 'v119')
R.dstamp('P2', 'epi')
lwait(R, C_KV, 'v118', 'v12')
R.stamp('B2')
R.dstamp('P2', 'B2')


def wo_piece(q):
    def f():
        p(f's_lshl_b32 {T[6]}, {s_q}, 14')
        p(f's_add_u32 m0, {T[6]}, {L_WO + q * 1024}')
        p(f's_lshl_b32 {T[6]}, {s_q}, 17')
        p(f's_add_u32 {T[6]}, {T[6]}, {q * 8192}')
        p(f'buffer_load_dwordx4 v115, {sWO}, {T[6]} offen lds')
        R.vm.issue('wo')
    return f


def wo_done():
    R.vm.wait(['wo'])
    signal(R, H_WO, 'v118', 'v119')


wo = [wo_piece(q) for q in range(16)]
if OPT['mallat'] == 11:
    lwait(R, C_FLAG, 'v118', 'v12')
    for g in [burst[1], burst[0], burst[3], burst[4]] + ([burst[2]] if OPT['m2early'] else []):
        g()
if OPT['wopos'] == 0:
    for g in wo:
        g()
    wo = []
att_2a(R)
if OPT['wopos'] == 1 or OPT['mallat'] == 10:
    lwait(R, C_HALO, 'v118', 'v12')
if OPT['mallat'] == 10:
    for g in [burst[1], burst[0], burst[3], burst[4]] + ([burst[2]] if OPT['m2early'] else []):
        g()
if not OPT['wolate']:
    for g in wo:
        g()
    wo = []
R.dstamp('P2', 'pref')
R.bar()
R.stamp('B3')
R.dstamp('P2', 'B3')
p(f'v_mov_b32 v10, {S_MODE}')
p('ds_read_b32 v10, v10')
p('s_waitcnt lgkmcnt(0)')
p(f'v_readfirstlane_b32 {s_mode}, v10')


def w2_groups(lst, regs=None):
    lst = list(lst)
    while len(lst) % 4:
        lst.append(lst[-1])
    gs = []
    if OPT.get('x_now2'):
        return [lambda: None] * (len(lst) // 2)
    for n in range(len(lst) // 4):
        ks = lst[4 * n:4 * n + 4]
        src = [k * 16 * 1024 for k in ks]
        dst = [w2_pos[k] for k in ks]

        def sel(reg, vals):
            d = vals[1] - vals[0]
            if all(vals[q] == vals[0] + q * d for q in range(4)):
                p(f's_mul_i32 {reg}, {s_q}, {d}')
                p(f's_add_u32 {reg}, {reg}, {vals[0]}')
            else:
                p(f's_mov_b32 {reg}, {vals[0]}')
                for q in range(1, 4):
                    p(f's_cmp_eq_u32 {s_q}, {q}')
                    p(f's_cselect_b32 {reg}, {vals[q]}, {reg}')

        def g0(src=src, dst=dst, n=n):
            sel(T[6], src)
            if regs is None:
                sel(T[7], dst)
                p(f's_mov_b32 m0, {T[7]}')
                p(f'buffer_load_dwordx4 v115, {sW2}, {T[6]} offen lds')
            else:
                p(f'buffer_load_dwordx4 {vr(regs[2 * n], 4)}, v115, {sW2}, {T[6]} offen')
            R.vm.issue(('w2', 2 * n))

        def g1(n=n):
            p(f's_add_u32 {T[6]}, {T[6]}, 8192')
            if regs is None:
                p(f's_add_u32 m0, {T[7]}, 1024')
                p(f'buffer_load_dwordx4 v115, {sW2}, {T[6]} offen lds')
            else:
                p(f'buffer_load_dwordx4 {vr(regs[2 * n + 1], 4)}, v115, {sW2}, {T[6]} offen')
            R.vm.issue(('w2', 2 * n + 1))
        gs += [g0, g1]
    return gs


p(f's_setprio {OPT["hprio"]}')
ex = ([touch_st] if OPT['m2at'] >= 2 else []) + ([burst[2]] if OPT['m2at'] == 3 else []) + wo + late[:8] + [wo_done] + late[8:] + ([burst[2]] if OPT['mallat'] >= 10 and not OPT['m2early'] else [])
sl = [lambda: None] * 44
for i, g in enumerate(ex):
    sl[i * 44 // len(ex)] = g
ex = sl
att_2b(R, ex, lambda: None)
p('s_setprio 0')
p('v_min_u32 v10, 47, v1')
p('v_lshlrev_b32 v11, 2, v10')
p(f's_mul_i32 {T[0]}, {s_c}, 192')
p(f'buffer_load_dword v12, v11, {sB1}, {T[0]} offen')
R.vm.issue('b1')
p(f's_mul_i32 {T[0]}, {s_q}, {8 * 3072}')
p(f's_add_u32 {T[0]}, {T[0]}, {BASE}')
p(f'v_add_u32 v3, {T[0]}, v2')
R.bar()
for n in range(24):
    p(f'ds_write_b128 v3, {vr(STG[n], 4)} offset:{n * 1024}')
    if n % 4 == 3:
        p('s_waitcnt lgkmcnt(4)')
LST = [120 + 4 * i for i in range(28)]
gl = w2_groups(late_order, LST)
NC = OPT['w2c']
R.vm.wait(['b1'])
p('v_lshlrev_b32 v14, 16, v12')
p('v_and_b32 v15, 0xffff0000, v12')
p('v_lshlrev_b32 v11, 3, v10')
p(f'ds_write_b64 v11, v[14:15] offset:{S_B1}')
p('v_mov_b32 v16, 0')
p('v_mov_b32 v17, 1')
signal(R, H_W1, 'v16', 'v17')
R.dstamp('P3', 'w1wr')
tr96_lane('v3')
p(f's_min_u32 {T[1]}, {s_q}, 2')
p(f's_lshl_b32 {T[1]}, {T[1]}, 6')
p(f'v_add_u32 v3, {T[1]}, v3')
p('v_add_u32 v4, 0x10000, v3')
p('v_mov_b32 v18, 0x3f803f80')
p('v_mov_b32 v100, 0')
p('v_mov_b32 v101, 0')
lwait(R, C_OIS, 'v16', 'v10')
if OPT['m2at'] == 2:
    p('v_min_u32 v19, 11, v1')
    p('v_lshlrev_b32 v19, 7, v19')
    p(f's_lshl_b32 {T[7]}, s2, 2')
    p(f's_add_u32 {T[7]}, {T[7]}, {s_q}')
    p(f's_mul_i32 {T[7]}, {T[7]}, 1536')
    p(f'buffer_load_dword v254, v19, {sW2}, {T[7]} offen')
for g in w2_groups(W2_REG) + gl[:NC]:
    g()
lwait(R, H_W1, 'v16', 'v10')
for s0 in range(0, 0 if OPT.get('x_nocs') else 36, 4):
    if s0 < 32:
        for s in range(s0, s0 + 4):
            for rd in range(2):
                dsr(R, 'ds_read_b64_tr_b16', vr(20 + 16 * ((s0 // 4) % 2) + 4 * (s % 4) + 2 * rd, 2), ['v3', 'v4'], w1_addr(s) + rd * 1536, ('c', s0))
    if s0 >= 4:
        R.lg.wait([('c', s0 - 4)])
        for r in range(16):
            p(f'v_dot2c_f32_bf16 v{100 + (r & 1)}, v{20 + 16 * ((s0 // 4 - 1) % 2) + r}, v18')
p('v_add_f32 v100, v100, v101')
half_sum('v100', 'v101')
p('v_and_b32 v10, 31, v1')
p('v_lshlrev_b32 v10, 2, v10')
p(f's_lshl_b32 {T[1]}, {T[1]}, 1')
p(f'v_add_u32 v11, {T[1]}, v10')
p(f'ds_write_b32 v11, v100 offset:{S_CS1}')
p(f's_lshl_b32 {T[1]}, {s_rb}, 2')
p(f's_add_u32 {T[1]}, {T[1]}, {s_q}')
p(f's_lshl_b32 {T[2]}, {T[1]}, 7')
p(f's_add_u32 {T[2]}, {T[2]}, {FH}')
p('v_and_b32 v12, 15, v1')
p('v_lshlrev_b32 v12, 2, v12')
p(f'v_add_u32 v12, {T[2]}, v12')
p(f's_lshl_b32 {T[1]}, {T[1]}, 12')
p(f's_add_u32 {T[1]}, {T[1]}, {STB}')
p('v_lshrrev_b32 v13, 5, v1')
p('v_lshlrev_b32 v13, 11, v13')
p('v_lshl_add_u32 v13, v10, 1, v13')
poll(R, 'v12', 'v11', slow=True)
for q in range(8):
    p(f'buffer_load_dwordx2 {vr(20 + 2 * q, 2)}, v13, {sWS}, {T[1]} offen offset:{q * 256} sc1')
p(f's_lshl_b32 {T[0]}, {s_q}, 7')
p(f'v_add_u32 v10, {T[0]}, v10')
p('s_waitcnt vmcnt(0)')
for q in range(1, 8):
    p(f'v_add_f32 v20, v20, v{20 + 2 * q}')
    p(f'v_add_f32 v21, v21, v{21 + 2 * q}')
half_sum('v20', 'v11')
half_sum('v21', 'v11')
ln_finish('v20', 'v21', 'v22', 'v23')
p('v_sub_f32 v23, 0, v23')
p(f'ds_write_b32 v10, v22 offset:{S_R}')
p(f'ds_write_b32 v10, v23 offset:{S_M}')
signal(R, H_TAB, 'v16', 'v17')
R.dstamp('P3', 'cs1')
R.dstamp('P4', 'cs1')
p(f's_lshl_b32 {T[0]}, {s_q}, 11')
p(f's_add_u32 {T[0]}, {T[0]}, {BASE}')
p(f'v_add_u32 v3, {T[0]}, v2')
p('v_add_u32 v4, 0x10000, v3')
lwait(R, C_ISS, 'v16', 'v10')
R.dstamp('P4', 'iss')
for g in w2_groups(W2_P1):
    g()
R.vm.q = ['w2p1' for _ in R.vm.q]
for g in gl[NC:NC + 8]:
    g()
R.vm.wait(['w2p1'])
signal(R, H_P1, 'v16', 'v17')
for g in gl[NC + 8:]:
    g()
R.dstamp('P4', 'late')
lwait(R, C_END, 'v16', 'v10')
for n in range(28):
    R.vm.wait([('w2', n)])
    off = (n // 2) * 8192 + (n % 2) * 1024
    p(f'ds_write_b128 v{3 + off // 65536}, {vr(LST[n], 4)} offset:{off % 65536}')
    if n % 4 == 3:
        p('s_waitcnt lgkmcnt(4)')
signal(R, H_LATE, 'v16', 'v17')
R.dstamp('P5', 'latedone')
L7 = p.newlabel('L_n7')
Le = p.newlabel('L_ep')
Led = p.newlabel('L_epd')
p('s_cmp_lg_u32 s2, 0')
p(f's_cbranch_scc1 {L7}')
p(f's_cmp_lg_u32 {s_w}, 7')
p(f's_cbranch_scc1 {L7}')
p('v_lshrrev_b32 v12, 2, v1')
p('v_lshlrev_b32 v12, 7, v12')
p('v_and_b32 v13, 3, v1')
p('v_lshl_add_u32 v12, v13, 4, v12')
p(f's_mov_b32 {T[0]}, 0')
p.label(Le)
for q in range(16):
    p(f's_mov_b32 {T[1]}, {RST + 2048 * q}')
    p(f'buffer_load_dword v{20 + q}, v12, {sWS}, {T[1]} offen offset:4 sc1')
p('s_waitcnt vmcnt(0)')
p('s_mov_b64 vcc, 0')
for q in range(16):
    p(f'v_cmp_ne_u32 s[90:91], {s_tag}, v{20 + q}')
    p('s_or_b64 vcc, vcc, s[90:91]')
p(f's_cbranch_vccz {Led}')
p(f's_add_u32 {T[0]}, {T[0]}, 1')
p(f's_cmp_lt_u32 {T[0]}, {OPT["spin"]}')
p(f's_cbranch_scc1 {Le}')
p.label(Led)
p('v_mov_b32 v10, 0')
p(f'v_mov_b32 v11, {s_tag}')
p('s_mov_b64 exec, 1')
p(f'buffer_store_dword v11, v10, {sWS}, 0 offen sc1')
p('s_mov_b64 exec, -1')
p.label(L7)
dump_stamps(R)
p.label('L_end')
p('s_endpgm')
while tail:
    tail.pop(0)()
tail = []

R = CW
p.label('L_CW')
if OPT['small']:
    st = OPT['small']
    p('s_waitcnt lgkmcnt(0)')
    p(f's_lshl_b32 {T[0]}, s2, 2')
    p(f's_add_u32 {T[0]}, {T[0]}, {s_q}')
    p(f's_mul_i32 {T[0]}, {T[0]}, 1376')
    for lo in (72, 76):
        p(f's_add_u32 s90, s{lo}, {T[0]}')
        p(f's_addc_u32 s91, s{lo + 1}, 0')
        for o in sorted(set(list(range(0, 1376, st)) + [1372])):
            p(f's_load_dword s92, s[90:91], {o}')
srds_w()
common_setup(R)


def tlbwarm():
    if not OPT['tlbwarm']:
        return
    p('v_and_b32 v250, 7, v1')
    p('v_min_u32 v250, 5, v250')
    p('v_lshlrev_b32 v250, 21, v250')
    p('v_mov_b32 v251, 0')
    p(f'buffer_load_dword v252, v250, {sWS}, 0 offen offset:2048 sc1')
    for k, d in enumerate((sWO, sW1, sW2, sOUT, sB1, sB2)):
        p(f'buffer_load_dword v{254 + (k & 1)}, v251, {d}, 0 offen')
    for _ in range(7):
        R.vm.issue('t')


p(f's_mov_b32 s65, {T[5]}')
make_masks()
p(f's_and_b32 {s_q}, {s_w}, 3')
x_lane('v9')
p(f's_lshl_b32 {T[0]}, {s_rb}, 11')
p(f's_add_u32 {T[0]}, {T[0]}, {RST}')
p(f'v_lshlrev_b32 v8, 4, v10')
p(f'v_add_u32 v8, {T[0]}, v8')
p('v_and_b32 v7, 31, v1')
p('v_lshlrev_b32 v7, 3, v7')
p(f's_lshl_b32 {T[1]}, {s_team}, 8')
p(f's_add_u32 {T[1]}, {T[1]}, {ST}')
p(f'v_add_u32 v7, {T[1]}, v7')
tr_kv_lane('v19')
XF = [20, 36]
WF = [52, 100]
AK, AV = 212, 228
GR = 148


def p1_addrs(ch):
    slot = RING + (ch % NSLOT) * SLOT
    p(f'v_add_u32 v10, {slot}, v9')
    for ks in range(1, 4):
        p(f'v_xor_b32 v{10 + ks}, {32 * ks}, v10')
    p(f'v_add_u32 v14, {slot + 16384}, v19')
    p('v_xor_b32 v15, 64, v14')


def p1_reads(ch):
    b = ch & 1
    out = []
    for ks in range(4):
        out.append(f'ds_read_b128 {vr(XF[b] + 4 * ks, 4)}, v{10 + ks}')
        for sec in (0, 1):
            for rd in range(2):
                out.append(f'ds_read_b64_tr_b16 {vr(WF[b] + 16 * sec + 4 * ks + 2 * rd, 2)}, v{14 + sec} offset:{ks * 2048 + rd * 512}')
    return out


def p1_mfmas(ch):
    a = ch & 1
    out = []
    for ks in range(4):
        first = ch == 0 and ks == 0
        x = vr(XF[a] + 4 * ks, 4)
        c = lambda r: '0' if first else vr(r, 16)
        out.append(f'v_mfma_f32_32x32x16_bf16 {vr(AK, 16)}, {vr(WF[a] + 4 * ks, 4)}, {x}, {c(AK)}')
        out.append(f'v_mfma_f32_32x32x16_bf16 {vr(AV, 16)}, {x}, {vr(WF[a] + 16 + 4 * ks, 4)}, {c(AV)}')
    return out


def weave(R, mf, lds, extra=(), per=3):
    lds = list(lds)
    extra = list(extra)
    n = 0

    def emit_lds(k):
        nonlocal n
        for _ in range(k):
            if not lds:
                return
            if n and n % 7 == 0 and n >= 14:
                p('s_waitcnt lgkmcnt(7)')
            p(lds.pop(0))
            n += 1
    for i, m in enumerate(mf):
        p(m)
        emit_lds(per)
        if extra and i % 3 == 2:
            extra.pop(0)()
    emit_lds(99)
    for g in extra:
        g()


def kv_ids():
    p(f's_lshl_b32 {T[2]}, {s_rb}, 4')
    p(f's_add_u32 {T[2]}, {T[2]}, {s_c}')
    p(f's_lshl_b32 {T[4]}, {T[2]}, 5')
    p(f's_add_u32 {T[4]}, {T[4]}, {s_w}')
    p(f's_lshl_b32 {T[4]}, {T[4]}, 2')
    p(f's_add_u32 {T[4]}, {T[4]}, {FKV}')
    p(f's_lshl_b32 {T[5]}, {s_w}, 12')
    p(f's_add_u32 {T[5]}, {T[5]}, {s_area}')
    p(f's_add_u32 {T[2]}, {T[5]}, {32 * 16384}')


def kv_clear():
    for r in range(4):
        p(f'v_mov_b32 v{244 + r}, -1')
    for q in range(4):
        p(f'buffer_store_dwordx4 v[244:247], v2, {sWS}, {T[2]} offen offset:{q * 1024} sc1')
        R.vm.issue('st')


def kv_cleared():
    flag_store(R, T[4], 'v248', 'v249', moded=False)


kv_ids()
if OPT['kvtag'] and OPT['clrat'] == -1:
    kv_clear()
p(f's_cmp_ge_u32 {s_rb}, 1')
p(f's_cselect_b32 {T[0]}, {16 * 128}, 0')
p(f's_sub_u32 {T[0]}, {T[4]}, {T[0]}')
p(f's_cmp_ge_u32 {s_rb}, 2')
p(f's_cselect_b32 {T[1]}, {2 * 16 * 128}, 0')
p(f's_sub_u32 {T[1]}, {T[4]}, {T[1]}')
p(f'v_mov_b32 v6, {T[0]}')
p(f'v_mov_b32 v11, {T[1]}')
p('v_and_b32 v12, 1, v1')
p('v_cmp_eq_u32 vcc, 1, v12')
p('v_cndmask_b32 v6, v6, v11, vcc')
row_stats(R)
p1_addrs(0)
R.stamp('start')
CSQ, CSK, RR, MM, CSV = 52, 68, 20, 84, 152
for ch in range(8):
    p('s_waitcnt lgkmcnt(0)')
    if ch >= 4:
        R.dstamp('P1', f'pre{ch}')
    R.bar()
    R.dstamp('P1', f'bar{ch}')
    extra = []
    if ch == 5:
        def ld():
            p(f'buffer_load_dwordx4 {vr(GR, 4)}, v8, {sWS}, 0 offen sc1')
            p(f'buffer_load_dwordx2 v[156:157], v7, {sWS}, 0 offen sc1')
            R.vm.issue('gr')
            R.vm.issue('gr')
            if OPT['fkvt']:
                p(f'buffer_load_dword v253, v6, {sWS}, 0 offen sc1')
                R.vm.issue('t')

        extra = [ld]
    if ch == 0:
        extra = [tlbwarm]
    if OPT.get('probe') and ch == 2:
        def probe():
            p(f'v_mov_b32 v250, {OPT["probe"]}')
            if OPT.get('probe_n'):
                p(f'v_min_u32 v251, {OPT["probe_n"] - 1}, v1')
                p(f'v_lshlrev_b32 v251, {OPT.get("probe_sh", 21)}, v251')
                p('v_add_u32 v250, v250, v251')
            if OPT.get('probe_spread'):
                p(f's_lshl_b32 {T[7]}, s2, 9')
                p(f'v_add_u32 v250, {T[7]}, v250')
            d = {0: sWS, 1: sWO, 2: sW1, 3: sW2, 4: sOUT, 5: sB1, 6: sB2}[OPT.get('probe_buf', 0)]
            p(f'buffer_load_dword v252, v250, {d}, 0 offen')
            R.vm.issue('t')
        extra = extra + [probe]
    if OPT['mallat'] == 20 + ch:
        def cw_burst():
            p('v_min_u32 v17, 11, v1')
            p('v_lshlrev_b32 v17, 7, v17')
            for g in (warm_mall(R, sW1), warm_wo(R), touch_fl) + ((warm_mall(R, sW2), touch_st) if OPT['m2at'] == 0 else ()):
                g()
        extra = extra + [cw_burst]
    if ch == OPT['clrat'] and OPT['kvtag']:
        extra = extra + [kv_clear]
    if ch == OPT['clrdone'] and OPT['kvtag']:
        extra = [kv_cleared]
    weave(R, p1_mfmas(ch - 1) if ch else [], p1_reads(ch), extra)
    if ch < 7:
        p1_addrs(ch + 1)
Lg = p.newlabel('L_gr')
Lgx = p.newlabel('L_grx')
R.vm.wait(['gr'])
p(f's_mov_b32 {T[0]}, 0')
p.label(Lg)
p(f'v_cmp_ne_u32 vcc, {s_tag}, v{GR + 1}')
p(f'v_cmp_ne_u32 s[90:91], {s_tag}, v{GR + 3}')
p('s_or_b64 vcc, vcc, s[90:91]')
p(f'v_cmp_ne_u32 s[90:91], {s_tag}, v156')
p('s_or_b64 vcc, vcc, s[90:91]')

p(f's_cbranch_vccnz {Lgx}')
Lgd = p.newlabel('L_grd')
p.label(Lgd)


def gr_retry():
    p.label(Lgx)
    p(f'buffer_load_dwordx4 {vr(GR, 4)}, v8, {sWS}, 0 offen sc1')
    p(f'buffer_load_dwordx2 v[156:157], v7, {sWS}, 0 offen sc1')
    p('s_waitcnt vmcnt(0)')
    p(f's_add_u32 {T[0]}, {T[0]}, 1')
    p(f's_cmp_lt_u32 {T[0]}, {OPT["spin"]}')
    p(f's_cbranch_scc1 {Lg}')
    p(f's_branch {Lgd}')


tail.append(gr_retry)
p(f'v_readfirstlane_b32 {T[1]}, v157')
p(f'v_cmp_ne_u32 vcc, {T[1]}, v157')
p('s_cmp_eq_u64 vcc, 0')
p(f's_cselect_b32 {s_mode}, 1, 0')
if OPT['force_safe']:
    p(f's_mov_b32 {s_mode}, 0')
p(f'v_mov_b32 v10, {S_MODE}')
p(f'v_mov_b32 v11, {s_mode}')
p('ds_write_b32 v10, v11')
p('v_and_b32 v10, 31, v1')
p('v_lshlrev_b32 v10, 2, v10')
p(f's_lshl_b32 {T[0]}, {s_tt}, 7')
p(f'v_add_u32 v11, {T[0]}, v10')
p(f'ds_write_b32 v11, v{GR} offset:{S_R}')
p(f'ds_write_b32 v11, v{GR + 2} offset:{S_M}')
p('v_lshrrev_b32 v12, 5, v1')
p('v_lshlrev_b32 v12, 4, v12')
p(f'v_add_u32 v13, {T[0]}, v12')
p('s_waitcnt lgkmcnt(0)')
R.bar()
R.stamp('B1')
R.dstamp('P2', 'B1')
lds = [f'ds_read_b128 {vr(CSK + 4 * g, 4)}, v12 offset:{S_CS + 128 + 32 * g}' for g in range(4)]
lds += [f'ds_read_b32 v{CSV}, v10 offset:{S_CS + 256}']
lds += [f'ds_read_b128 {vr(MM + 4 * g, 4)}, v13 offset:{S_M + 32 * g}' for g in range(4)]
lds += [f'ds_read_b128 {vr(RR + 4 * g, 4)}, v13 offset:{S_R + 32 * g}' for g in range(4)]


def pub_addrs():
    p(f's_lshl_b32 {T[0]}, {s_tt}, 11')
    p(f's_add_u32 {T[1]}, {T[0]}, {L_K + 8 * 2048}')
    p(f'v_add_u32 v15, {T[1]}, v2')
    p(f's_mul_i32 {T[0]}, {s_tt}, {2 * VSTR}')
    p(f's_add_u32 {T[0]}, {T[0]}, {L_V + 16 * VSTR}')
    p(f'v_add_u32 v16, {T[0]}, v2')


mf = p1_mfmas(7)
mf = mf[0::2] + mf[1::2]


def st_pair(reg, off):
    def f():
        if OPT['kvtag']:
            for r in range(0, 8, 2):
                p(f'v_min_u32 v{reg + r}, -2, v{reg + r}')
        for g in range(2):
            p(f'buffer_store_dwordx4 {vr(reg + 4 * g, 4)}, v2, {sWS}, {T[2]} offen offset:{off + g * 1024} sc1')
            R.vm.issue('st')
    return f


PKK, PKV = 244, 52
for x in lds[:9]:
    p(x)
p(mf[0])
for x in lds[9:13]:
    p(x)
p(mf[1])
pub_addrs()
p(mf[2])
p('s_waitcnt lgkmcnt(9)')
for i in range(8):
    p(f'v_mul_f32 v{CSK + i}, v{GR + 2}, v{CSK + i}')
p(mf[3])
for i in range(8, 16):
    p(f'v_mul_f32 v{CSK + i}, v{GR + 2}, v{CSK + i}')
p(mf[4])
p('s_waitcnt lgkmcnt(4)')
for i in range(8):
    p(f'v_mul_f32 v{MM + i}, v{CSV}, v{MM + i}')
p(mf[5])
for i in range(8, 16):
    p(f'v_mul_f32 v{MM + i}, v{CSV}, v{MM + i}')
kops = [f'v_fma_f32 v{AK + i}, v{AK + i}, v{GR}, -v{CSK + i}' for i in range(16)]
kops += [f'v_cvt_pk_bf16_f32 v{PKK + r}, v{AK + 2 * r}, v{AK + 2 * r + 1}' for r in range(8)]
for m in (6, 7):
    p(mf[m])
    for x in kops[8 * (m - 6):8 * (m - 5)]:
        p(x)
for x in kops[16:]:
    p(x)
st_pair(PKK, 0)()
p('s_waitcnt lgkmcnt(0)')
for i in range(16):
    p(f'v_fma_f32 v{AV + i}, v{AV + i}, v{RR + i}, -v{MM + i}')
for r in range(8):
    p(f'v_cvt_pk_bf16_f32 v{PKV + r}, v{AV + 2 * r}, v{AV + 2 * r + 1}')
st_pair(PKV, 2048)()
for g in range(2):
    p(f'ds_write_b128 v15, {vr(PKK + 4 * g, 4)} offset:{g * 1024}')
    p(f'ds_write_b128 v16, {vr(PKV + 4 * g, 4)} offset:{g * VSTR}')
p(f's_lshl_b32 {T[0]}, {s_tt}, 10')
p(f's_add_u32 {T[0]}, {T[0]}, {L_QX}')
p(f'v_add_u32 v12, {T[0]}, v2')
p('v_mov_b32 v102, 0')
p('v_mov_b32 v103, 1')
signal(R, C_KV, 'v102', 'v103')
att_addrs()
R.dstamp('P2', 'epi')
if not OPT['kvtag']:
    flag_store(R, T[4], 'v10', 'v11', moded=False)
signal(R, C_FLAG, 'v102', 'v103')
R.stamp('KVflag')
R.dstamp('P2', 'KVflag')
p('v_mov_b32 v13, v12')


def cw_2a():
    lwait(R, H_Q, 'v102', 'v10')
    lwait(R, C_KV, 'v102', 'v10')
    p(f'ds_read_b128 {vr(VQ, 4)}, v13')
    att_2a(R)


if OPT['a_first']:
    cw_2a()
p(f's_add_u32 {T[3]}, {T[5]}, {16 * 16384}')
p(f'v_subrev_u32 v15, {8 * 2048}, v15')
p(f'v_subrev_u32 v16, {16 * VSTR}, v16')


def halo_loads():
    for d in (1, 2):
        for q in range(4):
            p(f'buffer_load_dwordx4 {vr(HALO + 16 * (2 - d) + 4 * q, 4)}, v2, {sWS}, {T[3] if d == 1 else T[5]} offen offset:{q * 1024} sc1')


if not OPT['kvtag']:
    poll(R, 'v6', 'v11')
else:
    p(f's_add_u32 {T[0]}, {T[3]}, 4080')
    p(f's_add_u32 {T[1]}, {T[5]}, 4080')
    p(f'v_mov_b32 v10, {T[0]}')
    p(f'v_mov_b32 v11, {T[1]}')
    p('v_and_b32 v12, 1, v1')
    p('v_cmp_eq_u32 vcc, 1, v12')
    p('v_cndmask_b32 v10, v10, v11, vcc')
    p(f'v_add_u32 v12, 1, v12')
    p(f'v_cmp_ge_u32 s[90:91], {s_rb}, v12')
    p('v_cmp_le_u32 vcc, 32, v1')
    p('v_cndmask_b32 v10, v10, v6, vcc')
    p('s_mov_b32 s91, 0')
    Lk = p.newlabel('L_kv')
    Lkx = p.newlabel('L_kvx')
    Lkd = p.newlabel('L_kvd')
    p(f's_mov_b32 {T[0]}, 0')
    p.label(Lk)
    p(f'buffer_load_dword v11, v10, {sWS}, 0 offen sc1')
    p('s_waitcnt vmcnt(0)')
    p('v_cmp_eq_u32 vcc, -1, v11')
    p('s_and_b64 vcc, vcc, s[90:91]')
    p(f'v_cmp_ne_u32 s[92:93], {s_tag}, v11')
    p('s_or_b32 vcc_hi, vcc_hi, s93')
    p(f's_cbranch_vccnz {Lkx}')
    p.label(Lkd)
    R.vm.reset()

    def kvx():
        p.label(Lkx)
        p(f's_add_u32 {T[0]}, {T[0]}, 1')
        p(f's_cmp_lt_u32 {T[0]}, {OPT["spin"]}')
        p(f's_cbranch_scc1 {Lk}')
        p(f's_branch {Lkd}')
    tail.append(kvx)
R.dstamp('P2', 'kvpoll')
halo_loads()
signal(R, C_HALO, 'v102', 'v103')
if OPT['m2at'] == 1:
    warm_mall(R, sW2)()
    touch_st()
NX = 2 if OPT['m2at'] == 1 else 0
if not OPT['a_first']:
    cw_2a()
XRES = 240
HRES = 248
p('v_and_b32 v10, 31, v1')
p(f's_lshl_b32 {T[0]}, {s_rs}, 1')
p(f's_add_u32 {s_tile}, {T[0]}, {s_t}')
p(f's_lshl_b32 {T[0]}, {s_tile}, 5')
p(f'v_add_u32 v10, {T[0]}, v10')
p('v_lshlrev_b32 v10, 10, v10')
p('v_lshrrev_b32 v11, 5, v1')
p('v_lshl_add_u32 v10, v11, 3, v10')
p(f's_lshl_b32 {T[0]}, {s_cb}, 7')
p(f's_lshl_b32 {T[1]}, {s_kh}, 6')
p(f's_add_u32 {T[0]}, {T[0]}, {T[1]}')
p(f'v_add_u32 v9, {T[0]}, v10')
Lz = p.newlabel('L_nohalo')
Lw = p.newlabel('L_halow')
Lzc = p.newlabel('L_zc')
p(f's_mov_b32 {T[0]}, 0')
p.label(Lzc)
p(f's_cmp_lt_u32 {s_rb}, 2')
p(f's_cbranch_scc1 {Lz}')
p.label(Lw)
if OPT['kvtag']:
    Lw2 = Lw


def zero_blk():
    L1 = p.newlabel('L_z1')
    p.label(Lz)
    p('s_waitcnt vmcnt(0)')
    for r in range(16):
        p(f'v_mov_b32 v{HALO + r}, 0')
    p(f's_cmp_eq_u32 {s_rb}, 1')
    p(f's_cbranch_scc1 {Lw}')
    for r in range(16):
        p(f'v_mov_b32 v{HALO + 16 + r}, 0')
    p(f's_branch {Lw}')


tail.append(zero_blk)
if OPT['kvtag']:
    Lv = p.newlabel('L_hv')
    Lvx = p.newlabel('L_hvx')
    Lvd = p.newlabel('L_hvd')
    p('s_waitcnt vmcnt(0)')
    p(f'v_max3_u32 v10, v{HALO}, v{HALO + 2}, v{HALO + 4}')
    p(f'v_max3_u32 v11, v{HALO + 6}, v{HALO + 8}, v{HALO + 10}')
    for k, r in enumerate(range(12, 32, 4)):
        p(f'v_max3_u32 v{10 + (k & 1)}, v{10 + (k & 1)}, v{HALO + r}, v{HALO + r + 2}')
    p('v_max_u32 v10, v10, v11')
    p('v_cmp_eq_u32 vcc, -1, v10')
    p(f's_cbranch_vccnz {Lvx}')
    p.label(Lvd)

    def hvx():
        p.label(Lvx)
        p(f's_add_u32 {T[0]}, {T[0]}, 1')
        p(f's_cmp_ge_u32 {T[0]}, {OPT["spin"]}')
        p(f's_cbranch_scc1 {Lvd}')
        halo_loads()
        p(f's_branch {Lzc}')
    tail.append(hvx)
for g in range(2):
    p(f's_waitcnt vmcnt({7 - g + NX})')
    p(f'ds_write_b128 v15, {vr(HALO + 16 + 4 * g, 4)} offset:{4 * 2048 + g * 1024}')
for g in range(2):
    p(f's_waitcnt vmcnt({5 - g + NX})')
    p(f'ds_write_b128 v16, {vr(HALO + 24 + 4 * g, 4)} offset:{(8 + g) * VSTR}')
R.vm.q = [('hb', g) for g in range(4)] + ['t'] * NX


def halo2(g):
    def f():
        R.vm.wait([('hb', g)])
        R.lg.room(1)
        if g < 2:
            p(f'ds_write_b128 v15, {vr(HALO + 4 * g, 4)} offset:{g * 1024}')
        else:
            p(f'ds_write_b128 v16, {vr(HALO + 4 * g, 4)} offset:{(g - 2) * VSTR}')
        R.lg.issue('hw')
    return f


def halo_done():
    p(f's_add_u32 {T[4]}, {T[4]}, 16')
    R.vm.q = []
    p(f'v_mov_b32 v10, {T[4]}')
    p(f'v_mov_b32 v11, {s_tag}')
    p('s_mov_b64 exec, 1')
    p(f'buffer_store_dword v11, v10, {sWS}, 0 offen sc1')
    p('s_mov_b64 exec, -1')
    for g in range(4):
        p(f'buffer_load_dwordx2 {vr(XRES + 2 * g, 2)}, v9, {sX}, 0 offen offset:{16 * g}')
        R.vm.issue('xres')


for g in range(4):
    halo2(g)()
halo_done()
tr64_lanes('v4', 'v5')
p(f's_lshl_b32 {T[0]}, {s_kh}, 6')
p(f'v_xor_b32 v4, {T[0]}, v4')
p(f'v_xor_b32 v5, {T[0]}, v5')
p(f's_lshl_b32 {T[0]}, {s_kh}, 15')
p(f's_add_u32 {T[0]}, {T[0]}, {L_WO}')
p(f'v_add_u32 v6, {T[0]}, v4')
p(f'v_add_u32 v7, {T[0]}, v5')
p('s_waitcnt lgkmcnt(0)')
R.dstamp('P2', 'halo')
R.bar()
R.stamp('B3')
R.dstamp('P2', 'B3')
WOF, OF, ACC3 = 16, 144, 208


def wo_reads(lo, hi):
    for s in range(lo, hi):
        for nt in range(2):
            for rd in range(2):
                p(f'ds_read_b64_tr_b16 {vr(WOF + 8 * s + 4 * nt + 2 * rd, 2)}, v{6 + nt} offset:{s * 2048 + rd * 1024}')
        if s % 2 == 1:
            p('s_waitcnt lgkmcnt(4)')


def cw_wo():
    p('v_mov_b32 v102, 0')
    lwait(R, H_WO, 'v102', 'v10')
    wo_reads(0, 8)


att_2b(R, [], cw_wo)
p('s_setprio 2')
wo_reads(8, 16)
p('v_and_b32 v8, 15, v1')
p('v_lshlrev_b32 v8, 2, v8')
p(f's_lshl_b32 {T[0]}, {s_tile}, 1')
p(f's_add_u32 {T[0]}, {T[0]}, {s_kh}')
p(f's_lshl_b32 {T[1]}, {s_rb}, 18')
p(f's_lshl_b32 {T[2]}, {s_kh}, 17')
p(f's_add_u32 {T[1]}, {T[1]}, {T[2]}')
p(f's_and_b32 {T[2]}, {s_tile}, 3')
p(f's_lshl_b32 {T[2]}, {T[2]}, 12')
p(f's_add_u32 {T[1]}, {T[1]}, {T[2]}')
p(f's_lshl_b32 {T[0]}, {T[0]}, 6')
p(f's_add_u32 {T[0]}, {T[0]}, {FO}')
p(f'v_add_u32 v10, {T[0]}, v8')
for g in range(4):
    for k in range(2):
        x = XRES + 2 * g + k
        p(f'v_lshlrev_b32 v{ACC3 + 4 * g + 2 * k}, 16, v{x}')
        p(f'v_and_b32 v{ACC3 + 4 * g + 2 * k + 1}, 0xffff0000, v{x}')
p('s_waitcnt lgkmcnt(0)')
R.bar()
R.dstamp('P3', 'B5')
poll(R, 'v10', 'v11')
R.stamp('Opoll')
R.dstamp('P3', 'Opoll')


def o_load(s):
    if s % 2 == 0:
        p(f's_add_u32 {T[2]}, {T[1]}, {AREA + (s // 2) * 16384}')
    p(f'buffer_load_dwordx4 {vr(OF + 4 * s, 4)}, v2, {sWS}, {T[2]} offen offset:{(s % 2) * 1024} sc1')
    R.vm.issue(('o', s))


def xchg_addrs(area):
    p(f's_lshl_b32 {T[0]}, {s_w}, 12')
    p(f's_add_u32 {T[0]}, {T[0]}, {area}')
    p(f'v_add_u32 v10, {T[0]}, v2')
    p(f's_xor_b32 {T[0]}, {s_w}, 2')
    p(f's_lshl_b32 {T[0]}, {T[0]}, 12')
    p(f's_add_u32 {T[0]}, {T[0]}, {area}')
    p(f'v_add_u32 v11, {T[0]}, v2')


def xchg_finish(R, acc, dst, pair=False):
    if pair:
        signal(R, X_P0, 'v14', 'v13')
        lwait(R, X_P0, 'v14', 'v15', n=2)
    else:
        p('s_waitcnt lgkmcnt(0)')
        R.bar()
    for g in range(4):
        p(f'ds_read_b128 {vr(dst + 4 * g, 4)}, v11 offset:{g * 1024}')
    for g in range(4):
        p(f's_waitcnt lgkmcnt({3 - g})')
        for i in range(4):
            p(f'v_add_f32 v{dst + 4 * g + i}, v{dst + 4 * g + i}, v{acc + 4 * g + i}')
    R.lg.reset()


TAILN = 5
AH = OPT['aho']
for s in range(AH):
    o_load(s)
xchg_addrs(L_HI)
p('v_mov_b32 v12, 0')
p('v_mov_b32 v13, 1')
p(f's_lshl_b32 {T[0]}, {s_t}, 2')
p(f'v_mov_b32 v14, {T[0]}')
seq3 = [(s, nt) for s in range(16 - TAILN) for nt in (1, 0)] + [(s, 1) for s in range(16 - TAILN, 16)] + [(s, 0) for s in range(16 - TAILN, 16)]
no = AH
for k, (s, nt) in enumerate(seq3):
    R.vm.wait([('o', s)])
    p(f'v_mfma_f32_32x32x16_bf16 {vr(ACC3 + 16 * nt, 16)}, {vr(WOF + 8 * s + 4 * nt, 4)}, {vr(OF + 4 * s, 4)}, {"0" if s == 0 and nt == 1 else vr(ACC3 + 16 * nt, 16)}')
    if no < 16:
        o_load(no)
        no += 1
        if no == 16:
            signal(R, C_OIS, 'v12', 'v13')
    g = k - (len(seq3) - 4)
    if g >= 0:
        p(f'ds_write_b128 v10, {vr(ACC3 + 16 + 4 * g, 4)} offset:{g * 1024}')
R.dstamp('P3', 'loop')
xchg_finish(R, ACC3, 16, pair=True)
R.dstamp('P3', 'xchg')
for r in range(8):
    p(f'v_cvt_pk_bf16_f32 v{HRES + r}, v{16 + 2 * r}, v{16 + 2 * r + 1}')
p(f's_lshl_b32 {T[0]}, {s_cb}, 1')
p(f's_add_u32 {T[0]}, {T[0]}, {s_kh}')
p(f's_lshl_b32 {T[3]}, {s_tile}, 4')
p(f's_add_u32 {T[3]}, {T[3]}, {T[0]}')
p(f's_add_u32 {T[1]}, {T[5]}, 2048')
moded_stores(R, [f'buffer_store_dwordx4 {vr(HRES, 4)}, v2, {sWS}, {T[1]} offen',
                 f'buffer_store_dwordx4 {vr(HRES + 4, 4)}, v2, {sWS}, {T[1]} offen offset:1024'], OPT['hsc1'])
p('v_mov_b32 v18, 0x3f803f80')
p('v_mov_b32 v12, 0')
p('v_mov_b32 v13, 0')
for r in range(8):
    p(f'v_dot2c_f32_bf16 v12, v{HRES + r}, v18')
    p(f'v_dot2c_f32_bf16 v13, v{HRES + r}, v{HRES + r}')
p(f's_lshl_b32 {T[2]}, {T[3]}, 8')
p(f's_add_u32 {T[2]}, {T[2]}, {STB}')
p(f's_lshl_b32 {T[3]}, {s_tile}, 5')
p(f's_add_u32 {T[3]}, {T[3]}, {T[0]}')
p(f's_lshl_b32 {T[3]}, {T[3]}, 2')
p(f's_add_u32 {T[3]}, {T[3]}, {FH}')
p('v_and_b32 v14, 31, v1')
p('v_lshlrev_b32 v14, 3, v14')
half_sum('v12', 'v10')
half_sum('v13', 'v10')
moded_stores(R, [f'buffer_store_dwordx2 v[12:13], v14, {sWS}, {T[2]} offen'], OPT['hsc1'])
p('v_mov_b32 v246, 0')
p('v_mov_b32 v247, 1')
lwait(R, H_W1, 'v246', 'v10')
HF, ACC4, W1B, STL = 16, 144, 192, 228
tr96_lane('v3')
p('v_add_u32 v6, 0x10000, v3')
W1A = ['v3', 'v6']


def w1_reads(s):
    b = W1B + 12 * (s % 3)
    for nt in range(3):
        for rd in range(2):
            dsr(R, 'ds_read_b64_tr_b16', vr(b + 4 * nt + 2 * rd, 2), W1A, w1_addr(s) + rd * 1536 + nt * 64, ('w1', s))


w1_reads(0)
w1_reads(1)
flag_store(R, T[3], 'v10', 'v11')
R.stamp('Hflag')
R.dstamp('P3', 'Hflag')
p(f's_lshl_b32 {T[0]}, {s_rb}, 2')
p(f's_add_u32 {T[7]}, {T[0]}, {s_w}')
p(f's_lshl_b32 {T[1]}, {s_rb}, 18')
p(f's_lshl_b32 {T[2]}, {s_kh}, 17')
p(f's_add_u32 {T[1]}, {T[1]}, {T[2]}')
p(f's_lshl_b32 {T[2]}, {s_t}, 12')
p(f's_add_u32 {T[1]}, {T[1]}, {T[2]}')
p(f's_lshl_b32 {T[0]}, {T[7]}, 7')
p(f's_add_u32 {T[0]}, {T[0]}, {FH}')
p(f'v_add_u32 v10, {T[0]}, v8')
poll(R, 'v10', 'v11')
R.stamp('Hpoll')
R.dstamp('P4', 'Hpoll')


def h_load(s):
    if s % 2 == 0:
        p(f's_add_u32 {T[2]}, {T[1]}, {AREA + (s >> 2) * 16384 + ((s >> 1) & 1) * 8192}')
    p(f'buffer_load_dwordx4 {vr(HF + 4 * s, 4)}, v2, {sWS}, {T[2]} offen offset:{2048 + (s % 2) * 1024} sc1')
    R.vm.issue(('h', s))


S0 = OPT['s0']
nh = 0
for s in range(OPT['ahh']):
    h_load(nh)
    nh += 1
p('v_lshrrev_b32 v13, 1, v14')
p(f's_lshl_b32 {T[0]}, {s_w}, 7')
p(f'v_add_u32 v13, {T[0]}, v13')
p('v_lshrrev_b32 v12, 5, v1')
p('v_lshlrev_b32 v12, 4, v12')
p(f's_lshl_b32 {T[4]}, {T[7]}, 4')
p(f's_add_u32 {T[4]}, {T[4]}, {s_c}')
p(f's_lshl_b32 {T[4]}, {T[4]}, 12')
p(f's_add_u32 {T[4]}, {T[4]}, {H1B}')
p(f's_lshl_b32 {T[3]}, {T[7]}, 5')
p(f's_add_u32 {T[3]}, {T[3]}, {s_c}')
p(f's_lshl_b32 {T[3]}, {T[3]}, 2')
p(f's_add_u32 {T[3]}, {T[3]}, {FH1}')


seq = [(s, nt) for s in range(S0) for nt in range(3)] + [(s, nt) for nt in range(3) for s in range(S0, 32)]
EB = [48, 16, 48] if S0 >= 16 else None


def epi_ops(nt):
    e = EB[nt]
    pk = STL + 8 * (nt & 1)
    ops = []
    r = e + 16
    for i in range(16):
        ops.append(f'v_fmac_f32 v{r + i}, v{ACC4 + 16 * nt + i}, v244')
        if i >= 1:
            ops.append(f'v_max_f32 v{r + i - 1}, 0, v{r + i - 1}')
        if i >= 2:
            ops.append(f'v_mul_f32 v{r + i - 2}, v{r + i - 2}, v{r + i - 2}')
        if i >= 4 and i % 2 == 0:
            ops.append(f'v_cvt_pk_bf16_f32 v{pk + (i - 4) // 2}, v{r + i - 4}, v{r + i - 3}')
    ops += [f'v_max_f32 v{r + 15}, 0, v{r + 15}', f'v_mul_f32 v{r + 14}, v{r + 14}, v{r + 14}', f'v_mul_f32 v{r + 15}, v{r + 15}, v{r + 15}',
            f'v_cvt_pk_bf16_f32 v{pk + 6}, v{r + 12}, v{r + 13}', f'v_cvt_pk_bf16_f32 v{pk + 7}, v{r + 14}, v{r + 15}']
    st = []
    for g in range(2):
        f = 2 * nt + g
        st.append(f'buffer_store_dwordx4 {vr(pk + 4 * g, 4)}, v2, {sWS}, {T[4] if f < 4 else T[5]} offen offset:{(f % 4) * 1024}')
    ops.append(st if nt == 2 else tuple(st))
    return ops


def emit_op(x):
    if isinstance(x, (list, tuple)):
        moded_stores(R, x, isinstance(x, tuple))
    else:
        p(x)


def e_reads(nt):
    R.lg.room(8)
    for g in range(4):
        p(f'ds_read_b128 {vr(EB[nt] + 4 * g, 4)}, v12 offset:{S_CS1 + 128 * nt + 32 * g}')
        R.lg.issue(('e', nt))
    for g in range(4):
        p(f'ds_read_b128 {vr(EB[nt] + 16 + 4 * g, 4)}, v12 offset:{S_B1 + 128 * nt + 32 * g}')
        R.lg.issue(('e', nt))


def e_comb(nt):
    return [f'v_fmac_f32 v{EB[nt] + 16 + i}, v245, v{EB[nt] + i}' for i in range(16)]


W2R = 16
PRE = 6
bufs = {}
for k in range(PRE):
    s, nt = seq[k]
    bufs[k] = W1B + 4 * k
valu = []
pend = []
OPT_K = {0: (0,), 1: (0, 48), 2: (0, 24, 48, 72)}[OPT.get('pk', 0)]
for k, (s, nt) in enumerate(seq):
    if s < S0 and nt == 0 or s >= S0 and nt == 0:
        R.vm.wait([('h', s)])
    if k in OPT_K:
        R.dstamp('P4', f'k{k}')
    R.lg.wait([('w1', s) if k < PRE else ('w1', s, nt)])
    p(f'v_mfma_f32_32x32x16_bf16 {vr(ACC4 + 16 * nt, 16)}, {vr(bufs[k], 4)}, {vr(HF + 4 * s, 4)}, {"0" if s == 0 else vr(ACC4 + 16 * nt, 16)}')
    if k + PRE < len(seq):
        s2, nt2 = seq[k + PRE]
        b = W1B + 4 * ((k + PRE) % 9)
        bufs[k + PRE] = b
        for rd in range(2):
            pend.append(lambda b=b, rd=rd, s2=s2, nt2=nt2: dsr(R, 'ds_read_b64_tr_b16', vr(b + 2 * rd, 2), W1A, w1_addr(s2) + rd * 1536 + nt2 * 64, ('w1', s2, nt2)))
    ld = nh < 32 and k % OPT['hrate'] == 1
    for _ in range(1 if ld and OPT['pack'] else 3):
        if pend:
            pend.pop(0)()
    if ld:
        h_load(nh)
        nh += 1
        if nh == 32:
            signal(R, C_ISS, 'v246', 'v247')
    if k == 3 * S0 - 6:
        p(f'ds_read_b32 v10, v246 offset:{H_TAB}')
        R.lg.issue(H_TAB)
    seg = (k - 3 * S0) // (32 - S0) if k >= 3 * S0 else -1
    pos = (k - 3 * S0) % (32 - S0)
    if k == 3 * S0:
        lwait(R, H_TAB, 'v246', 'v10', early=True)
        R.lg.room(2)
        p(f'ds_read_b32 v244, v13 offset:{S_R}')
        p(f'ds_read_b32 v245, v13 offset:{S_M}')
        R.lg.issue('rm')
        R.lg.issue('rm')
    if seg >= 0 and pos == (1 if seg == 0 else 32 - S0 - 5):
        e_reads(seg)
    if seg >= 0 and pos == (5 if seg == 0 else 32 - S0 - 3):
        R.lg.wait([('e', seg)])
        valu += e_comb(seg)
    if seg >= 1 and pos == 1:
        valu += epi_ops(seg - 1)
    n = -(-76 // (32 - S0 - 1)) if seg >= 1 else 4
    if OPT.get('x_noepi') and seg >= 0:
        valu = [x for x in valu if isinstance(x, (list, tuple))]
    for _ in range(n):
        if valu:
            emit_op(valu.pop(0))
for x in valu:
    emit_op(x)
R.dstamp('P4', 'loop')
p('v_lshrrev_b32 v10, 5, v1')
p('v_lshlrev_b32 v10, 3, v10')
p(f's_lshl_b32 {T[0]}, {s_cb}, 7')
p(f's_lshl_b32 {T[1]}, {s_kh}, 6')
p(f's_add_u32 {T[0]}, {T[0]}, {T[1]}')
for g in range(4):
    p(f'buffer_load_dwordx2 {vr(200 + 2 * g, 2)}, v10, {sB2}, {T[0]} offen offset:{16 * g}')
    R.vm.issue('b2')
for x in epi_ops(2):
    emit_op(x)
p(f's_lshl_b32 {T[0]}, {s_kh}, 13')
p(f's_add_u32 {T[0]}, {T[0]}, {L_X}')
p(f'v_add_u32 v6, {T[0]}, v4')
p(f'v_add_u32 v7, {T[0]}, v5')
for s in range(4):
    for nt in range(2):
        for rd in range(2):
            p(f'ds_read_b64_tr_b16 {vr(W2R + 8 * s + 4 * nt + 2 * rd, 2)}, v{6 + nt} offset:{s * 2048 + rd * 1024}')
    if s == 1:
        p('s_waitcnt lgkmcnt(4)')
R.lg.reset()
signal(R, C_END, 'v246', 'v247')
R.stamp('P4end')
R.dstamp('P4', 'epi')
ACC5, W2B, H1F, B2R = 48, 80, 136, 200
NWB = 7
NRING = 16
p(f's_mul_i32 {T[0]}, {s_kh}, {11 * 2048}')
p(f'v_add_u32 v6, {T[0]}, v4')
p(f'v_add_u32 v7, {T[0]}, v5')
p('v_add_u32 v6, 0x10000, v6')
p('v_add_u32 v7, 0x10000, v7')
p('v_add_u32 v12, 0x10000, v6')
p('v_add_u32 v13, 0x10000, v7')
p(f's_lshl_b32 {T[0]}, {s_kh}, 11')
p(f'v_add_u32 v4, {T[0]}, v4')
p(f'v_add_u32 v5, {T[0]}, v5')
p('v_add_u32 v14, 0x10000, v4')
p('v_add_u32 v15, 0x10000, v5')
for i in range(4, 15):
    assert w2_pos[42 + KORD[i]] - w2_rd_pos(i) == 11 * 2048
for i in range(15, 44):
    assert w2_pos[42 + KORD[i]] - w2_rd_pos(i) == 2048


def w2_reads(i, defer=None):
    b = W2B + 8 * (i % NWB)
    for nt in (1, 0):
        if i < 15:
            bases = [None, 'v6' if nt == 0 else 'v7', 'v12' if nt == 0 else 'v13']
        else:
            bases = ['v4' if nt == 0 else 'v5', 'v14' if nt == 0 else 'v15']
        for rd in range(2):
            f = (lambda nt=nt, rd=rd, bases=bases: dsr(R, 'ds_read_b64_tr_b16', vr(b + 4 * nt + 2 * rd, 2), bases, w2_rd_pos(i) + rd * 1024, ('w2', i)))
            if defer is not None and nt == 0 and rd == 1:
                defer.append(f)
            else:
                f()


p('s_waitcnt lgkmcnt(0)')
R.lg.reset()
flag_store(R, T[3], 'v10', 'v11')
R.stamp('H1flag')
R.dstamp('P4', 'H1flag')
R.dstamp('P5', 'H1flag')
p('v_and_b32 v10, 7, v1')
p(f's_add_u32 {T[0]}, {s_kh}, 6')
p(f'v_min_u32 v10, {T[0]}, v10')
p('v_lshlrev_b32 v10, 2, v10')
p(f's_lshl_b32 {T[1]}, {s_tile}, 7')
p(f's_mul_i32 {T[0]}, {s_kh}, 28')
p(f's_add_u32 {T[1]}, {T[1]}, {T[0]}')
p(f's_add_u32 {T[1]}, {T[1]}, {FH1}')
p(f'v_add_u32 v10, {T[1]}, v10')
p(f's_lshl_b32 {T[1]}, {s_rb}, 18')
p(f's_mul_i32 {T[2]}, {s_kh}, {7 * 16384}')
p(f's_add_u32 {T[1]}, {T[1]}, {T[2]}')
p(f's_and_b32 {T[2]}, {s_tile}, 3')
p(f's_lshl_b32 {T[2]}, {T[2]}, 12')
p(f's_add_u32 {T[1]}, {T[1]}, {T[2]}')
p(f's_lshl_b32 {T[3]}, {s_tile}, 16')
p(f's_mul_i32 {T[2]}, {s_kh}, {7 * 4096}')
p(f's_add_u32 {T[3]}, {T[3]}, {T[2]}')
for g in range(4):
    for k in range(2):
        a = ACC5 + 4 * g + 2 * k
        p(f'v_lshlrev_b32 v{a}, 16, v{HRES + 2 * g + k}')
        p(f'v_and_b32 v{a + 1}, 0xffff0000, v{HRES + 2 * g + k}')
        p(f'v_lshlrev_b32 v{ACC5 + 16}, 16, v{B2R + 2 * g + k}')
        p(f'v_and_b32 v{ACC5 + 17}, 0xffff0000, v{B2R + 2 * g + k}')
        p(f'v_add_f32 v{a}, v{a}, v{ACC5 + 16}')
        p(f'v_add_f32 v{a + 1}, v{a + 1}, v{ACC5 + 17}')
poll(R, 'v10', 'v11')
R.stamp('H1poll')
R.dstamp('P5', 'H1poll')


def h1_load(i):
    c, f = divmod(KORD[i], 6)
    if f == 4:
        p(f's_add_u32 {T[2]}, {T[1]}, {AREA + c * 16384}')
    if f == 0:
        p(f's_add_u32 {T[2]}, {T[3]}, {H1B + c * 4096}')
    if i == 42:
        p(f's_cmp_eq_u32 {s_kh}, 0')
        p(f's_cselect_b32 {T[2]}, {0x7ff00000}, {T[2]}')
    p(f'buffer_load_dwordx4 {vr(H1F + 4 * (i % NRING), 4)}, v2, {sWS}, {T[2]} offen offset:{(f % 4) * 1024} sc1')
    R.vm.issue(('h1', i))


AH = OPT['ah1']
NS = 44
for i in range(AH):
    h1_load(i)
lwait(R, H_P1, 'v246', 'v10')
w2_reads(4)
w2_reads(5)
seq5 = [(i, nt) for i in range(NS - TAILN) for nt in (1, 0)] + [(i, 1) for i in range(NS - TAILN, NS)] + [(i, 0) for i in range(NS - TAILN, NS)]
nw, nl = 6, AH
dfr = []
last_use = {i: k for k, (i, nt) in enumerate(seq5)}
first_use = {i: k for k, (i, nt) in reversed(list(enumerate(seq5)))}
for k, (i, nt) in enumerate(seq5):
    if k == 20:
        p(f'ds_read_b32 v10, v246 offset:{H_LATE}')
        R.lg.issue(H_LATE)
    if k == 25:
        R.dstamp('P5', 'preL')
        lwait(R, H_LATE, 'v246', 'v10', early=True)
        R.dstamp('P5', 'late')
    if k == 44:
        R.bar()
        xchg_addrs(L_HI)
    R.vm.wait([('h1', i)])
    if k in (0, 56):
        R.dstamp('P5', f'h1_{i}')
    if i >= 4:
        R.lg.wait([('w2', i)])
    b = W2R + 8 * i if i < 4 else W2B + 8 * (i % NWB)
    p(f'v_mfma_f32_32x32x16_bf16 {vr(ACC5 + 16 * nt, 16)}, {vr(b + 4 * nt, 4)}, {vr(H1F + 4 * (i % NRING), 4)}, {"0" if i == 0 and nt == 1 else vr(ACC5 + 16 * nt, 16)}')
    if k >= 8 and nw < NS and (k % 2 == 0 or k >= 2 * (NS - TAILN) - 6) and (nw < 15 or k >= 25):
        assert last_use.get(nw - NWB, -1) <= k and first_use[nw] > k + 1, (nw, k)
        for f in dfr:
            f()
        dfr = []
        w2_reads(nw, dfr if OPT['pack'] and k < 2 * (NS - TAILN) - 6 else None)
        nw += 1
    elif dfr:
        dfr.pop()()
    if k % 2 == 1 and nl < NS:
        assert last_use.get(nl - NRING, -1) <= k
        h1_load(nl)
        nl += 1
    g = k - (len(seq5) - 4)
    if g >= 0:
        R.lg.room(1)
        p(f'ds_write_b128 v10, {vr(ACC5 + 16 + 4 * g, 4)} offset:{g * 1024}')
assert nw == NS and nl == NS
R.dstamp('P5', 'loop')
xchg_finish(R, ACC5, 16)
R.stamp('B13')
R.dstamp('P5', 'B13')
for r in range(8):
    p(f'v_cvt_pk_bf16_f32 v{32 + r}, v{16 + 2 * r}, v{16 + 2 * r + 1}')
p('v_lshrrev_b32 v10, 5, v1')
p('v_lshl_add_u32 v9, v10, 3, v9')
for q in range(2):
    p(f'v_permlane32_swap_b32 v{32 + 4 * q}, v{32 + 4 * q + 2}')
    p(f'v_permlane32_swap_b32 v{32 + 4 * q + 1}, v{32 + 4 * q + 3}')
    p(f'buffer_store_dwordx4 {vr(32 + 4 * q, 4)}, v9, {sOUT}, 0 offen offset:{32 * q}' + {0: '', 1: ' nt', 2: ' sc1'}[OPT.get('osm', 0)])
dump_stamps(R)
p('s_endpgm')
while tail:
    tail.pop(0)()
tail = []

assert CW.nbar == HW.nbar + 2, (CW.nbar, HW.nbar)
p.label('L_codeend')

p.fix_hazards()

hdr = open(os.path.join(os.path.dirname(os.path.abspath(__file__)), '..', 'cdna_kernels', NAME + '.s.ref')).read().split('\n')
top = [l for l in hdr if l.startswith(';') and '@launch' not in l and 'Override' not in l and 'grid=ceil' not in l]
out = '\n'.join(top) + '\n'
out += f'; @launch grid=(256,1,1) block=(512,1,1) lds={LDS_BYTES}\n'
out += f'''.amdgcn_target "amdgcn-amd-amdhsa--gfx950"
.text
.globl {KNAME}
.p2align 8
.type {KNAME},@function
'''
out += p.text()
out += f'''.section .rodata,"a"
.p2align 6
.amdhsa_kernel {KNAME}
  .amdhsa_next_free_vgpr 256
  .amdhsa_next_free_sgpr 102
  .amdhsa_accum_offset 256
  .amdhsa_group_segment_fixed_size 0
  .amdhsa_kernarg_size 88
  .amdhsa_user_sgpr_count 2
  .amdhsa_user_sgpr_kernarg_segment_ptr 1
  .amdhsa_system_sgpr_workgroup_id_x 1
.end_amdhsa_kernel
'''
open(sys.argv[1], 'w').write(out)
if OPT['stamps']:
    import json
    json.dump(STAMPS, open(sys.argv[1] + '.stamps.json', 'w'))
print('instructions:', sum(1 for x in p.ins if x.kind not in ('label', 'dir')), 'maxv', p.maxreg('v'), 'maxs', p.maxreg('s'), 'barriers', CW.nbar)
```

```python
import sys
import os
sys.path.insert(0, os.path.dirname(os.path.abspath(__file__)))
from asmlib import Prog, Cnt

NAME = 'sequential_preLN__sliding_block__dense_activation_squared_relu__prompt'
KNAME = NAME + '_kernel'

OPT = dict(stamps=False, force_safe=False, force_fallback=False, spin=200000, h1sc1=0, osc1=0, hsc1=0, mallwarm=1, p1touch=1, la=2, t0=2, tmode=4, codewarm=1, tlbwarm=0, aho=8, ahh=6, ah1=10, mallat=27, m2at=0, m2early=1, a_first=1, wopos=0, fkvt=1, qat=2, slp=2, pre_w=0, pack=1, twait=0, pgwarm=0, hprio=1, small=0, s0=16, wolate=0, kvtag=0, flagearly=1, w2c=8, clrat=-1, clrdone=4, hrate=2, early0=0)
for a in sys.argv[2:]:
    k, _, v = a.partition('=')
    OPT[k] = int(v) if v else True

EPOCH = 0x0
ST = 0x1000
FKV = 0x2000
FO = 0xA000
FH = 0xC000
FH1 = 0xE000
RST = 0x10000
AREA = 0x100000
H1B = 0x600000
STB = 0xA00000
WS_END = 0xB00000 if not OPT.get('probe') else 0x8000000
STAMP = 0x1000000
WS_SIZE = 0x1100000

S_R = 0
S_M = 512
S_CS = 1024
S_CS1 = 1536
S_B1 = 2048
S_TAG = 2560
S_MODE = 2564
S_SYNC = 2816
C_ISS, C_END, H_TAB, H_P1, H_LATE, H_WO, C_OIS, H_WQ, H_CSQ, H_Q, C_KV, C_HALO, C_FLAG, H_W1, X_P0, X_P1 = [S_SYNC + 4 * i for i in range(16)]
BASE = 3072
RING = BASE
SLOT = 24576
NSLOT = 4
L_WO = BASE
L_K = BASE + 64 * 1024
L_V = L_K + 24 * 1024
VSTR = 1040
L_HI = 116 * 1024
assert L_V + 24 * VSTR <= L_HI and RING + NSLOT * SLOT <= L_HI
L_WQ = L_HI
L_QX = L_HI + 32 * 1024
S_CSQ = S_CS1
L_X = BASE + 96 * 1024
LDS_BYTES = 160 * 1024


def w1_addr(s):
    return BASE + s * 3072


KORD = [6 * c + f for c in range(7) for f in (4, 5)] + [6 * c + f for c in range(7) for f in range(4)] + [42, 43]
W2_REG = KORD[:4] + [42 + k for k in KORD[:4]]
W2_P1 = KORD[4:15] + [42 + k for k in KORD[4:15]]
w2_pos = {}
for i, s in enumerate(W2_REG):
    w2_pos[s] = L_X + i * 2048
for i, s in enumerate(W2_P1):
    w2_pos[s] = L_HI + i * 2048
late_order = []
for i in range(15, 42):
    late_order += [KORD[i], 42 + KORD[i]]
late_order += [84, 85]
assert len(late_order) == 56
for i, s in enumerate(late_order):
    w2_pos[s] = BASE + i * 2048
assert BASE + 56 * 2048 <= L_HI


def w2_rd_pos(i):
    return w2_pos[KORD[i]] if i < 42 else w2_pos[42 + KORD[i]] - 2048


sX, sWQKV, sWO, sW1, sW2, sOUT, sWS, sB1, sB2, sDBG = [f's[{i}:{i + 3}]' for i in range(4, 44, 4)]
s_team, s_j, s_rb, s_c, s_rs, s_cb, s_w, s_tt, s_tag, s_mode, s_hd = [f's{i}' for i in range(44, 55)]
T = [f's{i}' for i in range(55, 64)]
s_xr = [f's{i}' for i in range(86, 90)]
s_wr = [f's{i}' for i in range(90, 94)]
s_t, s_kh = 's94', 's95'
s_tile = 's64'
s_area = 's88'
s_last = 's96'
s_stamp = 's[98:99]'

LOG2E = 1.4426950408889634
BIG = 0xf149f2ca


def fhex(x):
    import struct
    return '0x%08x' % struct.unpack('<I', struct.pack('<f', x))[0]


def vr(a, n=1):
    return f'v{a}' if n == 1 else f'v[{a}:{a + n - 1}]'


p = Prog()
tail = []


class Role:
    def __init__(self, name):
        self.name = name
        self.vm = Cnt(p, 'vmcnt', 63)
        self.lg = Cnt(p, 'lgkmcnt', 15)
        self.nbar = 0
        self.nstamp = 0

    def bar(self):
        p('s_barrier')
        self.nbar += 1

    def dstamp(self, grp, label):
        if OPT.get('d' + grp):
            self.stamp(label, True)

    def stamp(self, label='', force=False):
        if not OPT['stamps']:
            return
        if not force and label not in ('start', 'end') and any(k.startswith('dP') for k in OPT):
            return
        k = self.nstamp
        self.nstamp += 1
        STAMPS.setdefault(self.name, []).append(label)
        assert k < 20
        p(f's_memtime {s_stamp}')
        p('s_waitcnt lgkmcnt(0)')
        self.lg.reset()
        p(f's_mov_b32 s{66 + k}, s98')


STAMPS = {}


def dsr(R, op, dst, bases, off, tag=None):
    k = off // 65536
    R.lg.room(1)
    p(f'{op} {dst}, {bases[k]} offset:{off % 65536}')
    R.lg.issue(tag)


def dma(R, vaddr, srd, soff, ldsaddr, tag=None):
    p(f's_mov_b32 m0, {ldsaddr}')
    p(f'buffer_load_dwordx4 {vaddr}, {srd}, {soff} offen lds')
    R.vm.issue(tag)


def poll(R, vaddr, vtmp, slow=False):
    L = p.newlabel('L_poll')
    p(f's_mov_b32 {T[0]}, 0')
    p.label(L)
    if slow:
        p('s_sleep 2')
    p(f'buffer_load_dword {vtmp}, {vaddr}, {sWS}, 0 offen sc1')
    p(f's_add_u32 {T[0]}, {T[0]}, 1')
    p(f's_cmp_lt_u32 {T[0]}, {OPT["spin"]}')
    p('s_cselect_b64 s[92:93], -1, 0')
    p('s_waitcnt vmcnt(0)')
    p(f'v_cmp_ne_u32 vcc, {s_tag}, {vtmp}')
    p('s_and_b64 vcc, vcc, s[92:93]')
    p(f's_cbranch_vccnz {L}')
    R.vm.reset()


def moded_stores(R, stores, wt=False):
    if wt:
        for s in stores:
            p(s + ' sc1')
            R.vm.issue('st')
        return
    Ls = p.newlabel('L_safe')
    Lb = p.newlabel('L_back')
    p(f's_cmp_eq_u32 {s_mode}, 1')
    p(f's_cbranch_scc0 {Ls}')
    for s in stores:
        p(s)
    p.label(Lb)
    for s in stores:
        if s.startswith('buffer_'):
            R.vm.issue('st')

    def blk():
        p.label(Ls)
        for s in stores:
            p(s + ' sc1' if s.startswith('buffer_') else s)
        p(f's_branch {Lb}')
    tail.append(blk)


def signal(R, word, vz, vone):
    p('s_mov_b64 exec, 1')
    p(f'ds_add_u32 {vz}, {vone} offset:{word}')
    p('s_mov_b64 exec, -1')
    R.lg.issue('sig')


def lwait(R, word, vz, vt, early=False, n=4):
    L = p.newlabel('L_lw')
    X = p.newlabel('L_lwx')
    if early:
        R.lg.wait([word])
    else:
        p(f'ds_read_b32 {vt}, {vz} offset:{word}')
        p('s_waitcnt lgkmcnt(0)')
        R.lg.reset()
    p(f'v_cmp_gt_u32 vcc, {n}, {vt}')
    p(f's_cbranch_vccnz {X}')
    p.label(L)

    def blk():
        Y = p.newlabel('L_lwy')
        p.label(X)
        p(f's_mov_b32 {T[0]}, 0')
        p.label(Y)
        if R.name == 'HW' and OPT['slp']:
            p(f's_sleep {OPT["slp"]}')
        p(f'ds_read_b32 {vt}, {vz} offset:{word}')
        p('s_waitcnt lgkmcnt(0)')
        p(f'v_cmp_gt_u32 vcc, {n}, {vt}')
        p(f's_cbranch_vccz {L}')
        p(f's_add_u32 {T[0]}, {T[0]}, 1')
        p(f's_cmp_lt_u32 {T[0]}, {OPT["spin"] * 8}')
        p(f's_cbranch_scc1 {Y}')
        p(f's_branch {L}')
    tail.append(blk)


def flag_store(R, saddr, vt0, vt1, moded=True):
    p(f'v_mov_b32 {vt0}, {saddr}')
    p(f'v_mov_b32 {vt1}, {s_tag}')
    R.vm.wait_all()
    p('s_mov_b64 exec, 1')
    if moded:
        moded_stores(R, [f'buffer_store_dword {vt1}, {vt0}, {sWS}, 0 offen'])
    else:
        p(f'buffer_store_dword {vt1}, {vt0}, {sWS}, 0 offen sc1')
        R.vm.issue('st')
    p('s_mov_b64 exec, -1')


CW = Role('CW')
HW = Role('HW')
s_q = T[8]
s_mx, s_mw, s_tw = 's96', 's97', 's3'


def srd(dst, lo, size):
    b = int(dst[2:dst.index(':')])
    p(f's_mov_b32 s{b}, s{lo}')
    p(f's_and_b32 s{b + 1}, s{lo + 1}, 0xffff')
    p(f's_mov_b32 s{b + 2}, {size}')
    p(f's_mov_b32 s{b + 3}, 0x20000')


p.label(KNAME)
p('s_cmp_ge_u32 s2, 256')
p('s_cbranch_scc1 L_end')
if OPT['stamps']:
    p('s_memtime s[100:101]')
if OPT.get('x_rt'):
    p('s_memrealtime s[86:87]')
if OPT.get('x_cy'):
    p('s_memtime s[86:87]')
if OPT.get('dbgout'):
    p('s_memrealtime s[86:87]')
p('s_load_dwordx16 s[64:79], s[0:1], 0')
p('s_load_dwordx4 s[80:83], s[0:1], 64')
p('s_load_dwordx2 s[84:85], s[0:1], 80')
if OPT['codewarm']:
    p('s_getpc_b64 s[56:57]')
    p.label('L_pc')
    p(f's_sub_u32 s56, s56, L_pc-{KNAME}')
    p('s_subb_u32 s57, s57, 0')
    p(f's_lshr_b32 {T[0]}, s2, 3')
    p(f's_lshl_b32 {T[0]}, {T[0]}, 11')
    p('v_lshrrev_b32 v10, 5, v0')
    p('v_lshlrev_b32 v10, 7, v10')
    p(f'v_add_u32 v10, {T[0]}, v10')
    p(f'v_min_u32 v10, L_codeend-{KNAME}-4, v10')
    p('global_load_dword v253, v10, s[56:57]')
    CW.vm.issue('t')
    HW.vm.issue('t')
p('v_and_b32 v1, 63, v0')
p('v_lshrrev_b32 v2, 6, v0')
p(f'v_readfirstlane_b32 {s_w}, v2')
p(f's_and_b32 {s_team}, s2, 7')
p(f's_lshr_b32 {s_j}, s2, 3')
p(f's_and_b32 {s_c}, {s_j}, 15')
p(f's_lshr_b32 {T[0]}, {s_j}, 4')
p(f's_lshl_b32 {s_rb}, {s_team}, 1')
p(f's_add_u32 {s_rb}, {s_rb}, {T[0]}')
p('v_lshlrev_b32 v2, 4, v1')
p(f's_and_b32 {s_q}, {s_w}, 3')
p('v_lshrrev_b32 v3, 3, v1')
p(f's_lshl_b32 {T[0]}, {s_q}, 5')
p(f'v_add_u32 v3, {T[0]}, v3')
p('v_and_b32 v10, 7, v1')
p(f's_lshl_b32 {T[1]}, {s_rb}, 17')
p('v_bfe_u32 v11, v3, 1, 3')
p('v_xor_b32 v11, v10, v11')
p('v_lshlrev_b32 v11, 4, v11')
p('v_lshl_add_u32 v4, v3, 10, v11')
p(f'v_add_u32 v4, {T[1]}, v4')
p('v_xor_b32 v5, 64, v4')
p('v_add_u32 v5, 8192, v5')
p('v_lshrrev_b32 v10, 3, v1')
p(f's_lshl_b32 {T[0]}, {s_q}, 4')
p(f'v_add_u32 v10, {T[0]}, v10')
p(f's_movk_i32 {T[4]}, 3072')
p(f'v_mul_lo_u32 v10, v10, {T[4]}')
p('v_bfe_u32 v11, v1, 2, 1')
p('v_bfe_u32 v12, v1, 4, 1')
p('v_xor_b32 v11, v11, v12')
p('v_lshl_add_u32 v10, v11, 10, v10')
p('v_and_b32 v11, 3, v1')
p('v_lshl_add_u32 v10, v11, 4, v10')
p(f's_lshl_b32 {T[1]}, {s_c}, 6')
p(f's_add_u32 {T[1]}, {T[1]}, 1024')
p(f'v_add_u32 v6, {T[1]}, v10')
p(f's_lshl_b32 {s_mx}, {s_q}, 12')
p(f's_lshl_b32 {s_mw}, {s_q}, 11')
p(f's_lshl_b32 {s_tw}, {s_j}, 2')
p(f's_add_u32 {s_tw}, {s_tw}, {s_q}')
p(f's_lshr_b32 {T[0]}, {s_tw}, 1')
p(f's_mul_i32 {T[0]}, {T[0]}, 3072')
p(f's_and_b32 {s_tw}, {s_tw}, 1')
p(f's_lshl_b32 {s_tw}, {s_tw}, 10')
p(f's_add_u32 {s_tw}, {s_tw}, {T[0]}')
p(f's_add_u32 {s_tw}, {s_tw}, 1024')
p('v_bfe_u32 v16, v1, 3, 1')
p(f'v_mul_u32_u24 v16, {64 * 3072}, v16')
p('v_and_b32 v15, 7, v1')
p('v_lshl_add_u32 v16, v15, 7, v16')
p('v_min_u32 v17, 11, v1')
p('v_lshlrev_b32 v17, 7, v17')
p(f's_lshl_b32 {T[5]}, {s_rb}, 4')
p(f's_add_u32 {T[5]}, {T[5]}, {s_c}')
p(f's_lshl_b32 {T[5]}, {T[5]}, 3')
p(f's_add_u32 {T[5]}, {T[5]}, {s_q}')
p('s_waitcnt lgkmcnt(0)')
if OPT['pre_w']:
    p('s_load_dword s92, s[66:67], 0')
srd(sX, 64, 2048 * 512 * 2)
p(f's_cmp_ge_u32 {s_w}, 4')
p('s_cbranch_scc1 L_norow')
p(f's_load_dword {s_tag}, s[84:85], {EPOCH}')
if OPT['pgwarm']:
    p(f's_lshl_b32 {T[0]}, {s_j}, 2')
    p(f's_add_u32 {T[0]}, {T[0]}, {s_w}')
    p(f's_and_b32 {T[0]}, {T[0]}, 15')
    p('s_mov_b64 s[90:91], s[84:85]')
    for k, lo in enumerate((68, 72, 74, 76, 78, 80)):
        p(f's_cmp_eq_u32 {T[0]}, {k}')
        p(f's_cselect_b64 s[90:91], s[{lo}:{lo + 1}], s[90:91]')
    p(f's_sub_i32 {T[0]}, {T[0]}, 6')
    p(f's_max_i32 {T[0]}, {T[0]}, 0')
    p(f's_lshl_b32 {T[0]}, {T[0]}, 20')
    p(f's_add_u32 s90, s90, {T[0]}')
    p('s_addc_u32 s91, s91, 0')
    p('s_load_dword s92, s[90:91], 0')
    if OPT['pgwarm'] == 2:
        p('s_load_dword s93, s[84:85], 0xf0000')
if OPT['kvtag'] and OPT['clrat'] == -2:
    srd(sWS, 84, WS_SIZE if OPT['stamps'] else WS_END)
    p(f's_lshr_b32 {T[0]}, {T[5]}, 3')
    p(f's_lshl_b32 {T[0]}, {T[0]}, 2')
    p(f's_add_u32 {T[0]}, {T[0]}, {s_q}')
    p(f's_lshl_b32 {T[0]}, {T[0]}, 12')
    p(f's_add_u32 {T[0]}, {T[0]}, {AREA + 32 * 16384}')
    for r in range(4):
        p(f'v_mov_b32 v{244 + r}, -1')
    for q in range(4):
        p(f'buffer_store_dwordx4 v[244:247], v2, {sWS}, {T[0]} offen offset:{q * 1024} sc1')
        CW.vm.issue('st')
p(f's_lshl_b32 {T[0]}, {T[5]}, 10')
p(f's_add_u32 {T[1]}, {T[0]}, 4096')
p(f'buffer_load_dwordx4 v[196:199], v2, {sX}, {T[0]} offen')
p(f'buffer_load_dwordx4 v[208:211], v2, {sX}, {T[1]} offen')
CW.vm.issue('row')
CW.vm.issue('row')
p.label('L_norow')
srd(sWQKV, 66, 512 * 1536 * 2)
if OPT['stamps']:
    p('s_memtime s[98:99]')
    p('s_waitcnt lgkmcnt(0)')
    p('s_mov_b32 s101, s98')
p(f's_cmp_lt_u32 {s_w}, 4')
p('s_cbranch_scc1 L_CW')


def chunk_groups(R, ch):
    slot = RING + (ch % NSLOT) * SLOT

    def xg(q):
        def f():
            p(f's_mov_b32 {T[7]}, {ch * 128 + (q >> 1) * 16384}')
            p(f's_add_u32 m0, {s_mx}, {slot + q * 1024}')
            p(f'buffer_load_dwordx4 v{4 + (q & 1)}, {sX}, {T[7]} offen' + (' nt' if OPT.get('nt_x') else '') + ' lds')
            R.vm.issue(('ch', ch))
        return f

    def wg(q):
        def f():
            p(f's_mov_b32 {T[7]}, {(ch * 64 + q * 8) * 3072}')
            p(f's_add_u32 m0, {s_mw}, {slot + 16384 + q * 1024}')
            p(f'buffer_load_dwordx4 v6, {sWQKV}, {T[7]} offen lds')
            R.vm.issue(('ch', ch))
        return f
    return [wg(0), xg(0), xg(1), wg(1), xg(2), xg(3)]


def wtouch(R, i):
    def f():
        p(f's_add_u32 {T[7]}, {s_tw}, {i * 64 * 3072}')
        p(f'buffer_load_dword v252, v16, {sWQKV}, {T[7]} offen' + (' nt' if OPT.get('nt_t') else ''))
        R.vm.issue('t')
    return f


def qtouch(R):
    def f():
        p(f's_lshl_b32 {T[7]}, {s_j}, 2')
        p(f's_add_u32 {T[7]}, {T[7]}, {s_q}')
        p(f's_mul_i32 {T[7]}, {T[7]}, {4 * 3072}')
        p('v_bfe_u32 v3, v1, 3, 2')
        p('v_mul_u32_u24 v3, 3072, v3')
        p('v_and_b32 v110, 7, v1')
        p('v_lshl_add_u32 v3, v110, 7, v3')
        p(f'buffer_load_dword v252, v3, {sWQKV}, {T[7]} offen')
        R.vm.issue('t')
    return f


def warm_wo(R):
    def f():
        p(f's_lshl_b32 {T[7]}, {s_j}, 2')
        p(f's_add_u32 {T[7]}, {T[7]}, {s_q}')
        p(f's_lshl_b32 {T[7]}, {T[7]}, 12')
        p('v_and_b32 v3, 31, v1')
        p('v_lshlrev_b32 v3, 7, v3')
        p(f'buffer_load_dword v255, v3, {sWO}, {T[7]} offen')
        R.vm.issue('t')
    return f


def warm_mall(R, srd_):
    def f():
        p(f's_lshl_b32 {T[7]}, s2, 2')
        p(f's_add_u32 {T[7]}, {T[7]}, {s_q}')
        p(f's_mul_i32 {T[7]}, {T[7]}, 1536')
        p(f'buffer_load_dword v254, v17, {srd_}, {T[7]} offen')
        R.vm.issue('t')
    return f


def srds_w():
    srd(sWO, 68, 512 * 512 * 2)
    srd(sW1, 72, 512 * 1376 * 2)
    srd(sW2, 76, 1376 * 512 * 2)


def common_setup(R):
    srd(sWS, 84, WS_SIZE if OPT['stamps'] else WS_END)
    srd(sB1, 74, 1376 * 2)
    srd(sB2, 78, 512 * 2)
    srd(sOUT, 80, 2048 * 512 * 2)
    p(f's_lshr_b32 {T[0]}, {s_j}, 3')
    p(f's_lshl_b32 {s_rs}, {s_team}, 2')
    p(f's_add_u32 {s_rs}, {s_rs}, {T[0]}')
    p(f's_and_b32 {s_cb}, {s_j}, 7')
    p(f's_lshr_b32 {s_hd}, {s_w}, 2')
    p(f's_lshl_b32 {s_area}, {s_rb}, 4')
    p(f's_add_u32 {s_area}, {s_area}, {s_c}')
    p(f's_lshl_b32 {s_area}, {s_area}, 14')
    p(f's_add_u32 {s_area}, {s_area}, {AREA}')
    if R is CW:
        p(f's_mov_b32 {s_tt}, {s_w}')
        p(f's_and_b32 {s_t}, {s_w}, 1')
        p(f's_lshr_b32 {s_kh}, {s_w}, 1')
    else:
        p(f's_sub_u32 {s_tt}, 7, {s_w}')
    p('v_mov_b32 v18, 0x3f803f80')
    if R is CW:
        if not OPT['small']:
            p('s_waitcnt lgkmcnt(0)')
        p(f's_add_u32 {s_tag}, {s_tag}, 1')
        p(f'v_mov_b32 v10, {S_TAG}')
        p(f'v_mov_b32 v11, {s_tag}')
        p('ds_write_b32 v10, v11')


def row_stats(R):
    p(f's_lshl_b32 s65, s65, 4')
    p(f's_add_u32 s65, s65, {RST}')
    p(f'v_mov_b32 v3, s65')
    for k in (200, 202, 212, 214):
        p(f'v_mov_b32 v{k}, 0')
    p(f's_getreg_b32 {T[1]}, hwreg(HW_REG_XCC_ID)')
    p(f's_and_b32 {T[1]}, {T[1]}, 15')
    p(f'v_mov_b32 v221, {T[1]}')
    p(f'v_mov_b32 v220, {s_tag}')
    p(f's_lshl_b32 {T[1]}, {s_team}, 5')
    p(f's_add_u32 {T[1]}, {T[1]}, {s_j}')
    p(f's_lshl_b32 {T[1]}, {T[1]}, 3')
    p(f's_add_u32 {T[1]}, {T[1]}, {ST}')
    p(f's_cmp_eq_u32 {s_w}, 0')
    p(f's_cselect_b32 {T[1]}, {T[1]}, {0x7ff00000}')
    p(f'v_mov_b32 v222, {T[1]}')
    R.vm.wait(['row'])
    for r in range(4):
        for o in (0, 12):
            p(f'v_dot2c_f32_bf16 v{200 + o}, v{196 + o + r}, v18')
            p(f'v_dot2c_f32_bf16 v{202 + o}, v{196 + o + r}, v{196 + o + r}')
    for sh in (8, 4, 2, 1):
        for k in (200, 202, 212, 214):
            p(f'v_add_f32_dpp v{k}, v{k}, v{k} row_ror:{sh} row_mask:0xf bank_mask:0xf')
    for op in ('v_permlane16_swap_b32', 'v_permlane32_swap_b32'):
        for k in (200, 202, 212, 214):
            p(f'v_mov_b32 v{k + 1}, v{k}')
        for k in (200, 202, 212, 214):
            p(f'{op} v{k}, v{k + 1}')
        for k in (200, 202, 212, 214):
            p(f'v_add_f32 v{k}, v{k}, v{k + 1}')
    for o in (0, 12):
        ln_finish(f'v{200 + o}', f'v{202 + o}', f'v{204 + o}', f'v{206 + o}')
        p(f'v_mov_b32 v{205 + o}, {s_tag}')
        p(f'v_mov_b32 v{207 + o}, {s_tag}')
    p('s_mov_b64 exec, 1')
    p(f'buffer_store_dwordx4 v[204:207], v3, {sWS}, 0 offen sc1')
    p(f'buffer_store_dwordx4 v[216:219], v3, {sWS}, 0 offen offset:64 sc1')
    p(f'buffer_store_dwordx2 v[220:221], v222, {sWS}, 0 offen sc1')
    p('s_mov_b64 exec, -1')
    for _ in range(3):
        R.vm.issue('st')


VQ, MD, MF = 160, 164, 180
SB = [20, 36]
VP = 52
KF = [60, 64]
VF = [68, 76]
VO = 84
VKA, VVA = 'v100', 'v101'
HALO = 120


def make_masks():
    p('v_and_b32 v10, 31, v1')
    p('v_lshrrev_b32 v11, 5, v1')
    p('v_lshlrev_b32 v11, 2, v11')
    p('v_sub_u32 v10, v10, v11')
    p(f'v_mov_b32 v12, {BIG:#x}')
    p('v_mov_b32 v13, 0')
    for i0 in range(0, 16, 4):
        for i in range(i0, i0 + 4):
            key = 8 * (i >> 2) + (i & 3)
            p(f'v_cmp_le_i32 s[{56 + 2 * (i & 3)}:{57 + 2 * (i & 3)}], {key}, v10')
        for i in range(i0, i0 + 4):
            m = f's[{56 + 2 * (i & 3)}:{57 + 2 * (i & 3)}]'
            p(f'v_cndmask_b32 v{MD + i}, v12, v13, {m}')
            p(f'v_cndmask_b32 v{MF + i}, v13, v12, {m}')


def att_addrs():
    p(f's_lshl_b32 {T[0]}, {s_tt}, 11')
    p(f's_lshl_b32 {T[1]}, {s_hd}, 10')
    p(f's_add_u32 {T[0]}, {T[0]}, {T[1]}')
    p(f's_add_u32 {T[0]}, {T[0]}, {L_K}')
    p(f'v_add_u32 {VKA}, {T[0]}, v2')
    p('v_and_b32 v10, 47, v1')
    p(f's_lshl_b32 {T[1]}, {s_hd}, 4')
    p(f'v_add_u32 v10, {T[1]}, v10')
    p('v_lshlrev_b32 v10, 4, v10')
    p('v_and_b32 v11, 16, v1')
    p('v_cmp_ne_u32 vcc, 0, v11')
    p('v_mov_b32 v11, 1024')
    p('v_cndmask_b32 v10, v10, v11, vcc')
    p(f's_mul_i32 {T[0]}, {s_tt}, {2 * VSTR}')
    p(f's_add_u32 {T[0]}, {T[0]}, {L_V}')
    p(f'v_add_u32 {VVA}, {T[0]}, v10')


def half_sum(a, t):
    p(f'v_mov_b32 {t}, {a}')
    p(f'v_permlane32_swap_b32 {a}, {t}')
    p(f'v_add_f32 {a}, {a}, {t}')


def ln_finish(s1, s2, rstd, mrs):
    p(f'v_mul_f32 {s1}, {fhex(1.0 / 512)}, {s1}')
    p(f'v_mul_f32 {s2}, {fhex(1.0 / 512)}, {s2}')
    p(f'v_fma_f32 {s2}, -{s1}, {s1}, {s2}')
    p(f'v_max_f32 {s2}, 0, {s2}')
    p(f'v_add_f32 {s2}, {fhex(1e-5)}, {s2}')
    p(f'v_rsq_f32 {rstd}, {s2}')
    p(f'v_mul_f32 {mrs}, {s1}, {rstd}')


def att_load(R, u, b, base):
    p(f'ds_read_b128 {vr(KF[b], 4)}, {base[0]} offset:{u * 2048}')
    R.lg.issue(('K', u))
    for g in range(2):
        p(f'ds_read_b128 {vr(VF[b] + 4 * g, 4)}, {base[1]} offset:{(2 * u + g) * VSTR}')
        R.lg.issue(('V', u))


def att_qk(R, u, b, c):
    R.lg.wait([('K', u)])
    p(f'v_mfma_f32_32x32x16_bf16 {vr(SB[b], 16)}, {vr(KF[b], 4)}, {vr(VQ, 4)}, {c}')


def att_body(R, u, b, nxt, first, extra=()):
    S = SB[b]
    if nxt is not None:
        att_load(R, nxt[0], 1 - b, nxt[1])
    extra = list(extra)
    for g in range(2):
        for i in range(8):
            p(f'v_exp_f32 v{S + 8 * g + i}, v{S + 8 * g + i}')
            if i in (0, 2, 3, 5, 7) and extra:
                extra.pop(0)()
        if g == 0 and nxt is not None:
            att_qk(R, nxt[0], 1 - b, nxt[2])
        for r in range(4):
            p(f'v_cvt_pk_bf16_f32 v{VP + 4 * g + r}, v{S + 8 * g + 2 * r}, v{S + 8 * g + 2 * r + 1}')
        R.lg.wait([('V', u)])
        c = '0' if (first and g == 0) else vr(VO, 16)
        p(f'v_mfma_f32_32x32x16_bf16 {vr(VO, 16)}, {vr(VF[b] + 4 * g, 4)}, {vr(VP + 4 * g, 4)}, {c}')
    assert not extra


REL = (VKA, VVA)
ABS = ('v116', 'v117')


def att_2a(R, after_first=None):
    Lx = p.newlabel('L_2a_done')
    att_load(R, 8, 0, REL)
    att_qk(R, 8, 0, vr(MD, 16))
    for n, j in enumerate((8, 7, 6, 5)):
        att_body(R, j, n & 1, (j - 1, REL, '0') if j > 5 else None, n == 0)
        if n == 0 and after_first:
            after_first()
        if j > 5:
            p(f's_cmp_eq_u32 {s_tt}, {n}')
            p(f's_cbranch_scc1 {Lx}')
    p.label(Lx)
    p('s_waitcnt lgkmcnt(0)')
    R.lg.reset()
    R.stamp('2a')
    R.dstamp('P2', '2a')


def att_2b(R, extra, after_store):
    p(f's_max_i32 {T[0]}, {s_rb}, 1')
    p(f's_sub_u32 {T[0]}, {T[0]}, 1')
    p(f's_lshl_b32 {T[0]}, {T[0]}, 4')
    p(f's_add_u32 {T[0]}, {T[0]}, {s_c}')
    p(f's_lshl_b32 {T[0]}, {T[0]}, 7')
    p(f's_add_u32 {T[0]}, {T[0]}, {FKV + 16}')
    p('v_and_b32 v102, 3, v1')
    p('v_lshlrev_b32 v102, 2, v102')
    p(f'v_add_u32 v102, {T[0]}, v102')

    def rd_check():
        p(f'buffer_load_dword v103, v102, {sWS}, 0 offen sc1')
        R.vm.issue('rd')
    Lx = p.newlabel('L_2b_done')
    att_load(R, 0, 0, REL)
    att_qk(R, 0, 0, vr(MF, 16))
    extra = list(extra)
    extra += [lambda: None] * (44 - len(extra)) + [rd_check]
    assert len(extra) <= 50
    for j in range(8):
        att_body(R, j, j & 1, (j + 1, REL, '0') if j < 7 else None, False, extra[10 * j:10 * j + 10])
        if 4 <= j < 7:
            p(f's_cmp_eq_u32 {s_tt}, {7 - j}')
            p(f's_cbranch_scc1 {Lx}')
    p.label(Lx)
    p('s_waitcnt lgkmcnt(0)')
    R.lg.reset()
    Lf = p.newlabel('L_fb')
    Lr = p.newlabel('L_fbret')
    p(f'v_mov_b32 v10, {fhex(2.0 ** -60)}')
    p(f'v_mov_b32 v11, {fhex(2.0 ** 60)}')
    p(f's_lshl_b32 {T[0]}, {s_rb}, 2')
    p(f's_add_u32 {T[0]}, {T[0]}, {s_tt}')
    p(f's_lshl_b32 {T[0]}, {T[0]}, 5')
    p(f's_lshl_b32 {T[6]}, {s_c}, 1')
    p(f's_add_u32 {T[0]}, {T[0]}, {T[6]}')
    p(f's_add_u32 {T[0]}, {T[0]}, {s_hd}')
    p(f's_lshl_b32 {T[7]}, {T[0]}, 2')
    p(f's_add_u32 {T[7]}, {T[7]}, {FO}')
    p(f's_lshl_b32 {T[0]}, {s_tt}, 2')
    p(f's_add_u32 {T[0]}, {T[0]}, {s_hd}')
    p(f's_lshl_b32 {T[0]}, {T[0]}, 10')
    p(f's_add_u32 {T[6]}, {T[0]}, {s_area}')
    p(f'v_cmp_nlt_f32 vcc, v10, v{VO + 8}')
    p(f'v_cmp_nlt_f32 s[56:57], v{VO + 8}, v11')
    p('s_or_b64 vcc, vcc, s[56:57]')
    if OPT['force_fallback']:
        p(f's_branch {Lf}')
    else:
        p(f's_cbranch_vccnz {Lf}')
    p.label(Lr)
    tail.append(lambda: fallback(Lf, Lr))
    p(f'v_rcp_f32 v10, v{VO + 8}')
    for i in range(8):
        p(f'v_mul_f32 v{VO + i}, v{VO + i}, v10')
    for r in range(4):
        p(f'v_cvt_pk_bf16_f32 v{12 + r}, v{VO + 2 * r}, v{VO + 2 * r + 1}')
    R.dstamp('P2', '2b')
    Lc = p.newlabel('L_rdc')
    Lcx = p.newlabel('L_rdx')
    R.vm.wait(['rd'])
    p(f'v_cmp_ne_u32 vcc, {s_tag}, v103')
    p(f's_cbranch_vccnz {Lcx}')
    p.label(Lc)

    def rd_slow():
        p.label(Lcx)
        poll(R2, 'v102', 'v103')
        p(f's_branch {Lc}')
    R2 = Role('tmp')
    tail.append(rd_slow)
    moded_stores(R, [f'buffer_store_dwordx4 v[12:15], v2, {sWS}, {T[6]} offen'], OPT['osc1'])
    after_store()
    flag_store(R, T[7], 'v10', 'v11')
    R.stamp('Oflag')
    R.dstamp('P2', 'Oflag')


def fallback(Lf, Lr):
    S = SB[0]
    p.label(Lf)
    p(f's_lshl_b32 {T[0]}, {s_rb}, 2')
    p(f's_add_u32 {T[0]}, {T[0]}, {s_tt}')
    p(f's_sub_i32 {T[0]}, 8, {T[0]}')
    p(f's_max_i32 s89, {T[0]}, 0')
    p(f'v_mov_b32 v14, {BIG:#x}')
    for pas in range(2):
        L = p.newlabel('L_fbl')
        Lm = p.newlabel('L_fbm')
        Ln = p.newlabel('L_fbn')
        Lc = p.newlabel('L_fbc')
        p(f's_mov_b32 s90, s89')
        if pas == 1:
            for i in range(16):
                p(f'v_mov_b32 v{VO + i}, 0')
        p.label(L)
        p(f's_lshl_b32 {T[0]}, s90, 11')
        p(f'v_add_u32 v10, {T[0]}, {VKA}')
        p(f's_mul_i32 {T[0]}, s90, {2 * VSTR}')
        p(f'v_add_u32 v11, {T[0]}, {VVA}')
        p(f'ds_read_b128 {vr(KF[0], 4)}, v10')
        p(f'ds_read_b128 {vr(VF[0], 4)}, v11')
        p(f'ds_read_b128 {vr(VF[0] + 4, 4)}, v11 offset:{VSTR}')
        p('s_waitcnt lgkmcnt(0)')
        p(f's_cmp_eq_u32 s90, 8')
        p(f's_cbranch_scc1 {Lm}')
        p(f's_cmp_eq_u32 s90, 0')
        p(f's_cbranch_scc1 {Ln}')
        p(f'v_mfma_f32_32x32x16_bf16 {vr(S, 16)}, {vr(KF[0], 4)}, {vr(VQ, 4)}, 0')
        p(f's_branch {Lc}')
        p.label(Lm)
        p(f'v_mfma_f32_32x32x16_bf16 {vr(S, 16)}, {vr(KF[0], 4)}, {vr(VQ, 4)}, {vr(MD, 16)}')
        p(f's_branch {Lc}')
        p.label(Ln)
        p(f'v_mfma_f32_32x32x16_bf16 {vr(S, 16)}, {vr(KF[0], 4)}, {vr(VQ, 4)}, {vr(MF, 16)}')
        p.label(Lc)
        if pas == 0:
            for i in range(16):
                p(f'v_max_f32 v14, v14, v{S + i}')
        else:
            for i in range(16):
                p(f'v_sub_f32 v{S + i}, v{S + i}, v14')
                p(f'v_exp_f32 v{S + i}, v{S + i}')
            for r in range(8):
                p(f'v_cvt_pk_bf16_f32 v{VP + r}, v{S + 2 * r}, v{S + 2 * r + 1}')
            for g in range(2):
                p(f'v_mfma_f32_32x32x16_bf16 {vr(VO, 16)}, {vr(VF[0] + 4 * g, 4)}, {vr(VP + 4 * g, 4)}, {vr(VO, 16)}')
        p(f's_add_u32 s90, s90, 1')
        p(f's_cmp_le_u32 s90, 8')
        p(f's_cbranch_scc1 {L}')
        if pas == 0:
            p('v_mov_b32 v15, v14')
            p('v_permlane32_swap_b32 v14, v15')
            p('v_max_f32 v14, v14, v15')
    p(f's_branch {Lr}')


def w64_dma_lane(dst):
    p('v_lshrrev_b32 v10, 3, v1')
    p('v_lshlrev_b32 v10, 10, v10')
    p('v_and_b32 v11, 7, v1')
    p('v_bfe_u32 v12, v1, 4, 1')
    p('v_lshlrev_b32 v12, 2, v12')
    p('v_xor_b32 v11, v11, v12')
    p('v_lshl_add_u32 v10, v11, 4, v10')
    p(f's_lshl_b32 {T[0]}, {s_cb}, 7')
    p(f'v_add_u32 {dst}, {T[0]}, v10')


def w1_dma_lanes(dsts):
    p(f's_movk_i32 {T[3]}, 5462')
    p(f's_movk_i32 {T[4]}, 2752')
    p(f's_mul_i32 {T[1]}, {s_c}, 192')
    for q, dst in enumerate(dsts):
        p(f'v_add_u32 v10, {64 * q}, v1')
        p(f'v_mul_lo_u32 v11, v10, {T[3]}')
        p('v_lshrrev_b32 v11, 16, v11')
        p('v_mul_u32_u24 v12, 12, v11')
        p('v_sub_u32 v12, v10, v12')
        p('v_lshlrev_b32 v12, 4, v12')
        p(f'v_mul_lo_u32 v11, v11, {T[4]}')
        p(f'v_add3_u32 {dst}, v11, v12, {T[1]}')


def tr64_lanes(a0, a1):
    p('v_bfe_u32 v10, v1, 2, 2')
    p('v_lshrrev_b32 v11, 5, v1')
    p('v_lshl_add_u32 v10, v11, 2, v10')
    p('v_lshlrev_b32 v10, 7, v10')
    p('v_bfe_u32 v11, v1, 4, 1')
    p('v_lshl_add_u32 v10, v11, 5, v10')
    p('v_and_b32 v11, 3, v1')
    p('v_lshl_add_u32 v10, v11, 3, v10')
    p('v_bfe_u32 v11, v1, 3, 1')
    p(f'v_lshl_add_u32 {a0}, v11, 6, v10')
    p(f'v_xor_b32 {a1}, 64, {a0}')


def tr_kv_lane(a):
    p('v_bfe_u32 v10, v1, 2, 2')
    p('v_lshrrev_b32 v11, 5, v1')
    p('v_lshl_add_u32 v10, v11, 3, v10')
    p('v_lshlrev_b32 v10, 7, v10')
    p('v_bfe_u32 v11, v1, 4, 1')
    p('v_lshl_add_u32 v10, v11, 5, v10')
    p('v_and_b32 v11, 3, v1')
    p('v_lshl_add_u32 v10, v11, 3, v10')
    p('v_bfe_u32 v11, v1, 3, 1')
    p(f'v_lshl_add_u32 {a}, v11, 6, v10')


def x_lane(a):
    p('v_and_b32 v10, 31, v1')
    p(f's_lshl_b32 {T[0]}, {s_tt}, 5')
    p(f'v_add_u32 v10, {T[0]}, v10')
    p('v_bfe_u32 v11, v10, 1, 3')
    p('v_lshrrev_b32 v12, 5, v1')
    p('v_xor_b32 v11, v11, v12')
    p('v_lshlrev_b32 v11, 4, v11')
    p(f'v_lshl_add_u32 {a}, v10, 7, v11')


def tr96_lane(a):
    p('v_bfe_u32 v10, v1, 2, 2')
    p('v_lshrrev_b32 v11, 5, v1')
    p('v_lshl_add_u32 v10, v11, 2, v10')
    p('v_mul_u32_u24 v10, 192, v10')
    p('v_bfe_u32 v11, v1, 4, 1')
    p('v_lshl_add_u32 v10, v11, 5, v10')
    p('v_and_b32 v11, 3, v1')
    p(f'v_lshl_add_u32 {a}, v11, 3, v10')


def dump_stamps(R):
    if not OPT['stamps']:
        return
    R.stamp('end')
    p(f's_lshl_b32 {T[0]}, s2, 3')
    p(f's_add_u32 {T[0]}, {T[0]}, {s_w}')
    p(f's_lshl_b32 {T[0]}, {T[0]}, 8')
    p(f's_add_u32 {T[0]}, {T[0]}, {STAMP}')
    p('v_lshlrev_b32 v10, 2, v1')
    p('v_mov_b32 v11, 0')
    for k in range(R.nstamp):
        p(f'v_writelane_b32 v11, s{66 + k}, {k}')
    p(f'v_writelane_b32 v11, {s_mode}, 63')
    p(f'v_writelane_b32 v11, s100, 62')
    p(f'v_writelane_b32 v11, s101, 61')
    p(f'buffer_store_dword v11, v10, {sWS}, {T[0]} offen')
    if OPT.get('dbgout') and R is CW:
        L = p.newlabel('L_dbg')
        p(f's_cmp_lg_u32 s2, {OPT["dbgout"]}')
        p(f's_cbranch_scc1 {L}')
        p(f's_cmp_lg_u32 {s_w}, 0')
        p(f's_cbranch_scc1 {L}')
        p('s_load_dwordx2 s[40:41], s[0:1], 72')
        p('s_memrealtime s[98:99]')
        p('s_waitcnt lgkmcnt(0)')
        p('s_and_b32 s41, s41, 0xffff')
        p('s_mov_b32 s42, 256')
        p('s_mov_b32 s43, 0x20000')
        p('v_subrev_u32 v11, s100, v11')
        p('s_sub_u32 s98, s98, s86')
        p('v_writelane_b32 v11, s98, 15')
        p('buffer_store_dword v11, v10, s[40:43], 0 offen')
        p.label(L)


R = HW
def touch_st():
    p('v_bfe_u32 v250, v1, 2, 1')
    p('v_lshlrev_b32 v250, 12, v250')
    p('v_and_b32 v251, 3, v1')
    p('v_lshl_add_u32 v250, v251, 7, v250')
    p(f's_lshl_b32 {T[6]}, {s_rs}, 13')
    p(f's_lshl_b32 {T[7]}, {s_cb}, 9')
    p(f's_add_u32 {T[6]}, {T[6]}, {T[7]}')
    p(f's_add_u32 {T[6]}, {T[6]}, {STB}')
    p(f'buffer_load_dword v253, v250, {sWS}, {T[6]} offen sc1')
    R.vm.issue('t')


def touch_fl():
    p('v_bfe_u32 v250, v1, 2, 2')
    p('v_min_u32 v250, 2, v250')
    p('v_lshlrev_b32 v250, 13, v250')
    p('v_and_b32 v251, 3, v1')
    p('v_lshl_add_u32 v250, v251, 7, v250')
    p(f's_lshl_b32 {T[6]}, {s_rb}, 9')
    p(f's_add_u32 {T[6]}, {T[6]}, {FO}')
    p(f'buffer_load_dword v254, v250, {sWS}, {T[6]} offen sc1')
    R.vm.issue('t')


TM = OPT['tmode']
after = {1: {0: [2], 1: [4], 2: [6]}, 2: {0: [2, 4], 1: [6]}, 3: {0: [2], 1: [4], 3: [6]}, 4: {0: [2, 4, 6]}}[TM]


def chunk_t(R, ch):
    gs = chunk_groups(R, ch) + [wtouch(R, i) for i in after.get(ch, [])]
    if ch == OPT['qat']:
        gs.append(qtouch(R))
    if OPT['mallat'] < 8:
        m = OPT['mallat']
        gs += {m: [warm_mall(R, sW1)], m + 1: [warm_mall(R, sW2)], m + 2: [warm_wo(R), touch_fl, touch_st]}.get(ch, [])
    return gs


if OPT['twait']:
    first = [wtouch(R, 0)] + [wtouch(R, i) for i in after.pop(0, [])] + [srds_w]
else:
    first = [wtouch(R, 0)] + chunk_t(R, 0) + [srds_w]
for g in first:
    g()
tr_kv_lane('v19')
p(f's_and_b32 {T[0]}, {s_q}, 1')
p(f's_lshl_b32 {T[0]}, {T[0]}, 6')
p(f'v_xor_b32 v19, {T[0]}, v19')
p(f's_sub_u32 {s_tt}, 7, {s_w}')
x_lane('v9')
XQ = [20 + 4 * i for i in range(4)] + [68 + 4 * i for i in range(8)] + [120 + 4 * i for i in range(10)] + [196 + 4 * i for i in range(10)]
AQ = 236


def wq_lane():
    p('v_lshrrev_b32 v10, 2, v1')
    p(f's_lshl_b32 {T[0]}, {s_q}, 7')
    p(f'v_add_u32 v10, {T[0]}, v10')
    p(f's_movk_i32 {T[1]}, 3072')
    p(f'v_mul_lo_u32 v10, v10, {T[1]}')
    p('v_and_b32 v11, 3, v1')
    p('v_lshl_add_u32 v10, v11, 4, v10')
    p(f's_lshl_b32 {T[1]}, {s_c}, 6')
    p(f'v_add_u32 v7, {T[1]}, v10')
    p('v_bfe_u32 v10, v1, 2, 2')
    p('v_lshrrev_b32 v11, 5, v1')
    p('v_lshl_add_u32 v10, v11, 3, v10')
    p('v_lshlrev_b32 v10, 6, v10')
    p('v_bfe_u32 v11, v1, 4, 1')
    p('v_lshl_add_u32 v10, v11, 5, v10')
    p('v_and_b32 v11, 3, v1')
    p('v_lshl_add_u32 v10, v11, 3, v10')
    p(f'v_add_u32 v8, {L_WQ}, v10')


def wq_piece(n):
    def f():
        p(f's_lshl_b32 {T[7]}, {s_q}, 13')
        p(f's_add_u32 m0, {T[7]}, {L_WQ + n * 1024}')
        p(f's_mov_b32 {T[7]}, {n * 16 * 3072}')
        p(f'buffer_load_dwordx4 v7, {sWQKV}, {T[7]} offen lds')
        R.vm.issue('wq')
    return f

STG = [120 + 4 * i for i in range(10)] + [196 + 4 * i for i in range(14)]
ONE, CSA = 104, 52
for r in range(4):
    p(f'v_mov_b32 v{ONE + r}, 0x3f803f80')


def w1_stage(n):
    def f():
        if n % 3 == 0:
            p(f's_mul_i32 {T[6]}, {s_q}, {8 * 16 * 2752}')
            p(f's_add_u32 {T[6]}, {T[6]}, {(n // 3) * 16 * 2752}')
        p(f'buffer_load_dwordx4 {vr(STG[n], 4)}, v{112 + n % 3}, {sW1}, {T[6]} offen' + (' nt' if OPT.get('nt_w1') else ''))
        R.vm.issue('w1')
    return f


def get_tag():
    p(f'v_mov_b32 v10, {S_TAG}')
    p('ds_read_b32 v10, v10')
    p('s_waitcnt lgkmcnt(0)')
    p(f'v_readfirstlane_b32 {s_tag}, v10')


def hw_masks():
    make_masks()
    p(f's_and_b32 {s_q}, {s_w}, 3')


p('v_mov_b32 v10, 0')
p('v_mov_b32 v11, 0')
p('v_lshlrev_b32 v12, 3, v1')
p('v_and_b32 v12, 63, v12')
p(f'ds_write_b64 v12, v[10:11] offset:{S_SYNC}')
common_setup(R)
w1_dma_lanes(['v112', 'v113', 'v114'])
hw_masks()
w64_dma_lane('v115')
att_addrs()
wq_lane()
R.dstamp('P1', 'setup')
if OPT['twait']:
    p(f's_waitcnt vmcnt({OPT["twait"] - 1})')
    for g in chunk_t(R, 0):
        g()
for g in chunk_t(R, 1) + (chunk_t(R, 2) if OPT['la'] == 3 else []):
    g()
R.stamp('start')
late = [w1_stage(n) for n in range(24)]
fill = {1: [get_tag]}
for ch in range(8):
    slot = RING + (ch % NSLOT) * SLOT
    p(f'v_add_u32 v14, {slot + 16384}, v19')
    p(f'v_add_u32 v108, {slot}, v9')
    for ks in range(1, 4):
        p(f'v_xor_b32 v{(108, 109, 116, 117)[ks]}, {32 * ks}, v108')
    if ch >= 4:
        R.dstamp('P1', f'iss{ch}')
    R.vm.wait([('ch', ch)])
    if ch == 0:
        p('s_waitcnt lgkmcnt(0)')
    if ch >= 4:
        R.dstamp('P1', f'vm{ch}')
    R.bar()
    R.dstamp('P1', f'bar{ch}')
    for ks in range(4):
        for rd in range(2):
            p(f'ds_read_b64_tr_b16 {vr(36 + 4 * ks + 2 * rd, 2)}, v14 offset:{ks * 2048 + rd * 512}')
    for ks in range(4):
        p(f'ds_read_b128 {vr(XQ[4 * ch + ks], 4)}, v{(108, 109, 116, 117)[ks]}')
    LA = OPT['la']
    if ch + LA < 8:
        extra = chunk_t(R, ch + LA)
    elif ch == 8 - LA:
        extra = [wq_piece(n) for n in range(8)]
    else:
        extra = []
    mf = [(lambda ks=ks: p(f'v_mfma_f32_32x32x16_bf16 {vr(CSA, 16)}, {vr(ONE, 4)}, {vr(36 + 4 * ks, 4)}, {"0" if ch == 0 and ks == 0 else vr(CSA, 16)}')) for ks in range(4)]
    other = [lambda: p('s_waitcnt lgkmcnt(0)')] + mf + fill.get(ch, [])
    for k, g in enumerate(extra):
        g()
        if k >= 1 and other:
            other.pop(0)()
            if k == 1:
                other.pop(0)()
    for g in other:
        g()
p('v_and_b32 v10, 31, v1')
p('v_lshlrev_b32 v10, 2, v10')
p(f's_and_b32 {T[0]}, {s_q}, 1')
p(f's_lshl_b32 {T[0]}, {T[0]}, 7')
p(f'v_add_u32 v11, {T[0]}, v10')
p(f'ds_write_b32 v11, v{CSA} offset:{S_CS + 128}')
p('s_waitcnt lgkmcnt(0)')
R.bar()
R.stamp('B1')
R.dstamp('P2', 'B1')
burst = [warm_wo(R), warm_mall(R, sW1), warm_mall(R, sW2), touch_fl, touch_st]
if OPT['small']:
    burst[1] = burst[2] = lambda: None
if OPT['mallat'] == 8:
    for g in burst:
        g()
p('v_min_u32 v15, 23, v1')
p('v_lshrrev_b32 v16, 3, v15')
p(f'v_add_u32 v16, {s_rb}, v16')
p('v_cmp_le_u32 vcc, 2, v16')
p('v_mov_b32 v13, 0')
p('v_cndmask_b32 v44, v13, v18, vcc')
p('v_mov_b32 v45, v44')
p('v_mov_b32 v46, v44')
p('v_mov_b32 v47, v44')
p(f'v_mul_u32_u24 v15, {VSTR}, v15')
p(f'v_add_u32 v15, {L_V + 1024}, v15')
p('ds_write_b128 v15, v[44:47]')
p('v_mov_b32 v118, 0')
p('v_mov_b32 v119, 1')
p(f's_lshl_b32 {T[0]}, {s_tt}, 7')
p(f'v_add_u32 v11, {T[0]}, v10')
p(f'ds_read_b32 v108, v11 offset:{S_R}')
p(f'ds_read_b32 v109, v11 offset:{S_M}')
R.vm.wait(['wq'])
p(f's_lshl_b32 {T[0]}, {s_q}, 13')
p(f'v_add_u32 v14, {T[0]}, v8')
signal(R, H_WQ, 'v118', 'v119')
R.lg.reset()
for k in range(8 + 3):
    if k < 8:
        for rd in range(2):
            dsr(R, 'ds_read_b64_tr_b16', vr(36 + 4 * (k % 4) + 2 * rd, 2), ['v14'], k * 1024 + rd * 256, ('c', k))
    if k >= 3:
        R.lg.wait([('c', k - 3)])
        p(f'v_mfma_f32_32x32x16_bf16 {vr(CSA, 16)}, {vr(ONE, 4)}, {vr(36 + 4 * ((k - 3) % 4), 4)}, {"0" if k == 3 else vr(CSA, 16)}')
lwait(R, H_WQ, 'v118', 'v12')
p(f's_lshl_b32 {T[0]}, {s_q}, 7')
p(f'v_add_u32 v11, {T[0]}, v10')
p('v_lshrrev_b32 v12, 5, v1')
p('v_lshlrev_b32 v12, 4, v12')
for k in range(32 + 3):
    if k < 32:
        for rd in range(2):
            dsr(R, 'ds_read_b64_tr_b16', vr(36 + 4 * (k % 4) + 2 * rd, 2), ['v8'], k * 1024 + rd * 256, ('q', k))
    if k >= 3:
        R.lg.wait([('q', k - 3)])
        p(f'v_mfma_f32_32x32x16_bf16 {vr(AQ, 16)}, {vr(36 + 4 * ((k - 3) % 4), 4)}, {vr(XQ[k - 3], 4)}, {"0" if k == 3 else vr(AQ, 16)}')
    if OPT['mallat'] == 9 and k in (8, 10, 12, 14, 16):
        burst[(k - 8) // 2]()
    if k == 4:
        p(f'ds_write_b32 v11, v{CSA} offset:{S_CSQ}')
        R.lg.issue('w')
        signal(R, H_CSQ, 'v118', 'v119')
    if k == 20:
        lwait(R, H_CSQ, 'v118', 'v13')
    if k in (21, 23, 25, 27):
        q = (k - 21) // 2
        R.lg.room(4)
        for g in range(4):
            p(f'ds_read_b128 {vr((CSA if q == 0 else 68 + 16 * ((q - 1) % 2)) + 4 * g, 4)}, v12 offset:{S_CSQ + 128 * q + 32 * g}')
            R.lg.issue(('p', q))
    if k in (25, 27, 29):
        q = (k - 23) // 2
        R.lg.wait([('p', q)])
        for i in range(16):
            p(f'v_add_f32 v{CSA + i}, v{CSA + i}, v{68 + 16 * ((q - 1) % 2) + i}')
c = 0.25 * LOG2E
p(f'v_mul_f32 v108, {fhex(c)}, v108')
p(f'v_mul_f32 v109, {fhex(c)}, v109')
for i in range(16):
    p(f'v_mul_f32 v{CSA + i}, v109, v{CSA + i}')
p(f's_lshl_b32 {T[0]}, {s_tt}, 10')
p(f's_add_u32 {T[0]}, {T[0]}, {L_QX}')
p(f'v_add_u32 v14, {T[0]}, v2')
for i in range(16):
    p(f'v_fma_f32 v{AQ + i}, v{AQ + i}, v108, -v{CSA + i}')
for r in range(4):
    p(f'v_cvt_pk_bf16_f32 v{40 + r}, v{AQ + 2 * r}, v{AQ + 2 * r + 1}')
p('ds_write_b128 v14, v[40:43]')
for r in range(4):
    p(f'v_cvt_pk_bf16_f32 v{VQ + r}, v{AQ + 8 + 2 * r}, v{AQ + 8 + 2 * r + 1}')
signal(R, H_Q, 'v118', 'v119')
R.dstamp('P2', 'epi')
lwait(R, C_KV, 'v118', 'v12')
R.stamp('B2')
R.dstamp('P2', 'B2')


def wo_piece(q):
    def f():
        p(f's_lshl_b32 {T[6]}, {s_q}, 14')
        p(f's_add_u32 m0, {T[6]}, {L_WO + q * 1024}')
        p(f's_lshl_b32 {T[6]}, {s_q}, 17')
        p(f's_add_u32 {T[6]}, {T[6]}, {q * 8192}')
        p(f'buffer_load_dwordx4 v115, {sWO}, {T[6]} offen lds')
        R.vm.issue('wo')
    return f


def wo_done():
    R.vm.wait(['wo'])
    signal(R, H_WO, 'v118', 'v119')


wo = [wo_piece(q) for q in range(16)]
if OPT['mallat'] == 11:
    lwait(R, C_FLAG, 'v118', 'v12')
    for g in [burst[1], burst[0], burst[3], burst[4]] + ([burst[2]] if OPT['m2early'] else []):
        g()
if OPT['wopos'] == 0:
    for g in wo:
        g()
    wo = []
att_2a(R)
if OPT['wopos'] == 1 or OPT['mallat'] == 10:
    lwait(R, C_HALO, 'v118', 'v12')
if OPT['mallat'] == 10:
    for g in [burst[1], burst[0], burst[3], burst[4]] + ([burst[2]] if OPT['m2early'] else []):
        g()
if not OPT['wolate']:
    for g in wo:
        g()
    wo = []
R.dstamp('P2', 'pref')
R.bar()
R.stamp('B3')
R.dstamp('P2', 'B3')
p(f'v_mov_b32 v10, {S_MODE}')
p('ds_read_b32 v10, v10')
p('s_waitcnt lgkmcnt(0)')
p(f'v_readfirstlane_b32 {s_mode}, v10')


def w2_groups(lst, regs=None):
    lst = list(lst)
    while len(lst) % 4:
        lst.append(lst[-1])
    gs = []
    if OPT.get('x_now2'):
        return [lambda: None] * (len(lst) // 2)
    for n in range(len(lst) // 4):
        ks = lst[4 * n:4 * n + 4]
        src = [k * 16 * 1024 for k in ks]
        dst = [w2_pos[k] for k in ks]

        def sel(reg, vals):
            d = vals[1] - vals[0]
            if all(vals[q] == vals[0] + q * d for q in range(4)):
                p(f's_mul_i32 {reg}, {s_q}, {d}')
                p(f's_add_u32 {reg}, {reg}, {vals[0]}')
            else:
                p(f's_mov_b32 {reg}, {vals[0]}')
                for q in range(1, 4):
                    p(f's_cmp_eq_u32 {s_q}, {q}')
                    p(f's_cselect_b32 {reg}, {vals[q]}, {reg}')

        def g0(src=src, dst=dst, n=n):
            sel(T[6], src)
            if regs is None:
                sel(T[7], dst)
                p(f's_mov_b32 m0, {T[7]}')
                p(f'buffer_load_dwordx4 v115, {sW2}, {T[6]} offen lds')
            else:
                p(f'buffer_load_dwordx4 {vr(regs[2 * n], 4)}, v115, {sW2}, {T[6]} offen')
            R.vm.issue(('w2', 2 * n))

        def g1(n=n):
            p(f's_add_u32 {T[6]}, {T[6]}, 8192')
            if regs is None:
                p(f's_add_u32 m0, {T[7]}, 1024')
                p(f'buffer_load_dwordx4 v115, {sW2}, {T[6]} offen lds')
            else:
                p(f'buffer_load_dwordx4 {vr(regs[2 * n + 1], 4)}, v115, {sW2}, {T[6]} offen')
            R.vm.issue(('w2', 2 * n + 1))
        gs += [g0, g1]
    return gs


p(f's_setprio {OPT["hprio"]}')
ex = ([touch_st] if OPT['m2at'] >= 2 else []) + ([burst[2]] if OPT['m2at'] == 3 else []) + wo + late[:8] + [wo_done] + late[8:] + ([burst[2]] if OPT['mallat'] >= 10 and not OPT['m2early'] else [])
sl = [lambda: None] * 44
for i, g in enumerate(ex):
    sl[i * 44 // len(ex)] = g
ex = sl
att_2b(R, ex, lambda: None)
p('s_setprio 0')
p('v_min_u32 v10, 47, v1')
p('v_lshlrev_b32 v11, 2, v10')
p(f's_mul_i32 {T[0]}, {s_c}, 192')
p(f'buffer_load_dword v12, v11, {sB1}, {T[0]} offen')
R.vm.issue('b1')
p(f's_mul_i32 {T[0]}, {s_q}, {8 * 3072}')
p(f's_add_u32 {T[0]}, {T[0]}, {BASE}')
p(f'v_add_u32 v3, {T[0]}, v2')
R.bar()
for n in range(24):
    p(f'ds_write_b128 v3, {vr(STG[n], 4)} offset:{n * 1024}')
    if n % 4 == 3:
        p('s_waitcnt lgkmcnt(4)')
LST = [120 + 4 * i for i in range(28)]
gl = w2_groups(late_order, LST)
NC = OPT['w2c']
R.vm.wait(['b1'])
p('v_lshlrev_b32 v14, 16, v12')
p('v_and_b32 v15, 0xffff0000, v12')
p('v_lshlrev_b32 v11, 3, v10')
p(f'ds_write_b64 v11, v[14:15] offset:{S_B1}')
p('v_mov_b32 v16, 0')
p('v_mov_b32 v17, 1')
signal(R, H_W1, 'v16', 'v17')
R.dstamp('P3', 'w1wr')
tr96_lane('v3')
p(f's_min_u32 {T[1]}, {s_q}, 2')
p(f's_lshl_b32 {T[1]}, {T[1]}, 6')
p(f'v_add_u32 v3, {T[1]}, v3')
p('v_add_u32 v4, 0x10000, v3')
p('v_mov_b32 v18, 0x3f803f80')
p('v_mov_b32 v100, 0')
p('v_mov_b32 v101, 0')
lwait(R, C_OIS, 'v16', 'v10')
if OPT['m2at'] == 2:
    p('v_min_u32 v19, 11, v1')
    p('v_lshlrev_b32 v19, 7, v19')
    p(f's_lshl_b32 {T[7]}, s2, 2')
    p(f's_add_u32 {T[7]}, {T[7]}, {s_q}')
    p(f's_mul_i32 {T[7]}, {T[7]}, 1536')
    p(f'buffer_load_dword v254, v19, {sW2}, {T[7]} offen')
for g in w2_groups(W2_REG) + gl[:NC]:
    g()
lwait(R, H_W1, 'v16', 'v10')
for s0 in range(0, 0 if OPT.get('x_nocs') else 36, 4):
    if s0 < 32:
        for s in range(s0, s0 + 4):
            for rd in range(2):
                dsr(R, 'ds_read_b64_tr_b16', vr(20 + 16 * ((s0 // 4) % 2) + 4 * (s % 4) + 2 * rd, 2), ['v3', 'v4'], w1_addr(s) + rd * 1536, ('c', s0))
    if s0 >= 4:
        R.lg.wait([('c', s0 - 4)])
        for r in range(16):
            p(f'v_dot2c_f32_bf16 v{100 + (r & 1)}, v{20 + 16 * ((s0 // 4 - 1) % 2) + r}, v18')
p('v_add_f32 v100, v100, v101')
half_sum('v100', 'v101')
p('v_and_b32 v10, 31, v1')
p('v_lshlrev_b32 v10, 2, v10')
p(f's_lshl_b32 {T[1]}, {T[1]}, 1')
p(f'v_add_u32 v11, {T[1]}, v10')
p(f'ds_write_b32 v11, v100 offset:{S_CS1}')
p(f's_lshl_b32 {T[1]}, {s_rb}, 2')
p(f's_add_u32 {T[1]}, {T[1]}, {s_q}')
p(f's_lshl_b32 {T[2]}, {T[1]}, 7')
p(f's_add_u32 {T[2]}, {T[2]}, {FH}')
p('v_and_b32 v12, 15, v1')
p('v_lshlrev_b32 v12, 2, v12')
p(f'v_add_u32 v12, {T[2]}, v12')
p(f's_lshl_b32 {T[1]}, {T[1]}, 12')
p(f's_add_u32 {T[1]}, {T[1]}, {STB}')
p('v_lshrrev_b32 v13, 5, v1')
p('v_lshlrev_b32 v13, 11, v13')
p('v_lshl_add_u32 v13, v10, 1, v13')
poll(R, 'v12', 'v11', slow=True)
for q in range(8):
    p(f'buffer_load_dwordx2 {vr(20 + 2 * q, 2)}, v13, {sWS}, {T[1]} offen offset:{q * 256} sc1')
p(f's_lshl_b32 {T[0]}, {s_q}, 7')
p(f'v_add_u32 v10, {T[0]}, v10')
p('s_waitcnt vmcnt(0)')
for q in range(1, 8):
    p(f'v_add_f32 v20, v20, v{20 + 2 * q}')
    p(f'v_add_f32 v21, v21, v{21 + 2 * q}')
half_sum('v20', 'v11')
half_sum('v21', 'v11')
ln_finish('v20', 'v21', 'v22', 'v23')
p('v_sub_f32 v23, 0, v23')
p(f'ds_write_b32 v10, v22 offset:{S_R}')
p(f'ds_write_b32 v10, v23 offset:{S_M}')
signal(R, H_TAB, 'v16', 'v17')
R.dstamp('P3', 'cs1')
R.dstamp('P4', 'cs1')
p(f's_lshl_b32 {T[0]}, {s_q}, 11')
p(f's_add_u32 {T[0]}, {T[0]}, {BASE}')
p(f'v_add_u32 v3, {T[0]}, v2')
p('v_add_u32 v4, 0x10000, v3')
lwait(R, C_ISS, 'v16', 'v10')
R.dstamp('P4', 'iss')
for g in w2_groups(W2_P1):
    g()
R.vm.q = ['w2p1' for _ in R.vm.q]
for g in gl[NC:NC + 8]:
    g()
R.vm.wait(['w2p1'])
signal(R, H_P1, 'v16', 'v17')
for g in gl[NC + 8:]:
    g()
R.dstamp('P4', 'late')
lwait(R, C_END, 'v16', 'v10')
for n in range(28):
    R.vm.wait([('w2', n)])
    off = (n // 2) * 8192 + (n % 2) * 1024
    p(f'ds_write_b128 v{3 + off // 65536}, {vr(LST[n], 4)} offset:{off % 65536}')
    if n % 4 == 3:
        p('s_waitcnt lgkmcnt(4)')
signal(R, H_LATE, 'v16', 'v17')
R.dstamp('P5', 'latedone')
L7 = p.newlabel('L_n7')
Le = p.newlabel('L_ep')
Led = p.newlabel('L_epd')
p('s_cmp_lg_u32 s2, 0')
p(f's_cbranch_scc1 {L7}')
p(f's_cmp_lg_u32 {s_w}, 7')
p(f's_cbranch_scc1 {L7}')
p('v_lshrrev_b32 v12, 2, v1')
p('v_lshlrev_b32 v12, 7, v12')
p('v_and_b32 v13, 3, v1')
p('v_lshl_add_u32 v12, v13, 4, v12')
p(f's_mov_b32 {T[0]}, 0')
p.label(Le)
for q in range(16):
    p(f's_mov_b32 {T[1]}, {RST + 2048 * q}')
    p(f'buffer_load_dword v{20 + q}, v12, {sWS}, {T[1]} offen offset:4 sc1')
p('s_waitcnt vmcnt(0)')
p('s_mov_b64 vcc, 0')
for q in range(16):
    p(f'v_cmp_ne_u32 s[90:91], {s_tag}, v{20 + q}')
    p('s_or_b64 vcc, vcc, s[90:91]')
p(f's_cbranch_vccz {Led}')
p(f's_add_u32 {T[0]}, {T[0]}, 1')
p(f's_cmp_lt_u32 {T[0]}, {OPT["spin"]}')
p(f's_cbranch_scc1 {Le}')
p.label(Led)
p('v_mov_b32 v10, 0')
p(f'v_mov_b32 v11, {s_tag}')
p('s_mov_b64 exec, 1')
p(f'buffer_store_dword v11, v10, {sWS}, 0 offen sc1')
p('s_mov_b64 exec, -1')
p.label(L7)
dump_stamps(R)
p.label('L_end')
p('s_endpgm')
while tail:
    tail.pop(0)()
tail = []

R = CW
p.label('L_CW')
if OPT['small']:
    st = OPT['small']
    p('s_waitcnt lgkmcnt(0)')
    p(f's_lshl_b32 {T[0]}, s2, 2')
    p(f's_add_u32 {T[0]}, {T[0]}, {s_q}')
    p(f's_mul_i32 {T[0]}, {T[0]}, 1376')
    for lo in (72, 76):
        p(f's_add_u32 s90, s{lo}, {T[0]}')
        p(f's_addc_u32 s91, s{lo + 1}, 0')
        for o in sorted(set(list(range(0, 1376, st)) + [1372])):
            p(f's_load_dword s92, s[90:91], {o}')
srds_w()
common_setup(R)


def tlbwarm():
    if not OPT['tlbwarm']:
        return
    p('v_and_b32 v250, 7, v1')
    p('v_min_u32 v250, 5, v250')
    p('v_lshlrev_b32 v250, 21, v250')
    p('v_mov_b32 v251, 0')
    p(f'buffer_load_dword v252, v250, {sWS}, 0 offen offset:2048 sc1')
    for k, d in enumerate((sWO, sW1, sW2, sOUT, sB1, sB2)):
        p(f'buffer_load_dword v{254 + (k & 1)}, v251, {d}, 0 offen')
    for _ in range(7):
        R.vm.issue('t')


p(f's_mov_b32 s65, {T[5]}')
make_masks()
p(f's_and_b32 {s_q}, {s_w}, 3')
x_lane('v9')
p(f's_lshl_b32 {T[0]}, {s_rb}, 11')
p(f's_add_u32 {T[0]}, {T[0]}, {RST}')
p(f'v_lshlrev_b32 v8, 4, v10')
p(f'v_add_u32 v8, {T[0]}, v8')
p('v_and_b32 v7, 31, v1')
p('v_lshlrev_b32 v7, 3, v7')
p(f's_lshl_b32 {T[1]}, {s_team}, 8')
p(f's_add_u32 {T[1]}, {T[1]}, {ST}')
p(f'v_add_u32 v7, {T[1]}, v7')
tr_kv_lane('v19')
XF = [20, 36]
WF = [52, 100]
AK, AV = 212, 228
GR = 148


def p1_addrs(ch):
    slot = RING + (ch % NSLOT) * SLOT
    p(f'v_add_u32 v10, {slot}, v9')
    for ks in range(1, 4):
        p(f'v_xor_b32 v{10 + ks}, {32 * ks}, v10')
    p(f'v_add_u32 v14, {slot + 16384}, v19')
    p('v_xor_b32 v15, 64, v14')


def p1_reads(ch):
    b = ch & 1
    out = []
    for ks in range(4):
        out.append(f'ds_read_b128 {vr(XF[b] + 4 * ks, 4)}, v{10 + ks}')
        for sec in (0, 1):
            for rd in range(2):
                out.append(f'ds_read_b64_tr_b16 {vr(WF[b] + 16 * sec + 4 * ks + 2 * rd, 2)}, v{14 + sec} offset:{ks * 2048 + rd * 512}')
    return out


def p1_mfmas(ch):
    a = ch & 1
    out = []
    for ks in range(4):
        first = ch == 0 and ks == 0
        x = vr(XF[a] + 4 * ks, 4)
        c = lambda r: '0' if first else vr(r, 16)
        out.append(f'v_mfma_f32_32x32x16_bf16 {vr(AK, 16)}, {vr(WF[a] + 4 * ks, 4)}, {x}, {c(AK)}')
        out.append(f'v_mfma_f32_32x32x16_bf16 {vr(AV, 16)}, {x}, {vr(WF[a] + 16 + 4 * ks, 4)}, {c(AV)}')
    return out


def weave(R, mf, lds, extra=(), per=3):
    lds = list(lds)
    extra = list(extra)
    n = 0

    def emit_lds(k):
        nonlocal n
        for _ in range(k):
            if not lds:
                return
            if n and n % 7 == 0 and n >= 14:
                p('s_waitcnt lgkmcnt(7)')
            p(lds.pop(0))
            n += 1
    for i, m in enumerate(mf):
        p(m)
        emit_lds(per)
        if extra and i % 3 == 2:
            extra.pop(0)()
    emit_lds(99)
    for g in extra:
        g()


def kv_ids():
    p(f's_lshl_b32 {T[2]}, {s_rb}, 4')
    p(f's_add_u32 {T[2]}, {T[2]}, {s_c}')
    p(f's_lshl_b32 {T[4]}, {T[2]}, 5')
    p(f's_add_u32 {T[4]}, {T[4]}, {s_w}')
    p(f's_lshl_b32 {T[4]}, {T[4]}, 2')
    p(f's_add_u32 {T[4]}, {T[4]}, {FKV}')
    p(f's_lshl_b32 {T[5]}, {s_w}, 12')
    p(f's_add_u32 {T[5]}, {T[5]}, {s_area}')
    p(f's_add_u32 {T[2]}, {T[5]}, {32 * 16384}')


def kv_clear():
    for r in range(4):
        p(f'v_mov_b32 v{244 + r}, -1')
    for q in range(4):
        p(f'buffer_store_dwordx4 v[244:247], v2, {sWS}, {T[2]} offen offset:{q * 1024} sc1')
        R.vm.issue('st')


def kv_cleared():
    flag_store(R, T[4], 'v248', 'v249', moded=False)


kv_ids()
if OPT['kvtag'] and OPT['clrat'] == -1:
    kv_clear()
p(f's_cmp_ge_u32 {s_rb}, 1')
p(f's_cselect_b32 {T[0]}, {16 * 128}, 0')
p(f's_sub_u32 {T[0]}, {T[4]}, {T[0]}')
p(f's_cmp_ge_u32 {s_rb}, 2')
p(f's_cselect_b32 {T[1]}, {2 * 16 * 128}, 0')
p(f's_sub_u32 {T[1]}, {T[4]}, {T[1]}')
p(f'v_mov_b32 v6, {T[0]}')
p(f'v_mov_b32 v11, {T[1]}')
p('v_and_b32 v12, 1, v1')
p('v_cmp_eq_u32 vcc, 1, v12')
p('v_cndmask_b32 v6, v6, v11, vcc')
row_stats(R)
p1_addrs(0)
R.stamp('start')
CSQ, CSK, RR, MM, CSV = 52, 68, 20, 84, 152
for ch in range(8):
    p('s_waitcnt lgkmcnt(0)')
    if ch >= 4:
        R.dstamp('P1', f'pre{ch}')
    R.bar()
    R.dstamp('P1', f'bar{ch}')
    extra = []
    if ch == 5:
        def ld():
            p(f'buffer_load_dwordx4 {vr(GR, 4)}, v8, {sWS}, 0 offen sc1')
            p(f'buffer_load_dwordx2 v[156:157], v7, {sWS}, 0 offen sc1')
            R.vm.issue('gr')
            R.vm.issue('gr')
            if OPT['fkvt']:
                p(f'buffer_load_dword v253, v6, {sWS}, 0 offen sc1')
                R.vm.issue('t')

        extra = [ld]
    if ch == 0:
        extra = [tlbwarm]
    if OPT.get('probe') and ch == 2:
        def probe():
            p(f'v_mov_b32 v250, {OPT["probe"]}')
            if OPT.get('probe_n'):
                p(f'v_min_u32 v251, {OPT["probe_n"] - 1}, v1')
                p(f'v_lshlrev_b32 v251, {OPT.get("probe_sh", 21)}, v251')
                p('v_add_u32 v250, v250, v251')
            if OPT.get('probe_spread'):
                p(f's_lshl_b32 {T[7]}, s2, 9')
                p(f'v_add_u32 v250, {T[7]}, v250')
            d = {0: sWS, 1: sWO, 2: sW1, 3: sW2, 4: sOUT, 5: sB1, 6: sB2}[OPT.get('probe_buf', 0)]
            p(f'buffer_load_dword v252, v250, {d}, 0 offen')
            R.vm.issue('t')
        extra = extra + [probe]
    if OPT['mallat'] == 20 + ch:
        def cw_burst():
            p('v_min_u32 v17, 11, v1')
            p('v_lshlrev_b32 v17, 7, v17')
            for g in (warm_mall(R, sW1), warm_wo(R), touch_fl) + ((warm_mall(R, sW2), touch_st) if OPT['m2at'] == 0 else ()):
                g()
        extra = extra + [cw_burst]
    if ch == OPT['clrat'] and OPT['kvtag']:
        extra = extra + [kv_clear]
    if ch == OPT['clrdone'] and OPT['kvtag']:
        extra = [kv_cleared]
    weave(R, p1_mfmas(ch - 1) if ch else [], p1_reads(ch), extra)
    if ch < 7:
        p1_addrs(ch + 1)
Lg = p.newlabel('L_gr')
Lgx = p.newlabel('L_grx')
R.vm.wait(['gr'])
p(f's_mov_b32 {T[0]}, 0')
p.label(Lg)
p(f'v_cmp_ne_u32 vcc, {s_tag}, v{GR + 1}')
p(f'v_cmp_ne_u32 s[90:91], {s_tag}, v{GR + 3}')
p('s_or_b64 vcc, vcc, s[90:91]')
p(f'v_cmp_ne_u32 s[90:91], {s_tag}, v156')
p('s_or_b64 vcc, vcc, s[90:91]')

p(f's_cbranch_vccnz {Lgx}')
Lgd = p.newlabel('L_grd')
p.label(Lgd)


def gr_retry():
    p.label(Lgx)
    p(f'buffer_load_dwordx4 {vr(GR, 4)}, v8, {sWS}, 0 offen sc1')
    p(f'buffer_load_dwordx2 v[156:157], v7, {sWS}, 0 offen sc1')
    p('s_waitcnt vmcnt(0)')
    p(f's_add_u32 {T[0]}, {T[0]}, 1')
    p(f's_cmp_lt_u32 {T[0]}, {OPT["spin"]}')
    p(f's_cbranch_scc1 {Lg}')
    p(f's_branch {Lgd}')


tail.append(gr_retry)
p(f'v_readfirstlane_b32 {T[1]}, v157')
p(f'v_cmp_ne_u32 vcc, {T[1]}, v157')
p('s_cmp_eq_u64 vcc, 0')
p(f's_cselect_b32 {s_mode}, 1, 0')
if OPT['force_safe']:
    p(f's_mov_b32 {s_mode}, 0')
p(f'v_mov_b32 v10, {S_MODE}')
p(f'v_mov_b32 v11, {s_mode}')
p('ds_write_b32 v10, v11')
p('v_and_b32 v10, 31, v1')
p('v_lshlrev_b32 v10, 2, v10')
p(f's_lshl_b32 {T[0]}, {s_tt}, 7')
p(f'v_add_u32 v11, {T[0]}, v10')
p(f'ds_write_b32 v11, v{GR} offset:{S_R}')
p(f'ds_write_b32 v11, v{GR + 2} offset:{S_M}')
p('v_lshrrev_b32 v12, 5, v1')
p('v_lshlrev_b32 v12, 4, v12')
p(f'v_add_u32 v13, {T[0]}, v12')
p('s_waitcnt lgkmcnt(0)')
R.bar()
R.stamp('B1')
R.dstamp('P2', 'B1')
lds = [f'ds_read_b128 {vr(CSK + 4 * g, 4)}, v12 offset:{S_CS + 128 + 32 * g}' for g in range(4)]
lds += [f'ds_read_b32 v{CSV}, v10 offset:{S_CS + 256}']
lds += [f'ds_read_b128 {vr(MM + 4 * g, 4)}, v13 offset:{S_M + 32 * g}' for g in range(4)]
lds += [f'ds_read_b128 {vr(RR + 4 * g, 4)}, v13 offset:{S_R + 32 * g}' for g in range(4)]


def pub_addrs():
    p(f's_lshl_b32 {T[0]}, {s_tt}, 11')
    p(f's_add_u32 {T[1]}, {T[0]}, {L_K + 8 * 2048}')
    p(f'v_add_u32 v15, {T[1]}, v2')
    p(f's_mul_i32 {T[0]}, {s_tt}, {2 * VSTR}')
    p(f's_add_u32 {T[0]}, {T[0]}, {L_V + 16 * VSTR}')
    p(f'v_add_u32 v16, {T[0]}, v2')


mf = p1_mfmas(7)
mf = mf[0::2] + mf[1::2]


def st_pair(reg, off):
    def f():
        if OPT['kvtag']:
            for r in range(0, 8, 2):
                p(f'v_min_u32 v{reg + r}, -2, v{reg + r}')
        for g in range(2):
            p(f'buffer_store_dwordx4 {vr(reg + 4 * g, 4)}, v2, {sWS}, {T[2]} offen offset:{off + g * 1024} sc1')
            R.vm.issue('st')
    return f


PKK, PKV = 244, 52
for x in lds[:9]:
    p(x)
p(mf[0])
for x in lds[9:13]:
    p(x)
p(mf[1])
pub_addrs()
p(mf[2])
p('s_waitcnt lgkmcnt(9)')
for i in range(8):
    p(f'v_mul_f32 v{CSK + i}, v{GR + 2}, v{CSK + i}')
p(mf[3])
for i in range(8, 16):
    p(f'v_mul_f32 v{CSK + i}, v{GR + 2}, v{CSK + i}')
p(mf[4])
p('s_waitcnt lgkmcnt(4)')
for i in range(8):
    p(f'v_mul_f32 v{MM + i}, v{CSV}, v{MM + i}')
p(mf[5])
for i in range(8, 16):
    p(f'v_mul_f32 v{MM + i}, v{CSV}, v{MM + i}')
kops = [f'v_fma_f32 v{AK + i}, v{AK + i}, v{GR}, -v{CSK + i}' for i in range(16)]
kops += [f'v_cvt_pk_bf16_f32 v{PKK + r}, v{AK + 2 * r}, v{AK + 2 * r + 1}' for r in range(8)]
for m in (6, 7):
    p(mf[m])
    for x in kops[8 * (m - 6):8 * (m - 5)]:
        p(x)
for x in kops[16:]:
    p(x)
st_pair(PKK, 0)()
p('s_waitcnt lgkmcnt(0)')
for i in range(16):
    p(f'v_fma_f32 v{AV + i}, v{AV + i}, v{RR + i}, -v{MM + i}')
for r in range(8):
    p(f'v_cvt_pk_bf16_f32 v{PKV + r}, v{AV + 2 * r}, v{AV + 2 * r + 1}')
st_pair(PKV, 2048)()
for g in range(2):
    p(f'ds_write_b128 v15, {vr(PKK + 4 * g, 4)} offset:{g * 1024}')
    p(f'ds_write_b128 v16, {vr(PKV + 4 * g, 4)} offset:{g * VSTR}')
p(f's_lshl_b32 {T[0]}, {s_tt}, 10')
p(f's_add_u32 {T[0]}, {T[0]}, {L_QX}')
p(f'v_add_u32 v12, {T[0]}, v2')
p('v_mov_b32 v102, 0')
p('v_mov_b32 v103, 1')
signal(R, C_KV, 'v102', 'v103')
att_addrs()
R.dstamp('P2', 'epi')
if not OPT['kvtag']:
    flag_store(R, T[4], 'v10', 'v11', moded=False)
signal(R, C_FLAG, 'v102', 'v103')
R.stamp('KVflag')
R.dstamp('P2', 'KVflag')
p('v_mov_b32 v13, v12')


def cw_2a():
    lwait(R, H_Q, 'v102', 'v10')
    lwait(R, C_KV, 'v102', 'v10')
    p(f'ds_read_b128 {vr(VQ, 4)}, v13')
    att_2a(R)


if OPT['a_first']:
    cw_2a()
p(f's_add_u32 {T[3]}, {T[5]}, {16 * 16384}')
p(f'v_subrev_u32 v15, {8 * 2048}, v15')
p(f'v_subrev_u32 v16, {16 * VSTR}, v16')


def halo_loads():
    for d in (1, 2):
        for q in range(4):
            p(f'buffer_load_dwordx4 {vr(HALO + 16 * (2 - d) + 4 * q, 4)}, v2, {sWS}, {T[3] if d == 1 else T[5]} offen offset:{q * 1024} sc1')


if not OPT['kvtag']:
    poll(R, 'v6', 'v11')
else:
    p(f's_add_u32 {T[0]}, {T[3]}, 4080')
    p(f's_add_u32 {T[1]}, {T[5]}, 4080')
    p(f'v_mov_b32 v10, {T[0]}')
    p(f'v_mov_b32 v11, {T[1]}')
    p('v_and_b32 v12, 1, v1')
    p('v_cmp_eq_u32 vcc, 1, v12')
    p('v_cndmask_b32 v10, v10, v11, vcc')
    p(f'v_add_u32 v12, 1, v12')
    p(f'v_cmp_ge_u32 s[90:91], {s_rb}, v12')
    p('v_cmp_le_u32 vcc, 32, v1')
    p('v_cndmask_b32 v10, v10, v6, vcc')
    p('s_mov_b32 s91, 0')
    Lk = p.newlabel('L_kv')
    Lkx = p.newlabel('L_kvx')
    Lkd = p.newlabel('L_kvd')
    p(f's_mov_b32 {T[0]}, 0')
    p.label(Lk)
    p(f'buffer_load_dword v11, v10, {sWS}, 0 offen sc1')
    p('s_waitcnt vmcnt(0)')
    p('v_cmp_eq_u32 vcc, -1, v11')
    p('s_and_b64 vcc, vcc, s[90:91]')
    p(f'v_cmp_ne_u32 s[92:93], {s_tag}, v11')
    p('s_or_b32 vcc_hi, vcc_hi, s93')
    p(f's_cbranch_vccnz {Lkx}')
    p.label(Lkd)
    R.vm.reset()

    def kvx():
        p.label(Lkx)
        p(f's_add_u32 {T[0]}, {T[0]}, 1')
        p(f's_cmp_lt_u32 {T[0]}, {OPT["spin"]}')
        p(f's_cbranch_scc1 {Lk}')
        p(f's_branch {Lkd}')
    tail.append(kvx)
R.dstamp('P2', 'kvpoll')
halo_loads()
signal(R, C_HALO, 'v102', 'v103')
if OPT['m2at'] == 1:
    warm_mall(R, sW2)()
    touch_st()
NX = 2 if OPT['m2at'] == 1 else 0
if not OPT['a_first']:
    cw_2a()
XRES = 240
HRES = 248
p('v_and_b32 v10, 31, v1')
p(f's_lshl_b32 {T[0]}, {s_rs}, 1')
p(f's_add_u32 {s_tile}, {T[0]}, {s_t}')
p(f's_lshl_b32 {T[0]}, {s_tile}, 5')
p(f'v_add_u32 v10, {T[0]}, v10')
p('v_lshlrev_b32 v10, 10, v10')
p('v_lshrrev_b32 v11, 5, v1')
p('v_lshl_add_u32 v10, v11, 3, v10')
p(f's_lshl_b32 {T[0]}, {s_cb}, 7')
p(f's_lshl_b32 {T[1]}, {s_kh}, 6')
p(f's_add_u32 {T[0]}, {T[0]}, {T[1]}')
p(f'v_add_u32 v9, {T[0]}, v10')
Lz = p.newlabel('L_nohalo')
Lw = p.newlabel('L_halow')
Lzc = p.newlabel('L_zc')
p(f's_mov_b32 {T[0]}, 0')
p.label(Lzc)
p(f's_cmp_lt_u32 {s_rb}, 2')
p(f's_cbranch_scc1 {Lz}')
p.label(Lw)
if OPT['kvtag']:
    Lw2 = Lw


def zero_blk():
    L1 = p.newlabel('L_z1')
    p.label(Lz)
    p('s_waitcnt vmcnt(0)')
    for r in range(16):
        p(f'v_mov_b32 v{HALO + r}, 0')
    p(f's_cmp_eq_u32 {s_rb}, 1')
    p(f's_cbranch_scc1 {Lw}')
    for r in range(16):
        p(f'v_mov_b32 v{HALO + 16 + r}, 0')
    p(f's_branch {Lw}')


tail.append(zero_blk)
if OPT['kvtag']:
    Lv = p.newlabel('L_hv')
    Lvx = p.newlabel('L_hvx')
    Lvd = p.newlabel('L_hvd')
    p('s_waitcnt vmcnt(0)')
    p(f'v_max3_u32 v10, v{HALO}, v{HALO + 2}, v{HALO + 4}')
    p(f'v_max3_u32 v11, v{HALO + 6}, v{HALO + 8}, v{HALO + 10}')
    for k, r in enumerate(range(12, 32, 4)):
        p(f'v_max3_u32 v{10 + (k & 1)}, v{10 + (k & 1)}, v{HALO + r}, v{HALO + r + 2}')
    p('v_max_u32 v10, v10, v11')
    p('v_cmp_eq_u32 vcc, -1, v10')
    p(f's_cbranch_vccnz {Lvx}')
    p.label(Lvd)

    def hvx():
        p.label(Lvx)
        p(f's_add_u32 {T[0]}, {T[0]}, 1')
        p(f's_cmp_ge_u32 {T[0]}, {OPT["spin"]}')
        p(f's_cbranch_scc1 {Lvd}')
        halo_loads()
        p(f's_branch {Lzc}')
    tail.append(hvx)
for g in range(2):
    p(f's_waitcnt vmcnt({7 - g + NX})')
    p(f'ds_write_b128 v15, {vr(HALO + 16 + 4 * g, 4)} offset:{4 * 2048 + g * 1024}')
for g in range(2):
    p(f's_waitcnt vmcnt({5 - g + NX})')
    p(f'ds_write_b128 v16, {vr(HALO + 24 + 4 * g, 4)} offset:{(8 + g) * VSTR}')
R.vm.q = [('hb', g) for g in range(4)] + ['t'] * NX


def halo2(g):
    def f():
        R.vm.wait([('hb', g)])
        R.lg.room(1)
        if g < 2:
            p(f'ds_write_b128 v15, {vr(HALO + 4 * g, 4)} offset:{g * 1024}')
        else:
            p(f'ds_write_b128 v16, {vr(HALO + 4 * g, 4)} offset:{(g - 2) * VSTR}')
        R.lg.issue('hw')
    return f


def halo_done():
    p(f's_add_u32 {T[4]}, {T[4]}, 16')
    R.vm.q = []
    p(f'v_mov_b32 v10, {T[4]}')
    p(f'v_mov_b32 v11, {s_tag}')
    p('s_mov_b64 exec, 1')
    p(f'buffer_store_dword v11, v10, {sWS}, 0 offen sc1')
    p('s_mov_b64 exec, -1')
    for g in range(4):
        p(f'buffer_load_dwordx2 {vr(XRES + 2 * g, 2)}, v9, {sX}, 0 offen offset:{16 * g}')
        R.vm.issue('xres')


for g in range(4):
    halo2(g)()
halo_done()
tr64_lanes('v4', 'v5')
p(f's_lshl_b32 {T[0]}, {s_kh}, 6')
p(f'v_xor_b32 v4, {T[0]}, v4')
p(f'v_xor_b32 v5, {T[0]}, v5')
p(f's_lshl_b32 {T[0]}, {s_kh}, 15')
p(f's_add_u32 {T[0]}, {T[0]}, {L_WO}')
p(f'v_add_u32 v6, {T[0]}, v4')
p(f'v_add_u32 v7, {T[0]}, v5')
p('s_waitcnt lgkmcnt(0)')
R.dstamp('P2', 'halo')
R.bar()
R.stamp('B3')
R.dstamp('P2', 'B3')
WOF, OF, ACC3 = 16, 144, 208


def wo_reads(lo, hi):
    for s in range(lo, hi):
        for nt in range(2):
            for rd in range(2):
                p(f'ds_read_b64_tr_b16 {vr(WOF + 8 * s + 4 * nt + 2 * rd, 2)}, v{6 + nt} offset:{s * 2048 + rd * 1024}')
        if s % 2 == 1:
            p('s_waitcnt lgkmcnt(4)')


def cw_wo():
    p('v_mov_b32 v102, 0')
    lwait(R, H_WO, 'v102', 'v10')
    wo_reads(0, 8)


att_2b(R, [], cw_wo)
p('s_setprio 2')
wo_reads(8, 16)
p('v_and_b32 v8, 15, v1')
p('v_lshlrev_b32 v8, 2, v8')
p(f's_lshl_b32 {T[0]}, {s_tile}, 1')
p(f's_add_u32 {T[0]}, {T[0]}, {s_kh}')
p(f's_lshl_b32 {T[1]}, {s_rb}, 18')
p(f's_lshl_b32 {T[2]}, {s_kh}, 17')
p(f's_add_u32 {T[1]}, {T[1]}, {T[2]}')
p(f's_and_b32 {T[2]}, {s_tile}, 3')
p(f's_lshl_b32 {T[2]}, {T[2]}, 12')
p(f's_add_u32 {T[1]}, {T[1]}, {T[2]}')
p(f's_lshl_b32 {T[0]}, {T[0]}, 6')
p(f's_add_u32 {T[0]}, {T[0]}, {FO}')
p(f'v_add_u32 v10, {T[0]}, v8')
for g in range(4):
    for k in range(2):
        x = XRES + 2 * g + k
        p(f'v_lshlrev_b32 v{ACC3 + 4 * g + 2 * k}, 16, v{x}')
        p(f'v_and_b32 v{ACC3 + 4 * g + 2 * k + 1}, 0xffff0000, v{x}')
p('s_waitcnt lgkmcnt(0)')
R.bar()
R.dstamp('P3', 'B5')
poll(R, 'v10', 'v11')
R.stamp('Opoll')
R.dstamp('P3', 'Opoll')


def o_load(s):
    if s % 2 == 0:
        p(f's_add_u32 {T[2]}, {T[1]}, {AREA + (s // 2) * 16384}')
    p(f'buffer_load_dwordx4 {vr(OF + 4 * s, 4)}, v2, {sWS}, {T[2]} offen offset:{(s % 2) * 1024} sc1')
    R.vm.issue(('o', s))


def xchg_addrs(area):
    p(f's_lshl_b32 {T[0]}, {s_w}, 12')
    p(f's_add_u32 {T[0]}, {T[0]}, {area}')
    p(f'v_add_u32 v10, {T[0]}, v2')
    p(f's_xor_b32 {T[0]}, {s_w}, 2')
    p(f's_lshl_b32 {T[0]}, {T[0]}, 12')
    p(f's_add_u32 {T[0]}, {T[0]}, {area}')
    p(f'v_add_u32 v11, {T[0]}, v2')


def xchg_finish(R, acc, dst, pair=False):
    if pair:
        signal(R, X_P0, 'v14', 'v13')
        lwait(R, X_P0, 'v14', 'v15', n=2)
    else:
        p('s_waitcnt lgkmcnt(0)')
        R.bar()
    for g in range(4):
        p(f'ds_read_b128 {vr(dst + 4 * g, 4)}, v11 offset:{g * 1024}')
    for g in range(4):
        p(f's_waitcnt lgkmcnt({3 - g})')
        for i in range(4):
            p(f'v_add_f32 v{dst + 4 * g + i}, v{dst + 4 * g + i}, v{acc + 4 * g + i}')
    R.lg.reset()


TAILN = 5
AH = OPT['aho']
for s in range(AH):
    o_load(s)
xchg_addrs(L_HI)
p('v_mov_b32 v12, 0')
p('v_mov_b32 v13, 1')
p(f's_lshl_b32 {T[0]}, {s_t}, 2')
p(f'v_mov_b32 v14, {T[0]}')
seq3 = [(s, nt) for s in range(16 - TAILN) for nt in (1, 0)] + [(s, 1) for s in range(16 - TAILN, 16)] + [(s, 0) for s in range(16 - TAILN, 16)]
no = AH
for k, (s, nt) in enumerate(seq3):
    R.vm.wait([('o', s)])
    p(f'v_mfma_f32_32x32x16_bf16 {vr(ACC3 + 16 * nt, 16)}, {vr(WOF + 8 * s + 4 * nt, 4)}, {vr(OF + 4 * s, 4)}, {"0" if s == 0 and nt == 1 else vr(ACC3 + 16 * nt, 16)}')
    if no < 16:
        o_load(no)
        no += 1
        if no == 16:
            signal(R, C_OIS, 'v12', 'v13')
    g = k - (len(seq3) - 4)
    if g >= 0:
        p(f'ds_write_b128 v10, {vr(ACC3 + 16 + 4 * g, 4)} offset:{g * 1024}')
R.dstamp('P3', 'loop')
xchg_finish(R, ACC3, 16, pair=True)
R.dstamp('P3', 'xchg')
for r in range(8):
    p(f'v_cvt_pk_bf16_f32 v{HRES + r}, v{16 + 2 * r}, v{16 + 2 * r + 1}')
p(f's_lshl_b32 {T[0]}, {s_cb}, 1')
p(f's_add_u32 {T[0]}, {T[0]}, {s_kh}')
p(f's_lshl_b32 {T[3]}, {s_tile}, 4')
p(f's_add_u32 {T[3]}, {T[3]}, {T[0]}')
p(f's_add_u32 {T[1]}, {T[5]}, 2048')
moded_stores(R, [f'buffer_store_dwordx4 {vr(HRES, 4)}, v2, {sWS}, {T[1]} offen',
                 f'buffer_store_dwordx4 {vr(HRES + 4, 4)}, v2, {sWS}, {T[1]} offen offset:1024'], OPT['hsc1'])
p('v_mov_b32 v18, 0x3f803f80')
p('v_mov_b32 v12, 0')
p('v_mov_b32 v13, 0')
for r in range(8):
    p(f'v_dot2c_f32_bf16 v12, v{HRES + r}, v18')
    p(f'v_dot2c_f32_bf16 v13, v{HRES + r}, v{HRES + r}')
p(f's_lshl_b32 {T[2]}, {T[3]}, 8')
p(f's_add_u32 {T[2]}, {T[2]}, {STB}')
p(f's_lshl_b32 {T[3]}, {s_tile}, 5')
p(f's_add_u32 {T[3]}, {T[3]}, {T[0]}')
p(f's_lshl_b32 {T[3]}, {T[3]}, 2')
p(f's_add_u32 {T[3]}, {T[3]}, {FH}')
p('v_and_b32 v14, 31, v1')
p('v_lshlrev_b32 v14, 3, v14')
half_sum('v12', 'v10')
half_sum('v13', 'v10')
moded_stores(R, [f'buffer_store_dwordx2 v[12:13], v14, {sWS}, {T[2]} offen'], OPT['hsc1'])
p('v_mov_b32 v246, 0')
p('v_mov_b32 v247, 1')
lwait(R, H_W1, 'v246', 'v10')
HF, ACC4, W1B, STL = 16, 144, 192, 228
tr96_lane('v3')
p('v_add_u32 v6, 0x10000, v3')
W1A = ['v3', 'v6']


def w1_reads(s):
    b = W1B + 12 * (s % 3)
    for nt in range(3):
        for rd in range(2):
            dsr(R, 'ds_read_b64_tr_b16', vr(b + 4 * nt + 2 * rd, 2), W1A, w1_addr(s) + rd * 1536 + nt * 64, ('w1', s))


w1_reads(0)
w1_reads(1)
flag_store(R, T[3], 'v10', 'v11')
R.stamp('Hflag')
R.dstamp('P3', 'Hflag')
p(f's_lshl_b32 {T[0]}, {s_rb}, 2')
p(f's_add_u32 {T[7]}, {T[0]}, {s_w}')
p(f's_lshl_b32 {T[1]}, {s_rb}, 18')
p(f's_lshl_b32 {T[2]}, {s_kh}, 17')
p(f's_add_u32 {T[1]}, {T[1]}, {T[2]}')
p(f's_lshl_b32 {T[2]}, {s_t}, 12')
p(f's_add_u32 {T[1]}, {T[1]}, {T[2]}')
p(f's_lshl_b32 {T[0]}, {T[7]}, 7')
p(f's_add_u32 {T[0]}, {T[0]}, {FH}')
p(f'v_add_u32 v10, {T[0]}, v8')
poll(R, 'v10', 'v11')
R.stamp('Hpoll')
R.dstamp('P4', 'Hpoll')


def h_load(s):
    if s % 2 == 0:
        p(f's_add_u32 {T[2]}, {T[1]}, {AREA + (s >> 2) * 16384 + ((s >> 1) & 1) * 8192}')
    p(f'buffer_load_dwordx4 {vr(HF + 4 * s, 4)}, v2, {sWS}, {T[2]} offen offset:{2048 + (s % 2) * 1024} sc1')
    R.vm.issue(('h', s))


S0 = OPT['s0']
nh = 0
for s in range(OPT['ahh']):
    h_load(nh)
    nh += 1
p('v_lshrrev_b32 v13, 1, v14')
p(f's_lshl_b32 {T[0]}, {s_w}, 7')
p(f'v_add_u32 v13, {T[0]}, v13')
p('v_lshrrev_b32 v12, 5, v1')
p('v_lshlrev_b32 v12, 4, v12')
p(f's_lshl_b32 {T[4]}, {T[7]}, 4')
p(f's_add_u32 {T[4]}, {T[4]}, {s_c}')
p(f's_lshl_b32 {T[4]}, {T[4]}, 12')
p(f's_add_u32 {T[4]}, {T[4]}, {H1B}')
p(f's_lshl_b32 {T[3]}, {T[7]}, 5')
p(f's_add_u32 {T[3]}, {T[3]}, {s_c}')
p(f's_lshl_b32 {T[3]}, {T[3]}, 2')
p(f's_add_u32 {T[3]}, {T[3]}, {FH1}')


seq = [(s, nt) for s in range(S0) for nt in range(3)] + [(s, nt) for nt in range(3) for s in range(S0, 32)]
EB = [48, 16, 48] if S0 >= 16 else None


def epi_ops(nt):
    e = EB[nt]
    pk = STL + 8 * (nt & 1)
    ops = []
    r = e + 16
    for i in range(16):
        ops.append(f'v_fmac_f32 v{r + i}, v{ACC4 + 16 * nt + i}, v244')
        if i >= 1:
            ops.append(f'v_max_f32 v{r + i - 1}, 0, v{r + i - 1}')
        if i >= 2:
            ops.append(f'v_mul_f32 v{r + i - 2}, v{r + i - 2}, v{r + i - 2}')
        if i >= 4 and i % 2 == 0:
            ops.append(f'v_cvt_pk_bf16_f32 v{pk + (i - 4) // 2}, v{r + i - 4}, v{r + i - 3}')
    ops += [f'v_max_f32 v{r + 15}, 0, v{r + 15}', f'v_mul_f32 v{r + 14}, v{r + 14}, v{r + 14}', f'v_mul_f32 v{r + 15}, v{r + 15}, v{r + 15}',
            f'v_cvt_pk_bf16_f32 v{pk + 6}, v{r + 12}, v{r + 13}', f'v_cvt_pk_bf16_f32 v{pk + 7}, v{r + 14}, v{r + 15}']
    st = []
    for g in range(2):
        f = 2 * nt + g
        st.append(f'buffer_store_dwordx4 {vr(pk + 4 * g, 4)}, v2, {sWS}, {T[4] if f < 4 else T[5]} offen offset:{(f % 4) * 1024}')
    ops.append(st if nt == 2 else tuple(st))
    return ops


def emit_op(x):
    if isinstance(x, (list, tuple)):
        moded_stores(R, x, isinstance(x, tuple))
    else:
        p(x)


def e_reads(nt):
    R.lg.room(8)
    for g in range(4):
        p(f'ds_read_b128 {vr(EB[nt] + 4 * g, 4)}, v12 offset:{S_CS1 + 128 * nt + 32 * g}')
        R.lg.issue(('e', nt))
    for g in range(4):
        p(f'ds_read_b128 {vr(EB[nt] + 16 + 4 * g, 4)}, v12 offset:{S_B1 + 128 * nt + 32 * g}')
        R.lg.issue(('e', nt))


def e_comb(nt):
    return [f'v_fmac_f32 v{EB[nt] + 16 + i}, v245, v{EB[nt] + i}' for i in range(16)]


W2R = 16
PRE = 6
bufs = {}
for k in range(PRE):
    s, nt = seq[k]
    bufs[k] = W1B + 4 * k
valu = []
pend = []
OPT_K = {0: (0,), 1: (0, 48), 2: (0, 24, 48, 72)}[OPT.get('pk', 0)]
for k, (s, nt) in enumerate(seq):
    if s < S0 and nt == 0 or s >= S0 and nt == 0:
        R.vm.wait([('h', s)])
    if k in OPT_K:
        R.dstamp('P4', f'k{k}')
    R.lg.wait([('w1', s) if k < PRE else ('w1', s, nt)])
    p(f'v_mfma_f32_32x32x16_bf16 {vr(ACC4 + 16 * nt, 16)}, {vr(bufs[k], 4)}, {vr(HF + 4 * s, 4)}, {"0" if s == 0 else vr(ACC4 + 16 * nt, 16)}')
    if k + PRE < len(seq):
        s2, nt2 = seq[k + PRE]
        b = W1B + 4 * ((k + PRE) % 9)
        bufs[k + PRE] = b
        for rd in range(2):
            pend.append(lambda b=b, rd=rd, s2=s2, nt2=nt2: dsr(R, 'ds_read_b64_tr_b16', vr(b + 2 * rd, 2), W1A, w1_addr(s2) + rd * 1536 + nt2 * 64, ('w1', s2, nt2)))
    ld = nh < 32 and k % OPT['hrate'] == 1
    for _ in range(1 if ld and OPT['pack'] else 3):
        if pend:
            pend.pop(0)()
    if ld:
        h_load(nh)
        nh += 1
        if nh == 32:
            signal(R, C_ISS, 'v246', 'v247')
    if k == 3 * S0 - 6:
        p(f'ds_read_b32 v10, v246 offset:{H_TAB}')
        R.lg.issue(H_TAB)
    seg = (k - 3 * S0) // (32 - S0) if k >= 3 * S0 else -1
    pos = (k - 3 * S0) % (32 - S0)
    if k == 3 * S0:
        lwait(R, H_TAB, 'v246', 'v10', early=True)
        R.lg.room(2)
        p(f'ds_read_b32 v244, v13 offset:{S_R}')
        p(f'ds_read_b32 v245, v13 offset:{S_M}')
        R.lg.issue('rm')
        R.lg.issue('rm')
    if seg >= 0 and pos == (1 if seg == 0 else 32 - S0 - 5):
        e_reads(seg)
    if seg >= 0 and pos == (5 if seg == 0 else 32 - S0 - 3):
        R.lg.wait([('e', seg)])
        valu += e_comb(seg)
    if seg >= 1 and pos == 1:
        valu += epi_ops(seg - 1)
    n = -(-76 // (32 - S0 - 1)) if seg >= 1 else 4
    if OPT.get('x_noepi') and seg >= 0:
        valu = [x for x in valu if isinstance(x, (list, tuple))]
    for _ in range(n):
        if valu:
            emit_op(valu.pop(0))
for x in valu:
    emit_op(x)
R.dstamp('P4', 'loop')
p('v_lshrrev_b32 v10, 5, v1')
p('v_lshlrev_b32 v10, 3, v10')
p(f's_lshl_b32 {T[0]}, {s_cb}, 7')
p(f's_lshl_b32 {T[1]}, {s_kh}, 6')
p(f's_add_u32 {T[0]}, {T[0]}, {T[1]}')
for g in range(4):
    p(f'buffer_load_dwordx2 {vr(200 + 2 * g, 2)}, v10, {sB2}, {T[0]} offen offset:{16 * g}')
    R.vm.issue('b2')
for x in epi_ops(2):
    emit_op(x)
p(f's_lshl_b32 {T[0]}, {s_kh}, 13')
p(f's_add_u32 {T[0]}, {T[0]}, {L_X}')
p(f'v_add_u32 v6, {T[0]}, v4')
p(f'v_add_u32 v7, {T[0]}, v5')
for s in range(4):
    for nt in range(2):
        for rd in range(2):
            p(f'ds_read_b64_tr_b16 {vr(W2R + 8 * s + 4 * nt + 2 * rd, 2)}, v{6 + nt} offset:{s * 2048 + rd * 1024}')
    if s == 1:
        p('s_waitcnt lgkmcnt(4)')
R.lg.reset()
signal(R, C_END, 'v246', 'v247')
R.stamp('P4end')
R.dstamp('P4', 'epi')
ACC5, W2B, H1F, B2R = 48, 80, 136, 200
NWB = 7
NRING = 16
p(f's_mul_i32 {T[0]}, {s_kh}, {11 * 2048}')
p(f'v_add_u32 v6, {T[0]}, v4')
p(f'v_add_u32 v7, {T[0]}, v5')
p('v_add_u32 v6, 0x10000, v6')
p('v_add_u32 v7, 0x10000, v7')
p('v_add_u32 v12, 0x10000, v6')
p('v_add_u32 v13, 0x10000, v7')
p(f's_lshl_b32 {T[0]}, {s_kh}, 11')
p(f'v_add_u32 v4, {T[0]}, v4')
p(f'v_add_u32 v5, {T[0]}, v5')
p('v_add_u32 v14, 0x10000, v4')
p('v_add_u32 v15, 0x10000, v5')
for i in range(4, 15):
    assert w2_pos[42 + KORD[i]] - w2_rd_pos(i) == 11 * 2048
for i in range(15, 44):
    assert w2_pos[42 + KORD[i]] - w2_rd_pos(i) == 2048


def w2_reads(i, defer=None):
    b = W2B + 8 * (i % NWB)
    for nt in (1, 0):
        if i < 15:
            bases = [None, 'v6' if nt == 0 else 'v7', 'v12' if nt == 0 else 'v13']
        else:
            bases = ['v4' if nt == 0 else 'v5', 'v14' if nt == 0 else 'v15']
        for rd in range(2):
            f = (lambda nt=nt, rd=rd, bases=bases: dsr(R, 'ds_read_b64_tr_b16', vr(b + 4 * nt + 2 * rd, 2), bases, w2_rd_pos(i) + rd * 1024, ('w2', i)))
            if defer is not None and nt == 0 and rd == 1:
                defer.append(f)
            else:
                f()


p('s_waitcnt lgkmcnt(0)')
R.lg.reset()
flag_store(R, T[3], 'v10', 'v11')
R.stamp('H1flag')
R.dstamp('P4', 'H1flag')
R.dstamp('P5', 'H1flag')
p('v_and_b32 v10, 7, v1')
p(f's_add_u32 {T[0]}, {s_kh}, 6')
p(f'v_min_u32 v10, {T[0]}, v10')
p('v_lshlrev_b32 v10, 2, v10')
p(f's_lshl_b32 {T[1]}, {s_tile}, 7')
p(f's_mul_i32 {T[0]}, {s_kh}, 28')
p(f's_add_u32 {T[1]}, {T[1]}, {T[0]}')
p(f's_add_u32 {T[1]}, {T[1]}, {FH1}')
p(f'v_add_u32 v10, {T[1]}, v10')
p(f's_lshl_b32 {T[1]}, {s_rb}, 18')
p(f's_mul_i32 {T[2]}, {s_kh}, {7 * 16384}')
p(f's_add_u32 {T[1]}, {T[1]}, {T[2]}')
p(f's_and_b32 {T[2]}, {s_tile}, 3')
p(f's_lshl_b32 {T[2]}, {T[2]}, 12')
p(f's_add_u32 {T[1]}, {T[1]}, {T[2]}')
p(f's_lshl_b32 {T[3]}, {s_tile}, 16')
p(f's_mul_i32 {T[2]}, {s_kh}, {7 * 4096}')
p(f's_add_u32 {T[3]}, {T[3]}, {T[2]}')
for g in range(4):
    for k in range(2):
        a = ACC5 + 4 * g + 2 * k
        p(f'v_lshlrev_b32 v{a}, 16, v{HRES + 2 * g + k}')
        p(f'v_and_b32 v{a + 1}, 0xffff0000, v{HRES + 2 * g + k}')
        p(f'v_lshlrev_b32 v{ACC5 + 16}, 16, v{B2R + 2 * g + k}')
        p(f'v_and_b32 v{ACC5 + 17}, 0xffff0000, v{B2R + 2 * g + k}')
        p(f'v_add_f32 v{a}, v{a}, v{ACC5 + 16}')
        p(f'v_add_f32 v{a + 1}, v{a + 1}, v{ACC5 + 17}')
poll(R, 'v10', 'v11')
R.stamp('H1poll')
R.dstamp('P5', 'H1poll')


def h1_load(i):
    c, f = divmod(KORD[i], 6)
    if f == 4:
        p(f's_add_u32 {T[2]}, {T[1]}, {AREA + c * 16384}')
    if f == 0:
        p(f's_add_u32 {T[2]}, {T[3]}, {H1B + c * 4096}')
    if i == 42:
        p(f's_cmp_eq_u32 {s_kh}, 0')
        p(f's_cselect_b32 {T[2]}, {0x7ff00000}, {T[2]}')
    p(f'buffer_load_dwordx4 {vr(H1F + 4 * (i % NRING), 4)}, v2, {sWS}, {T[2]} offen offset:{(f % 4) * 1024} sc1')
    R.vm.issue(('h1', i))


AH = OPT['ah1']
NS = 44
for i in range(AH):
    h1_load(i)
lwait(R, H_P1, 'v246', 'v10')
w2_reads(4)
w2_reads(5)
seq5 = [(i, nt) for i in range(NS - TAILN) for nt in (1, 0)] + [(i, 1) for i in range(NS - TAILN, NS)] + [(i, 0) for i in range(NS - TAILN, NS)]
nw, nl = 6, AH
dfr = []
last_use = {i: k for k, (i, nt) in enumerate(seq5)}
first_use = {i: k for k, (i, nt) in reversed(list(enumerate(seq5)))}
for k, (i, nt) in enumerate(seq5):
    if k == 20:
        p(f'ds_read_b32 v10, v246 offset:{H_LATE}')
        R.lg.issue(H_LATE)
    if k == 25:
        R.dstamp('P5', 'preL')
        lwait(R, H_LATE, 'v246', 'v10', early=True)
        R.dstamp('P5', 'late')
    if k == 44:
        R.bar()
        xchg_addrs(L_HI)
    R.vm.wait([('h1', i)])
    if k in (0, 56):
        R.dstamp('P5', f'h1_{i}')
    if i >= 4:
        R.lg.wait([('w2', i)])
    b = W2R + 8 * i if i < 4 else W2B + 8 * (i % NWB)
    p(f'v_mfma_f32_32x32x16_bf16 {vr(ACC5 + 16 * nt, 16)}, {vr(b + 4 * nt, 4)}, {vr(H1F + 4 * (i % NRING), 4)}, {"0" if i == 0 and nt == 1 else vr(ACC5 + 16 * nt, 16)}')
    if k >= 8 and nw < NS and (k % 2 == 0 or k >= 2 * (NS - TAILN) - 6) and (nw < 15 or k >= 25):
        assert last_use.get(nw - NWB, -1) <= k and first_use[nw] > k + 1, (nw, k)
        for f in dfr:
            f()
        dfr = []
        w2_reads(nw, dfr if OPT['pack'] and k < 2 * (NS - TAILN) - 6 else None)
        nw += 1
    elif dfr:
        dfr.pop()()
    if k % 2 == 1 and nl < NS:
        assert last_use.get(nl - NRING, -1) <= k
        h1_load(nl)
        nl += 1
    g = k - (len(seq5) - 4)
    if g >= 0:
        R.lg.room(1)
        p(f'ds_write_b128 v10, {vr(ACC5 + 16 + 4 * g, 4)} offset:{g * 1024}')
assert nw == NS and nl == NS
R.dstamp('P5', 'loop')
xchg_finish(R, ACC5, 16)
R.stamp('B13')
R.dstamp('P5', 'B13')
for r in range(8):
    p(f'v_cvt_pk_bf16_f32 v{32 + r}, v{16 + 2 * r}, v{16 + 2 * r + 1}')
p('v_lshrrev_b32 v10, 5, v1')
p('v_lshl_add_u32 v9, v10, 3, v9')
for q in range(2):
    p(f'v_permlane32_swap_b32 v{32 + 4 * q}, v{32 + 4 * q + 2}')
    p(f'v_permlane32_swap_b32 v{32 + 4 * q + 1}, v{32 + 4 * q + 3}')
    p(f'buffer_store_dwordx4 {vr(32 + 4 * q, 4)}, v9, {sOUT}, 0 offen offset:{32 * q}' + {0: '', 1: ' nt', 2: ' sc1'}[OPT.get('osm', 0)])
if OPT.get('x_rt') or OPT.get('x_cy'):
    p.label('L_cal')
    p('s_memrealtime s[90:91]' if OPT.get('x_rt') else 's_memtime s[90:91]')
    p('s_waitcnt lgkmcnt(0)')
    p('s_sub_u32 s90, s90, s86')
    p(f's_cmp_lt_u32 s90, {OPT.get("x_rt") or OPT.get("x_cy")}')
    p('s_cbranch_scc1 L_cal')
dump_stamps(R)
p('s_endpgm')
while tail:
    tail.pop(0)()
tail = []

assert CW.nbar == HW.nbar + 2, (CW.nbar, HW.nbar)
p.label('L_codeend')

p.fix_hazards()

hdr = open(os.path.join(os.path.dirname(os.path.abspath(__file__)), '..', 'cdna_kernels', NAME + '.s.ref')).read().split('\n')
top = [l for l in hdr if l.startswith(';') and '@launch' not in l and 'Override' not in l and 'grid=ceil' not in l]
out = '\n'.join(top) + '\n'
out += f'; @launch grid=(256,1,1) block=(512,1,1) lds={LDS_BYTES}\n'
out += f'''.amdgcn_target "amdgcn-amd-amdhsa--gfx950"
.text
.globl {KNAME}
.p2align 8
.type {KNAME},@function
'''
out += p.text()
out += f'''.section .rodata,"a"
.p2align 6
.amdhsa_kernel {KNAME}
  .amdhsa_next_free_vgpr 256
  .amdhsa_next_free_sgpr 102
  .amdhsa_accum_offset 256
  .amdhsa_group_segment_fixed_size 0
  .amdhsa_kernarg_size 88
  .amdhsa_user_sgpr_count 2
  .amdhsa_user_sgpr_kernarg_segment_ptr 1
  .amdhsa_system_sgpr_workgroup_id_x 1
.end_amdhsa_kernel
'''
open(sys.argv[1], 'w').write(out)
if OPT['stamps']:
    import json
    json.dump(STAMPS, open(sys.argv[1] + '.stamps.json', 'w'))
print('instructions:', sum(1 for x in p.ins if x.kind not in ('label', 'dir')), 'maxv', p.maxreg('v'), 'maxs', p.maxreg('s'), 'barriers', CW.nbar)
```
